```python
import torch

def _softmax(x, axis=-1):
    return torch.softmax(x, dim=axis)
def _gelu(x):
    return torch.nn.functional.gelu(x, approximate="tanh")
def _silu(x):
    return torch.nn.functional.silu(x)
def _sigmoid(x):
    return torch.sigmoid(x)
def _layernorm(x, axis=-1, eps=1e-5):
    m = x.mean(dim=axis, keepdim=True)
    v = x.var(dim=axis, keepdim=True, unbiased=False)
    return (x - m) / torch.sqrt(v + eps)
def _scatter_add(tgt, idx, src, axis=0):
    return tgt.clone().index_add_(axis, idx, src)
def _segment_sum(src, seg, n):
    out = torch.zeros((n,) + src.shape[1:], dtype=src.dtype)
    return out.index_add_(0, seg, src)
def _pad(x, pw):
    flat = tuple(v for pair in reversed(pw) for v in pair)
    return torch.nn.functional.pad(x, flat)

kernel_name = 'parallel_sum__ssm_conv_s5__dense_activation_silu__prompt'

def setup_inputs():

    _w = (lambda a: (lambda t: t.to(torch.bfloat16) if t.is_floating_point() else t)(torch.as_tensor(a)))
    def _A_setup():
        B, S, D = 1, 2048, 512
        P = D
        Lambda_re = -0.5 * (lambda _x: torch.exp(torch.as_tensor(_x)))((lambda *s: torch.randn(*s, dtype=torch.bfloat16) * 0.2)(P))
        Lambda_im = (lambda *s: torch.randn(*s, dtype=torch.bfloat16) * 0.8)(P) * 1.0
        B_re = (lambda *s: torch.randn(*s, dtype=torch.bfloat16) * 0.2)(P, D) * (D ** -0.5)
        B_im = (lambda *s: torch.randn(*s, dtype=torch.bfloat16) * 0.2)(P, D) * (D ** -0.5)
        C_re = (lambda *s: torch.randn(*s, dtype=torch.bfloat16) * 0.2)(D, P) * (P ** -0.5)
        C_im = (lambda *s: torch.randn(*s, dtype=torch.bfloat16) * 0.2)(D, P) * (P ** -0.5)
        log_dt = (lambda *s: torch.randn(*s, dtype=torch.bfloat16) * 0.2)(P) * 0.3 - 2.0
        Dskip = (lambda *s: torch.randn(*s, dtype=torch.bfloat16) * 0.05)(D)
        return {
            "x": _w((lambda *s: torch.randn(*s, dtype=torch.bfloat16) * 0.05)(B, S, D)),
            "Lambda_re": _w(Lambda_re),
            "Lambda_im": _w(Lambda_im),
            "B_re": _w(B_re),
            "B_im": _w(B_im),
            "C_re": _w(C_re),
            "C_im": _w(C_im),
            "log_dt": _w(log_dt),
            "Dskip": _w(Dskip),
        }
    _A_in = _A_setup()

    def _B_setup():
        B, S, D, F = 1, 2048, 512, 1376
        return {
            "x": _w((lambda *s: torch.randn(*s, dtype=torch.bfloat16) * 0.05)(B, S, D)),
            "w1": _w((lambda *s: torch.randn(*s, dtype=torch.bfloat16) * 0.8)(D, F) * (D ** -0.5)),
            "w2": _w((lambda *s: torch.randn(*s, dtype=torch.bfloat16) * 0.2)(F, D) * (F ** -0.5)),
        }
    _B_in = _B_setup()

    return {
        "A_x": _A_in["x"],
        "A_Lambda_re": _A_in["Lambda_re"],
        "A_Lambda_im": _A_in["Lambda_im"],
        "A_B_re": _A_in["B_re"],
        "A_B_im": _A_in["B_im"],
        "A_C_re": _A_in["C_re"],
        "A_C_im": _A_in["C_im"],
        "A_log_dt": _A_in["log_dt"],
        "A_Dskip": _A_in["Dskip"],
        "B_x": _B_in["x"],
        "B_w1": _B_in["w1"],
        "B_w2": _B_in["w2"],
    }

def reference(A_x, A_Lambda_re, A_Lambda_im, A_B_re, A_B_im, A_C_re, A_C_im, A_log_dt, A_Dskip, B_x, B_w1, B_w2):
    def _A_ref(x, Lambda_re, Lambda_im, B_re, B_im, C_re, C_im, log_dt, Dskip):
        Bsz, L, H = x.shape
        Lam = Lambda_re + 1j * Lambda_im
        Bmat = B_re + 1j * B_im
        Cmat = C_re + 1j * C_im
        dt = torch.exp(log_dt)
        Lam_bar = torch.exp(dt * Lam)
        B_bar = ((Lam_bar - 1.0) / Lam)[:, None] * Bmat
        Bu = torch.einsum("bld,pd->blp", x + 0j, B_bar)
        h = torch.zeros_like(Bu[:, 0, :])
        hs = []
        for t in range(L):
            h = Lam_bar[None, :] * h + Bu[:, t, :]
            hs.append(h)
        hseq = torch.stack(hs, 1)
        y = 2.0 * torch.einsum("blp,dp->bld", hseq, Cmat).real + x * Dskip[None, None, :]
        return y

    def _B_ref(x, w1, w2):
        h = torch.einsum("bsd,df->bsf", x, w1)
        h = _silu(h)
        out = torch.einsum("bsf,fd->bsd", h, w2)
        return out

    x = A_x
    xn = _layernorm(x, axis=-1)
    return x + _A_ref(xn, A_Lambda_re, A_Lambda_im, A_B_re, A_B_im, A_C_re, A_C_im, A_log_dt, A_Dskip) + _B_ref(xn, B_w1, B_w2)
```

```python
import sys, json

NAME = "parallel_sum__ssm_conv_s5__dense_activation_silu__prompt"

class G:
    def __init__(self):
        self.L = []
        self.nlab = 0
    def __call__(self, s):
        for ln in s.strip("\n").split("\n"):
            ln = ln.strip()
            if ln: self.L.append("    " + ln if not ln.endswith(":") else ln)
    def c(self, s): self.L.append("    ; " + s)
    def lab(self, p="L"):
        self.nlab += 1
        return f"{p}_{self.nlab}"
    def text(self): return "\n".join(self.L) + "\n"

def v(a, n=1): return f"v{a}" if n == 1 else f"v[{a}:{a+n-1}]"
def s(a, n=1): return f"s{a}" if n == 1 else f"s[{a}:{a+n-1}]"

NKS = 152
WS_INTER = 0
WS_AGG   = 0xA00000
WS_FLAGF = 0xA40000
WS_FLAGS = 0xA44000
WS_STATS = 0xA50000
WS_EPOCH = 0xA60000
WS_STAMP = 0xB00000
WS_BYTES = 0xC00000
SLOT = 24576
W1B  = 2 * SLOT
MISC = 6 * SLOT
L_RS, L_NM, L_CSS, L_CNT = MISC, MISC + 512, MISC + 1024, MISC + 1536
L_LBP = MISC + 2048
L_CSF = MISC + 4096
L_TR  = MISC + 8192
L_SEG = L_TR + 3 * 2048
LDS_BYTES = MISC + 16384
C_S1, C_S2, C_W0, C_CSF, C_W1D, C_FD = 0, 4, 8, 24, 28, 32

S_WAVE, S_WI, S_MT, S_G, S_RT, S_NT, S_C0, S_TAG = 3, 4, 5, 6, 7, 8, 9, 10
S_T0, S_T1, S_T2, S_T3, S_T4 = 11, 12, 13, 14, 15
P_X, P_LRE, P_LIM, P_BRE, P_BIM, P_CRE, P_CIM, P_LDT = 16, 18, 20, 22, 24, 26, 28, 30
P_DSK, P_BX, P_W1, P_W2, P_OUT, P_DBG, P_WS = 32, 34, 36, 38, 40, 42, 44
R_X, R_A, R_B, R_W2, R_WS, R_OUT = 48, 52, 56, 60, 64, 68
S_ONES, S_XO, S_BO, S_WO, S_SPIN = 72, 73, 74, 75, 76
S_U0, S_U1, S_U2, S_U3 = 77, 78, 79, 80
S_EX = 82
S_MK = 84
S_ST = 86

def srd(g, r, p, nbytes):
    g(f"""s_mov_b32 {s(r)}, {s(p)}
          s_mov_b32 {s(r+1)}, {s(p+1)}
          s_mov_b32 {s(r+2)}, {hex(nbytes)}
          s_mov_b32 {s(r+3)}, 0x20000""")

class Gen:
    def __init__(self, opt):
        self.o = opt
        self.g = G()
        self.nst = 0

    def stamp(self, i):
        if not self.o.get("stamps"): return
        g = self.g
        g(f"""s_memtime s[100:101]
              s_waitcnt lgkmcnt(0)
              s_mov_b32 {s(S_ST+i)}, s100""")

    def stamps_out(self, vt):
        if not self.o.get("stamps"): return
        g = self.g
        g(f"s_waitcnt vmcnt(0)")
        g(f"""s_memrealtime s[100:101]
              s_waitcnt lgkmcnt(0)
              s_mov_b32 {s(S_ST+13)}, s100""")
        g(f"""s_lshl_b32 {s(S_T0)}, s2, 3
              s_add_u32 {s(S_T0)}, {s(S_T0)}, {s(S_WAVE)}
              s_lshl_b32 {s(S_T0)}, {s(S_T0)}, 6
              s_add_u32 {s(S_T0)}, {s(S_T0)}, {hex(WS_STAMP)}
              v_mov_b32 {v(vt)}, 0""")
        for i in range(14):
            g(f"""v_mov_b32 {v(vt+1)}, {s(S_ST+i)}
                  buffer_store_dword {v(vt+1)}, {v(vt)}, {s(R_WS,4)}, {s(S_T0)} offen offset:{4*i}
                  s_nop 1""")

    def spin_cnt(self, cnt, vaddr_cnt, vt, reads=""):
        g = self.g
        l = g.lab("SPIN"); d = g.lab("SPD")
        g(f"s_mov_b32 {s(S_SPIN)}, 0x100000")
        g(f"{l}:")
        g(f"ds_read_b32 {v(vt)}, {v(vaddr_cnt)} offset:{cnt}")
        if reads: g(reads)
        g(f"""s_waitcnt lgkmcnt(0)
              v_readfirstlane_b32 {s(S_U3)}, {v(vt)}
              s_sub_u32 {s(S_SPIN)}, {s(S_SPIN)}, 1
              s_cbranch_scc1 {d}
              s_cmp_lg_u32 {s(S_U3)}, 4
              s_cbranch_scc1 {l}""")
        g(f"{d}:")

    def signal_cnt(self, cnt, vaddr_cnt, vone):
        g = self.g
        g(f"""s_mov_b64 exec, 1
              ds_add_u32 {v(vaddr_cnt)}, {v(vone)} offset:{cnt}
              s_mov_b64 exec, -1""")

    def cmul(self, dr, di, ar, ai, br, bi):
        self.g(f"""v_mul_f32 {v(dr)}, {v(ar)}, {v(br)}
                   v_mul_f32 {v(di)}, {v(ar)}, {v(bi)}
                   v_fma_f32 {v(dr)}, -{v(ai)}, {v(bi)}, {v(dr)}
                   v_fmac_f32 {v(di)}, {v(ai)}, {v(br)}""")

    def cfma(self, dr, di, ar, ai, br, bi, cr, ci):
        self.g(f"""v_fma_f32 {v(dr)}, {v(ar)}, {v(br)}, {v(cr)}
                   v_fma_f32 {v(di)}, {v(ar)}, {v(bi)}, {v(ci)}
                   v_fma_f32 {v(dr)}, -{v(ai)}, {v(bi)}, {v(dr)}
                   v_fmac_f32 {v(di)}, {v(ai)}, {v(br)}""")

    def poll_flags(self, base, vaddr, vt):
        g = self.g
        l = g.lab("POLL"); d = g.lab("PLD")
        g(f"""s_lshl_b32 {s(S_U0)}, {s(S_RT)}, 2
              s_add_u32 {s(S_U0)}, {s(S_U0)}, {s(S_WI)}
              s_lshl_b32 {s(S_U0)}, {s(S_U0)}, 7
              s_add_u32 {s(S_U0)}, {s(S_U0)}, {hex(base)}
              s_mov_b32 {s(S_SPIN)}, 0x40000
              s_mov_b64 exec, 0xff""")
        g(f"{l}:")
        g(f"""buffer_load_dword {v(vt)}, {v(vaddr)}, {s(R_WS,4)}, {s(S_U0)} offen sc1
              s_waitcnt vmcnt(0)
              v_cmp_ne_u32 vcc, {s(S_TAG)}, {v(vt)}
              s_sub_u32 {s(S_SPIN)}, {s(S_SPIN)}, 1
              s_cbranch_scc1 {d}
              s_cmp_eq_u64 vcc, 0
              s_cbranch_scc1 {d}
              s_sleep {self.o.get('poll_sleep', 2)}
              s_branch {l}""")
        g(f"{d}:")
        g("s_mov_b64 exec, -1")

    def set_flag(self, base, vz, vt):
        g = self.g
        g(f"""s_lshl_b32 {s(S_U0)}, {s(S_MT)}, 1
              s_lshr_b32 {s(S_U1)}, {s(S_WI)}, 1
              s_add_u32 {s(S_U0)}, {s(S_U0)}, {s(S_U1)}
              s_lshl_b32 {s(S_U0)}, {s(S_U0)}, 2
              s_lshr_b32 {s(S_U1)}, {s(S_G)}, 2
              s_add_u32 {s(S_U0)}, {s(S_U0)}, {s(S_U1)}
              s_lshl_b32 {s(S_U0)}, {s(S_U0)}, 7
              s_and_b32 {s(S_U1)}, {s(S_WI)}, 1
              s_lshl_b32 {s(S_U1)}, {s(S_U1)}, 4
              s_add_u32 {s(S_U0)}, {s(S_U0)}, {s(S_U1)}
              s_and_b32 {s(S_U1)}, {s(S_G)}, 3
              s_lshl_b32 {s(S_U1)}, {s(S_U1)}, 2
              s_add_u32 {s(S_U0)}, {s(S_U0)}, {s(S_U1)}
              s_add_u32 {s(S_U0)}, {s(S_U0)}, {hex(base)}
              v_mov_b32 {v(vt)}, {s(S_TAG)}
              s_waitcnt vmcnt(0)
              s_mov_b64 exec, 1
              buffer_store_dword {v(vt)}, {v(vz)}, {s(R_WS,4)}, {s(S_U0)} offen sc1
              s_mov_b64 exec, -1""")

    def prologue(self):
        g = self.g
        g(f"""s_cmp_ge_u32 s2, 256
              s_cbranch_scc1 L_END
              s_load_dwordx16 s[16:31], s[0:1], 0
              s_load_dwordx8 s[32:39], s[0:1], 64
              s_load_dwordx4 s[40:43], s[0:1], 96
              s_load_dwordx2 s[44:45], s[0:1], 112""")
        if self.o.get("stamps"):
            g(f"""s_memrealtime s[100:101]
                  s_waitcnt lgkmcnt(0)
                  s_mov_b32 {s(S_ST+12)}, s100""")
            for i in range(12): g(f"s_mov_b32 {s(S_ST+i)}, 0")
            self.stamp(0)
        g(f"""v_lshrrev_b32 v1, 6, v0
              v_and_b32 v0, 63, v0
              s_and_b32 {s(S_T0)}, s2, 7
              v_readfirstlane_b32 {s(S_WAVE)}, v1
              s_lshr_b32 {s(S_T1)}, s2, 3
              s_and_b32 {s(S_T2)}, {s(S_T1)}, 3
              s_lshr_b32 {s(S_NT)}, {s(S_T1)}, 2
              s_lshr_b32 {s(S_T3)}, {s(S_T0)}, 1
              s_lshl_b32 {s(S_MT)}, {s(S_T3)}, 2
              s_add_u32 {s(S_MT)}, {s(S_MT)}, {s(S_T2)}
              s_and_b32 {s(S_T4)}, {s(S_T0)}, 1
              s_lshl_b32 {s(S_G)}, {s(S_T4)}, 3
              s_add_u32 {s(S_G)}, {s(S_G)}, {s(S_NT)}
              s_lshl_b32 {s(S_RT)}, {s(S_T0)}, 2
              s_add_u32 {s(S_RT)}, {s(S_RT)}, {s(S_T2)}
              s_lshl_b32 {s(S_C0)}, {s(S_T4)}, 1
              s_add_u32 {s(S_C0)}, {s(S_C0)}, {s(S_T3)}
              s_lshl_b32 {s(S_C0)}, {s(S_C0)}, 1
              s_and_b32 {s(S_C0)}, {s(S_C0)}, 7
              s_and_b32 {s(S_WI)}, {s(S_WAVE)}, 3
              s_cmp_ge_u32 {s(S_WAVE)}, 4
              s_cbranch_scc0 L_SWAVE""")

    def epoch(self):
        g = self.g
        g(f"""s_add_u32 {s(S_EX)}, {s(P_WS)}, {hex(WS_EPOCH)}
              s_addc_u32 {s(S_EX+1)}, {s(P_WS+1)}, 0
              s_load_dword {s(S_TAG)}, {s(S_EX,2)}, 0""")
    def epoch_fin(self):
        self.g(f"""s_mul_i32 {s(S_TAG)}, {s(S_TAG)}, 0x9E3779B1
                   s_add_u32 {s(S_TAG)}, {s(S_TAG)}, 0x7F4A7C15""")

    def frag_pat(self, P, t0, t1, xor_wi):
        g = self.g
        g(f"""v_and_b32 {v(t0)}, 31, v0
              v_lshrrev_b32 {v(t1)}, 1, v0
              v_and_b32 {v(t1)}, 7, {v(t1)}
              v_lshrrev_b32 {v(P)}, 5, v0
              v_xor_b32 {v(t1)}, {v(t1)}, {v(P)}
              v_lshlrev_b32 {v(t1)}, 4, {v(t1)}
              v_lshl_or_b32 {v(P)}, {v(t0)}, 7, {v(t1)}""")
        if xor_wi:
            g(f"""s_lshl_b32 {s(S_U0)}, {s(S_WI)}, 5
                  v_xor_b32 {v(P)}, {s(S_U0)}, {v(P)}""")
        for k in (1, 2, 3):
            g(f"v_xor_b32 {v(P+k)}, {32*k}, {v(P)}")

    def lane8_pat(self, d, t0, t1):
        self.g(f"""v_lshrrev_b32 {v(t0)}, 3, v0
                   v_and_b32 {v(d)}, 7, v0
                   v_lshrrev_b32 {v(t1)}, 4, v0
                   v_xor_b32 {v(d)}, {v(d)}, {v(t1)}
                   v_lshlrev_b32 {v(d)}, 4, {v(d)}""")

    def fwave(self):
        g = self.g; o = self.o
        X = 128
        ACC = 80
        WF = 48
        VX, VB, VW = 2, 6, 8
        P, PB = 12, 16
        SX, SQ, CA, CB = 17, 18, 19, 20
        BT = 24
        T = 32
        WA = 12
        VCNT, VONE, VZ = 21, 22, 23
        NM, RS, NRS = 44, 11, 1
        CS = 17

        g.c("---------------- F wave: stage A loader ----------------")
        self.lane8_pat(T, T+1, T+2)
        g(f"""v_lshrrev_b32 {v(T+2)}, 2, {v(T+1)}
              v_lshlrev_b32 {v(T+2)}, 4, {v(T+2)}
              v_and_b32 {v(T+3)}, 3, {v(T+1)}
              v_add_u32 {v(T+2)}, {v(T+2)}, {v(T+3)}
              v_lshl_or_b32 {v(VX)}, {v(T+2)}, 10, {v(T)}
              v_add_u32 {v(VX+1)}, 3072, {v(VX)}
              v_xor_b32 {v(VX+1)}, 64, {v(VX+1)}
              v_add_u32 {v(VX+2)}, 6144, {v(VX)}
              v_add_u32 {v(VX+3)}, 6144, {v(VX+1)}
              v_lshl_or_b32 {v(VB)}, {v(T+1)}, 10, {v(T)}
              v_add_u32 {v(VB+1)}, 7168, {v(VB)}
              v_xor_b32 {v(VB+1)}, 64, {v(VB+1)}
              s_lshl_b32 {s(S_XO)}, {s(S_MT)}, 17
              s_lshl_b32 {s(S_T0)}, {s(S_WI)}, 15
              s_add_u32 {s(S_XO)}, {s(S_XO)}, {s(S_T0)}
              s_lshl_b32 {s(S_BO)}, {s(S_G)}, 15
              s_and_b32 {s(S_T0)}, {s(S_WI)}, 1
              s_lshl_b32 {s(S_T0)}, {s(S_T0)}, 14
              s_add_u32 {s(S_BO)}, {s(S_BO)}, {s(S_T0)}
              s_lshl_b32 {s(S_T3)}, {s(S_WI)}, 12
              s_lshl_b32 {s(S_T4)}, {s(S_WI)}, 11
              s_add_u32 {s(S_T4)}, {s(S_T4)}, 16384
              s_waitcnt lgkmcnt(0)""")
        srd(g, R_X, P_X, 2048 * 512 * 2)
        g(f"""s_cmp_ge_u32 {s(S_WI)}, 2
              s_cselect_b32 {s(R_A)}, {s(P_BIM)}, {s(P_BRE)}
              s_cselect_b32 {s(R_A+1)}, {s(P_BIM+1)}, {s(P_BRE+1)}
              s_mov_b32 {s(R_A+2)}, {hex(512*512*2)}
              s_mov_b32 {s(R_A+3)}, 0x20000""")

        def issue_x(c):
            slot = (c % 6) * SLOT
            g(f"""s_add_u32 {s(S_U0)}, {s(S_C0)}, {c}
                  s_and_b32 {s(S_U0)}, {s(S_U0)}, 7
                  s_lshl_b32 {s(S_U0)}, {s(S_U0)}, 7
                  s_add_u32 m0, {s(S_T3)}, {slot}
                  s_add_u32 {s(S_U1)}, {s(S_U0)}, {s(S_XO)}""")
            for e in range(4):
                g(f"buffer_load_dwordx4 {v(VX+e)}, {s(R_X,4)}, {s(S_U1)} offen offset:{1024*e} lds")
            g(f"""s_add_u32 m0, {s(S_T4)}, {slot}
                  s_add_u32 {s(S_U1)}, {s(S_U0)}, {s(S_BO)}""")
            for e in range(2):
                g(f"buffer_load_dwordx4 {v(VB+e)}, {s(R_A,4)}, {s(S_U1)} offen offset:{1024*e} lds")

        def issue_w(j):
            g(f"""s_add_u32 {s(S_U0)}, {s(S_C0)}, {j}
                  s_and_b32 {s(S_U0)}, {s(S_U0)}, 7
                  s_mul_i32 {s(S_U0)}, {s(S_U0)}, {64*2752}
                  s_add_u32 m0, {s(S_T2)}, {W1B + j*12288}
                  s_add_u32 {s(S_U1)}, {s(S_U0)}, {s(S_WO)}""")
            for e in range(3):
                g(f"buffer_load_dwordx4 {v(VW+e)}, {s(R_B,4)}, {s(S_U1)} offen offset:{1024*e} lds")

        issue_x(0); issue_x(1)
        self.stamp(1)
        self.epoch()
        srd(g, R_B, P_W1, 512 * 1376 * 2)
        srd(g, R_W2, P_W2, 1376 * 512 * 2)
        srd(g, R_WS, P_WS, WS_BYTES)
        g(f"s_mov_b32 {s(S_T0)}, 683")
        for e in range(3):
            g(f"""v_add_u32 {v(T)}, {64*e}, v0
                  v_mul_u32_u24 {v(T+1)}, {s(S_T0)}, {v(T)}
                  v_lshrrev_b32 {v(T+1)}, 13, {v(T+1)}
                  v_mul_u32_u24 {v(T+2)}, 12, {v(T+1)}
                  v_sub_u32 {v(T+2)}, {v(T)}, {v(T+2)}
                  v_mul_u32_u24 {v(T+1)}, 2752, {v(T+1)}
                  v_lshl_add_u32 {v(VW+e)}, {v(T+2)}, 4, {v(T+1)}""")
            if e: g(f"v_subrev_u32 {v(VW+e)}, {1024*e}, {v(VW+e)}")
        g(f"""s_lshr_b32 {s(S_T0)}, {s(S_G)}, 2
              s_mul_i32 {s(S_T1)}, {s(S_T0)}, 11
              s_and_b32 {s(S_T0)}, {s(S_G)}, 3
              s_mul_i32 {s(S_T0)}, {s(S_T0)}, 3
              s_add_u32 {s(S_T1)}, {s(S_T1)}, {s(S_T0)}
              s_lshl_b32 {s(S_WO)}, {s(S_T1)}, 6
              s_mul_i32 {s(S_T0)}, {s(S_WI)}, {16*2752}
              s_add_u32 {s(S_WO)}, {s(S_WO)}, {s(S_T0)}
              s_mul_i32 {s(S_T2)}, {s(S_WI)}, 3072
              s_mov_b32 {s(S_ONES)}, 0x3f803f80""")
        self.frag_pat(P, T, T+1, True)
        for k in range(4): g(f"v_add_u32 {v(P+k)}, {s(S_T3)}, {v(P+k)}")
        g(f"""v_lshl_add_u32 {v(PB)}, v0, 4, {s(S_T4)}
              v_mov_b32 {v(SX)}, 0
              v_mov_b32 {v(SQ)}, 0
              v_mov_b32 {v(CA)}, 0
              v_mov_b32 {v(CB)}, 0
              v_mov_b32 {v(VCNT)}, {L_CNT}
              v_mov_b32 {v(VONE)}, 1
              v_mov_b32 {v(VZ)}, 0
              s_waitcnt lgkmcnt(0)""")
        self.epoch_fin()

        def stats(c):
            for k in range(16):
                r = X + 16 * c + k
                g(f"""v_dot2c_f32_bf16 {v(SX)}, {s(S_ONES)}, {v(r)}
                      v_dot2c_f32_bf16 {v(SQ)}, {v(r)}, {v(r)}""")
        def csum():
            for k in range(4):
                g(f"""v_dot2c_f32_bf16 {v(CA)}, {s(S_ONES)}, {v(BT+k)}
                      v_dot2c_f32_bf16 {v(CB)}, {s(S_ONES)}, {v(BT+4+k)}""")

        for c in range(8):
            g.c(f"chunk {c}")
            if c + 2 < 8: issue_x(c + 2)
            else: issue_w(2 * (c - 6)); issue_w(2 * (c - 6) + 1)
            if c in (3, 6):
                op = "v_add_u32" if c == 3 else "v_subrev_u32"
                for k in range(5): g(f"{op} {v(P+k)}, {3*SLOT}, {v(P+k)}")
            g("s_waitcnt vmcnt(12)\ns_barrier")
            off = (c % 3) * SLOT
            g(f"""ds_read_b128 {v(BT,4)}, {v(PB)} offset:{off}
                  ds_read_b128 {v(BT+4,4)}, {v(PB)} offset:{off+1024}""")
            for k in range(4):
                g(f"ds_read_b128 {v(X+16*c+4*k,4)}, {v(P+k)} offset:{off}")
            g("s_waitcnt lgkmcnt(4)")
            csum()
            g("s_waitcnt lgkmcnt(0)")
            stats(c)
        self.stamp(2)
        g.c("row statistics")
        g(f"""s_nop 2
              v_mov_b32 {v(T)}, {v(SX)}
              v_mov_b32 {v(T+1)}, {v(SQ)}
              v_add_f32_dpp {v(CA)}, {v(CA)}, {v(CA)} quad_perm:[1,0,3,2] row_mask:0xf bank_mask:0xf
              v_add_f32_dpp {v(CB)}, {v(CB)}, {v(CB)} quad_perm:[1,0,3,2] row_mask:0xf bank_mask:0xf
              v_permlane32_swap_b32 {v(T)}, {v(SX)}
              v_permlane32_swap_b32 {v(T+1)}, {v(SQ)}
              v_add_f32_dpp {v(CA)}, {v(CA)}, {v(CA)} quad_perm:[2,3,0,1] row_mask:0xf bank_mask:0xf
              v_add_f32_dpp {v(CB)}, {v(CB)}, {v(CB)} quad_perm:[2,3,0,1] row_mask:0xf bank_mask:0xf
              v_add_f32 {v(SX)}, {v(SX)}, {v(T)}
              v_add_f32 {v(SQ)}, {v(SQ)}, {v(T+1)}
              v_add_f32_dpp {v(CA)}, {v(CA)}, {v(CA)} row_half_mirror row_mask:0xf bank_mask:0xf
              v_add_f32_dpp {v(CB)}, {v(CB)}, {v(CB)} row_half_mirror row_mask:0xf bank_mask:0xf
              v_mul_f32 {v(SX)}, 0x3b000000, {v(SX)}
              v_mul_f32 {v(SQ)}, 0x3b000000, {v(SQ)}
              v_fma_f32 {v(SQ)}, -{v(SX)}, {v(SX)}, {v(SQ)}
              v_max_f32 {v(SQ)}, 0, {v(SQ)}
              v_cvt_pk_bf16_f32 {v(NM)}, -{v(SX)}, -{v(SX)}
              v_cvt_pk_bf16_f32 {v(T)}, {v(SQ)}, {v(SQ)}
              v_and_b32 {v(T)}, 0xffff0000, {v(T)}
              v_add_f32 {v(T)}, 0x3727c5ac, {v(T)}
              v_cvt_pk_bf16_f32 {v(T)}, {v(T)}, {v(T)}
              v_and_b32 {v(T)}, 0xffff0000, {v(T)}
              v_sqrt_f32 {v(T)}, {v(T)}
              v_and_b32 {v(T+2)}, 1, v0
              v_cvt_pk_bf16_f32 {v(T+8)}, {v(SX)}, {v(T)}
              v_and_b32 {v(T)}, 0xffff0000, {v(T+8)}
              v_rcp_f32 {v(RS)}, {v(T)}
              v_cmp_eq_u32 vcc, 1, {v(T+2)}
              v_mov_b32 {v(NM+1)}, {v(NM)}
              v_mov_b32 {v(NM+2)}, 0
              v_cndmask_b32 {v(CA)}, {v(CA)}, {v(CB)}, vcc
              v_mov_b32 {v(NM+3)}, 0""")
        def split3(src, d0, d1, t0, t1):
            g(f"""v_and_b32 {v(t0)}, 0xffff0000, {v(src)}
                  v_sub_f32 {v(t1)}, {v(src)}, {v(t0)}
                  v_and_b32 {v(d0)}, 0xffff0000, {v(t1)}
                  v_sub_f32 {v(t1)}, {v(t1)}, {v(d0)}
                  v_lshrrev_b32 {v(t0)}, 16, {v(t0)}
                  v_or_b32 {v(d0)}, {v(d0)}, {v(t0)}
                  v_lshrrev_b32 {v(d1)}, 16, {v(t1)}""")
        split3(CA, T+4, T+5, T+1, T+3)
        g(f"""v_lshrrev_b32 {v(T+1)}, 3, v0
              v_lshl_add_u32 {v(T+1)}, {v(T+2)}, 3, {v(T+1)}
              s_lshl_b32 {s(S_U0)}, {s(S_WI)}, 7
              s_add_u32 {s(S_U1)}, {s(S_U0)}, {L_CSS}
              v_lshl_add_u32 {v(T+1)}, {v(T+1)}, 3, {s(S_U1)}
              ds_write_b64 {v(T+1)}, {v(T+4,2)}
              v_and_b32 {v(T+2)}, 31, v0
              s_add_u32 {s(S_U1)}, {s(S_U0)}, {L_NM}
              v_lshl_add_u32 {v(T+3)}, {v(T+2)}, 2, {s(S_U1)}
              ds_write_b32 {v(T+3)}, {v(NM)}
              v_and_b32 {v(T+6)}, 4, v0
              v_lshlrev_b32 {v(T+6)}, 2, {v(T+6)}
              v_lshrrev_b32 {v(T+7)}, 1, {v(T+2)}
              v_and_b32 {v(T+7)}, 12, {v(T+7)}
              v_and_b32 {v(T+2)}, 3, v0
              v_or3_b32 {v(T+9)}, {v(T+6)}, {v(T+7)}, {v(T+2)}
              s_add_u32 {s(S_U1)}, {s(S_U0)}, {L_RS}
              v_lshl_add_u32 {v(T+3)}, {v(T+9)}, 2, {s(S_U1)}
              ds_write_b32 {v(T+3)}, {v(RS)}
              s_waitcnt lgkmcnt(0)
              s_barrier""")
        self.stamp(3)
        for j in range(4, 8): issue_w(j)
        lskip = g.lab("NOST")
        g(f"""s_and_b32 {s(S_U0)}, {s(S_G)}, 3
              s_cmp_lg_u32 {s(S_U0)}, 0
              s_cbranch_scc1 {lskip}
              s_lshl_b32 {s(S_U0)}, {s(S_G)}, 11
              s_lshl_b32 {s(S_U1)}, {s(S_MT)}, 9
              s_add_u32 {s(S_U0)}, {s(S_U0)}, {s(S_U1)}
              s_lshl_b32 {s(S_U1)}, {s(S_WI)}, 7
              s_add_u32 {s(S_U0)}, {s(S_U0)}, {s(S_U1)}
              s_add_u32 {s(S_U0)}, {s(S_U0)}, {hex(WS_STATS)}
              v_lshlrev_b32 {v(T+9)}, 2, {v(T+9)}
              s_mov_b32 exec_hi, 0
              buffer_store_dword {v(T+8)}, {v(T+9)}, {s(R_WS,4)}, {s(S_U0)} offen sc1
              s_mov_b64 exec, -1
              s_branch {lskip}_b""")
        g(f"{lskip}:")
        g(f"buffer_load_dword {v(T+9)}, {v(VZ)}, {s(R_X,4)}, 0 offen")
        g(f"{lskip}_b:")
        g.c("---------------- F stage: w1 GEMM ----------------")
        g(f"""v_lshrrev_b32 {v(T)}, 5, v0
              v_bfe_u32 {v(T+1)}, v0, 2, 2
              v_lshl_add_u32 {v(T)}, {v(T)}, 3, {v(T+1)}
              v_mul_u32_u24 {v(T)}, 192, {v(T)}
              v_bfe_u32 {v(T+1)}, v0, 4, 1
              v_lshl_add_u32 {v(T)}, {v(T+1)}, 5, {v(T)}
              v_and_b32 {v(T+1)}, 3, v0
              v_lshl_add_u32 {v(T)}, {v(T+1)}, 3, {v(T)}
              v_mul_f32 {v(NRS)}, 0xbfb8aa3b, {v(RS)}
              v_mov_b32 {v(CS)}, 0
              v_mov_b32 {v(CS+1)}, 0
              v_mov_b32 {v(CS+2)}, 0""")
        for k in range(4):
            g(f"""s_xor_b32 {s(S_U0)}, {s(S_WI)}, {k}
                  s_mul_i32 {s(S_U0)}, {s(S_U0)}, 3072
                  s_add_u32 {s(S_U0)}, {s(S_U0)}, {W1B}
                  v_add_u32 {v(WA+k)}, {s(S_U0)}, {v(T)}""")
        def wread(dst, j, k, tile):
            off = (j % 4) * 12288 + tile * 64
            g(f"""ds_read_b64_tr_b16 {v(dst,2)}, {v(WA+k)} offset:{off}
                  ds_read_b64_tr_b16 {v(dst+2,2)}, {v(WA+k)} offset:{off+768}""")
        first = True
        for pr in range(4):
            g.c(f"w1 pair {pr}")
            g(f"s_waitcnt vmcnt({19 - 6*pr})")
            self.signal_cnt(C_W0 + 4*pr, VCNT, VONE)
            if pr == 2:
                for k in range(4): g(f"v_add_u32 {v(WA+k)}, {4*12288}, {v(WA+k)}")
            self.spin_cnt(C_W0 + 4*pr, VCNT, T)
            steps = [(j, k) for j in (2*pr, 2*pr+1) for k in range(4)]
            def rd(idx):
                j, k = steps[idx]; b = WF + 16 * (idx & 1)
                wread(b, j, k, 0); wread(b+4, j, k, 1)
                if k == 0: wread(b+8, j, k, 2)
                return 6 if k == 0 else 4
            rd(0)
            for idx, (j, k) in enumerate(steps):
                b = WF + 16 * (idx & 1)
                n = rd(idx + 1) if idx + 1 < 8 else 0
                g(f"s_waitcnt lgkmcnt({n})")
                xr = X + 16*j + 4*k
                for t in range(2):
                    cc = "0" if first else v(ACC+16*t, 16)
                    g(f"v_mfma_f32_32x32x16_bf16 {v(ACC+16*t,16)}, {v(b+4*t,4)}, {v(xr,4)}, {cc}")
                first = False
                if k == 0:
                    for q in range(4):
                        for t in range(3):
                            g(f"v_dot2c_f32_bf16 {v(CS+t)}, {s(S_ONES)}, {v(b+4*t+q)}")
        self.stamp(4)
        g(f"""s_lshl_b32 {s(S_U0)}, {s(S_WI)}, 2
              s_add_u32 {s(S_U0)}, {s(S_U0)}, {L_CSF}
              v_lshl_add_u32 {v(T)}, v0, 4, {s(S_U0)}
              v_lshlrev_b32 {v(T+1)}, 4, v0
              v_add_u32 {v(T+1)}, {L_CSF}, {v(T+1)}""")
        for t in range(3): g(f"ds_write_b32 {v(T)}, {v(CS+t)} offset:{1024*t}")
        self.signal_cnt(C_CSF, VCNT, VONE)
        for k in range(4): g(f"v_subrev_u32 {v(WA+k)}, {4*12288}, {v(WA+k)}")
        steps = [(j, k) for j in range(8) for k in range(4)]
        def rd2(idx):
            j, k = steps[idx]
            if idx == 16:
                for kk in range(4): g(f"v_add_u32 {v(WA+kk)}, {4*12288}, {v(WA+kk)}")
            wread(WF + 4 * (idx & 3), j, k, 2)
        for i in range(3): rd2(i)
        for idx, (j, k) in enumerate(steps):
            if idx + 3 < 32: rd2(idx + 3)
            g(f"s_waitcnt lgkmcnt({2*min(3, 31-idx)})")
            cc = "0" if idx == 0 else v(ACC+32, 16)
            g(f"v_mfma_f32_32x32x16_bf16 {v(ACC+32,16)}, {v(WF+4*(idx&3),4)}, {v(X+16*j+4*k,4)}, {cc}")
        self.signal_cnt(C_W1D, VCNT, VONE)
        rds = "\n".join(f"ds_read_b128 {v(WF+16+4*t,4)}, {v(T+1)} offset:{1024*t}" for t in range(3))
        self.spin_cnt(C_CSF, VCNT, T, rds)
        for t in range(3):
            b = WF + 16 + 4*t
            g(f"""v_add_f32 {v(b)}, {v(b)}, {v(b+1)}
                  v_add_f32 {v(b+2)}, {v(b+2)}, {v(b+3)}
                  v_add_f32 {v(b+2)}, {v(b)}, {v(b+2)}""")
            split3(b+2, b, b+1, T, T+2)
            g(f"""v_mov_b32 {v(b+2)}, 0
                  v_mov_b32 {v(b+3)}, 0
                  s_nop 1
                  v_mfma_f32_32x32x16_bf16 {v(ACC+16*t,16)}, {v(b,4)}, {v(NM,4)}, {v(ACC+16*t,16)}""")
        self.stamp(5)
        g.c("SiLU + store")
        g(f"""s_lshl_b32 {s(S_U0)}, {s(S_MT)}, 2
              s_add_u32 {s(S_U0)}, {s(S_U0)}, {s(S_WI)}
              s_mul_i32 {s(S_U0)}, {s(S_U0)}, {NKS}
              s_lshl_b32 {s(S_U1)}, {s(S_T1)}, 1
              s_add_u32 {s(S_U0)}, {s(S_U0)}, {s(S_U1)}
              s_add_u32 {s(S_U0)}, {s(S_U0)}, 64
              s_lshl_b32 {s(S_U2)}, {s(S_U0)}, 10
              v_lshlrev_b32 {v(PB)}, 4, v0
              s_nop 7""")
        lsk = g.lab("NOT2")
        for t in range(3):
            a = ACC + 16*t
            if t == 2:
                g(f"""s_and_b32 {s(S_U0)}, {s(S_G)}, 3
                      s_cmp_eq_u32 {s(S_U0)}, 3
                      s_cbranch_scc1 {lsk}
                      s_add_u32 {s(S_U2)}, {s(S_U2)}, 4096""")
            for hf in range(2):
                e = WF if hf == 0 else WF + 8
                rr = range(8*hf, 8*hf + 8)
                for i, r in enumerate(rr): g(f"v_mul_f32 {v(e+i)}, {v(NRS)}, {v(a+r)}")
                for i, r in enumerate(rr): g(f"v_exp_f32 {v(e+i)}, {v(e+i)}\nv_mul_f32 {v(a+r)}, {v(RS)}, {v(a+r)}")
                for i, r in enumerate(rr): g(f"v_add_f32 {v(e+i)}, 1.0, {v(e+i)}")
                for i, r in enumerate(rr): g(f"v_rcp_f32 {v(e+i)}, {v(e+i)}")
                for i, r in enumerate(rr): g(f"v_mul_f32 {v(a+r)}, {v(a+r)}, {v(e+i)}")
                d = T + 4*hf
                for i in range(4): g(f"v_cvt_pk_bf16_f32 {v(d+i)}, {v(a+8*hf+2*i)}, {v(a+8*hf+2*i+1)}")
                g(f"buffer_store_dwordx4 {v(d,4)}, {v(PB)}, {s(R_WS,4)}, {s(S_U2)} offen offset:{((2*t+hf)&3)*1024} sc1")
        g(f"{lsk}:")
        self.stamp(6)
        self.set_flag(WS_FLAGF, VZ, T+8)
        self.stamp(7)

        g.c("---------------- F phase 2 ----------------")
        A2 = 176
        BR = 96
        AB = 48
        BTm = 240
        VD = 2
        WB = 6
        VA = 8
        NR = 10
        g(f"""v_lshrrev_b32 {v(T)}, 3, v0
              v_and_b32 {v(T+1)}, 7, v0
              v_bfe_u32 {v(T+2)}, v0, 4, 1
              v_lshlrev_b32 {v(T+2)}, 2, {v(T+2)}
              v_xor_b32 {v(T+1)}, {v(T+1)}, {v(T+2)}
              v_lshlrev_b32 {v(T+1)}, 4, {v(T+1)}
              v_lshl_or_b32 {v(VD)}, {v(T)}, 10, {v(T+1)}
              v_add_u32 {v(VD+1)}, 7168, {v(VD)}
              v_add_u32 {v(VD+2)}, {2*7168}, {v(VD)}
              v_add_u32 {v(VD+3)}, {3*7168}, {v(VD)}
              s_mul_i32 {s(S_WO)}, {s(S_WI)}, {352*1024}
              s_lshl_b32 {s(S_U0)}, {s(S_NT)}, 7
              s_add_u32 {s(S_WO)}, {s(S_WO)}, {s(S_U0)}
              s_mul_i32 {s(S_T2)}, {s(S_WI)}, {SLOT}
              s_add_u32 {s(S_T2)}, {s(S_T2)}, {W1B}""")
        g(f"""v_lshrrev_b32 {v(T)}, 5, v0
              v_bfe_u32 {v(T+1)}, v0, 2, 2
              v_lshl_add_u32 {v(T)}, {v(T)}, 2, {v(T+1)}
              v_lshlrev_b32 {v(T)}, 7, {v(T)}
              v_bfe_u32 {v(T+1)}, v0, 3, 1
              s_and_b32 {s(S_U0)}, {s(S_WI)}, 1
              v_xor_b32 {v(T+1)}, {s(S_U0)}, {v(T+1)}
              v_lshl_add_u32 {v(T)}, {v(T+1)}, 6, {v(T)}
              v_bfe_u32 {v(T+1)}, v0, 4, 1
              v_lshl_add_u32 {v(T)}, {v(T+1)}, 5, {v(T)}
              v_and_b32 {v(T+1)}, 3, v0
              v_lshl_add_u32 {v(T)}, {v(T+1)}, 3, {v(T)}
              v_add_u32 {v(WB)}, {s(S_T2)}, {v(T)}
              v_xor_b32 {v(WB+1)}, 64, {v(WB)}""")
        self.spin_cnt(C_W1D, VCNT, T)
        def issue_w2(ks0, n, lds0):
            for i in range(0, n, 2):
                g(f"""s_add_u32 m0, {s(S_T2)}, {lds0 + i*2048}
                      s_add_u32 {s(S_U1)}, {s(S_WO)}, {(ks0+i)*16384}""")
                for e in range(4):
                    g(f"buffer_load_dwordx4 {v(VD+e)}, {s(R_W2,4)}, {s(S_U1)} offen offset:{1024*e} lds")
        def bread(dst, lks):
            for ct in range(2):
                for u in range(2):
                    g(f"ds_read_b64_tr_b16 {v(dst+4*ct+2*u,2)}, {v(WB+ct)} offset:{lks*2048+u*1024}")
        issue_w2(0, NR, 0)
        g("s_waitcnt vmcnt(0)")
        for ks in range(NR):
            bread(BR + 8*ks, ks)
            if ks % 3 == 2: g("s_waitcnt lgkmcnt(0)")
        g("s_waitcnt lgkmcnt(0)")
        issue_w2(NR, 22 - NR, 0)
        self.a_setup(VA, 64, 22, T)
        g(f"v_and_b32 {v(T+1)}, 7, v0\nv_lshlrev_b32 {v(T+1)}, 2, {v(T+1)}")
        self.stamp(8)
        self.poll_flags(WS_FLAGF, T+1, T)
        self.stamp(9)
        def bsrc(ks):
            return BR + 8*ks if ks < NR else BTm + 8*(ks & 1)
        def pre(ks):
            if ks + 1 >= NR and ks + 1 < 22: bread(BTm + 8*((ks+1) & 1), ks + 1 - NR)
            if ks >= NR: g(f"s_waitcnt lgkmcnt({4 if ks + 1 < 22 else 0})")
        self.p2_loop(22, VA, AB, A2, bsrc, pre)
        self.stamp(10)
        g.c("F: dump partials, residual, pre-reduce")
        XR = 96; ST = 112; DS = 128
        g(f"""s_lshr_b32 {s(S_U0)}, {s(S_WI)}, 1
              s_lshl_b32 {s(S_U1)}, {s(S_RT)}, 1
              s_add_u32 {s(S_U0)}, {s(S_U0)}, {s(S_U1)}
              s_lshl_b32 {s(S_U1)}, {s(S_NT)}, 7
              s_and_b32 {s(S_U2)}, {s(S_WI)}, 1
              s_lshl_b32 {s(S_U2)}, {s(S_U2)}, 6
              s_add_u32 {s(S_U1)}, {s(S_U1)}, {s(S_U2)}
              s_lshl_b32 {s(S_U2)}, {s(S_U0)}, 15
              s_add_u32 {s(S_U2)}, {s(S_U2)}, {s(S_U1)}
              v_and_b32 {v(T)}, 31, v0
              v_lshlrev_b32 {v(T)}, 1, {v(T)}
              v_lshrrev_b32 {v(T+1)}, 5, v0
              v_lshl_add_u32 {v(T+2)}, {v(T+1)}, 14, {v(T)}
              v_add_u32 {v(T)}, {s(S_U1)}, {v(T)}
              v_lshlrev_b32 {v(T+1)}, 6, {v(T+1)}
              global_load_ushort {v(DS)}, {v(T)}, {s(P_DSK,2)}""")
        for r in range(16):
            if r and r % 4 == 0: g(f"s_add_u32 {s(S_U2)}, {s(S_U2)}, 4096")
            g(f"buffer_load_ushort {v(XR+r)}, {v(T+2)}, {s(R_X,4)}, {s(S_U2)} offen offset:{(r%4)*1024}")
        g(f"""s_lshl_b32 {s(S_U0)}, {s(S_U0)}, 7
              s_lshl_b32 {s(S_U1)}, {s(S_WI)}, 13
              s_add_u32 {s(S_U0)}, {s(S_U0)}, {s(S_U1)}
              s_add_u32 {s(S_U0)}, {s(S_U0)}, {hex(WS_STATS)}""")
        for k in range(4):
            g(f"buffer_load_dwordx4 {v(ST+4*k,4)}, {v(T+1)}, {s(R_WS,4)}, {s(S_U0)} offen offset:{16*k} sc1")
        g(f"v_lshl_add_u32 {v(T+3)}, v0, 4, {s(S_T2)}")
        for sl in range(1, 4):
            for q in range(4):
                g(f"ds_write_b128 {v(T+3)}, {v(A2+16*sl+4*q,4)} offset:{(sl-1)*4096+q*1024}")
        self.signal_cnt(C_FD, VCNT, VONE)
        g(f"s_waitcnt vmcnt(0)\nv_lshlrev_b32 {v(DS)}, 16, {v(DS)}")
        for r in range(16):
            x, st, t = XR + r, ST + r, T + 4 + 2*(r & 1)
            g(f"""v_lshlrev_b32 {v(x)}, 16, {v(x)}
                  v_lshlrev_b32 {v(t)}, 16, {v(st)}
                  v_and_b32 {v(st)}, 0xffff0000, {v(st)}
                  v_rcp_f32 {v(st)}, {v(st)}
                  v_sub_f32 {v(t)}, {v(x)}, {v(t)}
                  v_cvt_pk_bf16_f32 {v(t)}, {v(t)}, {v(t)}
                  v_and_b32 {v(t)}, 0xffff0000, {v(t)}
                  v_mul_f32 {v(t)}, {v(t)}, {v(st)}
                  v_cvt_pk_bf16_f32 {v(t)}, {v(t)}, {v(t)}
                  v_and_b32 {v(t)}, 0xffff0000, {v(t)}
                  v_mul_f32 {v(t)}, {v(t)}, {v(DS)}
                  v_cvt_pk_bf16_f32 {v(t)}, {v(t)}, {v(t)}
                  v_and_b32 {v(t)}, 0xffff0000, {v(t)}
                  v_add_f32 {v(x)}, {v(x)}, {v(t)}
                  v_add_f32 {v(A2+r)}, {v(A2+r)}, {v(x)}""")
        self.spin_cnt(C_FD, VCNT, T)
        self.gather3(W1B, SLOT, AB, T)
        for d in range(3):
            g(f"s_waitcnt lgkmcnt({8-4*d})")
            for r in range(16): g(f"v_add_f32 {v(A2+r)}, {v(A2+r)}, {v(AB+16*d+r)}")
        for q in range(4):
            g(f"ds_write_b128 {v(T+3)}, {v(A2+4*q,4)} offset:{12288+q*1024}")
        g("s_waitcnt lgkmcnt(0)\ns_barrier")
        self.stamp(11)
        self.stamps_out(T)
        g("s_endpgm")

    def gather3(self, base, stride, dst, T):
        g = self.g
        for d in range(1, 4):
            g(f"""s_xor_b32 {s(S_U0)}, {s(S_WI)}, {d}
                  s_mul_i32 {s(S_U0)}, {s(S_U0)}, {stride}
                  s_add_u32 {s(S_U0)}, {s(S_U0)}, {base + (d-1)*4096}
                  v_lshl_add_u32 {v(T)}, v0, 4, {s(S_U0)}""")
            for q in range(4):
                g(f"ds_read_b128 {v(dst+16*(d-1)+4*q,4)}, {v(T)} offset:{q*1024}")

    def a_setup(self, VA, ks_base, per_wave, T):
        g = self.g
        g(f"""s_lshr_b32 {s(S_U0)}, {s(S_WI)}, 1
              s_mul_i32 {s(S_U1)}, {s(S_U0)}, {NKS*1024}
              s_sub_u32 {s(S_U2)}, {NKS*1024}, {s(S_U1)}
              v_lshl_add_u32 {v(VA)}, v0, 4, {s(S_U1)}
              v_lshl_add_u32 {v(VA+1)}, v0, 4, {s(S_U2)}
              s_mul_i32 {s(S_XO)}, {s(S_RT)}, {2*NKS}
              s_mul_i32 {s(S_U0)}, {s(S_WI)}, {per_wave}
              s_add_u32 {s(S_XO)}, {s(S_XO)}, {s(S_U0)}
              s_add_u32 {s(S_XO)}, {s(S_XO)}, {ks_base}
              s_lshl_b32 {s(S_XO)}, {s(S_XO)}, 10""")

    def p2_loop(self, n, VA, AB, A2, bsrc, pre):
        g = self.g
        D = 6
        def aload(ks):
            if ks and ks % 4 == 0: g(f"s_add_u32 {s(S_XO)}, {s(S_XO)}, 4096")
            for rb in range(2):
                g(f"buffer_load_dwordx4 {v(AB+8*(ks%D)+4*rb,4)}, {v(VA+rb)}, {s(R_WS,4)}, {s(S_XO)} offen offset:{(ks%4)*1024} sc1")
        for ks in range(D): aload(ks)
        for ks in range(n):
            pre(ks)
            g(f"s_waitcnt vmcnt({2*(min(n, ks+D) - ks - 1)})")
            for rb in range(2):
                for ct in range(2):
                    d = A2 + 16*(2*rb+ct)
                    cc = "0" if ks == 0 else v(d, 16)
                    g(f"v_mfma_f32_32x32x16_bf16 {v(d,16)}, {v(AB+8*(ks%D)+4*rb,4)}, {v(bsrc(ks)+4*ct,4)}, {cc}")
            if ks + D < n: aload(ks + D)
        g("s_nop 7\ns_nop 7")

    def swave(self):
        g = self.g; o = self.o
        BR = 128
        UR, UI = 96, 112
        FR = 48
        XA, BA = 2, 6
        LA, LB = 10, 11
        L16, L128, W0, KA, GS = 12, 14, 16, 18, 20
        VCNT, VONE, VZ = 22, 23, 24
        SEGV = 25
        T = 28
        g("L_SWAVE:")
        g.c("---------------- S wave ----------------")
        if o.get("sprio", 1): g("s_setprio 2")
        g(f"""v_and_b32 {v(T)}, 31, v0
              v_lshlrev_b32 {v(T)}, 1, {v(T)}
              s_lshl_b32 {s(S_T0)}, {s(S_G)}, 6
              v_add_u32 {v(T)}, {s(S_T0)}, {v(T)}
              v_mov_b32 {v(VCNT)}, {L_CNT}
              v_mov_b32 {v(VONE)}, 1
              v_mov_b32 {v(VZ)}, 0
              v_lshlrev_b32 {v(T+4)}, 2, v0
              v_add_u32 {v(T+4)}, {L_CNT}, {v(T+4)}
              s_waitcnt lgkmcnt(0)
              global_load_ushort {v(T+1)}, {v(T)}, {s(P_LRE,2)}
              global_load_ushort {v(T+2)}, {v(T)}, {s(P_LIM,2)}
              global_load_ushort {v(T+3)}, {v(T)}, {s(P_LDT,2)}
              ds_write_b32 {v(T+4)}, {v(VZ)}""")
        self.epoch()
        srd(g, R_A, P_CRE, 512*512*2); srd(g, R_B, P_CIM, 512*512*2)
        srd(g, R_WS, P_WS, WS_BYTES); srd(g, R_OUT, P_OUT, 2048*512*4)
        self.frag_pat(BA, T+4, T+5, False)
        g(f"s_lshl_b32 {s(S_T3)}, {s(S_WI)}, 12")
        for k in range(4):
            g(f"v_add_u32 {v(XA+k)}, {s(S_T3)}, {v(BA+k)}\nv_add_u32 {v(BA+k)}, 16384, {v(BA+k)}")
        for r in range(32): g(f"v_mov_b32 {v(UR+r)}, 0")
        for r in range(24): g(f"v_mov_b32 {v(FR+24+r)}, 0")
        g(f"""v_lshrrev_b32 {v(SEGV)}, 5, v0
              s_lshl_b32 {s(S_T0)}, {s(S_WI)}, 1
              v_add_u32 {v(SEGV)}, {s(S_T0)}, {v(SEGV)}
              s_waitcnt vmcnt(0) lgkmcnt(0)""")
        self.epoch_fin()
        lr, li, dt = T+1, T+2, T+3
        g(f"""v_lshlrev_b32 {v(lr)}, 16, {v(lr)}
              v_lshlrev_b32 {v(li)}, 16, {v(li)}
              v_lshlrev_b32 {v(dt)}, 16, {v(dt)}
              v_mul_f32 {v(dt)}, 0x3fb8aa3b, {v(dt)}
              v_exp_f32 {v(dt)}, {v(dt)}
              s_nop 0
              v_cvt_pk_bf16_f32 {v(dt)}, {v(dt)}, {v(dt)}
              v_and_b32 {v(dt)}, 0xffff0000, {v(dt)}
              v_mul_f32 {v(T+4)}, {v(dt)}, {v(lr)}
              v_mul_f32 {v(T+5)}, {v(dt)}, {v(li)}
              v_mul_f32 {v(T+4)}, 0x3fb8aa3b, {v(T+4)}
              v_mul_f32 {v(T+5)}, 0.15915494, {v(T+5)}
              v_rndne_f32 {v(T+6)}, {v(T+5)}
              v_sub_f32 {v(T+5)}, {v(T+5)}, {v(T+6)}
              v_exp_f32 {v(T+4)}, {v(T+4)}
              v_cos_f32 {v(T+6)}, {v(T+5)}
              v_sin_f32 {v(T+7)}, {v(T+5)}
              v_mul_f32 {v(T+8)}, {v(lr)}, {v(lr)}
              v_mul_f32 {v(LA)}, {v(T+4)}, {v(T+6)}
              v_mul_f32 {v(LB)}, {v(T+4)}, {v(T+7)}
              v_fmac_f32 {v(T+8)}, {v(li)}, {v(li)}
              v_rcp_f32 {v(T+8)}, {v(T+8)}
              v_add_f32 {v(T+4)}, -1.0, {v(LA)}
              v_mul_f32 {v(KA)}, {v(T+4)}, {v(lr)}
              v_mul_f32 {v(KA+1)}, {v(LB)}, {v(lr)}
              v_fmac_f32 {v(KA)}, {v(LB)}, {v(li)}
              v_fma_f32 {v(KA+1)}, -{v(T+4)}, {v(li)}, {v(KA+1)}
              v_add_f32 {v(T+8)}, {v(T+8)}, {v(T+8)}
              v_mul_f32 {v(KA)}, {v(KA)}, {v(T+8)}
              v_mul_f32 {v(KA+1)}, {v(KA+1)}, {v(T+8)}""")
        a, b, c2, d2 = T, T+2, T+4, T+6
        sq = lambda d, x: self.cmul(d, d+1, x, x+1, x, x+1)
        sq(a, LA); sq(b, a); sq(a, b); sq(L16, a)
        sq(a, L16); sq(b, a); sq(L128, b)
        g(f"""v_cmp_lt_u32 vcc, 31, v0
              s_nop 1
              v_cndmask_b32 {v(c2)}, 1.0, {v(L16)}, vcc
              v_cndmask_b32 {v(c2+1)}, 0, {v(L16+1)}, vcc
              s_bitcmp1_b32 {s(S_WI)}, 0
              s_cselect_b64 vcc, -1, 0
              v_cndmask_b32 {v(a)}, 1.0, {v(a)}, vcc
              v_cndmask_b32 {v(a+1)}, 0, {v(a+1)}, vcc
              s_bitcmp1_b32 {s(S_WI)}, 1
              s_cselect_b64 vcc, -1, 0
              v_cndmask_b32 {v(b)}, 1.0, {v(b)}, vcc
              v_cndmask_b32 {v(b+1)}, 0, {v(b+1)}, vcc""")
        self.cmul(d2, d2+1, c2, c2+1, a, a+1)
        self.cmul(c2, c2+1, d2, d2+1, b, b+1)
        self.cmul(GS, GS+1, c2, c2+1, KA, KA+1)
        sq(a, c2); sq(b, a); sq(a, b); sq(W0, a)
        self.stamp(1)
        g.c("stage A loop")
        def rd(k):
            f = FR + 12*k
            g(f"""ds_read_b128 {v(f,4)}, {v(XA+k)}
                  ds_read_b128 {v(f+4,4)}, {v(BA+k)}
                  ds_read_b128 {v(f+8,4)}, {v(BA+k)} offset:4096""")
        def mm(k):
            f = FR + 12*k
            g(f"""v_mfma_f32_32x32x16_bf16 {v(UR,16)}, {v(f,4)}, {v(f+4,4)}, {v(UR,16)}
                  v_mfma_f32_32x32x16_bf16 {v(UI,16)}, {v(f,4)}, {v(f+8,4)}, {v(UI,16)}""")
        g(f"s_mov_b32 {s(S_T0)}, 0\ns_mov_b32 {s(S_T2)}, {SLOT}")
        g("L_SA:")
        g("s_barrier")
        rd(0); rd(1)
        g("s_waitcnt lgkmcnt(6)")
        mm(2); mm(3)
        rd(2); rd(3)
        g(f"""s_add_u32 {s(S_T0)}, {s(S_T0)}, 1
              s_cmp_eq_u32 {s(S_T0)}, 6
              s_cselect_b32 {s(S_T1)}, {-5*SLOT & 0xffffffff}, {s(S_T2)}
              s_waitcnt lgkmcnt(9)""")
        mm(0)
        g("s_waitcnt lgkmcnt(6)")
        mm(1)
        for k in range(8): g(f"v_add_u32 {v(XA+k)}, {s(S_T1)}, {v(XA+k)}")
        g(f"""s_cmp_lt_u32 {s(S_T0)}, 8
              s_cbranch_scc1 L_SA
              s_waitcnt lgkmcnt(0)""")
        mm(2); mm(3)
        self.stamp(2)
        g(f"""v_and_b32 {v(T)}, 31, v0
              s_lshl_b32 {s(S_U0)}, {s(S_WI)}, 7
              s_add_u32 {s(S_U1)}, {s(S_U0)}, {L_NM}
              v_lshl_add_u32 {v(T+1)}, {v(T)}, 2, {s(S_U1)}
              v_lshlrev_b32 {v(T+2)}, 3, {v(T)}
              v_add_u32 {v(T+2)}, {L_CSS}, {v(T+2)}
              v_lshlrev_b32 {v(T+3)}, 6, {v(SEGV)}
              v_add_u32 {v(T+3)}, {L_RS}, {v(T+3)}
              v_mov_b32 {v(FR+2)}, 0
              v_mov_b32 {v(FR+3)}, 0
              v_mov_b32 {v(FR+6)}, 0
              v_mov_b32 {v(FR+7)}, 0
              v_mov_b32 {v(FR+10)}, 0
              v_mov_b32 {v(FR+11)}, 0
              v_cmp_gt_u32 vcc, 32, v0
              s_barrier
              ds_read_b32 {v(FR)}, {v(T+1)}
              ds_read_b64 {v(FR+4,2)}, {v(T+2)}
              ds_read_b64 {v(FR+8,2)}, {v(T+2)} offset:256""")
        RSV = FR + 12
        for k in range(4): g(f"ds_read_b128 {v(RSV+4*k,4)}, {v(T+3)} offset:{16*k}")
        g(f"""s_waitcnt lgkmcnt(4)
              v_cndmask_b32 {v(FR)}, 0, {v(FR)}, vcc
              v_mov_b32 {v(FR+1)}, {v(FR)}
              s_nop 1""")
        mm(0)
        self.stamp(3)
        g(f"""v_lshlrev_b32 {v(T+4)}, 3, {v(T)}
              v_add_u32 {v(T+4)}, {L_SEG}, {v(T+4)}
              v_lshl_add_u32 {v(T+5)}, {v(SEGV)}, 8, {v(T+4)}
              s_waitcnt lgkmcnt(0)
              s_nop 7
              s_nop 3""")
        for r in range(16): g(f"v_mul_f32 {v(UR+r)}, {v(UR+r)}, {v(RSV+r)}")
        for r in range(16): g(f"v_mul_f32 {v(UI+r)}, {v(UI+r)}, {v(RSV+r)}")
        e0, e1 = T+6, T+8
        cur = (UR, UI)
        for r in range(1, 16):
            d = e0 if r & 1 else e1
            self.cfma(d, d+1, LA, LB, cur[0], cur[1], UR+r, UI+r)
            cur = (d, d+1)
        g(f"ds_write_b64 {v(T+5)}, {v(e0,2)}")
        self.signal_cnt(C_S1, VCNT, VONE)
        E = FR
        rds = "\n".join(f"ds_read_b64 {v(E+2*k,2)}, {v(T+4)} offset:{256*k}" for k in range(8))
        self.spin_cnt(C_S1, VCNT, T+6, rds)
        for k in range(1, 8):
            self.cfma(E+2*k, E+2*k+1, L16, L16+1, E+2*k-2, E+2*k-1, E+2*k, E+2*k+1)
        lnp = g.lab("NOPUB")
        g(f"""v_lshlrev_b32 {v(T+6)}, 4, {v(T)}
              s_lshl_b32 {s(S_T4)}, {s(S_G)}, 13
              s_add_u32 {s(S_T4)}, {s(S_T4)}, {hex(WS_AGG)}
              s_cmp_lg_u32 {s(S_WI)}, 0
              s_cbranch_scc1 {lnp}
              v_mov_b32 {v(E+16)}, {s(S_TAG)}
              v_mov_b32 {v(E+17)}, {s(S_TAG)}
              s_lshl_b32 {s(S_U0)}, {s(S_MT)}, 9
              s_add_u32 {s(S_U0)}, {s(S_U0)}, {s(S_T4)}
              s_mov_b32 exec_hi, 0
              buffer_store_dwordx4 {v(E+14,4)}, {v(T+6)}, {s(R_WS,4)}, {s(S_U0)} offen sc1
              s_mov_b64 exec, -1""")
        g(f"{lnp}:")
        self.stamp(4)
        VD = 2
        PC = BA
        self.lane8_pat(T+8, T+9, T+10)
        g(f"""v_lshl_or_b32 {v(VD)}, {v(T+9)}, 10, {v(T+8)}
              v_add_u32 {v(VD+1)}, 7168, {v(VD)}
              v_xor_b32 {v(VD+1)}, 64, {v(VD+1)}
              v_add_u32 {v(VD+2)}, {2*7168}, {v(VD)}
              v_add_u32 {v(VD+3)}, {2*7168}, {v(VD+1)}
              s_mul_i32 {s(S_T2)}, {s(S_WI)}, 12288
              s_sub_u32 {s(S_U0)}, {s(S_T2)}, {16384 + 2*SLOT}
              s_lshl_b32 {s(S_WO)}, {s(S_NT)}, 16
              s_lshl_b32 {s(S_U1)}, {s(S_WI)}, 8
              s_add_u32 {s(S_WO)}, {s(S_WO)}, {s(S_U1)}
              s_and_b32 {s(S_U1)}, {s(S_WI)}, 1
              s_lshl_b32 {s(S_U1)}, {s(S_U1)}, 15
              s_xor_b32 {s(S_BO)}, {s(S_U1)}, 0x8000
              s_add_u32 {s(S_BO)}, {s(S_BO)}, {s(S_WO)}
              s_add_u32 {s(S_WO)}, {s(S_WO)}, {s(S_U1)}""")
        for k in range(4): g(f"v_add_u32 {v(PC+k)}, {s(S_U0)}, {v(PC+k)}")
        hps = [(part, kh, ct) for kh in range(2) for part in range(2) for ct in range(2)]
        def c_issue(i):
            part, kh, ct = hps[i]
            g(f"""s_add_u32 m0, {s(S_T2)}, {(i%3)*4096}
                  s_add_u32 {s(S_U1)}, {s(S_BO if ct else S_WO)}, {128*kh}""")
            for e in range(4):
                g(f"buffer_load_dwordx4 {v(VD+e)}, {s(R_B if part else R_A,4)}, {s(S_U1)} offen offset:{1024*e} lds")
        def c_read(i):
            part, kh, ct = hps[i]
            for k in range(4):
                gi = 2*kh + (k >> 1); cb = k & 1
                ks = 4*gi + 2*part + cb
                g(f"ds_read_b128 {v(BR+8*ks+4*ct,4)}, {v(PC+k)} offset:{(i%3)*4096}")
        for i in range(3): c_issue(i)
        PP = T+8
        g(f"v_mov_b32 {v(PP)}, 0\nv_mov_b32 {v(PP+1)}, 0")
        for k in range(1, 8):
            g(f"""v_cmp_eq_u32 vcc, {k}, {v(SEGV)}
                  s_nop 1
                  v_cndmask_b32 {v(PP)}, {v(PP)}, {v(E+2*k-2)}, vcc
                  v_cndmask_b32 {v(PP+1)}, {v(PP+1)}, {v(E+2*k-1)}, vcc""")
        PK = T+10
        self.cmul(PK, PK+1, KA, KA+1, PP, PP+1)
        for r in range(16):
            t = T+12 + (r & 1)
            g(f"""v_mul_f32 {v(t)}, {v(KA+1)}, {v(UR+r)}
                  v_mul_f32 {v(UR+r)}, {v(KA)}, {v(UR+r)}
                  v_fma_f32 {v(UR+r)}, -{v(KA+1)}, {v(UI+r)}, {v(UR+r)}
                  v_fma_f32 {v(UI+r)}, {v(KA)}, {v(UI+r)}, {v(t)}""")
        LBn = FR + 20
        g(f"""v_lshlrev_b32 {v(T+12)}, 1, {v(SEGV)}
              v_sub_u32 {v(T+12)}, {s(S_MT)}, {v(T+12)}
              v_cmp_le_i32 {s(S_EX,2)}, 1, {v(T+12)}
              v_cmp_le_i32 {s(S_MK,2)}, 2, {v(T+12)}
              v_subrev_u32 {v(T+13)}, 1, {v(T+12)}
              v_subrev_u32 {v(T+14)}, 2, {v(T+12)}
              v_max_i32 {v(T+13)}, 0, {v(T+13)}
              v_max_i32 {v(T+14)}, 0, {v(T+14)}
              v_lshl_add_u32 {v(T+13)}, {v(T+13)}, 9, {v(T+6)}
              v_lshl_add_u32 {v(T+14)}, {v(T+14)}, 9, {v(T+6)}""")
        for k in range(8): g(f"v_mov_b32 {v(LBn+k)}, 0")
        self.stamp(5)
        l = g.lab("LB"); d = g.lab("LBD")
        g(f"""s_mov_b32 {s(S_SPIN)}, 0x40000
              s_cmp_eq_u64 {s(S_EX,2)}, 0
              s_cbranch_scc1 {d}""")
        g(f"{l}:")
        g(f"""s_mov_b64 exec, {s(S_EX,2)}
              buffer_load_dwordx4 {v(LBn,4)}, {v(T+13)}, {s(R_WS,4)}, {s(S_T4)} offen sc1
              buffer_load_dwordx4 {v(LBn+4,4)}, {v(T+14)}, {s(R_WS,4)}, {s(S_T4)} offen sc1
              s_waitcnt vmcnt(0)
              v_cmp_ne_u32 vcc, {s(S_TAG)}, {v(LBn+2)}
              v_cmp_ne_u32 s[100:101], {s(S_TAG)}, {v(LBn+6)}
              s_mov_b64 exec, -1
              s_sub_u32 {s(S_SPIN)}, {s(S_SPIN)}, 1
              s_cbranch_scc1 {d}
              s_or_b64 vcc, vcc, s[100:101]
              s_cbranch_scc0 {d}
              s_sleep {o.get('lb_sleep', 2)}
              s_branch {l}""")
        g(f"{d}:")
        self.stamp(6)
        g(f"""v_cndmask_b32 {v(LBn+4)}, 0, {v(LBn+4)}, {s(S_MK,2)}
              v_cndmask_b32 {v(LBn+5)}, 0, {v(LBn+5)}, {s(S_MK,2)}""")
        self.cfma(LBn, LBn+1, L128, L128+1, LBn+4, LBn+5, LBn, LBn+1)
        self.cmul(LBn+2, LBn+3, W0, W0+1, LBn, LBn+1)
        g(f"""v_add_u32 {v(T+5)}, {L_LBP - L_SEG}, {v(T+5)}
              v_add_u32 {v(T+4)}, {L_LBP - L_SEG}, {v(T+4)}
              ds_write_b64 {v(T+5)}, {v(LBn+2,2)}""")
        self.signal_cnt(C_S2, VCNT, VONE)
        self.spin_cnt(C_S2, VCNT, T+12, rds)
        for w in (4, 2, 1):
            for k in range(w):
                g(f"v_add_f32 {v(E+2*k)}, {v(E+2*k)}, {v(E+2*k+2*w)}\nv_add_f32 {v(E+2*k+1)}, {v(E+2*k+1)}, {v(E+2*k+2*w+1)}")
        self.cfma(PK, PK+1, GS, GS+1, E, E+1, PK, PK+1)
        cur = (PK, PK+1)
        for r in range(16):
            self.cfma(UR+r, UI+r, LA, LB, cur[0], cur[1], UR+r, UI+r)
            cur = (UR+r, UI+r)
        H = FR
        for i in range(8): g(f"v_cvt_pk_bf16_f32 {v(H+i)}, {v(UR+2*i)}, {v(UR+2*i+1)}")
        for i in range(8): g(f"v_cvt_pk_bf16_f32 {v(H+8+i)}, -{v(UI+2*i)}, -{v(UI+2*i+1)}")
        g(f"""s_lshl_b32 {s(S_U0)}, {s(S_WI)}, 11
              s_add_u32 {s(S_U0)}, {s(S_U0)}, {L_TR}
              v_lshl_add_u32 {v(T+1)}, {v(T)}, 6, {s(S_U0)}
              v_and_b32 {v(T+2)}, 32, v0
              v_add_u32 {v(T+1)}, {v(T+1)}, {v(T+2)}
              v_lshlrev_b32 {v(T+2)}, 4, {v(T+2)}
              v_bfe_u32 {v(T+3)}, v0, 2, 2
              v_lshl_add_u32 {v(T+2)}, {v(T+3)}, 6, {v(T+2)}
              v_and_b32 {v(T+3)}, 1, v0
              v_lshl_add_u32 {v(T+2)}, {v(T+3)}, 5, {v(T+2)}
              v_and_b32 {v(T+3)}, 16, v0
              v_add_u32 {v(T+2)}, {v(T+2)}, {v(T+3)}
              v_and_b32 {v(T+3)}, 2, v0
              v_lshl_add_u32 {v(T+2)}, {v(T+3)}, 2, {v(T+2)}
              v_add_u32 {v(T+2)}, {s(S_U0)}, {v(T+2)}
              v_lshlrev_b32 {v(T+3)}, 4, v0
              s_lshl_b32 {s(S_U0)}, {s(S_MT)}, 2
              s_add_u32 {s(S_U0)}, {s(S_U0)}, {s(S_WI)}
              s_mul_i32 {s(S_U0)}, {s(S_U0)}, {NKS}
              s_lshl_b32 {s(S_U1)}, {s(S_G)}, 2
              s_add_u32 {s(S_U0)}, {s(S_U0)}, {s(S_U1)}
              s_lshl_b32 {s(S_U2)}, {s(S_U0)}, 10""")
        O = FR + 16
        for part in range(2):
            g(f"""ds_write_b128 {v(T+1)}, {v(H+8*part,4)}
                  ds_write_b128 {v(T+1)}, {v(H+8*part+4,4)} offset:16""")
            for cb in range(2):
                for u in range(2):
                    g(f"ds_read_b64_tr_b16 {v(O+8*part+4*cb+2*u,2)}, {v(T+2)} offset:{cb*1024+u*256}")
        for part in range(2):
            g(f"s_waitcnt lgkmcnt({6 if part == 0 else 0})")
            for cb in range(2):
                g(f"buffer_store_dwordx4 {v(O+8*part+4*cb,4)}, {v(T+3)}, {s(R_WS,4)}, {s(S_U2)} offen offset:{(2*part+cb)*1024} sc1")
        self.stamp(7)
        g("s_waitcnt vmcnt(4)")
        for i in range(3): c_read(i)
        self.set_flag(WS_FLAGS, VZ, T+8)
        g("s_waitcnt lgkmcnt(0)")
        for i in range(3, 6): c_issue(i)
        for i in range(3, 8):
            g(f"s_waitcnt vmcnt({8 if i < 6 else 4*(7-i)})")
            c_read(i)
            if i + 3 < 8:
                g("s_waitcnt lgkmcnt(0)")
                c_issue(i + 3)
        g.c("---------------- S phase 2 ----------------")
        A2 = 64; AB = 16; VA = 10
        g("s_waitcnt lgkmcnt(0)")
        self.a_setup(VA, 0, 16, 12)
        g(f"v_and_b32 v13, 7, v0\nv_lshlrev_b32 v13, 2, v13")
        self.stamp(8)
        self.poll_flags(WS_FLAGS, 13, 12)
        self.stamp(9)
        self.p2_loop(16, VA, AB, A2, lambda ks: BR + 8*ks, lambda ks: None)
        self.stamp(10)
        g(f"v_lshl_add_u32 v12, v0, 4, {s(S_T2)}")
        for sl in range(1, 4):
            for q in range(4):
                g(f"ds_write_b128 v12, {v(A2+16*sl+4*q,4)} offset:{(sl-1)*4096+q*1024}")
        g(f"""s_lshr_b32 {s(S_U0)}, {s(S_WI)}, 1
              s_lshl_b32 {s(S_U1)}, {s(S_RT)}, 1
              s_add_u32 {s(S_U0)}, {s(S_U0)}, {s(S_U1)}
              s_lshl_b32 {s(S_T0)}, {s(S_U0)}, 16
              s_lshl_b32 {s(S_U1)}, {s(S_NT)}, 8
              s_add_u32 {s(S_T0)}, {s(S_T0)}, {s(S_U1)}
              s_and_b32 {s(S_U1)}, {s(S_WI)}, 1
              s_lshl_b32 {s(S_U1)}, {s(S_U1)}, 7
              s_add_u32 {s(S_T0)}, {s(S_T0)}, {s(S_U1)}
              v_and_b32 v13, 31, v0
              v_lshlrev_b32 v13, 2, v13
              v_lshrrev_b32 v14, 5, v0
              v_lshl_add_u32 v13, v14, 15, v13
              s_mul_i32 {s(S_U0)}, {s(S_WI)}, {SLOT}
              s_add_u32 {s(S_U0)}, {s(S_U0)}, {W1B + 12288}
              v_lshl_add_u32 v14, v0, 4, {s(S_U0)}
              s_waitcnt lgkmcnt(0)
              s_barrier""")
        for q in range(4): g(f"ds_read_b128 {v(BR+4*q,4)}, v14 offset:{q*1024}")
        g("s_waitcnt lgkmcnt(0)")
        self.gather3(0, 12288, BR+16, 12)
        for dd in range(4):
            if dd: g(f"s_waitcnt lgkmcnt({12-4*dd})")
            for r in range(16): g(f"v_add_f32 {v(A2+r)}, {v(A2+r)}, {v(BR+16*dd+r)}")
        for r in range(16):
            if r and r % 2 == 0: g(f"s_add_u32 {s(S_T0)}, {s(S_T0)}, 4096")
            g(f"buffer_store_dword {v(A2+r)}, v13, {s(R_OUT,4)}, {s(S_T0)} offen offset:{(r%2)*2048}{o.get('out_pol','')}")
        le = g.lab("NOEP")
        g(f"""s_lshl_b32 {s(S_U0)}, {s(S_RT)}, 5
              s_lshl_b32 {s(S_U1)}, {s(S_NT)}, 2
              s_add_u32 {s(S_U0)}, {s(S_U0)}, {s(S_U1)}
              s_add_u32 {s(S_U0)}, {s(S_U0)}, {s(S_WI)}
              s_cmp_lg_u32 {s(S_U0)}, {31*32}
              s_cbranch_scc1 {le}
              v_mov_b32 v12, {s(S_TAG)}
              v_mov_b32 v13, 0
              s_mov_b32 {s(S_U0)}, {hex(WS_EPOCH)}
              s_mov_b64 exec, 1
              buffer_store_dword v12, v13, {s(R_WS,4)}, {s(S_U0)} offen
              s_mov_b64 exec, -1""")
        g(f"{le}:")
        self.stamp(11)
        self.stamps_out(12)
        g("L_END:")
        g("s_endpgm")

    def build(self):
        hdr = open("cdna_kernels/" + NAME + ".s.ref").read().split("\n")
        head = [l for l in hdr if l.startswith(";") and "@launch" not in l]
        self.prologue(); self.fwave(); self.swave()
        out = "\n".join(head) + f"\n; @launch grid=(256,1,1) block=(512,1,1) lds={LDS_BYTES}\n"
        out += f""".amdgcn_target "amdgcn-amd-amdhsa--gfx950"
.text
.globl {NAME}_kernel
.p2align 8
.type {NAME}_kernel,@function
{NAME}_kernel:
"""
        out += self.g.text()
        out += f""".section .rodata,"a"
.p2align 6
.amdhsa_kernel {NAME}_kernel
  .amdhsa_next_free_vgpr 256
  .amdhsa_next_free_sgpr 102
  .amdhsa_accum_offset 256
  .amdhsa_group_segment_fixed_size 0
  .amdhsa_kernarg_size 120
  .amdhsa_user_sgpr_count 2
  .amdhsa_user_sgpr_kernarg_segment_ptr 1
  .amdhsa_system_sgpr_workgroup_id_x 1
.end_amdhsa_kernel
"""
        return out

if __name__ == "__main__":
    path = sys.argv[1]
    opt = json.loads(sys.argv[2]) if len(sys.argv) > 2 else {}
    open(path, "w").write(Gen(opt).build())
```

```python
import sys, json

NAME = "parallel_sum__ssm_conv_s5__dense_activation_silu__prompt"

class G:
    def __init__(self):
        self.L = []
        self.nlab = 0
    def __call__(self, s):
        for ln in s.strip("\n").split("\n"):
            ln = ln.strip()
            if ln: self.L.append("    " + ln if not ln.endswith(":") else ln)
    def c(self, s): self.L.append("    ; " + s)
    def lab(self, p="L"):
        self.nlab += 1
        return f"{p}_{self.nlab}"
    def text(self): return "\n".join(self.L) + "\n"

def v(a, n=1): return f"v{a}" if n == 1 else f"v[{a}:{a+n-1}]"
def s(a, n=1): return f"s{a}" if n == 1 else f"s[{a}:{a+n-1}]"

NKS = 152
WS_INTER = 0
WS_AGG   = 0xA00000
WS_FLAGF = 0xA40000
WS_FLAGS = 0xA44000
WS_STATS = 0xA50000
WS_EPOCH = 0xA60000
WS_STAMP = 0xB00000
WS_BYTES = 0xC00000
SLOT = 24576
W1B  = 2 * SLOT
MISC = 6 * SLOT
L_RS, L_NM, L_CSS, L_CNT = MISC, MISC + 512, MISC + 1024, MISC + 1536
L_LBP = MISC + 2048
L_CSF = MISC + 4096
L_TR  = MISC + 8192
L_SEG = L_TR + 3 * 2048
LDS_BYTES = MISC + 16384
C_S1, C_S2, C_W0, C_CSF, C_W1D, C_FD = 0, 4, 8, 24, 28, 32

S_WAVE, S_WI, S_MT, S_G, S_RT, S_NT, S_C0, S_TAG = 3, 4, 5, 6, 7, 8, 9, 10
S_T0, S_T1, S_T2, S_T3, S_T4 = 11, 12, 13, 14, 15
P_X, P_LRE, P_LIM, P_BRE, P_BIM, P_CRE, P_CIM, P_LDT = 16, 18, 20, 22, 24, 26, 28, 30
P_DSK, P_BX, P_W1, P_W2, P_OUT, P_DBG, P_WS = 32, 34, 36, 38, 40, 42, 44
R_X, R_A, R_B, R_W2, R_WS, R_OUT = 48, 52, 56, 60, 64, 68
S_ONES, S_XO, S_BO, S_WO, S_SPIN = 72, 73, 74, 75, 76
S_U0, S_U1, S_U2, S_U3 = 77, 78, 79, 80
S_EX = 82
S_MK = 84
S_ST = 86

def srd(g, r, p, nbytes):
    g(f"""s_mov_b32 {s(r)}, {s(p)}
          s_mov_b32 {s(r+1)}, {s(p+1)}
          s_mov_b32 {s(r+2)}, {hex(nbytes)}
          s_mov_b32 {s(r+3)}, 0x20000""")

class Gen:
    def __init__(self, opt):
        self.o = opt
        self.g = G()
        self.nst = 0

    def stamp(self, i):
        if not self.o.get("stamps"): return
        g = self.g
        g(f"""s_memtime s[100:101]
              s_waitcnt lgkmcnt(0)
              s_mov_b32 {s(S_ST+i)}, s100""")

    def stamps_out(self, vt, role):
        if not self.o.get("stamps"): return
        g = self.g
        pr = self.o.get("probe")
        if pr and pr[0] == role:
            l = g.lab("PRB")
            g(f"""s_sub_u32 {s(S_T0)}, {s(S_ST+int(pr[1:]))}, {s(S_ST)}
                  s_lshl_b32 {s(S_T0)}, {s(S_T0)}, 4
                  s_memtime s[100:101]
                  s_waitcnt lgkmcnt(0)
                  s_mov_b32 {s(S_T1)}, s100""")
            g(f"{l}:")
            g(f"""s_memtime s[100:101]
                  s_waitcnt lgkmcnt(0)
                  s_sub_u32 {s(S_T2)}, s100, {s(S_T1)}
                  s_cmp_lt_u32 {s(S_T2)}, {s(S_T0)}
                  s_cbranch_scc1 {l}""")
        g(f"s_waitcnt vmcnt(0)")
        g(f"""s_memrealtime s[100:101]
              s_waitcnt lgkmcnt(0)
              s_mov_b32 {s(S_ST+13)}, s100""")
        g(f"""s_lshl_b32 {s(S_T0)}, s2, 3
              s_add_u32 {s(S_T0)}, {s(S_T0)}, {s(S_WAVE)}
              s_lshl_b32 {s(S_T0)}, {s(S_T0)}, 6
              s_add_u32 {s(S_T0)}, {s(S_T0)}, {hex(WS_STAMP)}
              v_mov_b32 {v(vt)}, 0""")
        for i in range(14):
            g(f"""v_mov_b32 {v(vt+1)}, {s(S_ST+i)}
                  buffer_store_dword {v(vt+1)}, {v(vt)}, {s(R_WS,4)}, {s(S_T0)} offen offset:{4*i}
                  s_nop 1""")

    def spin_cnt(self, cnt, vaddr_cnt, vt, reads=""):
        g = self.g
        l = g.lab("SPIN"); d = g.lab("SPD")
        g(f"s_mov_b32 {s(S_SPIN)}, 0x100000")
        g(f"{l}:")
        g(f"ds_read_b32 {v(vt)}, {v(vaddr_cnt)} offset:{cnt}")
        if reads: g(reads)
        g(f"""s_waitcnt lgkmcnt(0)
              v_readfirstlane_b32 {s(S_U3)}, {v(vt)}
              s_sub_u32 {s(S_SPIN)}, {s(S_SPIN)}, 1
              s_cbranch_scc1 {d}
              s_cmp_lg_u32 {s(S_U3)}, 4
              s_cbranch_scc1 {l}""")
        g(f"{d}:")

    def signal_cnt(self, cnt, vaddr_cnt, vone):
        g = self.g
        g(f"""s_mov_b64 exec, 1
              ds_add_u32 {v(vaddr_cnt)}, {v(vone)} offset:{cnt}
              s_mov_b64 exec, -1""")

    def cmul(self, dr, di, ar, ai, br, bi):
        self.g(f"""v_mul_f32 {v(dr)}, {v(ar)}, {v(br)}
                   v_mul_f32 {v(di)}, {v(ar)}, {v(bi)}
                   v_fma_f32 {v(dr)}, -{v(ai)}, {v(bi)}, {v(dr)}
                   v_fmac_f32 {v(di)}, {v(ai)}, {v(br)}""")

    def cfma(self, dr, di, ar, ai, br, bi, cr, ci):
        self.g(f"""v_fma_f32 {v(dr)}, {v(ar)}, {v(br)}, {v(cr)}
                   v_fma_f32 {v(di)}, {v(ar)}, {v(bi)}, {v(ci)}
                   v_fma_f32 {v(dr)}, -{v(ai)}, {v(bi)}, {v(dr)}
                   v_fmac_f32 {v(di)}, {v(ai)}, {v(br)}""")

    def poll_flags(self, base, vaddr, vt):
        g = self.g
        l = g.lab("POLL"); d = g.lab("PLD")
        g(f"""s_lshl_b32 {s(S_U0)}, {s(S_RT)}, 2
              s_add_u32 {s(S_U0)}, {s(S_U0)}, {s(S_WI)}
              s_lshl_b32 {s(S_U0)}, {s(S_U0)}, 7
              s_add_u32 {s(S_U0)}, {s(S_U0)}, {hex(base)}
              s_mov_b32 {s(S_SPIN)}, 0x40000
              s_mov_b64 exec, 0xff""")
        g(f"{l}:")
        g(f"""buffer_load_dword {v(vt)}, {v(vaddr)}, {s(R_WS,4)}, {s(S_U0)} offen sc1
              s_waitcnt vmcnt(0)
              v_cmp_ne_u32 vcc, {s(S_TAG)}, {v(vt)}
              s_sub_u32 {s(S_SPIN)}, {s(S_SPIN)}, 1
              s_cbranch_scc1 {d}
              s_cmp_eq_u64 vcc, 0
              s_cbranch_scc1 {d}
              s_sleep {self.o.get('poll_sleep', 2)}
              s_branch {l}""")
        g(f"{d}:")
        g("s_mov_b64 exec, -1")

    def set_flag(self, base, vz, vt):
        g = self.g
        g(f"""s_lshl_b32 {s(S_U0)}, {s(S_MT)}, 1
              s_lshr_b32 {s(S_U1)}, {s(S_WI)}, 1
              s_add_u32 {s(S_U0)}, {s(S_U0)}, {s(S_U1)}
              s_lshl_b32 {s(S_U0)}, {s(S_U0)}, 2
              s_lshr_b32 {s(S_U1)}, {s(S_G)}, 2
              s_add_u32 {s(S_U0)}, {s(S_U0)}, {s(S_U1)}
              s_lshl_b32 {s(S_U0)}, {s(S_U0)}, 7
              s_and_b32 {s(S_U1)}, {s(S_WI)}, 1
              s_lshl_b32 {s(S_U1)}, {s(S_U1)}, 4
              s_add_u32 {s(S_U0)}, {s(S_U0)}, {s(S_U1)}
              s_and_b32 {s(S_U1)}, {s(S_G)}, 3
              s_lshl_b32 {s(S_U1)}, {s(S_U1)}, 2
              s_add_u32 {s(S_U0)}, {s(S_U0)}, {s(S_U1)}
              s_add_u32 {s(S_U0)}, {s(S_U0)}, {hex(base)}
              v_mov_b32 {v(vt)}, {s(S_TAG)}
              s_waitcnt vmcnt(0)
              s_mov_b64 exec, 1
              buffer_store_dword {v(vt)}, {v(vz)}, {s(R_WS,4)}, {s(S_U0)} offen sc1
              s_mov_b64 exec, -1""")

    def prologue(self):
        g = self.g
        g(f"""s_cmp_ge_u32 s2, 256
              s_cbranch_scc1 L_END
              s_load_dwordx16 s[16:31], s[0:1], 0
              s_load_dwordx8 s[32:39], s[0:1], 64
              s_load_dwordx4 s[40:43], s[0:1], 96
              s_load_dwordx2 s[44:45], s[0:1], 112""")
        if self.o.get("stamps"):
            g(f"""s_memrealtime s[100:101]
                  s_waitcnt lgkmcnt(0)
                  s_mov_b32 {s(S_ST+12)}, s100""")
            for i in range(12): g(f"s_mov_b32 {s(S_ST+i)}, 0")
            self.stamp(0)
        g(f"""v_lshrrev_b32 v1, 6, v0
              v_and_b32 v0, 63, v0
              s_and_b32 {s(S_T0)}, s2, 7
              v_readfirstlane_b32 {s(S_WAVE)}, v1
              s_lshr_b32 {s(S_T1)}, s2, 3
              s_and_b32 {s(S_T2)}, {s(S_T1)}, 3
              s_lshr_b32 {s(S_NT)}, {s(S_T1)}, 2
              s_lshr_b32 {s(S_T3)}, {s(S_T0)}, 1
              s_lshl_b32 {s(S_MT)}, {s(S_T3)}, 2
              s_add_u32 {s(S_MT)}, {s(S_MT)}, {s(S_T2)}
              s_and_b32 {s(S_T4)}, {s(S_T0)}, 1
              s_lshl_b32 {s(S_G)}, {s(S_T4)}, 3
              s_add_u32 {s(S_G)}, {s(S_G)}, {s(S_NT)}
              s_lshl_b32 {s(S_RT)}, {s(S_T0)}, 2
              s_add_u32 {s(S_RT)}, {s(S_RT)}, {s(S_T2)}
              s_lshl_b32 {s(S_C0)}, {s(S_T4)}, 1
              s_add_u32 {s(S_C0)}, {s(S_C0)}, {s(S_T3)}
              s_lshl_b32 {s(S_C0)}, {s(S_C0)}, 1
              s_and_b32 {s(S_C0)}, {s(S_C0)}, 7
              s_and_b32 {s(S_WI)}, {s(S_WAVE)}, 3
              s_cmp_ge_u32 {s(S_WAVE)}, 4
              s_cbranch_scc0 L_SWAVE""")

    def epoch(self):
        g = self.g
        g(f"""s_add_u32 {s(S_EX)}, {s(P_WS)}, {hex(WS_EPOCH)}
              s_addc_u32 {s(S_EX+1)}, {s(P_WS+1)}, 0
              s_load_dword {s(S_TAG)}, {s(S_EX,2)}, 0""")
    def epoch_fin(self):
        self.g(f"""s_mul_i32 {s(S_TAG)}, {s(S_TAG)}, 0x9E3779B1
                   s_add_u32 {s(S_TAG)}, {s(S_TAG)}, 0x7F4A7C15""")

    def frag_pat(self, P, t0, t1, xor_wi):
        g = self.g
        g(f"""v_and_b32 {v(t0)}, 31, v0
              v_lshrrev_b32 {v(t1)}, 1, v0
              v_and_b32 {v(t1)}, 7, {v(t1)}
              v_lshrrev_b32 {v(P)}, 5, v0
              v_xor_b32 {v(t1)}, {v(t1)}, {v(P)}
              v_lshlrev_b32 {v(t1)}, 4, {v(t1)}
              v_lshl_or_b32 {v(P)}, {v(t0)}, 7, {v(t1)}""")
        if xor_wi:
            g(f"""s_lshl_b32 {s(S_U0)}, {s(S_WI)}, 5
                  v_xor_b32 {v(P)}, {s(S_U0)}, {v(P)}""")
        for k in (1, 2, 3):
            g(f"v_xor_b32 {v(P+k)}, {32*k}, {v(P)}")

    def lane8_pat(self, d, t0, t1):
        self.g(f"""v_lshrrev_b32 {v(t0)}, 3, v0
                   v_and_b32 {v(d)}, 7, v0
                   v_lshrrev_b32 {v(t1)}, 4, v0
                   v_xor_b32 {v(d)}, {v(d)}, {v(t1)}
                   v_lshlrev_b32 {v(d)}, 4, {v(d)}""")

    def fwave(self):
        g = self.g; o = self.o
        X = 128
        ACC = 80
        WF = 48
        VX, VB, VW = 2, 6, 8
        P, PB = 12, 16
        SX, SQ, CA, CB = 17, 18, 19, 20
        BT = 24
        T = 32
        WA = 12
        VCNT, VONE, VZ = 21, 22, 23
        NM, RS, NRS = 44, 11, 1
        CS = 17

        g.c("---------------- F wave: stage A loader ----------------")
        self.lane8_pat(T, T+1, T+2)
        g(f"""v_lshrrev_b32 {v(T+2)}, 2, {v(T+1)}
              v_lshlrev_b32 {v(T+2)}, 4, {v(T+2)}
              v_and_b32 {v(T+3)}, 3, {v(T+1)}
              v_add_u32 {v(T+2)}, {v(T+2)}, {v(T+3)}
              v_lshl_or_b32 {v(VX)}, {v(T+2)}, 10, {v(T)}
              v_add_u32 {v(VX+1)}, 3072, {v(VX)}
              v_xor_b32 {v(VX+1)}, 64, {v(VX+1)}
              v_add_u32 {v(VX+2)}, 6144, {v(VX)}
              v_add_u32 {v(VX+3)}, 6144, {v(VX+1)}
              v_lshl_or_b32 {v(VB)}, {v(T+1)}, 10, {v(T)}
              v_add_u32 {v(VB+1)}, 7168, {v(VB)}
              v_xor_b32 {v(VB+1)}, 64, {v(VB+1)}
              s_lshl_b32 {s(S_XO)}, {s(S_MT)}, 17
              s_lshl_b32 {s(S_T0)}, {s(S_WI)}, 15
              s_add_u32 {s(S_XO)}, {s(S_XO)}, {s(S_T0)}
              s_lshl_b32 {s(S_BO)}, {s(S_G)}, 15
              s_and_b32 {s(S_T0)}, {s(S_WI)}, 1
              s_lshl_b32 {s(S_T0)}, {s(S_T0)}, 14
              s_add_u32 {s(S_BO)}, {s(S_BO)}, {s(S_T0)}
              s_lshl_b32 {s(S_T3)}, {s(S_WI)}, 12
              s_lshl_b32 {s(S_T4)}, {s(S_WI)}, 11
              s_add_u32 {s(S_T4)}, {s(S_T4)}, 16384
              s_waitcnt lgkmcnt(0)""")
        srd(g, R_X, P_X, 2048 * 512 * 2)
        g(f"""s_cmp_ge_u32 {s(S_WI)}, 2
              s_cselect_b32 {s(R_A)}, {s(P_BIM)}, {s(P_BRE)}
              s_cselect_b32 {s(R_A+1)}, {s(P_BIM+1)}, {s(P_BRE+1)}
              s_mov_b32 {s(R_A+2)}, {hex(512*512*2)}
              s_mov_b32 {s(R_A+3)}, 0x20000""")

        def issue_x(c):
            slot = (c % 6) * SLOT
            g(f"""s_add_u32 {s(S_U0)}, {s(S_C0)}, {c}
                  s_and_b32 {s(S_U0)}, {s(S_U0)}, 7
                  s_lshl_b32 {s(S_U0)}, {s(S_U0)}, 7
                  s_add_u32 m0, {s(S_T3)}, {slot}
                  s_add_u32 {s(S_U1)}, {s(S_U0)}, {s(S_XO)}""")
            for e in range(4):
                g(f"buffer_load_dwordx4 {v(VX+e)}, {s(R_X,4)}, {s(S_U1)} offen offset:{1024*e} lds")
            g(f"""s_add_u32 m0, {s(S_T4)}, {slot}
                  s_add_u32 {s(S_U1)}, {s(S_U0)}, {s(S_BO)}""")
            for e in range(2):
                g(f"buffer_load_dwordx4 {v(VB+e)}, {s(R_A,4)}, {s(S_U1)} offen offset:{1024*e} lds")

        def issue_w(j):
            g(f"""s_add_u32 {s(S_U0)}, {s(S_C0)}, {j}
                  s_and_b32 {s(S_U0)}, {s(S_U0)}, 7
                  s_mul_i32 {s(S_U0)}, {s(S_U0)}, {64*2752}
                  s_add_u32 m0, {s(S_T2)}, {W1B + j*12288}
                  s_add_u32 {s(S_U1)}, {s(S_U0)}, {s(S_WO)}""")
            for e in range(3):
                g(f"buffer_load_dwordx4 {v(VW+e)}, {s(R_B,4)}, {s(S_U1)} offen offset:{1024*e} lds")

        issue_x(0); issue_x(1)
        self.stamp(1)
        self.epoch()
        srd(g, R_B, P_W1, 512 * 1376 * 2)
        srd(g, R_W2, P_W2, 1376 * 512 * 2)
        srd(g, R_WS, P_WS, WS_BYTES)
        g(f"s_mov_b32 {s(S_T0)}, 683")
        for e in range(3):
            g(f"""v_add_u32 {v(T)}, {64*e}, v0
                  v_mul_u32_u24 {v(T+1)}, {s(S_T0)}, {v(T)}
                  v_lshrrev_b32 {v(T+1)}, 13, {v(T+1)}
                  v_mul_u32_u24 {v(T+2)}, 12, {v(T+1)}
                  v_sub_u32 {v(T+2)}, {v(T)}, {v(T+2)}
                  v_mul_u32_u24 {v(T+1)}, 2752, {v(T+1)}
                  v_lshl_add_u32 {v(VW+e)}, {v(T+2)}, 4, {v(T+1)}""")
            if e: g(f"v_subrev_u32 {v(VW+e)}, {1024*e}, {v(VW+e)}")
        g(f"""s_lshr_b32 {s(S_T0)}, {s(S_G)}, 2
              s_mul_i32 {s(S_T1)}, {s(S_T0)}, 11
              s_and_b32 {s(S_T0)}, {s(S_G)}, 3
              s_mul_i32 {s(S_T0)}, {s(S_T0)}, 3
              s_add_u32 {s(S_T1)}, {s(S_T1)}, {s(S_T0)}
              s_lshl_b32 {s(S_WO)}, {s(S_T1)}, 6
              s_mul_i32 {s(S_T0)}, {s(S_WI)}, {16*2752}
              s_add_u32 {s(S_WO)}, {s(S_WO)}, {s(S_T0)}
              s_mul_i32 {s(S_T2)}, {s(S_WI)}, 3072
              s_mov_b32 {s(S_ONES)}, 0x3f803f80""")
        self.frag_pat(P, T, T+1, True)
        for k in range(4): g(f"v_add_u32 {v(P+k)}, {s(S_T3)}, {v(P+k)}")
        g(f"""v_lshl_add_u32 {v(PB)}, v0, 4, {s(S_T4)}
              v_mov_b32 {v(SX)}, 0
              v_mov_b32 {v(SQ)}, 0
              v_mov_b32 {v(CA)}, 0
              v_mov_b32 {v(CB)}, 0
              v_mov_b32 {v(VCNT)}, {L_CNT}
              v_mov_b32 {v(VONE)}, 1
              v_mov_b32 {v(VZ)}, 0
              s_waitcnt lgkmcnt(0)""")
        self.epoch_fin()

        def stats(c):
            for k in range(16):
                r = X + 16 * c + k
                g(f"""v_dot2c_f32_bf16 {v(SX)}, {s(S_ONES)}, {v(r)}
                      v_dot2c_f32_bf16 {v(SQ)}, {v(r)}, {v(r)}""")
        def csum():
            for k in range(4):
                g(f"""v_dot2c_f32_bf16 {v(CA)}, {s(S_ONES)}, {v(BT+k)}
                      v_dot2c_f32_bf16 {v(CB)}, {s(S_ONES)}, {v(BT+4+k)}""")

        for c in range(8):
            g.c(f"chunk {c}")
            if c + 2 < 8: issue_x(c + 2)
            else: issue_w(2 * (c - 6)); issue_w(2 * (c - 6) + 1)
            if c in (3, 6):
                op = "v_add_u32" if c == 3 else "v_subrev_u32"
                for k in range(5): g(f"{op} {v(P+k)}, {3*SLOT}, {v(P+k)}")
            g("s_waitcnt vmcnt(12)\ns_barrier")
            off = (c % 3) * SLOT
            g(f"""ds_read_b128 {v(BT,4)}, {v(PB)} offset:{off}
                  ds_read_b128 {v(BT+4,4)}, {v(PB)} offset:{off+1024}""")
            for k in range(4):
                g(f"ds_read_b128 {v(X+16*c+4*k,4)}, {v(P+k)} offset:{off}")
            g("s_waitcnt lgkmcnt(4)")
            csum()
            g("s_waitcnt lgkmcnt(0)")
            stats(c)
        self.stamp(2)
        g.c("row statistics")
        g(f"""s_nop 2
              v_mov_b32 {v(T)}, {v(SX)}
              v_mov_b32 {v(T+1)}, {v(SQ)}
              v_add_f32_dpp {v(CA)}, {v(CA)}, {v(CA)} quad_perm:[1,0,3,2] row_mask:0xf bank_mask:0xf
              v_add_f32_dpp {v(CB)}, {v(CB)}, {v(CB)} quad_perm:[1,0,3,2] row_mask:0xf bank_mask:0xf
              v_permlane32_swap_b32 {v(T)}, {v(SX)}
              v_permlane32_swap_b32 {v(T+1)}, {v(SQ)}
              v_add_f32_dpp {v(CA)}, {v(CA)}, {v(CA)} quad_perm:[2,3,0,1] row_mask:0xf bank_mask:0xf
              v_add_f32_dpp {v(CB)}, {v(CB)}, {v(CB)} quad_perm:[2,3,0,1] row_mask:0xf bank_mask:0xf
              v_add_f32 {v(SX)}, {v(SX)}, {v(T)}
              v_add_f32 {v(SQ)}, {v(SQ)}, {v(T+1)}
              v_add_f32_dpp {v(CA)}, {v(CA)}, {v(CA)} row_half_mirror row_mask:0xf bank_mask:0xf
              v_add_f32_dpp {v(CB)}, {v(CB)}, {v(CB)} row_half_mirror row_mask:0xf bank_mask:0xf
              v_mul_f32 {v(SX)}, 0x3b000000, {v(SX)}
              v_mul_f32 {v(SQ)}, 0x3b000000, {v(SQ)}
              v_fma_f32 {v(SQ)}, -{v(SX)}, {v(SX)}, {v(SQ)}
              v_max_f32 {v(SQ)}, 0, {v(SQ)}
              v_cvt_pk_bf16_f32 {v(NM)}, -{v(SX)}, -{v(SX)}
              v_cvt_pk_bf16_f32 {v(T)}, {v(SQ)}, {v(SQ)}
              v_and_b32 {v(T)}, 0xffff0000, {v(T)}
              v_add_f32 {v(T)}, 0x3727c5ac, {v(T)}
              v_cvt_pk_bf16_f32 {v(T)}, {v(T)}, {v(T)}
              v_and_b32 {v(T)}, 0xffff0000, {v(T)}
              v_sqrt_f32 {v(T)}, {v(T)}
              v_and_b32 {v(T+2)}, 1, v0
              v_cvt_pk_bf16_f32 {v(T+8)}, {v(SX)}, {v(T)}
              v_and_b32 {v(T)}, 0xffff0000, {v(T+8)}
              v_rcp_f32 {v(RS)}, {v(T)}
              v_cmp_eq_u32 vcc, 1, {v(T+2)}
              v_mov_b32 {v(NM+1)}, {v(NM)}
              v_mov_b32 {v(NM+2)}, 0
              v_cndmask_b32 {v(CA)}, {v(CA)}, {v(CB)}, vcc
              v_mov_b32 {v(NM+3)}, 0""")
        def split3(src, d0, d1, t0, t1):
            g(f"""v_and_b32 {v(t0)}, 0xffff0000, {v(src)}
                  v_sub_f32 {v(t1)}, {v(src)}, {v(t0)}
                  v_and_b32 {v(d0)}, 0xffff0000, {v(t1)}
                  v_sub_f32 {v(t1)}, {v(t1)}, {v(d0)}
                  v_lshrrev_b32 {v(t0)}, 16, {v(t0)}
                  v_or_b32 {v(d0)}, {v(d0)}, {v(t0)}
                  v_lshrrev_b32 {v(d1)}, 16, {v(t1)}""")
        split3(CA, T+4, T+5, T+1, T+3)
        g(f"""v_lshrrev_b32 {v(T+1)}, 3, v0
              v_lshl_add_u32 {v(T+1)}, {v(T+2)}, 3, {v(T+1)}
              s_lshl_b32 {s(S_U0)}, {s(S_WI)}, 7
              s_add_u32 {s(S_U1)}, {s(S_U0)}, {L_CSS}
              v_lshl_add_u32 {v(T+1)}, {v(T+1)}, 3, {s(S_U1)}
              ds_write_b64 {v(T+1)}, {v(T+4,2)}
              v_and_b32 {v(T+2)}, 31, v0
              s_add_u32 {s(S_U1)}, {s(S_U0)}, {L_NM}
              v_lshl_add_u32 {v(T+3)}, {v(T+2)}, 2, {s(S_U1)}
              ds_write_b32 {v(T+3)}, {v(NM)}
              v_and_b32 {v(T+6)}, 4, v0
              v_lshlrev_b32 {v(T+6)}, 2, {v(T+6)}
              v_lshrrev_b32 {v(T+7)}, 1, {v(T+2)}
              v_and_b32 {v(T+7)}, 12, {v(T+7)}
              v_and_b32 {v(T+2)}, 3, v0
              v_or3_b32 {v(T+9)}, {v(T+6)}, {v(T+7)}, {v(T+2)}
              s_add_u32 {s(S_U1)}, {s(S_U0)}, {L_RS}
              v_lshl_add_u32 {v(T+3)}, {v(T+9)}, 2, {s(S_U1)}
              ds_write_b32 {v(T+3)}, {v(RS)}
              s_waitcnt lgkmcnt(0)
              s_barrier""")
        self.stamp(3)
        for j in range(4, 8): issue_w(j)
        lskip = g.lab("NOST")
        g(f"""s_and_b32 {s(S_U0)}, {s(S_G)}, 3
              s_cmp_lg_u32 {s(S_U0)}, 0
              s_cbranch_scc1 {lskip}
              s_lshl_b32 {s(S_U0)}, {s(S_G)}, 11
              s_lshl_b32 {s(S_U1)}, {s(S_MT)}, 9
              s_add_u32 {s(S_U0)}, {s(S_U0)}, {s(S_U1)}
              s_lshl_b32 {s(S_U1)}, {s(S_WI)}, 7
              s_add_u32 {s(S_U0)}, {s(S_U0)}, {s(S_U1)}
              s_add_u32 {s(S_U0)}, {s(S_U0)}, {hex(WS_STATS)}
              v_lshlrev_b32 {v(T+9)}, 2, {v(T+9)}
              s_mov_b32 exec_hi, 0
              buffer_store_dword {v(T+8)}, {v(T+9)}, {s(R_WS,4)}, {s(S_U0)} offen sc1
              s_mov_b64 exec, -1
              s_branch {lskip}_b""")
        g(f"{lskip}:")
        g(f"buffer_load_dword {v(T+9)}, {v(VZ)}, {s(R_X,4)}, 0 offen")
        g(f"{lskip}_b:")
        g.c("---------------- F stage: w1 GEMM ----------------")
        g(f"""v_lshrrev_b32 {v(T)}, 5, v0
              v_bfe_u32 {v(T+1)}, v0, 2, 2
              v_lshl_add_u32 {v(T)}, {v(T)}, 3, {v(T+1)}
              v_mul_u32_u24 {v(T)}, 192, {v(T)}
              v_bfe_u32 {v(T+1)}, v0, 4, 1
              v_lshl_add_u32 {v(T)}, {v(T+1)}, 5, {v(T)}
              v_and_b32 {v(T+1)}, 3, v0
              v_lshl_add_u32 {v(T)}, {v(T+1)}, 3, {v(T)}
              v_mul_f32 {v(NRS)}, 0xbfb8aa3b, {v(RS)}
              v_mov_b32 {v(CS)}, 0
              v_mov_b32 {v(CS+1)}, 0
              v_mov_b32 {v(CS+2)}, 0""")
        for k in range(4):
            g(f"""s_xor_b32 {s(S_U0)}, {s(S_WI)}, {k}
                  s_mul_i32 {s(S_U0)}, {s(S_U0)}, 3072
                  s_add_u32 {s(S_U0)}, {s(S_U0)}, {W1B}
                  v_add_u32 {v(WA+k)}, {s(S_U0)}, {v(T)}""")
        def wread(dst, j, k, tile):
            off = (j % 4) * 12288 + tile * 64
            g(f"""ds_read_b64_tr_b16 {v(dst,2)}, {v(WA+k)} offset:{off}
                  ds_read_b64_tr_b16 {v(dst+2,2)}, {v(WA+k)} offset:{off+768}""")
        first = True
        for pr in range(4):
            g.c(f"w1 pair {pr}")
            g(f"s_waitcnt vmcnt({19 - 6*pr})")
            self.signal_cnt(C_W0 + 4*pr, VCNT, VONE)
            if pr == 2:
                for k in range(4): g(f"v_add_u32 {v(WA+k)}, {4*12288}, {v(WA+k)}")
            self.spin_cnt(C_W0 + 4*pr, VCNT, T)
            steps = [(j, k) for j in (2*pr, 2*pr+1) for k in range(4)]
            def rd(idx):
                j, k = steps[idx]; b = WF + 16 * (idx & 1)
                wread(b, j, k, 0); wread(b+4, j, k, 1)
                if k == 0: wread(b+8, j, k, 2)
                return 6 if k == 0 else 4
            rd(0)
            for idx, (j, k) in enumerate(steps):
                b = WF + 16 * (idx & 1)
                n = rd(idx + 1) if idx + 1 < 8 else 0
                g(f"s_waitcnt lgkmcnt({n})")
                xr = X + 16*j + 4*k
                for t in range(2):
                    cc = "0" if first else v(ACC+16*t, 16)
                    g(f"v_mfma_f32_32x32x16_bf16 {v(ACC+16*t,16)}, {v(b+4*t,4)}, {v(xr,4)}, {cc}")
                first = False
                if k == 0:
                    for q in range(4):
                        for t in range(3):
                            g(f"v_dot2c_f32_bf16 {v(CS+t)}, {s(S_ONES)}, {v(b+4*t+q)}")
        self.stamp(4)
        g(f"""s_lshl_b32 {s(S_U0)}, {s(S_WI)}, 2
              s_add_u32 {s(S_U0)}, {s(S_U0)}, {L_CSF}
              v_lshl_add_u32 {v(T)}, v0, 4, {s(S_U0)}
              v_lshlrev_b32 {v(T+1)}, 4, v0
              v_add_u32 {v(T+1)}, {L_CSF}, {v(T+1)}""")
        for t in range(3): g(f"ds_write_b32 {v(T)}, {v(CS+t)} offset:{1024*t}")
        self.signal_cnt(C_CSF, VCNT, VONE)
        for k in range(4): g(f"v_subrev_u32 {v(WA+k)}, {4*12288}, {v(WA+k)}")
        steps = [(j, k) for j in range(8) for k in range(4)]
        def rd2(idx):
            j, k = steps[idx]
            if idx == 16:
                for kk in range(4): g(f"v_add_u32 {v(WA+kk)}, {4*12288}, {v(WA+kk)}")
            wread(WF + 4 * (idx & 3), j, k, 2)
        for i in range(3): rd2(i)
        for idx, (j, k) in enumerate(steps):
            if idx + 3 < 32: rd2(idx + 3)
            g(f"s_waitcnt lgkmcnt({2*min(3, 31-idx)})")
            cc = "0" if idx == 0 else v(ACC+32, 16)
            g(f"v_mfma_f32_32x32x16_bf16 {v(ACC+32,16)}, {v(WF+4*(idx&3),4)}, {v(X+16*j+4*k,4)}, {cc}")
        self.signal_cnt(C_W1D, VCNT, VONE)
        rds = "\n".join(f"ds_read_b128 {v(WF+16+4*t,4)}, {v(T+1)} offset:{1024*t}" for t in range(3))
        self.spin_cnt(C_CSF, VCNT, T, rds)
        for t in range(3):
            b = WF + 16 + 4*t
            g(f"""v_add_f32 {v(b)}, {v(b)}, {v(b+1)}
                  v_add_f32 {v(b+2)}, {v(b+2)}, {v(b+3)}
                  v_add_f32 {v(b+2)}, {v(b)}, {v(b+2)}""")
            split3(b+2, b, b+1, T, T+2)
            g(f"""v_mov_b32 {v(b+2)}, 0
                  v_mov_b32 {v(b+3)}, 0
                  s_nop 1
                  v_mfma_f32_32x32x16_bf16 {v(ACC+16*t,16)}, {v(b,4)}, {v(NM,4)}, {v(ACC+16*t,16)}""")
        self.stamp(5)
        g.c("SiLU + store")
        g(f"""s_lshl_b32 {s(S_U0)}, {s(S_MT)}, 2
              s_add_u32 {s(S_U0)}, {s(S_U0)}, {s(S_WI)}
              s_mul_i32 {s(S_U0)}, {s(S_U0)}, {NKS}
              s_lshl_b32 {s(S_U1)}, {s(S_T1)}, 1
              s_add_u32 {s(S_U0)}, {s(S_U0)}, {s(S_U1)}
              s_add_u32 {s(S_U0)}, {s(S_U0)}, 64
              s_lshl_b32 {s(S_U2)}, {s(S_U0)}, 10
              v_lshlrev_b32 {v(PB)}, 4, v0
              s_nop 7""")
        lsk = g.lab("NOT2")
        for t in range(3):
            a = ACC + 16*t
            if t == 2:
                g(f"""s_and_b32 {s(S_U0)}, {s(S_G)}, 3
                      s_cmp_eq_u32 {s(S_U0)}, 3
                      s_cbranch_scc1 {lsk}
                      s_add_u32 {s(S_U2)}, {s(S_U2)}, 4096""")
            for hf in range(2):
                e = WF if hf == 0 else WF + 8
                rr = range(8*hf, 8*hf + 8)
                for i, r in enumerate(rr): g(f"v_mul_f32 {v(e+i)}, {v(NRS)}, {v(a+r)}")
                for i, r in enumerate(rr): g(f"v_exp_f32 {v(e+i)}, {v(e+i)}\nv_mul_f32 {v(a+r)}, {v(RS)}, {v(a+r)}")
                for i, r in enumerate(rr): g(f"v_add_f32 {v(e+i)}, 1.0, {v(e+i)}")
                for i, r in enumerate(rr): g(f"v_rcp_f32 {v(e+i)}, {v(e+i)}")
                for i, r in enumerate(rr): g(f"v_mul_f32 {v(a+r)}, {v(a+r)}, {v(e+i)}")
                d = T + 4*hf
                for i in range(4): g(f"v_cvt_pk_bf16_f32 {v(d+i)}, {v(a+8*hf+2*i)}, {v(a+8*hf+2*i+1)}")
                g(f"buffer_store_dwordx4 {v(d,4)}, {v(PB)}, {s(R_WS,4)}, {s(S_U2)} offen offset:{((2*t+hf)&3)*1024} sc1")
        g(f"{lsk}:")
        self.stamp(6)
        self.set_flag(WS_FLAGF, VZ, T+8)
        self.stamp(7)

        g.c("---------------- F phase 2 ----------------")
        A2 = 176
        BR = 96
        AB = 48
        BTm = 240
        VD = 2
        WB = 6
        VA = 8
        NR = 10
        g(f"""v_lshrrev_b32 {v(T)}, 3, v0
              v_and_b32 {v(T+1)}, 7, v0
              v_bfe_u32 {v(T+2)}, v0, 4, 1
              v_lshlrev_b32 {v(T+2)}, 2, {v(T+2)}
              v_xor_b32 {v(T+1)}, {v(T+1)}, {v(T+2)}
              v_lshlrev_b32 {v(T+1)}, 4, {v(T+1)}
              v_lshl_or_b32 {v(VD)}, {v(T)}, 10, {v(T+1)}
              v_add_u32 {v(VD+1)}, 7168, {v(VD)}
              v_add_u32 {v(VD+2)}, {2*7168}, {v(VD)}
              v_add_u32 {v(VD+3)}, {3*7168}, {v(VD)}
              s_mul_i32 {s(S_WO)}, {s(S_WI)}, {352*1024}
              s_lshl_b32 {s(S_U0)}, {s(S_NT)}, 7
              s_add_u32 {s(S_WO)}, {s(S_WO)}, {s(S_U0)}
              s_mul_i32 {s(S_T2)}, {s(S_WI)}, {SLOT}
              s_add_u32 {s(S_T2)}, {s(S_T2)}, {W1B}""")
        g(f"""v_lshrrev_b32 {v(T)}, 5, v0
              v_bfe_u32 {v(T+1)}, v0, 2, 2
              v_lshl_add_u32 {v(T)}, {v(T)}, 2, {v(T+1)}
              v_lshlrev_b32 {v(T)}, 7, {v(T)}
              v_bfe_u32 {v(T+1)}, v0, 3, 1
              s_and_b32 {s(S_U0)}, {s(S_WI)}, 1
              v_xor_b32 {v(T+1)}, {s(S_U0)}, {v(T+1)}
              v_lshl_add_u32 {v(T)}, {v(T+1)}, 6, {v(T)}
              v_bfe_u32 {v(T+1)}, v0, 4, 1
              v_lshl_add_u32 {v(T)}, {v(T+1)}, 5, {v(T)}
              v_and_b32 {v(T+1)}, 3, v0
              v_lshl_add_u32 {v(T)}, {v(T+1)}, 3, {v(T)}
              v_add_u32 {v(WB)}, {s(S_T2)}, {v(T)}
              v_xor_b32 {v(WB+1)}, 64, {v(WB)}""")
        self.spin_cnt(C_W1D, VCNT, T)
        def issue_w2(ks0, n, lds0):
            for i in range(0, n, 2):
                g(f"""s_add_u32 m0, {s(S_T2)}, {lds0 + i*2048}
                      s_add_u32 {s(S_U1)}, {s(S_WO)}, {(ks0+i)*16384}""")
                for e in range(4):
                    g(f"buffer_load_dwordx4 {v(VD+e)}, {s(R_W2,4)}, {s(S_U1)} offen offset:{1024*e} lds")
        def bread(dst, lks):
            for ct in range(2):
                for u in range(2):
                    g(f"ds_read_b64_tr_b16 {v(dst+4*ct+2*u,2)}, {v(WB+ct)} offset:{lks*2048+u*1024}")
        issue_w2(0, NR, 0)
        g("s_waitcnt vmcnt(0)")
        for ks in range(NR):
            bread(BR + 8*ks, ks)
            if ks % 3 == 2: g("s_waitcnt lgkmcnt(0)")
        g("s_waitcnt lgkmcnt(0)")
        issue_w2(NR, 22 - NR, 0)
        self.a_setup(VA, 64, 22, T)
        g(f"v_and_b32 {v(T+1)}, 7, v0\nv_lshlrev_b32 {v(T+1)}, 2, {v(T+1)}")
        self.stamp(8)
        self.poll_flags(WS_FLAGF, T+1, T)
        self.stamp(9)
        def bsrc(ks):
            return BR + 8*ks if ks < NR else BTm + 8*(ks & 1)
        def pre(ks):
            if ks + 1 >= NR and ks + 1 < 22: bread(BTm + 8*((ks+1) & 1), ks + 1 - NR)
            if ks >= NR: g(f"s_waitcnt lgkmcnt({4 if ks + 1 < 22 else 0})")
        self.p2_loop(22, VA, AB, A2, bsrc, pre)
        self.stamp(10)
        g.c("F: dump partials, residual, pre-reduce")
        XR = 96; ST = 112; DS = 128
        g(f"""s_lshr_b32 {s(S_U0)}, {s(S_WI)}, 1
              s_lshl_b32 {s(S_U1)}, {s(S_RT)}, 1
              s_add_u32 {s(S_U0)}, {s(S_U0)}, {s(S_U1)}
              s_lshl_b32 {s(S_U1)}, {s(S_NT)}, 7
              s_and_b32 {s(S_U2)}, {s(S_WI)}, 1
              s_lshl_b32 {s(S_U2)}, {s(S_U2)}, 6
              s_add_u32 {s(S_U1)}, {s(S_U1)}, {s(S_U2)}
              s_lshl_b32 {s(S_U2)}, {s(S_U0)}, 15
              s_add_u32 {s(S_U2)}, {s(S_U2)}, {s(S_U1)}
              v_and_b32 {v(T)}, 31, v0
              v_lshlrev_b32 {v(T)}, 1, {v(T)}
              v_lshrrev_b32 {v(T+1)}, 5, v0
              v_lshl_add_u32 {v(T+2)}, {v(T+1)}, 14, {v(T)}
              v_add_u32 {v(T)}, {s(S_U1)}, {v(T)}
              v_lshlrev_b32 {v(T+1)}, 6, {v(T+1)}
              global_load_ushort {v(DS)}, {v(T)}, {s(P_DSK,2)}""")
        for r in range(16):
            if r and r % 4 == 0: g(f"s_add_u32 {s(S_U2)}, {s(S_U2)}, 4096")
            g(f"buffer_load_ushort {v(XR+r)}, {v(T+2)}, {s(R_X,4)}, {s(S_U2)} offen offset:{(r%4)*1024}")
        g(f"""s_lshl_b32 {s(S_U0)}, {s(S_U0)}, 7
              s_lshl_b32 {s(S_U1)}, {s(S_WI)}, 13
              s_add_u32 {s(S_U0)}, {s(S_U0)}, {s(S_U1)}
              s_add_u32 {s(S_U0)}, {s(S_U0)}, {hex(WS_STATS)}""")
        for k in range(4):
            g(f"buffer_load_dwordx4 {v(ST+4*k,4)}, {v(T+1)}, {s(R_WS,4)}, {s(S_U0)} offen offset:{16*k} sc1")
        g(f"v_lshl_add_u32 {v(T+3)}, v0, 4, {s(S_T2)}")
        for sl in range(1, 4):
            for q in range(4):
                g(f"ds_write_b128 {v(T+3)}, {v(A2+16*sl+4*q,4)} offset:{(sl-1)*4096+q*1024}")
        self.signal_cnt(C_FD, VCNT, VONE)
        g(f"s_waitcnt vmcnt(0)\nv_lshlrev_b32 {v(DS)}, 16, {v(DS)}")
        for r in range(16):
            x, st, t = XR + r, ST + r, T + 4 + 2*(r & 1)
            g(f"""v_lshlrev_b32 {v(x)}, 16, {v(x)}
                  v_lshlrev_b32 {v(t)}, 16, {v(st)}
                  v_and_b32 {v(st)}, 0xffff0000, {v(st)}
                  v_rcp_f32 {v(st)}, {v(st)}
                  v_sub_f32 {v(t)}, {v(x)}, {v(t)}
                  v_cvt_pk_bf16_f32 {v(t)}, {v(t)}, {v(t)}
                  v_and_b32 {v(t)}, 0xffff0000, {v(t)}
                  v_mul_f32 {v(t)}, {v(t)}, {v(st)}
                  v_cvt_pk_bf16_f32 {v(t)}, {v(t)}, {v(t)}
                  v_and_b32 {v(t)}, 0xffff0000, {v(t)}
                  v_mul_f32 {v(t)}, {v(t)}, {v(DS)}
                  v_cvt_pk_bf16_f32 {v(t)}, {v(t)}, {v(t)}
                  v_and_b32 {v(t)}, 0xffff0000, {v(t)}
                  v_add_f32 {v(x)}, {v(x)}, {v(t)}
                  v_add_f32 {v(A2+r)}, {v(A2+r)}, {v(x)}""")
        self.spin_cnt(C_FD, VCNT, T)
        self.gather3(W1B, SLOT, AB, T)
        for d in range(3):
            g(f"s_waitcnt lgkmcnt({8-4*d})")
            for r in range(16): g(f"v_add_f32 {v(A2+r)}, {v(A2+r)}, {v(AB+16*d+r)}")
        for q in range(4):
            g(f"ds_write_b128 {v(T+3)}, {v(A2+4*q,4)} offset:{12288+q*1024}")
        g("s_waitcnt lgkmcnt(0)\ns_barrier")
        self.stamp(11)
        self.stamps_out(T, 'F')
        g("s_endpgm")

    def gather3(self, base, stride, dst, T):
        g = self.g
        for d in range(1, 4):
            g(f"""s_xor_b32 {s(S_U0)}, {s(S_WI)}, {d}
                  s_mul_i32 {s(S_U0)}, {s(S_U0)}, {stride}
                  s_add_u32 {s(S_U0)}, {s(S_U0)}, {base + (d-1)*4096}
                  v_lshl_add_u32 {v(T)}, v0, 4, {s(S_U0)}""")
            for q in range(4):
                g(f"ds_read_b128 {v(dst+16*(d-1)+4*q,4)}, {v(T)} offset:{q*1024}")

    def a_setup(self, VA, ks_base, per_wave, T):
        g = self.g
        g(f"""s_lshr_b32 {s(S_U0)}, {s(S_WI)}, 1
              s_mul_i32 {s(S_U1)}, {s(S_U0)}, {NKS*1024}
              s_sub_u32 {s(S_U2)}, {NKS*1024}, {s(S_U1)}
              v_lshl_add_u32 {v(VA)}, v0, 4, {s(S_U1)}
              v_lshl_add_u32 {v(VA+1)}, v0, 4, {s(S_U2)}
              s_mul_i32 {s(S_XO)}, {s(S_RT)}, {2*NKS}
              s_mul_i32 {s(S_U0)}, {s(S_WI)}, {per_wave}
              s_add_u32 {s(S_XO)}, {s(S_XO)}, {s(S_U0)}
              s_add_u32 {s(S_XO)}, {s(S_XO)}, {ks_base}
              s_lshl_b32 {s(S_XO)}, {s(S_XO)}, 10""")

    def p2_loop(self, n, VA, AB, A2, bsrc, pre):
        g = self.g
        D = 6
        def aload(ks):
            if ks and ks % 4 == 0: g(f"s_add_u32 {s(S_XO)}, {s(S_XO)}, 4096")
            for rb in range(2):
                g(f"buffer_load_dwordx4 {v(AB+8*(ks%D)+4*rb,4)}, {v(VA+rb)}, {s(R_WS,4)}, {s(S_XO)} offen offset:{(ks%4)*1024} sc1")
        for ks in range(D): aload(ks)
        for ks in range(n):
            pre(ks)
            g(f"s_waitcnt vmcnt({2*(min(n, ks+D) - ks - 1)})")
            for rb in range(2):
                for ct in range(2):
                    d = A2 + 16*(2*rb+ct)
                    cc = "0" if ks == 0 else v(d, 16)
                    g(f"v_mfma_f32_32x32x16_bf16 {v(d,16)}, {v(AB+8*(ks%D)+4*rb,4)}, {v(bsrc(ks)+4*ct,4)}, {cc}")
            if ks + D < n: aload(ks + D)
        g("s_nop 7\ns_nop 7")

    def swave(self):
        g = self.g; o = self.o
        BR = 128
        UR, UI = 96, 112
        FR = 48
        XA, BA = 2, 6
        LA, LB = 10, 11
        L16, L128, W0, KA, GS = 12, 14, 16, 18, 20
        VCNT, VONE, VZ = 22, 23, 24
        SEGV = 25
        T = 28
        g("L_SWAVE:")
        g.c("---------------- S wave ----------------")
        if o.get("sprio", 1): g("s_setprio 2")
        g(f"""v_and_b32 {v(T)}, 31, v0
              v_lshlrev_b32 {v(T)}, 1, {v(T)}
              s_lshl_b32 {s(S_T0)}, {s(S_G)}, 6
              v_add_u32 {v(T)}, {s(S_T0)}, {v(T)}
              v_mov_b32 {v(VCNT)}, {L_CNT}
              v_mov_b32 {v(VONE)}, 1
              v_mov_b32 {v(VZ)}, 0
              v_lshlrev_b32 {v(T+4)}, 2, v0
              v_add_u32 {v(T+4)}, {L_CNT}, {v(T+4)}
              s_waitcnt lgkmcnt(0)
              global_load_ushort {v(T+1)}, {v(T)}, {s(P_LRE,2)}
              global_load_ushort {v(T+2)}, {v(T)}, {s(P_LIM,2)}
              global_load_ushort {v(T+3)}, {v(T)}, {s(P_LDT,2)}
              ds_write_b32 {v(T+4)}, {v(VZ)}""")
        self.epoch()
        srd(g, R_A, P_CRE, 512*512*2); srd(g, R_B, P_CIM, 512*512*2)
        srd(g, R_WS, P_WS, WS_BYTES); srd(g, R_OUT, P_OUT, 2048*512*4)
        self.frag_pat(BA, T+4, T+5, False)
        g(f"s_lshl_b32 {s(S_T3)}, {s(S_WI)}, 12")
        for k in range(4):
            g(f"v_add_u32 {v(XA+k)}, {s(S_T3)}, {v(BA+k)}\nv_add_u32 {v(BA+k)}, 16384, {v(BA+k)}")
        for r in range(32): g(f"v_mov_b32 {v(UR+r)}, 0")
        for r in range(24): g(f"v_mov_b32 {v(FR+24+r)}, 0")
        g(f"""v_lshrrev_b32 {v(SEGV)}, 5, v0
              s_lshl_b32 {s(S_T0)}, {s(S_WI)}, 1
              v_add_u32 {v(SEGV)}, {s(S_T0)}, {v(SEGV)}
              s_waitcnt vmcnt(0) lgkmcnt(0)""")
        self.epoch_fin()
        lr, li, dt = T+1, T+2, T+3
        g(f"""v_lshlrev_b32 {v(lr)}, 16, {v(lr)}
              v_lshlrev_b32 {v(li)}, 16, {v(li)}
              v_lshlrev_b32 {v(dt)}, 16, {v(dt)}
              v_mul_f32 {v(dt)}, 0x3fb8aa3b, {v(dt)}
              v_exp_f32 {v(dt)}, {v(dt)}
              s_nop 0
              v_cvt_pk_bf16_f32 {v(dt)}, {v(dt)}, {v(dt)}
              v_and_b32 {v(dt)}, 0xffff0000, {v(dt)}
              v_mul_f32 {v(T+4)}, {v(dt)}, {v(lr)}
              v_mul_f32 {v(T+5)}, {v(dt)}, {v(li)}
              v_mul_f32 {v(T+4)}, 0x3fb8aa3b, {v(T+4)}
              v_mul_f32 {v(T+5)}, 0.15915494, {v(T+5)}
              v_rndne_f32 {v(T+6)}, {v(T+5)}
              v_sub_f32 {v(T+5)}, {v(T+5)}, {v(T+6)}
              v_exp_f32 {v(T+4)}, {v(T+4)}
              v_cos_f32 {v(T+6)}, {v(T+5)}
              v_sin_f32 {v(T+7)}, {v(T+5)}
              v_mul_f32 {v(T+8)}, {v(lr)}, {v(lr)}
              v_mul_f32 {v(LA)}, {v(T+4)}, {v(T+6)}
              v_mul_f32 {v(LB)}, {v(T+4)}, {v(T+7)}
              v_fmac_f32 {v(T+8)}, {v(li)}, {v(li)}
              v_rcp_f32 {v(T+8)}, {v(T+8)}
              v_add_f32 {v(T+4)}, -1.0, {v(LA)}
              v_mul_f32 {v(KA)}, {v(T+4)}, {v(lr)}
              v_mul_f32 {v(KA+1)}, {v(LB)}, {v(lr)}
              v_fmac_f32 {v(KA)}, {v(LB)}, {v(li)}
              v_fma_f32 {v(KA+1)}, -{v(T+4)}, {v(li)}, {v(KA+1)}
              v_add_f32 {v(T+8)}, {v(T+8)}, {v(T+8)}
              v_mul_f32 {v(KA)}, {v(KA)}, {v(T+8)}
              v_mul_f32 {v(KA+1)}, {v(KA+1)}, {v(T+8)}""")
        a, b, c2, d2 = T, T+2, T+4, T+6
        sq = lambda d, x: self.cmul(d, d+1, x, x+1, x, x+1)
        sq(a, LA); sq(b, a); sq(a, b); sq(L16, a)
        sq(a, L16); sq(b, a); sq(L128, b)
        g(f"""v_cmp_lt_u32 vcc, 31, v0
              s_nop 1
              v_cndmask_b32 {v(c2)}, 1.0, {v(L16)}, vcc
              v_cndmask_b32 {v(c2+1)}, 0, {v(L16+1)}, vcc
              s_bitcmp1_b32 {s(S_WI)}, 0
              s_cselect_b64 vcc, -1, 0
              v_cndmask_b32 {v(a)}, 1.0, {v(a)}, vcc
              v_cndmask_b32 {v(a+1)}, 0, {v(a+1)}, vcc
              s_bitcmp1_b32 {s(S_WI)}, 1
              s_cselect_b64 vcc, -1, 0
              v_cndmask_b32 {v(b)}, 1.0, {v(b)}, vcc
              v_cndmask_b32 {v(b+1)}, 0, {v(b+1)}, vcc""")
        self.cmul(d2, d2+1, c2, c2+1, a, a+1)
        self.cmul(c2, c2+1, d2, d2+1, b, b+1)
        self.cmul(GS, GS+1, c2, c2+1, KA, KA+1)
        sq(a, c2); sq(b, a); sq(a, b); sq(W0, a)
        self.stamp(1)
        g.c("stage A loop")
        def rd(k):
            f = FR + 12*k
            g(f"""ds_read_b128 {v(f,4)}, {v(XA+k)}
                  ds_read_b128 {v(f+4,4)}, {v(BA+k)}
                  ds_read_b128 {v(f+8,4)}, {v(BA+k)} offset:4096""")
        def mm(k):
            f = FR + 12*k
            g(f"""v_mfma_f32_32x32x16_bf16 {v(UR,16)}, {v(f,4)}, {v(f+4,4)}, {v(UR,16)}
                  v_mfma_f32_32x32x16_bf16 {v(UI,16)}, {v(f,4)}, {v(f+8,4)}, {v(UI,16)}""")
        g(f"s_mov_b32 {s(S_T0)}, 0\ns_mov_b32 {s(S_T2)}, {SLOT}")
        g("L_SA:")
        g("s_barrier")
        rd(0); rd(1)
        g("s_waitcnt lgkmcnt(6)")
        mm(2); mm(3)
        rd(2); rd(3)
        g(f"""s_add_u32 {s(S_T0)}, {s(S_T0)}, 1
              s_cmp_eq_u32 {s(S_T0)}, 6
              s_cselect_b32 {s(S_T1)}, {-5*SLOT & 0xffffffff}, {s(S_T2)}
              s_waitcnt lgkmcnt(9)""")
        mm(0)
        g("s_waitcnt lgkmcnt(6)")
        mm(1)
        for k in range(8): g(f"v_add_u32 {v(XA+k)}, {s(S_T1)}, {v(XA+k)}")
        g(f"""s_cmp_lt_u32 {s(S_T0)}, 8
              s_cbranch_scc1 L_SA
              s_waitcnt lgkmcnt(0)""")
        mm(2); mm(3)
        self.stamp(2)
        g(f"""v_and_b32 {v(T)}, 31, v0
              s_lshl_b32 {s(S_U0)}, {s(S_WI)}, 7
              s_add_u32 {s(S_U1)}, {s(S_U0)}, {L_NM}
              v_lshl_add_u32 {v(T+1)}, {v(T)}, 2, {s(S_U1)}
              v_lshlrev_b32 {v(T+2)}, 3, {v(T)}
              v_add_u32 {v(T+2)}, {L_CSS}, {v(T+2)}
              v_lshlrev_b32 {v(T+3)}, 6, {v(SEGV)}
              v_add_u32 {v(T+3)}, {L_RS}, {v(T+3)}
              v_mov_b32 {v(FR+2)}, 0
              v_mov_b32 {v(FR+3)}, 0
              v_mov_b32 {v(FR+6)}, 0
              v_mov_b32 {v(FR+7)}, 0
              v_mov_b32 {v(FR+10)}, 0
              v_mov_b32 {v(FR+11)}, 0
              v_cmp_gt_u32 vcc, 32, v0
              s_barrier
              ds_read_b32 {v(FR)}, {v(T+1)}
              ds_read_b64 {v(FR+4,2)}, {v(T+2)}
              ds_read_b64 {v(FR+8,2)}, {v(T+2)} offset:256""")
        RSV = FR + 12
        for k in range(4): g(f"ds_read_b128 {v(RSV+4*k,4)}, {v(T+3)} offset:{16*k}")
        g(f"""s_waitcnt lgkmcnt(4)
              v_cndmask_b32 {v(FR)}, 0, {v(FR)}, vcc
              v_mov_b32 {v(FR+1)}, {v(FR)}
              s_nop 1""")
        mm(0)
        self.stamp(3)
        g(f"""v_lshlrev_b32 {v(T+4)}, 3, {v(T)}
              v_add_u32 {v(T+4)}, {L_SEG}, {v(T+4)}
              v_lshl_add_u32 {v(T+5)}, {v(SEGV)}, 8, {v(T+4)}
              s_waitcnt lgkmcnt(0)
              s_nop 7
              s_nop 3""")
        for r in range(16): g(f"v_mul_f32 {v(UR+r)}, {v(UR+r)}, {v(RSV+r)}")
        for r in range(16): g(f"v_mul_f32 {v(UI+r)}, {v(UI+r)}, {v(RSV+r)}")
        e0, e1 = T+6, T+8
        cur = (UR, UI)
        for r in range(1, 16):
            d = e0 if r & 1 else e1
            self.cfma(d, d+1, LA, LB, cur[0], cur[1], UR+r, UI+r)
            cur = (d, d+1)
        g(f"ds_write_b64 {v(T+5)}, {v(e0,2)}")
        self.signal_cnt(C_S1, VCNT, VONE)
        E = FR
        rds = "\n".join(f"ds_read_b64 {v(E+2*k,2)}, {v(T+4)} offset:{256*k}" for k in range(8))
        self.spin_cnt(C_S1, VCNT, T+6, rds)
        for k in range(1, 8):
            self.cfma(E+2*k, E+2*k+1, L16, L16+1, E+2*k-2, E+2*k-1, E+2*k, E+2*k+1)
        lnp = g.lab("NOPUB")
        g(f"""v_lshlrev_b32 {v(T+6)}, 4, {v(T)}
              s_lshl_b32 {s(S_T4)}, {s(S_G)}, 13
              s_add_u32 {s(S_T4)}, {s(S_T4)}, {hex(WS_AGG)}
              s_cmp_lg_u32 {s(S_WI)}, 0
              s_cbranch_scc1 {lnp}
              v_mov_b32 {v(E+16)}, {s(S_TAG)}
              v_mov_b32 {v(E+17)}, {s(S_TAG)}
              s_lshl_b32 {s(S_U0)}, {s(S_MT)}, 9
              s_add_u32 {s(S_U0)}, {s(S_U0)}, {s(S_T4)}
              s_mov_b32 exec_hi, 0
              buffer_store_dwordx4 {v(E+14,4)}, {v(T+6)}, {s(R_WS,4)}, {s(S_U0)} offen sc1
              s_mov_b64 exec, -1""")
        g(f"{lnp}:")
        self.stamp(4)
        VD = 2
        PC = BA
        self.lane8_pat(T+8, T+9, T+10)
        g(f"""v_lshl_or_b32 {v(VD)}, {v(T+9)}, 10, {v(T+8)}
              v_add_u32 {v(VD+1)}, 7168, {v(VD)}
              v_xor_b32 {v(VD+1)}, 64, {v(VD+1)}
              v_add_u32 {v(VD+2)}, {2*7168}, {v(VD)}
              v_add_u32 {v(VD+3)}, {2*7168}, {v(VD+1)}
              s_mul_i32 {s(S_T2)}, {s(S_WI)}, 12288
              s_sub_u32 {s(S_U0)}, {s(S_T2)}, {16384 + 2*SLOT}
              s_lshl_b32 {s(S_WO)}, {s(S_NT)}, 16
              s_lshl_b32 {s(S_U1)}, {s(S_WI)}, 8
              s_add_u32 {s(S_WO)}, {s(S_WO)}, {s(S_U1)}
              s_and_b32 {s(S_U1)}, {s(S_WI)}, 1
              s_lshl_b32 {s(S_U1)}, {s(S_U1)}, 15
              s_xor_b32 {s(S_BO)}, {s(S_U1)}, 0x8000
              s_add_u32 {s(S_BO)}, {s(S_BO)}, {s(S_WO)}
              s_add_u32 {s(S_WO)}, {s(S_WO)}, {s(S_U1)}""")
        for k in range(4): g(f"v_add_u32 {v(PC+k)}, {s(S_U0)}, {v(PC+k)}")
        hps = [(part, kh, ct) for kh in range(2) for part in range(2) for ct in range(2)]
        def c_issue(i):
            part, kh, ct = hps[i]
            g(f"""s_add_u32 m0, {s(S_T2)}, {(i%3)*4096}
                  s_add_u32 {s(S_U1)}, {s(S_BO if ct else S_WO)}, {128*kh}""")
            for e in range(4):
                g(f"buffer_load_dwordx4 {v(VD+e)}, {s(R_B if part else R_A,4)}, {s(S_U1)} offen offset:{1024*e} lds")
        def c_read(i):
            part, kh, ct = hps[i]
            for k in range(4):
                gi = 2*kh + (k >> 1); cb = k & 1
                ks = 4*gi + 2*part + cb
                g(f"ds_read_b128 {v(BR+8*ks+4*ct,4)}, {v(PC+k)} offset:{(i%3)*4096}")
        for i in range(3): c_issue(i)
        PP = T+8
        g(f"v_mov_b32 {v(PP)}, 0\nv_mov_b32 {v(PP+1)}, 0")
        for k in range(1, 8):
            g(f"""v_cmp_eq_u32 vcc, {k}, {v(SEGV)}
                  s_nop 1
                  v_cndmask_b32 {v(PP)}, {v(PP)}, {v(E+2*k-2)}, vcc
                  v_cndmask_b32 {v(PP+1)}, {v(PP+1)}, {v(E+2*k-1)}, vcc""")
        PK = T+10
        self.cmul(PK, PK+1, KA, KA+1, PP, PP+1)
        for r in range(16):
            t = T+12 + (r & 1)
            g(f"""v_mul_f32 {v(t)}, {v(KA+1)}, {v(UR+r)}
                  v_mul_f32 {v(UR+r)}, {v(KA)}, {v(UR+r)}
                  v_fma_f32 {v(UR+r)}, -{v(KA+1)}, {v(UI+r)}, {v(UR+r)}
                  v_fma_f32 {v(UI+r)}, {v(KA)}, {v(UI+r)}, {v(t)}""")
        LBn = FR + 20
        g(f"""v_lshlrev_b32 {v(T+12)}, 1, {v(SEGV)}
              v_sub_u32 {v(T+12)}, {s(S_MT)}, {v(T+12)}
              v_cmp_le_i32 {s(S_EX,2)}, 1, {v(T+12)}
              v_cmp_le_i32 {s(S_MK,2)}, 2, {v(T+12)}
              v_subrev_u32 {v(T+13)}, 1, {v(T+12)}
              v_subrev_u32 {v(T+14)}, 2, {v(T+12)}
              v_max_i32 {v(T+13)}, 0, {v(T+13)}
              v_max_i32 {v(T+14)}, 0, {v(T+14)}
              v_lshl_add_u32 {v(T+13)}, {v(T+13)}, 9, {v(T+6)}
              v_lshl_add_u32 {v(T+14)}, {v(T+14)}, 9, {v(T+6)}""")
        for k in range(8): g(f"v_mov_b32 {v(LBn+k)}, 0")
        self.stamp(5)
        l = g.lab("LB"); d = g.lab("LBD")
        g(f"""s_mov_b32 {s(S_SPIN)}, 0x40000
              s_cmp_eq_u64 {s(S_EX,2)}, 0
              s_cbranch_scc1 {d}""")
        g(f"{l}:")
        g(f"""s_mov_b64 exec, {s(S_EX,2)}
              buffer_load_dwordx4 {v(LBn,4)}, {v(T+13)}, {s(R_WS,4)}, {s(S_T4)} offen sc1
              buffer_load_dwordx4 {v(LBn+4,4)}, {v(T+14)}, {s(R_WS,4)}, {s(S_T4)} offen sc1
              s_waitcnt vmcnt(0)
              v_cmp_ne_u32 vcc, {s(S_TAG)}, {v(LBn+2)}
              v_cmp_ne_u32 s[100:101], {s(S_TAG)}, {v(LBn+6)}
              s_mov_b64 exec, -1
              s_sub_u32 {s(S_SPIN)}, {s(S_SPIN)}, 1
              s_cbranch_scc1 {d}
              s_or_b64 vcc, vcc, s[100:101]
              s_cbranch_scc0 {d}
              s_sleep {o.get('lb_sleep', 2)}
              s_branch {l}""")
        g(f"{d}:")
        self.stamp(6)
        g(f"""v_cndmask_b32 {v(LBn+4)}, 0, {v(LBn+4)}, {s(S_MK,2)}
              v_cndmask_b32 {v(LBn+5)}, 0, {v(LBn+5)}, {s(S_MK,2)}""")
        self.cfma(LBn, LBn+1, L128, L128+1, LBn+4, LBn+5, LBn, LBn+1)
        self.cmul(LBn+2, LBn+3, W0, W0+1, LBn, LBn+1)
        g(f"""v_add_u32 {v(T+5)}, {L_LBP - L_SEG}, {v(T+5)}
              v_add_u32 {v(T+4)}, {L_LBP - L_SEG}, {v(T+4)}
              ds_write_b64 {v(T+5)}, {v(LBn+2,2)}""")
        self.signal_cnt(C_S2, VCNT, VONE)
        self.spin_cnt(C_S2, VCNT, T+12, rds)
        for w in (4, 2, 1):
            for k in range(w):
                g(f"v_add_f32 {v(E+2*k)}, {v(E+2*k)}, {v(E+2*k+2*w)}\nv_add_f32 {v(E+2*k+1)}, {v(E+2*k+1)}, {v(E+2*k+2*w+1)}")
        self.cfma(PK, PK+1, GS, GS+1, E, E+1, PK, PK+1)
        cur = (PK, PK+1)
        for r in range(16):
            self.cfma(UR+r, UI+r, LA, LB, cur[0], cur[1], UR+r, UI+r)
            cur = (UR+r, UI+r)
        H = FR
        for i in range(8): g(f"v_cvt_pk_bf16_f32 {v(H+i)}, {v(UR+2*i)}, {v(UR+2*i+1)}")
        for i in range(8): g(f"v_cvt_pk_bf16_f32 {v(H+8+i)}, -{v(UI+2*i)}, -{v(UI+2*i+1)}")
        g(f"""s_lshl_b32 {s(S_U0)}, {s(S_WI)}, 11
              s_add_u32 {s(S_U0)}, {s(S_U0)}, {L_TR}
              v_lshl_add_u32 {v(T+1)}, {v(T)}, 6, {s(S_U0)}
              v_and_b32 {v(T+2)}, 32, v0
              v_add_u32 {v(T+1)}, {v(T+1)}, {v(T+2)}
              v_lshlrev_b32 {v(T+2)}, 4, {v(T+2)}
              v_bfe_u32 {v(T+3)}, v0, 2, 2
              v_lshl_add_u32 {v(T+2)}, {v(T+3)}, 6, {v(T+2)}
              v_and_b32 {v(T+3)}, 1, v0
              v_lshl_add_u32 {v(T+2)}, {v(T+3)}, 5, {v(T+2)}
              v_and_b32 {v(T+3)}, 16, v0
              v_add_u32 {v(T+2)}, {v(T+2)}, {v(T+3)}
              v_and_b32 {v(T+3)}, 2, v0
              v_lshl_add_u32 {v(T+2)}, {v(T+3)}, 2, {v(T+2)}
              v_add_u32 {v(T+2)}, {s(S_U0)}, {v(T+2)}
              v_lshlrev_b32 {v(T+3)}, 4, v0
              s_lshl_b32 {s(S_U0)}, {s(S_MT)}, 2
              s_add_u32 {s(S_U0)}, {s(S_U0)}, {s(S_WI)}
              s_mul_i32 {s(S_U0)}, {s(S_U0)}, {NKS}
              s_lshl_b32 {s(S_U1)}, {s(S_G)}, 2
              s_add_u32 {s(S_U0)}, {s(S_U0)}, {s(S_U1)}
              s_lshl_b32 {s(S_U2)}, {s(S_U0)}, 10""")
        O = FR + 16
        for part in range(2):
            g(f"""ds_write_b128 {v(T+1)}, {v(H+8*part,4)}
                  ds_write_b128 {v(T+1)}, {v(H+8*part+4,4)} offset:16""")
            for cb in range(2):
                for u in range(2):
                    g(f"ds_read_b64_tr_b16 {v(O+8*part+4*cb+2*u,2)}, {v(T+2)} offset:{cb*1024+u*256}")
        for part in range(2):
            g(f"s_waitcnt lgkmcnt({6 if part == 0 else 0})")
            for cb in range(2):
                g(f"buffer_store_dwordx4 {v(O+8*part+4*cb,4)}, {v(T+3)}, {s(R_WS,4)}, {s(S_U2)} offen offset:{(2*part+cb)*1024} sc1")
        self.stamp(7)
        g("s_waitcnt vmcnt(4)")
        for i in range(3): c_read(i)
        self.set_flag(WS_FLAGS, VZ, T+8)
        g("s_waitcnt lgkmcnt(0)")
        for i in range(3, 6): c_issue(i)
        for i in range(3, 8):
            g(f"s_waitcnt vmcnt({8 if i < 6 else 4*(7-i)})")
            c_read(i)
            if i + 3 < 8:
                g("s_waitcnt lgkmcnt(0)")
                c_issue(i + 3)
        g.c("---------------- S phase 2 ----------------")
        A2 = 64; AB = 16; VA = 10
        g("s_waitcnt lgkmcnt(0)")
        self.a_setup(VA, 0, 16, 12)
        g(f"v_and_b32 v13, 7, v0\nv_lshlrev_b32 v13, 2, v13")
        self.stamp(8)
        self.poll_flags(WS_FLAGS, 13, 12)
        self.stamp(9)
        self.p2_loop(16, VA, AB, A2, lambda ks: BR + 8*ks, lambda ks: None)
        self.stamp(10)
        g(f"v_lshl_add_u32 v12, v0, 4, {s(S_T2)}")
        for sl in range(1, 4):
            for q in range(4):
                g(f"ds_write_b128 v12, {v(A2+16*sl+4*q,4)} offset:{(sl-1)*4096+q*1024}")
        g(f"""s_lshr_b32 {s(S_U0)}, {s(S_WI)}, 1
              s_lshl_b32 {s(S_U1)}, {s(S_RT)}, 1
              s_add_u32 {s(S_U0)}, {s(S_U0)}, {s(S_U1)}
              s_lshl_b32 {s(S_T0)}, {s(S_U0)}, 16
              s_lshl_b32 {s(S_U1)}, {s(S_NT)}, 8
              s_add_u32 {s(S_T0)}, {s(S_T0)}, {s(S_U1)}
              s_and_b32 {s(S_U1)}, {s(S_WI)}, 1
              s_lshl_b32 {s(S_U1)}, {s(S_U1)}, 7
              s_add_u32 {s(S_T0)}, {s(S_T0)}, {s(S_U1)}
              v_and_b32 v13, 31, v0
              v_lshlrev_b32 v13, 2, v13
              v_lshrrev_b32 v14, 5, v0
              v_lshl_add_u32 v13, v14, 15, v13
              s_mul_i32 {s(S_U0)}, {s(S_WI)}, {SLOT}
              s_add_u32 {s(S_U0)}, {s(S_U0)}, {W1B + 12288}
              v_lshl_add_u32 v14, v0, 4, {s(S_U0)}
              s_waitcnt lgkmcnt(0)
              s_barrier""")
        for q in range(4): g(f"ds_read_b128 {v(BR+4*q,4)}, v14 offset:{q*1024}")
        g("s_waitcnt lgkmcnt(0)")
        self.gather3(0, 12288, BR+16, 12)
        for dd in range(4):
            if dd: g(f"s_waitcnt lgkmcnt({12-4*dd})")
            for r in range(16): g(f"v_add_f32 {v(A2+r)}, {v(A2+r)}, {v(BR+16*dd+r)}")
        for r in range(16):
            if r and r % 2 == 0: g(f"s_add_u32 {s(S_T0)}, {s(S_T0)}, 4096")
            g(f"buffer_store_dword {v(A2+r)}, v13, {s(R_OUT,4)}, {s(S_T0)} offen offset:{(r%2)*2048}{o.get('out_pol','')}")
        le = g.lab("NOEP")
        g(f"""s_lshl_b32 {s(S_U0)}, {s(S_RT)}, 5
              s_lshl_b32 {s(S_U1)}, {s(S_NT)}, 2
              s_add_u32 {s(S_U0)}, {s(S_U0)}, {s(S_U1)}
              s_add_u32 {s(S_U0)}, {s(S_U0)}, {s(S_WI)}
              s_cmp_lg_u32 {s(S_U0)}, {31*32}
              s_cbranch_scc1 {le}
              v_mov_b32 v12, {s(S_TAG)}
              v_mov_b32 v13, 0
              s_mov_b32 {s(S_U0)}, {hex(WS_EPOCH)}
              s_mov_b64 exec, 1
              buffer_store_dword v12, v13, {s(R_WS,4)}, {s(S_U0)} offen
              s_mov_b64 exec, -1""")
        g(f"{le}:")
        self.stamp(11)
        self.stamps_out(12, 'S')
        g("L_END:")
        g("s_endpgm")

    def build(self):
        hdr = open("cdna_kernels/" + NAME + ".s.ref").read().split("\n")
        head = [l for l in hdr if l.startswith(";") and "@launch" not in l]
        self.prologue(); self.fwave(); self.swave()
        out = "\n".join(head) + f"\n; @launch grid=(256,1,1) block=(512,1,1) lds={LDS_BYTES}\n"
        out += f""".amdgcn_target "amdgcn-amd-amdhsa--gfx950"
.text
.globl {NAME}_kernel
.p2align 8
.type {NAME}_kernel,@function
{NAME}_kernel:
"""
        out += self.g.text()
        out += f""".section .rodata,"a"
.p2align 6
.amdhsa_kernel {NAME}_kernel
  .amdhsa_next_free_vgpr 256
  .amdhsa_next_free_sgpr 102
  .amdhsa_accum_offset 256
  .amdhsa_group_segment_fixed_size 0
  .amdhsa_kernarg_size 120
  .amdhsa_user_sgpr_count 2
  .amdhsa_user_sgpr_kernarg_segment_ptr 1
  .amdhsa_system_sgpr_workgroup_id_x 1
.end_amdhsa_kernel
"""
        return out

if __name__ == "__main__":
    path = sys.argv[1]
    opt = json.loads(sys.argv[2]) if len(sys.argv) > 2 else {}
    open(path, "w").write(Gen(opt).build())
```

```python
import sys, json

NAME = "parallel_sum__ssm_conv_s5__dense_activation_silu__prompt"

class G:
    def __init__(self):
        self.L = []
        self.nlab = 0
    def __call__(self, s):
        for ln in s.strip("\n").split("\n"):
            ln = ln.strip()
            if ln: self.L.append("    " + ln if not ln.endswith(":") else ln)
    def c(self, s): self.L.append("    ; " + s)
    def lab(self, p="L"):
        self.nlab += 1
        return f"{p}_{self.nlab}"
    def text(self): return "\n".join(self.L) + "\n"

def v(a, n=1): return f"v{a}" if n == 1 else f"v[{a}:{a+n-1}]"
def s(a, n=1): return f"s{a}" if n == 1 else f"s[{a}:{a+n-1}]"

NKS = 152
WS_INTER = 0
WS_AGG   = 0xA00000
WS_FLAGF = 0xA40000
WS_FLAGS = 0xA44000
WS_STATS = 0xA50000
WS_EPOCH = 0xA60000
WS_STAMP = 0xB00000
WS_BYTES = 0xC00000
SLOT = 24576
W1B  = 2 * SLOT
MISC = 6 * SLOT
L_RS, L_NM, L_CSS, L_CNT = MISC, MISC + 512, MISC + 1024, MISC + 1536
L_LBP = MISC + 2048
L_CSF = MISC + 4096
L_TR  = MISC + 8192
L_SEG = L_TR + 3 * 2048
LDS_BYTES = MISC + 16384
C_S1, C_S2, C_W0, C_CSF, C_W1D, C_FD = 0, 4, 8, 24, 28, 32

S_WAVE, S_WI, S_MT, S_G, S_RT, S_NT, S_C0, S_TAG = 3, 4, 5, 6, 7, 8, 9, 10
S_T0, S_T1, S_T2, S_T3, S_T4 = 11, 12, 13, 14, 15
P_X, P_LRE, P_LIM, P_BRE, P_BIM, P_CRE, P_CIM, P_LDT = 16, 18, 20, 22, 24, 26, 28, 30
P_DSK, P_BX, P_W1, P_W2, P_OUT, P_DBG, P_WS = 32, 34, 36, 38, 40, 42, 44
R_X, R_A, R_B, R_W2, R_WS, R_OUT = 48, 52, 56, 60, 64, 68
S_ONES, S_XO, S_BO, S_WO, S_SPIN = 72, 73, 74, 75, 76
S_U0, S_U1, S_U2, S_U3 = 77, 78, 79, 80
S_EX = 82
S_MK = 84
S_ST = 86

def srd(g, r, p, nbytes):
    g(f"""s_mov_b32 {s(r)}, {s(p)}
          s_mov_b32 {s(r+1)}, {s(p+1)}
          s_mov_b32 {s(r+2)}, {hex(nbytes)}
          s_mov_b32 {s(r+3)}, 0x20000""")

class Gen:
    def __init__(self, opt):
        self.o = opt
        self.g = G()
        self.nst = 0

    def stamp(self, i):
        if not self.o.get("stamps"): return
        g = self.g
        clk = "s_memrealtime" if self.o.get("rt") else "s_memtime"
        g(f"""{clk} s[100:101]
              s_waitcnt lgkmcnt(0)
              s_mov_b32 {s(S_ST+i)}, s100""")

    def stamps_out(self, vt, role):
        if not self.o.get("stamps"): return
        g = self.g
        pr = self.o.get("probe")
        if pr and pr[0] == role:
            l = g.lab("PRB")
            clk = "s_memrealtime" if self.o.get("rt") else "s_memtime"
            g(f"""s_sub_u32 {s(S_T0)}, {s(S_ST+int(pr[1:]))}, {s(S_ST)}
                  s_lshl_b32 {s(S_T0)}, {s(S_T0)}, 4
                  {clk} s[100:101]
                  s_waitcnt lgkmcnt(0)
                  s_mov_b32 {s(S_T1)}, s100""")
            g(f"{l}:")
            g(f"""{clk} s[100:101]
                  s_waitcnt lgkmcnt(0)
                  s_sub_u32 {s(S_T2)}, s100, {s(S_T1)}
                  s_cmp_lt_u32 {s(S_T2)}, {s(S_T0)}
                  s_cbranch_scc1 {l}""")
        g(f"s_waitcnt vmcnt(0)")
        g(f"""s_memrealtime s[100:101]
              s_waitcnt lgkmcnt(0)
              s_mov_b32 {s(S_ST+13)}, s100""")
        g(f"""s_lshl_b32 {s(S_T0)}, s2, 3
              s_add_u32 {s(S_T0)}, {s(S_T0)}, {s(S_WAVE)}
              s_lshl_b32 {s(S_T0)}, {s(S_T0)}, 6
              s_add_u32 {s(S_T0)}, {s(S_T0)}, {hex(WS_STAMP)}
              v_mov_b32 {v(vt)}, 0""")
        for i in range(14):
            g(f"""v_mov_b32 {v(vt+1)}, {s(S_ST+i)}
                  buffer_store_dword {v(vt+1)}, {v(vt)}, {s(R_WS,4)}, {s(S_T0)} offen offset:{4*i}
                  s_nop 1""")

    def spin_cnt(self, cnt, vaddr_cnt, vt, reads=""):
        g = self.g
        l = g.lab("SPIN"); d = g.lab("SPD")
        g(f"s_mov_b32 {s(S_SPIN)}, 0x100000")
        g(f"{l}:")
        g(f"ds_read_b32 {v(vt)}, {v(vaddr_cnt)} offset:{cnt}")
        if reads: g(reads)
        g(f"""s_waitcnt lgkmcnt(0)
              v_readfirstlane_b32 {s(S_U3)}, {v(vt)}
              s_sub_u32 {s(S_SPIN)}, {s(S_SPIN)}, 1
              s_cbranch_scc1 {d}
              s_cmp_lg_u32 {s(S_U3)}, 4
              s_cbranch_scc1 {l}""")
        g(f"{d}:")

    def signal_cnt(self, cnt, vaddr_cnt, vone):
        g = self.g
        g(f"""s_mov_b64 exec, 1
              ds_add_u32 {v(vaddr_cnt)}, {v(vone)} offset:{cnt}
              s_mov_b64 exec, -1""")

    def cmul(self, dr, di, ar, ai, br, bi):
        self.g(f"""v_mul_f32 {v(dr)}, {v(ar)}, {v(br)}
                   v_mul_f32 {v(di)}, {v(ar)}, {v(bi)}
                   v_fma_f32 {v(dr)}, -{v(ai)}, {v(bi)}, {v(dr)}
                   v_fmac_f32 {v(di)}, {v(ai)}, {v(br)}""")

    def cfma(self, dr, di, ar, ai, br, bi, cr, ci):
        self.g(f"""v_fma_f32 {v(dr)}, {v(ar)}, {v(br)}, {v(cr)}
                   v_fma_f32 {v(di)}, {v(ar)}, {v(bi)}, {v(ci)}
                   v_fma_f32 {v(dr)}, -{v(ai)}, {v(bi)}, {v(dr)}
                   v_fmac_f32 {v(di)}, {v(ai)}, {v(br)}""")

    def poll_flags(self, base, vaddr, vt):
        g = self.g
        l = g.lab("POLL"); d = g.lab("PLD")
        g(f"""s_lshl_b32 {s(S_U0)}, {s(S_RT)}, 2
              s_add_u32 {s(S_U0)}, {s(S_U0)}, {s(S_WI)}
              s_lshl_b32 {s(S_U0)}, {s(S_U0)}, 7
              s_add_u32 {s(S_U0)}, {s(S_U0)}, {hex(base)}
              s_mov_b32 {s(S_SPIN)}, 0x40000
              s_mov_b64 exec, 0xff""")
        g(f"{l}:")
        g(f"""buffer_load_dword {v(vt)}, {v(vaddr)}, {s(R_WS,4)}, {s(S_U0)} offen sc1
              s_waitcnt vmcnt(0)
              v_cmp_ne_u32 vcc, {s(S_TAG)}, {v(vt)}
              s_sub_u32 {s(S_SPIN)}, {s(S_SPIN)}, 1
              s_cbranch_scc1 {d}
              s_cmp_eq_u64 vcc, 0
              s_cbranch_scc1 {d}
              s_sleep {self.o.get('poll_sleep', 2)}
              s_branch {l}""")
        g(f"{d}:")
        g("s_mov_b64 exec, -1")

    def set_flag(self, base, vz, vt):
        g = self.g
        g(f"""s_lshl_b32 {s(S_U0)}, {s(S_MT)}, 1
              s_lshr_b32 {s(S_U1)}, {s(S_WI)}, 1
              s_add_u32 {s(S_U0)}, {s(S_U0)}, {s(S_U1)}
              s_lshl_b32 {s(S_U0)}, {s(S_U0)}, 2
              s_lshr_b32 {s(S_U1)}, {s(S_G)}, 2
              s_add_u32 {s(S_U0)}, {s(S_U0)}, {s(S_U1)}
              s_lshl_b32 {s(S_U0)}, {s(S_U0)}, 7
              s_and_b32 {s(S_U1)}, {s(S_WI)}, 1
              s_lshl_b32 {s(S_U1)}, {s(S_U1)}, 4
              s_add_u32 {s(S_U0)}, {s(S_U0)}, {s(S_U1)}
              s_and_b32 {s(S_U1)}, {s(S_G)}, 3
              s_lshl_b32 {s(S_U1)}, {s(S_U1)}, 2
              s_add_u32 {s(S_U0)}, {s(S_U0)}, {s(S_U1)}
              s_add_u32 {s(S_U0)}, {s(S_U0)}, {hex(base)}
              v_mov_b32 {v(vt)}, {s(S_TAG)}
              s_waitcnt vmcnt(0)
              s_mov_b64 exec, 1
              buffer_store_dword {v(vt)}, {v(vz)}, {s(R_WS,4)}, {s(S_U0)} offen sc1
              s_mov_b64 exec, -1""")

    def prologue(self):
        g = self.g
        g(f"""s_cmp_ge_u32 s2, 256
              s_cbranch_scc1 L_END
              s_load_dwordx16 s[16:31], s[0:1], 0
              s_load_dwordx8 s[32:39], s[0:1], 64
              s_load_dwordx4 s[40:43], s[0:1], 96
              s_load_dwordx2 s[44:45], s[0:1], 112""")
        if self.o.get("stamps"):
            g(f"""s_memrealtime s[100:101]
                  s_waitcnt lgkmcnt(0)
                  s_mov_b32 {s(S_ST+12)}, s100""")
            for i in range(12): g(f"s_mov_b32 {s(S_ST+i)}, 0")
            self.stamp(0)
        g(f"""v_lshrrev_b32 v1, 6, v0
              v_and_b32 v0, 63, v0
              s_and_b32 {s(S_T0)}, s2, 7
              v_readfirstlane_b32 {s(S_WAVE)}, v1
              s_lshr_b32 {s(S_T1)}, s2, 3
              s_and_b32 {s(S_T2)}, {s(S_T1)}, 3
              s_lshr_b32 {s(S_NT)}, {s(S_T1)}, 2
              s_lshr_b32 {s(S_T3)}, {s(S_T0)}, 1
              s_lshl_b32 {s(S_MT)}, {s(S_T3)}, 2
              s_add_u32 {s(S_MT)}, {s(S_MT)}, {s(S_T2)}
              s_and_b32 {s(S_T4)}, {s(S_T0)}, 1
              s_lshl_b32 {s(S_G)}, {s(S_T4)}, 3
              s_add_u32 {s(S_G)}, {s(S_G)}, {s(S_NT)}
              s_lshl_b32 {s(S_RT)}, {s(S_T0)}, 2
              s_add_u32 {s(S_RT)}, {s(S_RT)}, {s(S_T2)}
              s_lshl_b32 {s(S_C0)}, {s(S_T4)}, 1
              s_add_u32 {s(S_C0)}, {s(S_C0)}, {s(S_T3)}
              s_lshl_b32 {s(S_C0)}, {s(S_C0)}, 1
              s_and_b32 {s(S_C0)}, {s(S_C0)}, 7
              s_and_b32 {s(S_WI)}, {s(S_WAVE)}, 3
              s_cmp_ge_u32 {s(S_WAVE)}, 4
              s_cbranch_scc0 L_SWAVE""")

    def epoch(self):
        g = self.g
        g(f"""s_add_u32 {s(S_EX)}, {s(P_WS)}, {hex(WS_EPOCH)}
              s_addc_u32 {s(S_EX+1)}, {s(P_WS+1)}, 0
              s_load_dword {s(S_TAG)}, {s(S_EX,2)}, 0""")
    def epoch_fin(self):
        self.g(f"""s_mul_i32 {s(S_TAG)}, {s(S_TAG)}, 0x9E3779B1
                   s_add_u32 {s(S_TAG)}, {s(S_TAG)}, 0x7F4A7C15""")

    def frag_pat(self, P, t0, t1, xor_wi):
        g = self.g
        g(f"""v_and_b32 {v(t0)}, 31, v0
              v_lshrrev_b32 {v(t1)}, 1, v0
              v_and_b32 {v(t1)}, 7, {v(t1)}
              v_lshrrev_b32 {v(P)}, 5, v0
              v_xor_b32 {v(t1)}, {v(t1)}, {v(P)}
              v_lshlrev_b32 {v(t1)}, 4, {v(t1)}
              v_lshl_or_b32 {v(P)}, {v(t0)}, 7, {v(t1)}""")
        if xor_wi:
            g(f"""s_lshl_b32 {s(S_U0)}, {s(S_WI)}, 5
                  v_xor_b32 {v(P)}, {s(S_U0)}, {v(P)}""")
        for k in (1, 2, 3):
            g(f"v_xor_b32 {v(P+k)}, {32*k}, {v(P)}")

    def lane8_pat(self, d, t0, t1):
        self.g(f"""v_lshrrev_b32 {v(t0)}, 3, v0
                   v_and_b32 {v(d)}, 7, v0
                   v_lshrrev_b32 {v(t1)}, 4, v0
                   v_xor_b32 {v(d)}, {v(d)}, {v(t1)}
                   v_lshlrev_b32 {v(d)}, 4, {v(d)}""")

    def fwave(self):
        g = self.g; o = self.o
        X = 128
        ACC = 80
        WF = 48
        VX, VB, VW = 2, 6, 8
        P, PB = 12, 16
        SX, SQ, CA, CB = 17, 18, 19, 20
        BT = 24
        T = 32
        WA = 12
        VCNT, VONE, VZ = 21, 22, 23
        NM, RS, NRS = 44, 11, 1
        CS = 17

        g.c("---------------- F wave: stage A loader ----------------")
        self.lane8_pat(T, T+1, T+2)
        g(f"""v_lshrrev_b32 {v(T+2)}, 2, {v(T+1)}
              v_lshlrev_b32 {v(T+2)}, 4, {v(T+2)}
              v_and_b32 {v(T+3)}, 3, {v(T+1)}
              v_add_u32 {v(T+2)}, {v(T+2)}, {v(T+3)}
              v_lshl_or_b32 {v(VX)}, {v(T+2)}, 10, {v(T)}
              v_add_u32 {v(VX+1)}, 3072, {v(VX)}
              v_xor_b32 {v(VX+1)}, 64, {v(VX+1)}
              v_add_u32 {v(VX+2)}, 6144, {v(VX)}
              v_add_u32 {v(VX+3)}, 6144, {v(VX+1)}
              v_lshl_or_b32 {v(VB)}, {v(T+1)}, 10, {v(T)}
              v_add_u32 {v(VB+1)}, 7168, {v(VB)}
              v_xor_b32 {v(VB+1)}, 64, {v(VB+1)}
              s_lshl_b32 {s(S_XO)}, {s(S_MT)}, 17
              s_lshl_b32 {s(S_T0)}, {s(S_WI)}, 15
              s_add_u32 {s(S_XO)}, {s(S_XO)}, {s(S_T0)}
              s_lshl_b32 {s(S_BO)}, {s(S_G)}, 15
              s_and_b32 {s(S_T0)}, {s(S_WI)}, 1
              s_lshl_b32 {s(S_T0)}, {s(S_T0)}, 14
              s_add_u32 {s(S_BO)}, {s(S_BO)}, {s(S_T0)}
              s_lshl_b32 {s(S_T3)}, {s(S_WI)}, 12
              s_lshl_b32 {s(S_T4)}, {s(S_WI)}, 11
              s_add_u32 {s(S_T4)}, {s(S_T4)}, 16384
              s_waitcnt lgkmcnt(0)""")
        srd(g, R_X, P_X, 2048 * 512 * 2)
        g(f"""s_cmp_ge_u32 {s(S_WI)}, 2
              s_cselect_b32 {s(R_A)}, {s(P_BIM)}, {s(P_BRE)}
              s_cselect_b32 {s(R_A+1)}, {s(P_BIM+1)}, {s(P_BRE+1)}
              s_mov_b32 {s(R_A+2)}, {hex(512*512*2)}
              s_mov_b32 {s(R_A+3)}, 0x20000""")

        def issue_x(c):
            slot = (c % 6) * SLOT
            g(f"""s_add_u32 {s(S_U0)}, {s(S_C0)}, {c}
                  s_and_b32 {s(S_U0)}, {s(S_U0)}, 7
                  s_lshl_b32 {s(S_U0)}, {s(S_U0)}, 7
                  s_add_u32 m0, {s(S_T3)}, {slot}
                  s_add_u32 {s(S_U1)}, {s(S_U0)}, {s(S_XO)}""")
            for e in range(4):
                g(f"buffer_load_dwordx4 {v(VX+e)}, {s(R_X,4)}, {s(S_U1)} offen offset:{1024*e} lds")
            g(f"""s_add_u32 m0, {s(S_T4)}, {slot}
                  s_add_u32 {s(S_U1)}, {s(S_U0)}, {s(S_BO)}""")
            for e in range(2):
                g(f"buffer_load_dwordx4 {v(VB+e)}, {s(R_A,4)}, {s(S_U1)} offen offset:{1024*e} lds")

        def issue_w(j):
            g(f"""s_add_u32 {s(S_U0)}, {s(S_C0)}, {j}
                  s_and_b32 {s(S_U0)}, {s(S_U0)}, 7
                  s_mul_i32 {s(S_U0)}, {s(S_U0)}, {64*2752}
                  s_add_u32 m0, {s(S_T2)}, {W1B + j*12288}
                  s_add_u32 {s(S_U1)}, {s(S_U0)}, {s(S_WO)}""")
            for e in range(3):
                g(f"buffer_load_dwordx4 {v(VW+e)}, {s(R_B,4)}, {s(S_U1)} offen offset:{1024*e} lds")

        issue_x(0); issue_x(1)
        self.stamp(1)
        self.epoch()
        srd(g, R_B, P_W1, 512 * 1376 * 2)
        srd(g, R_W2, P_W2, 1376 * 512 * 2)
        srd(g, R_WS, P_WS, WS_BYTES)
        g(f"s_mov_b32 {s(S_T0)}, 683")
        for e in range(3):
            g(f"""v_add_u32 {v(T)}, {64*e}, v0
                  v_mul_u32_u24 {v(T+1)}, {s(S_T0)}, {v(T)}
                  v_lshrrev_b32 {v(T+1)}, 13, {v(T+1)}
                  v_mul_u32_u24 {v(T+2)}, 12, {v(T+1)}
                  v_sub_u32 {v(T+2)}, {v(T)}, {v(T+2)}
                  v_mul_u32_u24 {v(T+1)}, 2752, {v(T+1)}
                  v_lshl_add_u32 {v(VW+e)}, {v(T+2)}, 4, {v(T+1)}""")
            if e: g(f"v_subrev_u32 {v(VW+e)}, {1024*e}, {v(VW+e)}")
        g(f"""s_lshr_b32 {s(S_T0)}, {s(S_G)}, 2
              s_mul_i32 {s(S_T1)}, {s(S_T0)}, 11
              s_and_b32 {s(S_T0)}, {s(S_G)}, 3
              s_mul_i32 {s(S_T0)}, {s(S_T0)}, 3
              s_add_u32 {s(S_T1)}, {s(S_T1)}, {s(S_T0)}
              s_lshl_b32 {s(S_WO)}, {s(S_T1)}, 6
              s_mul_i32 {s(S_T0)}, {s(S_WI)}, {16*2752}
              s_add_u32 {s(S_WO)}, {s(S_WO)}, {s(S_T0)}
              s_mul_i32 {s(S_T2)}, {s(S_WI)}, 3072
              s_mov_b32 {s(S_ONES)}, 0x3f803f80""")
        self.frag_pat(P, T, T+1, True)
        for k in range(4): g(f"v_add_u32 {v(P+k)}, {s(S_T3)}, {v(P+k)}")
        g(f"""v_lshl_add_u32 {v(PB)}, v0, 4, {s(S_T4)}
              v_mov_b32 {v(SX)}, 0
              v_mov_b32 {v(SQ)}, 0
              v_mov_b32 {v(CA)}, 0
              v_mov_b32 {v(CB)}, 0
              v_mov_b32 {v(VCNT)}, {L_CNT}
              v_mov_b32 {v(VONE)}, 1
              v_mov_b32 {v(VZ)}, 0
              s_waitcnt lgkmcnt(0)""")
        self.epoch_fin()

        def stats(c):
            for k in range(16):
                r = X + 16 * c + k
                g(f"""v_dot2c_f32_bf16 {v(SX)}, {s(S_ONES)}, {v(r)}
                      v_dot2c_f32_bf16 {v(SQ)}, {v(r)}, {v(r)}""")
        def csum():
            for k in range(4):
                g(f"""v_dot2c_f32_bf16 {v(CA)}, {s(S_ONES)}, {v(BT+k)}
                      v_dot2c_f32_bf16 {v(CB)}, {s(S_ONES)}, {v(BT+4+k)}""")

        for c in range(8):
            g.c(f"chunk {c}")
            if c + 2 < 8: issue_x(c + 2)
            else: issue_w(2 * (c - 6)); issue_w(2 * (c - 6) + 1)
            if c in (3, 6):
                op = "v_add_u32" if c == 3 else "v_subrev_u32"
                for k in range(5): g(f"{op} {v(P+k)}, {3*SLOT}, {v(P+k)}")
            g("s_waitcnt vmcnt(12)\ns_barrier")
            off = (c % 3) * SLOT
            g(f"""ds_read_b128 {v(BT,4)}, {v(PB)} offset:{off}
                  ds_read_b128 {v(BT+4,4)}, {v(PB)} offset:{off+1024}""")
            for k in range(4):
                g(f"ds_read_b128 {v(X+16*c+4*k,4)}, {v(P+k)} offset:{off}")
            g("s_waitcnt lgkmcnt(4)")
            csum()
            g("s_waitcnt lgkmcnt(0)")
            stats(c)
        self.stamp(2)
        g.c("row statistics")
        g(f"""s_nop 2
              v_mov_b32 {v(T)}, {v(SX)}
              v_mov_b32 {v(T+1)}, {v(SQ)}
              v_add_f32_dpp {v(CA)}, {v(CA)}, {v(CA)} quad_perm:[1,0,3,2] row_mask:0xf bank_mask:0xf
              v_add_f32_dpp {v(CB)}, {v(CB)}, {v(CB)} quad_perm:[1,0,3,2] row_mask:0xf bank_mask:0xf
              v_permlane32_swap_b32 {v(T)}, {v(SX)}
              v_permlane32_swap_b32 {v(T+1)}, {v(SQ)}
              v_add_f32_dpp {v(CA)}, {v(CA)}, {v(CA)} quad_perm:[2,3,0,1] row_mask:0xf bank_mask:0xf
              v_add_f32_dpp {v(CB)}, {v(CB)}, {v(CB)} quad_perm:[2,3,0,1] row_mask:0xf bank_mask:0xf
              v_add_f32 {v(SX)}, {v(SX)}, {v(T)}
              v_add_f32 {v(SQ)}, {v(SQ)}, {v(T+1)}
              v_add_f32_dpp {v(CA)}, {v(CA)}, {v(CA)} row_half_mirror row_mask:0xf bank_mask:0xf
              v_add_f32_dpp {v(CB)}, {v(CB)}, {v(CB)} row_half_mirror row_mask:0xf bank_mask:0xf
              v_mul_f32 {v(SX)}, 0x3b000000, {v(SX)}
              v_mul_f32 {v(SQ)}, 0x3b000000, {v(SQ)}
              v_fma_f32 {v(SQ)}, -{v(SX)}, {v(SX)}, {v(SQ)}
              v_max_f32 {v(SQ)}, 0, {v(SQ)}
              v_cvt_pk_bf16_f32 {v(NM)}, -{v(SX)}, -{v(SX)}
              v_cvt_pk_bf16_f32 {v(T)}, {v(SQ)}, {v(SQ)}
              v_and_b32 {v(T)}, 0xffff0000, {v(T)}
              v_add_f32 {v(T)}, 0x3727c5ac, {v(T)}
              v_cvt_pk_bf16_f32 {v(T)}, {v(T)}, {v(T)}
              v_and_b32 {v(T)}, 0xffff0000, {v(T)}
              v_sqrt_f32 {v(T)}, {v(T)}
              v_and_b32 {v(T+2)}, 1, v0
              v_cvt_pk_bf16_f32 {v(T+8)}, {v(SX)}, {v(T)}
              v_and_b32 {v(T)}, 0xffff0000, {v(T+8)}
              v_rcp_f32 {v(RS)}, {v(T)}
              v_cmp_eq_u32 vcc, 1, {v(T+2)}
              v_mov_b32 {v(NM+1)}, {v(NM)}
              v_mov_b32 {v(NM+2)}, 0
              v_cndmask_b32 {v(CA)}, {v(CA)}, {v(CB)}, vcc
              v_mov_b32 {v(NM+3)}, 0""")
        def split3(src, d0, d1, t0, t1):
            g(f"""v_and_b32 {v(t0)}, 0xffff0000, {v(src)}
                  v_sub_f32 {v(t1)}, {v(src)}, {v(t0)}
                  v_and_b32 {v(d0)}, 0xffff0000, {v(t1)}
                  v_sub_f32 {v(t1)}, {v(t1)}, {v(d0)}
                  v_lshrrev_b32 {v(t0)}, 16, {v(t0)}
                  v_or_b32 {v(d0)}, {v(d0)}, {v(t0)}
                  v_lshrrev_b32 {v(d1)}, 16, {v(t1)}""")
        split3(CA, T+4, T+5, T+1, T+3)
        g(f"""v_lshrrev_b32 {v(T+1)}, 3, v0
              v_lshl_add_u32 {v(T+1)}, {v(T+2)}, 3, {v(T+1)}
              s_lshl_b32 {s(S_U0)}, {s(S_WI)}, 7
              s_add_u32 {s(S_U1)}, {s(S_U0)}, {L_CSS}
              v_lshl_add_u32 {v(T+1)}, {v(T+1)}, 3, {s(S_U1)}
              ds_write_b64 {v(T+1)}, {v(T+4,2)}
              v_and_b32 {v(T+2)}, 31, v0
              s_add_u32 {s(S_U1)}, {s(S_U0)}, {L_NM}
              v_lshl_add_u32 {v(T+3)}, {v(T+2)}, 2, {s(S_U1)}
              ds_write_b32 {v(T+3)}, {v(NM)}
              v_and_b32 {v(T+6)}, 4, v0
              v_lshlrev_b32 {v(T+6)}, 2, {v(T+6)}
              v_lshrrev_b32 {v(T+7)}, 1, {v(T+2)}
              v_and_b32 {v(T+7)}, 12, {v(T+7)}
              v_and_b32 {v(T+2)}, 3, v0
              v_or3_b32 {v(T+9)}, {v(T+6)}, {v(T+7)}, {v(T+2)}
              s_add_u32 {s(S_U1)}, {s(S_U0)}, {L_RS}
              v_lshl_add_u32 {v(T+3)}, {v(T+9)}, 2, {s(S_U1)}
              ds_write_b32 {v(T+3)}, {v(RS)}
              s_waitcnt lgkmcnt(0)
              s_barrier""")
        self.stamp(3)
        for j in range(4, 8): issue_w(j)
        lskip = g.lab("NOST")
        g(f"""s_and_b32 {s(S_U0)}, {s(S_G)}, 3
              s_cmp_lg_u32 {s(S_U0)}, 0
              s_cbranch_scc1 {lskip}
              s_lshl_b32 {s(S_U0)}, {s(S_G)}, 11
              s_lshl_b32 {s(S_U1)}, {s(S_MT)}, 9
              s_add_u32 {s(S_U0)}, {s(S_U0)}, {s(S_U1)}
              s_lshl_b32 {s(S_U1)}, {s(S_WI)}, 7
              s_add_u32 {s(S_U0)}, {s(S_U0)}, {s(S_U1)}
              s_add_u32 {s(S_U0)}, {s(S_U0)}, {hex(WS_STATS)}
              v_lshlrev_b32 {v(T+9)}, 2, {v(T+9)}
              s_mov_b32 exec_hi, 0
              buffer_store_dword {v(T+8)}, {v(T+9)}, {s(R_WS,4)}, {s(S_U0)} offen sc1
              s_mov_b64 exec, -1
              s_branch {lskip}_b""")
        g(f"{lskip}:")
        g(f"buffer_load_dword {v(T+9)}, {v(VZ)}, {s(R_X,4)}, 0 offen")
        g(f"{lskip}_b:")
        g.c("---------------- F stage: w1 GEMM ----------------")
        g(f"""v_lshrrev_b32 {v(T)}, 5, v0
              v_bfe_u32 {v(T+1)}, v0, 2, 2
              v_lshl_add_u32 {v(T)}, {v(T)}, 3, {v(T+1)}
              v_mul_u32_u24 {v(T)}, 192, {v(T)}
              v_bfe_u32 {v(T+1)}, v0, 4, 1
              v_lshl_add_u32 {v(T)}, {v(T+1)}, 5, {v(T)}
              v_and_b32 {v(T+1)}, 3, v0
              v_lshl_add_u32 {v(T)}, {v(T+1)}, 3, {v(T)}
              v_mul_f32 {v(NRS)}, 0xbfb8aa3b, {v(RS)}
              v_mov_b32 {v(CS)}, 0
              v_mov_b32 {v(CS+1)}, 0
              v_mov_b32 {v(CS+2)}, 0""")
        for k in range(4):
            g(f"""s_xor_b32 {s(S_U0)}, {s(S_WI)}, {k}
                  s_mul_i32 {s(S_U0)}, {s(S_U0)}, 3072
                  s_add_u32 {s(S_U0)}, {s(S_U0)}, {W1B}
                  v_add_u32 {v(WA+k)}, {s(S_U0)}, {v(T)}""")
        def wread(dst, j, k, tile):
            off = (j % 4) * 12288 + tile * 64
            g(f"""ds_read_b64_tr_b16 {v(dst,2)}, {v(WA+k)} offset:{off}
                  ds_read_b64_tr_b16 {v(dst+2,2)}, {v(WA+k)} offset:{off+768}""")
        first = True
        for pr in range(4):
            g.c(f"w1 pair {pr}")
            g(f"s_waitcnt vmcnt({19 - 6*pr})")
            self.signal_cnt(C_W0 + 4*pr, VCNT, VONE)
            if pr == 2:
                for k in range(4): g(f"v_add_u32 {v(WA+k)}, {4*12288}, {v(WA+k)}")
            self.spin_cnt(C_W0 + 4*pr, VCNT, T)
            steps = [(j, k) for j in (2*pr, 2*pr+1) for k in range(4)]
            def rd(idx):
                j, k = steps[idx]; b = WF + 16 * (idx & 1)
                wread(b, j, k, 0); wread(b+4, j, k, 1)
                if k == 0: wread(b+8, j, k, 2)
                return 6 if k == 0 else 4
            rd(0)
            for idx, (j, k) in enumerate(steps):
                b = WF + 16 * (idx & 1)
                n = rd(idx + 1) if idx + 1 < 8 else 0
                g(f"s_waitcnt lgkmcnt({n})")
                xr = X + 16*j + 4*k
                for t in range(2):
                    cc = "0" if first else v(ACC+16*t, 16)
                    g(f"v_mfma_f32_32x32x16_bf16 {v(ACC+16*t,16)}, {v(b+4*t,4)}, {v(xr,4)}, {cc}")
                first = False
                if k == 0:
                    for q in range(4):
                        for t in range(3):
                            g(f"v_dot2c_f32_bf16 {v(CS+t)}, {s(S_ONES)}, {v(b+4*t+q)}")
        self.stamp(4)
        g(f"""s_lshl_b32 {s(S_U0)}, {s(S_WI)}, 2
              s_add_u32 {s(S_U0)}, {s(S_U0)}, {L_CSF}
              v_lshl_add_u32 {v(T)}, v0, 4, {s(S_U0)}
              v_lshlrev_b32 {v(T+1)}, 4, v0
              v_add_u32 {v(T+1)}, {L_CSF}, {v(T+1)}""")
        for t in range(3): g(f"ds_write_b32 {v(T)}, {v(CS+t)} offset:{1024*t}")
        self.signal_cnt(C_CSF, VCNT, VONE)
        for k in range(4): g(f"v_subrev_u32 {v(WA+k)}, {4*12288}, {v(WA+k)}")
        steps = [(j, k) for j in range(8) for k in range(4)]
        def rd2(idx):
            j, k = steps[idx]
            if idx == 16:
                for kk in range(4): g(f"v_add_u32 {v(WA+kk)}, {4*12288}, {v(WA+kk)}")
            wread(WF + 4 * (idx & 3), j, k, 2)
        for i in range(3): rd2(i)
        for idx, (j, k) in enumerate(steps):
            if idx + 3 < 32: rd2(idx + 3)
            g(f"s_waitcnt lgkmcnt({2*min(3, 31-idx)})")
            cc = "0" if idx == 0 else v(ACC+32, 16)
            g(f"v_mfma_f32_32x32x16_bf16 {v(ACC+32,16)}, {v(WF+4*(idx&3),4)}, {v(X+16*j+4*k,4)}, {cc}")
        self.signal_cnt(C_W1D, VCNT, VONE)
        rds = "\n".join(f"ds_read_b128 {v(WF+16+4*t,4)}, {v(T+1)} offset:{1024*t}" for t in range(3))
        self.spin_cnt(C_CSF, VCNT, T, rds)
        for t in range(3):
            b = WF + 16 + 4*t
            g(f"""v_add_f32 {v(b)}, {v(b)}, {v(b+1)}
                  v_add_f32 {v(b+2)}, {v(b+2)}, {v(b+3)}
                  v_add_f32 {v(b+2)}, {v(b)}, {v(b+2)}""")
            split3(b+2, b, b+1, T, T+2)
            g(f"""v_mov_b32 {v(b+2)}, 0
                  v_mov_b32 {v(b+3)}, 0
                  s_nop 1
                  v_mfma_f32_32x32x16_bf16 {v(ACC+16*t,16)}, {v(b,4)}, {v(NM,4)}, {v(ACC+16*t,16)}""")
        self.stamp(5)
        g.c("SiLU + store")
        g(f"""s_lshl_b32 {s(S_U0)}, {s(S_MT)}, 2
              s_add_u32 {s(S_U0)}, {s(S_U0)}, {s(S_WI)}
              s_mul_i32 {s(S_U0)}, {s(S_U0)}, {NKS}
              s_lshl_b32 {s(S_U1)}, {s(S_T1)}, 1
              s_add_u32 {s(S_U0)}, {s(S_U0)}, {s(S_U1)}
              s_add_u32 {s(S_U0)}, {s(S_U0)}, 64
              s_lshl_b32 {s(S_U2)}, {s(S_U0)}, 10
              v_lshlrev_b32 {v(PB)}, 4, v0
              s_nop 7""")
        lsk = g.lab("NOT2")
        for t in range(3):
            a = ACC + 16*t
            if t == 2:
                g(f"""s_and_b32 {s(S_U0)}, {s(S_G)}, 3
                      s_cmp_eq_u32 {s(S_U0)}, 3
                      s_cbranch_scc1 {lsk}
                      s_add_u32 {s(S_U2)}, {s(S_U2)}, 4096""")
            for hf in range(2):
                e = WF if hf == 0 else WF + 8
                rr = range(8*hf, 8*hf + 8)
                for i, r in enumerate(rr): g(f"v_mul_f32 {v(e+i)}, {v(NRS)}, {v(a+r)}")
                for i, r in enumerate(rr): g(f"v_exp_f32 {v(e+i)}, {v(e+i)}\nv_mul_f32 {v(a+r)}, {v(RS)}, {v(a+r)}")
                for i, r in enumerate(rr): g(f"v_add_f32 {v(e+i)}, 1.0, {v(e+i)}")
                for i, r in enumerate(rr): g(f"v_rcp_f32 {v(e+i)}, {v(e+i)}")
                for i, r in enumerate(rr): g(f"v_mul_f32 {v(a+r)}, {v(a+r)}, {v(e+i)}")
                d = T + 4*hf
                for i in range(4): g(f"v_cvt_pk_bf16_f32 {v(d+i)}, {v(a+8*hf+2*i)}, {v(a+8*hf+2*i+1)}")
                g(f"buffer_store_dwordx4 {v(d,4)}, {v(PB)}, {s(R_WS,4)}, {s(S_U2)} offen offset:{((2*t+hf)&3)*1024} sc1")
        g(f"{lsk}:")
        self.stamp(6)
        self.set_flag(WS_FLAGF, VZ, T+8)
        self.stamp(7)

        g.c("---------------- F phase 2 ----------------")
        A2 = 176
        BR = 96
        AB = 48
        BTm = 240
        VD = 2
        WB = 6
        VA = 8
        NR = 10
        g(f"""v_lshrrev_b32 {v(T)}, 3, v0
              v_and_b32 {v(T+1)}, 7, v0
              v_bfe_u32 {v(T+2)}, v0, 4, 1
              v_lshlrev_b32 {v(T+2)}, 2, {v(T+2)}
              v_xor_b32 {v(T+1)}, {v(T+1)}, {v(T+2)}
              v_lshlrev_b32 {v(T+1)}, 4, {v(T+1)}
              v_lshl_or_b32 {v(VD)}, {v(T)}, 10, {v(T+1)}
              v_add_u32 {v(VD+1)}, 7168, {v(VD)}
              v_add_u32 {v(VD+2)}, {2*7168}, {v(VD)}
              v_add_u32 {v(VD+3)}, {3*7168}, {v(VD)}
              s_mul_i32 {s(S_WO)}, {s(S_WI)}, {352*1024}
              s_lshl_b32 {s(S_U0)}, {s(S_NT)}, 7
              s_add_u32 {s(S_WO)}, {s(S_WO)}, {s(S_U0)}
              s_mul_i32 {s(S_T2)}, {s(S_WI)}, {SLOT}
              s_add_u32 {s(S_T2)}, {s(S_T2)}, {W1B}""")
        g(f"""v_lshrrev_b32 {v(T)}, 5, v0
              v_bfe_u32 {v(T+1)}, v0, 2, 2
              v_lshl_add_u32 {v(T)}, {v(T)}, 2, {v(T+1)}
              v_lshlrev_b32 {v(T)}, 7, {v(T)}
              v_bfe_u32 {v(T+1)}, v0, 3, 1
              s_and_b32 {s(S_U0)}, {s(S_WI)}, 1
              v_xor_b32 {v(T+1)}, {s(S_U0)}, {v(T+1)}
              v_lshl_add_u32 {v(T)}, {v(T+1)}, 6, {v(T)}
              v_bfe_u32 {v(T+1)}, v0, 4, 1
              v_lshl_add_u32 {v(T)}, {v(T+1)}, 5, {v(T)}
              v_and_b32 {v(T+1)}, 3, v0
              v_lshl_add_u32 {v(T)}, {v(T+1)}, 3, {v(T)}
              v_add_u32 {v(WB)}, {s(S_T2)}, {v(T)}
              v_xor_b32 {v(WB+1)}, 64, {v(WB)}""")
        self.spin_cnt(C_W1D, VCNT, T)
        def issue_w2(ks0, n, lds0):
            for i in range(0, n, 2):
                g(f"""s_add_u32 m0, {s(S_T2)}, {lds0 + i*2048}
                      s_add_u32 {s(S_U1)}, {s(S_WO)}, {(ks0+i)*16384}""")
                for e in range(4):
                    g(f"buffer_load_dwordx4 {v(VD+e)}, {s(R_W2,4)}, {s(S_U1)} offen offset:{1024*e} lds")
        def bread(dst, lks):
            for ct in range(2):
                for u in range(2):
                    g(f"ds_read_b64_tr_b16 {v(dst+4*ct+2*u,2)}, {v(WB+ct)} offset:{lks*2048+u*1024}")
        issue_w2(0, NR, 0)
        g("s_waitcnt vmcnt(0)")
        for ks in range(NR):
            bread(BR + 8*ks, ks)
            if ks % 3 == 2: g("s_waitcnt lgkmcnt(0)")
        g("s_waitcnt lgkmcnt(0)")
        issue_w2(NR, 22 - NR, 0)
        self.a_setup(VA, 64, 22, T)
        g(f"v_and_b32 {v(T+1)}, 7, v0\nv_lshlrev_b32 {v(T+1)}, 2, {v(T+1)}")
        self.stamp(8)
        self.poll_flags(WS_FLAGF, T+1, T)
        self.stamp(9)
        def bsrc(ks):
            return BR + 8*ks if ks < NR else BTm + 8*(ks & 1)
        def pre(ks):
            if ks + 1 >= NR and ks + 1 < 22: bread(BTm + 8*((ks+1) & 1), ks + 1 - NR)
            if ks >= NR: g(f"s_waitcnt lgkmcnt({4 if ks + 1 < 22 else 0})")
        self.p2_loop(22, VA, AB, A2, bsrc, pre)
        self.stamp(10)
        g.c("F: dump partials, residual, pre-reduce")
        XR = 96; ST = 112; DS = 128
        g(f"""s_lshr_b32 {s(S_U0)}, {s(S_WI)}, 1
              s_lshl_b32 {s(S_U1)}, {s(S_RT)}, 1
              s_add_u32 {s(S_U0)}, {s(S_U0)}, {s(S_U1)}
              s_lshl_b32 {s(S_U1)}, {s(S_NT)}, 7
              s_and_b32 {s(S_U2)}, {s(S_WI)}, 1
              s_lshl_b32 {s(S_U2)}, {s(S_U2)}, 6
              s_add_u32 {s(S_U1)}, {s(S_U1)}, {s(S_U2)}
              s_lshl_b32 {s(S_U2)}, {s(S_U0)}, 15
              s_add_u32 {s(S_U2)}, {s(S_U2)}, {s(S_U1)}
              v_and_b32 {v(T)}, 31, v0
              v_lshlrev_b32 {v(T)}, 1, {v(T)}
              v_lshrrev_b32 {v(T+1)}, 5, v0
              v_lshl_add_u32 {v(T+2)}, {v(T+1)}, 14, {v(T)}
              v_add_u32 {v(T)}, {s(S_U1)}, {v(T)}
              v_lshlrev_b32 {v(T+1)}, 6, {v(T+1)}
              global_load_ushort {v(DS)}, {v(T)}, {s(P_DSK,2)}""")
        for r in range(16):
            if r and r % 4 == 0: g(f"s_add_u32 {s(S_U2)}, {s(S_U2)}, 4096")
            g(f"buffer_load_ushort {v(XR+r)}, {v(T+2)}, {s(R_X,4)}, {s(S_U2)} offen offset:{(r%4)*1024}")
        g(f"""s_lshl_b32 {s(S_U0)}, {s(S_U0)}, 7
              s_lshl_b32 {s(S_U1)}, {s(S_WI)}, 13
              s_add_u32 {s(S_U0)}, {s(S_U0)}, {s(S_U1)}
              s_add_u32 {s(S_U0)}, {s(S_U0)}, {hex(WS_STATS)}""")
        for k in range(4):
            g(f"buffer_load_dwordx4 {v(ST+4*k,4)}, {v(T+1)}, {s(R_WS,4)}, {s(S_U0)} offen offset:{16*k} sc1")
        g(f"v_lshl_add_u32 {v(T+3)}, v0, 4, {s(S_T2)}")
        for sl in range(1, 4):
            for q in range(4):
                g(f"ds_write_b128 {v(T+3)}, {v(A2+16*sl+4*q,4)} offset:{(sl-1)*4096+q*1024}")
        self.signal_cnt(C_FD, VCNT, VONE)
        g(f"s_waitcnt vmcnt(0)\nv_lshlrev_b32 {v(DS)}, 16, {v(DS)}")
        for r in range(16):
            x, st, t = XR + r, ST + r, T + 4 + 2*(r & 1)
            g(f"""v_lshlrev_b32 {v(x)}, 16, {v(x)}
                  v_lshlrev_b32 {v(t)}, 16, {v(st)}
                  v_and_b32 {v(st)}, 0xffff0000, {v(st)}
                  v_rcp_f32 {v(st)}, {v(st)}
                  v_sub_f32 {v(t)}, {v(x)}, {v(t)}
                  v_cvt_pk_bf16_f32 {v(t)}, {v(t)}, {v(t)}
                  v_and_b32 {v(t)}, 0xffff0000, {v(t)}
                  v_mul_f32 {v(t)}, {v(t)}, {v(st)}
                  v_cvt_pk_bf16_f32 {v(t)}, {v(t)}, {v(t)}
                  v_and_b32 {v(t)}, 0xffff0000, {v(t)}
                  v_mul_f32 {v(t)}, {v(t)}, {v(DS)}
                  v_cvt_pk_bf16_f32 {v(t)}, {v(t)}, {v(t)}
                  v_and_b32 {v(t)}, 0xffff0000, {v(t)}
                  v_add_f32 {v(x)}, {v(x)}, {v(t)}
                  v_add_f32 {v(A2+r)}, {v(A2+r)}, {v(x)}""")
        self.spin_cnt(C_FD, VCNT, T)
        self.gather3(W1B, SLOT, AB, T)
        for d in range(3):
            g(f"s_waitcnt lgkmcnt({8-4*d})")
            for r in range(16): g(f"v_add_f32 {v(A2+r)}, {v(A2+r)}, {v(AB+16*d+r)}")
        for q in range(4):
            g(f"ds_write_b128 {v(T+3)}, {v(A2+4*q,4)} offset:{12288+q*1024}")
        g("s_waitcnt lgkmcnt(0)\ns_barrier")
        self.stamp(11)
        self.stamps_out(T, 'F')
        g("s_endpgm")

    def gather3(self, base, stride, dst, T):
        g = self.g
        for d in range(1, 4):
            g(f"""s_xor_b32 {s(S_U0)}, {s(S_WI)}, {d}
                  s_mul_i32 {s(S_U0)}, {s(S_U0)}, {stride}
                  s_add_u32 {s(S_U0)}, {s(S_U0)}, {base + (d-1)*4096}
                  v_lshl_add_u32 {v(T)}, v0, 4, {s(S_U0)}""")
            for q in range(4):
                g(f"ds_read_b128 {v(dst+16*(d-1)+4*q,4)}, {v(T)} offset:{q*1024}")

    def a_setup(self, VA, ks_base, per_wave, T):
        g = self.g
        g(f"""s_lshr_b32 {s(S_U0)}, {s(S_WI)}, 1
              s_mul_i32 {s(S_U1)}, {s(S_U0)}, {NKS*1024}
              s_sub_u32 {s(S_U2)}, {NKS*1024}, {s(S_U1)}
              v_lshl_add_u32 {v(VA)}, v0, 4, {s(S_U1)}
              v_lshl_add_u32 {v(VA+1)}, v0, 4, {s(S_U2)}
              s_mul_i32 {s(S_XO)}, {s(S_RT)}, {2*NKS}
              s_mul_i32 {s(S_U0)}, {s(S_WI)}, {per_wave}
              s_add_u32 {s(S_XO)}, {s(S_XO)}, {s(S_U0)}
              s_add_u32 {s(S_XO)}, {s(S_XO)}, {ks_base}
              s_lshl_b32 {s(S_XO)}, {s(S_XO)}, 10""")

    def p2_loop(self, n, VA, AB, A2, bsrc, pre):
        g = self.g
        D = 6
        def aload(ks):
            if ks and ks % 4 == 0: g(f"s_add_u32 {s(S_XO)}, {s(S_XO)}, 4096")
            for rb in range(2):
                g(f"buffer_load_dwordx4 {v(AB+8*(ks%D)+4*rb,4)}, {v(VA+rb)}, {s(R_WS,4)}, {s(S_XO)} offen offset:{(ks%4)*1024} sc1")
        for ks in range(D): aload(ks)
        for ks in range(n):
            pre(ks)
            g(f"s_waitcnt vmcnt({2*(min(n, ks+D) - ks - 1)})")
            for rb in range(2):
                for ct in range(2):
                    d = A2 + 16*(2*rb+ct)
                    cc = "0" if ks == 0 else v(d, 16)
                    g(f"v_mfma_f32_32x32x16_bf16 {v(d,16)}, {v(AB+8*(ks%D)+4*rb,4)}, {v(bsrc(ks)+4*ct,4)}, {cc}")
            if ks + D < n: aload(ks + D)
        g("s_nop 7\ns_nop 7")

    def swave(self):
        g = self.g; o = self.o
        BR = 128
        UR, UI = 96, 112
        FR = 48
        XA, BA = 2, 6
        LA, LB = 10, 11
        L16, L128, W0, KA, GS = 12, 14, 16, 18, 20
        VCNT, VONE, VZ = 22, 23, 24
        SEGV = 25
        T = 28
        g("L_SWAVE:")
        g.c("---------------- S wave ----------------")
        if o.get("sprio", 1): g("s_setprio 2")
        g(f"""v_and_b32 {v(T)}, 31, v0
              v_lshlrev_b32 {v(T)}, 1, {v(T)}
              s_lshl_b32 {s(S_T0)}, {s(S_G)}, 6
              v_add_u32 {v(T)}, {s(S_T0)}, {v(T)}
              v_mov_b32 {v(VCNT)}, {L_CNT}
              v_mov_b32 {v(VONE)}, 1
              v_mov_b32 {v(VZ)}, 0
              v_lshlrev_b32 {v(T+4)}, 2, v0
              v_add_u32 {v(T+4)}, {L_CNT}, {v(T+4)}
              s_waitcnt lgkmcnt(0)
              global_load_ushort {v(T+1)}, {v(T)}, {s(P_LRE,2)}
              global_load_ushort {v(T+2)}, {v(T)}, {s(P_LIM,2)}
              global_load_ushort {v(T+3)}, {v(T)}, {s(P_LDT,2)}
              ds_write_b32 {v(T+4)}, {v(VZ)}""")
        self.epoch()
        srd(g, R_A, P_CRE, 512*512*2); srd(g, R_B, P_CIM, 512*512*2)
        srd(g, R_WS, P_WS, WS_BYTES); srd(g, R_OUT, P_OUT, 2048*512*4)
        self.frag_pat(BA, T+4, T+5, False)
        g(f"s_lshl_b32 {s(S_T3)}, {s(S_WI)}, 12")
        for k in range(4):
            g(f"v_add_u32 {v(XA+k)}, {s(S_T3)}, {v(BA+k)}\nv_add_u32 {v(BA+k)}, 16384, {v(BA+k)}")
        for r in range(32): g(f"v_mov_b32 {v(UR+r)}, 0")
        for r in range(24): g(f"v_mov_b32 {v(FR+24+r)}, 0")
        g(f"""v_lshrrev_b32 {v(SEGV)}, 5, v0
              s_lshl_b32 {s(S_T0)}, {s(S_WI)}, 1
              v_add_u32 {v(SEGV)}, {s(S_T0)}, {v(SEGV)}
              s_waitcnt vmcnt(0) lgkmcnt(0)""")
        self.epoch_fin()
        lr, li, dt = T+1, T+2, T+3
        g(f"""v_lshlrev_b32 {v(lr)}, 16, {v(lr)}
              v_lshlrev_b32 {v(li)}, 16, {v(li)}
              v_lshlrev_b32 {v(dt)}, 16, {v(dt)}
              v_mul_f32 {v(dt)}, 0x3fb8aa3b, {v(dt)}
              v_exp_f32 {v(dt)}, {v(dt)}
              s_nop 0
              v_cvt_pk_bf16_f32 {v(dt)}, {v(dt)}, {v(dt)}
              v_and_b32 {v(dt)}, 0xffff0000, {v(dt)}
              v_mul_f32 {v(T+4)}, {v(dt)}, {v(lr)}
              v_mul_f32 {v(T+5)}, {v(dt)}, {v(li)}
              v_mul_f32 {v(T+4)}, 0x3fb8aa3b, {v(T+4)}
              v_mul_f32 {v(T+5)}, 0.15915494, {v(T+5)}
              v_rndne_f32 {v(T+6)}, {v(T+5)}
              v_sub_f32 {v(T+5)}, {v(T+5)}, {v(T+6)}
              v_exp_f32 {v(T+4)}, {v(T+4)}
              v_cos_f32 {v(T+6)}, {v(T+5)}
              v_sin_f32 {v(T+7)}, {v(T+5)}
              v_mul_f32 {v(T+8)}, {v(lr)}, {v(lr)}
              v_mul_f32 {v(LA)}, {v(T+4)}, {v(T+6)}
              v_mul_f32 {v(LB)}, {v(T+4)}, {v(T+7)}
              v_fmac_f32 {v(T+8)}, {v(li)}, {v(li)}
              v_rcp_f32 {v(T+8)}, {v(T+8)}
              v_add_f32 {v(T+4)}, -1.0, {v(LA)}
              v_mul_f32 {v(KA)}, {v(T+4)}, {v(lr)}
              v_mul_f32 {v(KA+1)}, {v(LB)}, {v(lr)}
              v_fmac_f32 {v(KA)}, {v(LB)}, {v(li)}
              v_fma_f32 {v(KA+1)}, -{v(T+4)}, {v(li)}, {v(KA+1)}
              v_add_f32 {v(T+8)}, {v(T+8)}, {v(T+8)}
              v_mul_f32 {v(KA)}, {v(KA)}, {v(T+8)}
              v_mul_f32 {v(KA+1)}, {v(KA+1)}, {v(T+8)}""")
        a, b, c2, d2 = T, T+2, T+4, T+6
        sq = lambda d, x: self.cmul(d, d+1, x, x+1, x, x+1)
        sq(a, LA); sq(b, a); sq(a, b); sq(L16, a)
        sq(a, L16); sq(b, a); sq(L128, b)
        g(f"""v_cmp_lt_u32 vcc, 31, v0
              s_nop 1
              v_cndmask_b32 {v(c2)}, 1.0, {v(L16)}, vcc
              v_cndmask_b32 {v(c2+1)}, 0, {v(L16+1)}, vcc
              s_bitcmp1_b32 {s(S_WI)}, 0
              s_cselect_b64 vcc, -1, 0
              v_cndmask_b32 {v(a)}, 1.0, {v(a)}, vcc
              v_cndmask_b32 {v(a+1)}, 0, {v(a+1)}, vcc
              s_bitcmp1_b32 {s(S_WI)}, 1
              s_cselect_b64 vcc, -1, 0
              v_cndmask_b32 {v(b)}, 1.0, {v(b)}, vcc
              v_cndmask_b32 {v(b+1)}, 0, {v(b+1)}, vcc""")
        self.cmul(d2, d2+1, c2, c2+1, a, a+1)
        self.cmul(c2, c2+1, d2, d2+1, b, b+1)
        self.cmul(GS, GS+1, c2, c2+1, KA, KA+1)
        sq(a, c2); sq(b, a); sq(a, b); sq(W0, a)
        self.stamp(1)
        g.c("stage A loop")
        def rd(k):
            f = FR + 12*k
            g(f"""ds_read_b128 {v(f,4)}, {v(XA+k)}
                  ds_read_b128 {v(f+4,4)}, {v(BA+k)}
                  ds_read_b128 {v(f+8,4)}, {v(BA+k)} offset:4096""")
        def mm(k):
            f = FR + 12*k
            g(f"""v_mfma_f32_32x32x16_bf16 {v(UR,16)}, {v(f,4)}, {v(f+4,4)}, {v(UR,16)}
                  v_mfma_f32_32x32x16_bf16 {v(UI,16)}, {v(f,4)}, {v(f+8,4)}, {v(UI,16)}""")
        g(f"s_mov_b32 {s(S_T0)}, 0\ns_mov_b32 {s(S_T2)}, {SLOT}")
        g("L_SA:")
        g("s_barrier")
        rd(0); rd(1)
        g("s_waitcnt lgkmcnt(6)")
        mm(2); mm(3)
        rd(2); rd(3)
        g(f"""s_add_u32 {s(S_T0)}, {s(S_T0)}, 1
              s_cmp_eq_u32 {s(S_T0)}, 6
              s_cselect_b32 {s(S_T1)}, {-5*SLOT & 0xffffffff}, {s(S_T2)}
              s_waitcnt lgkmcnt(9)""")
        mm(0)
        g("s_waitcnt lgkmcnt(6)")
        mm(1)
        for k in range(8): g(f"v_add_u32 {v(XA+k)}, {s(S_T1)}, {v(XA+k)}")
        g(f"""s_cmp_lt_u32 {s(S_T0)}, 8
              s_cbranch_scc1 L_SA
              s_waitcnt lgkmcnt(0)""")
        mm(2); mm(3)
        self.stamp(2)
        g(f"""v_and_b32 {v(T)}, 31, v0
              s_lshl_b32 {s(S_U0)}, {s(S_WI)}, 7
              s_add_u32 {s(S_U1)}, {s(S_U0)}, {L_NM}
              v_lshl_add_u32 {v(T+1)}, {v(T)}, 2, {s(S_U1)}
              v_lshlrev_b32 {v(T+2)}, 3, {v(T)}
              v_add_u32 {v(T+2)}, {L_CSS}, {v(T+2)}
              v_lshlrev_b32 {v(T+3)}, 6, {v(SEGV)}
              v_add_u32 {v(T+3)}, {L_RS}, {v(T+3)}
              v_mov_b32 {v(FR+2)}, 0
              v_mov_b32 {v(FR+3)}, 0
              v_mov_b32 {v(FR+6)}, 0
              v_mov_b32 {v(FR+7)}, 0
              v_mov_b32 {v(FR+10)}, 0
              v_mov_b32 {v(FR+11)}, 0
              v_cmp_gt_u32 vcc, 32, v0
              s_barrier
              ds_read_b32 {v(FR)}, {v(T+1)}
              ds_read_b64 {v(FR+4,2)}, {v(T+2)}
              ds_read_b64 {v(FR+8,2)}, {v(T+2)} offset:256""")
        RSV = FR + 12
        for k in range(4): g(f"ds_read_b128 {v(RSV+4*k,4)}, {v(T+3)} offset:{16*k}")
        g(f"""s_waitcnt lgkmcnt(4)
              v_cndmask_b32 {v(FR)}, 0, {v(FR)}, vcc
              v_mov_b32 {v(FR+1)}, {v(FR)}
              s_nop 1""")
        mm(0)
        self.stamp(3)
        g(f"""v_lshlrev_b32 {v(T+4)}, 3, {v(T)}
              v_add_u32 {v(T+4)}, {L_SEG}, {v(T+4)}
              v_lshl_add_u32 {v(T+5)}, {v(SEGV)}, 8, {v(T+4)}
              s_waitcnt lgkmcnt(0)
              s_nop 7
              s_nop 3""")
        for r in range(16): g(f"v_mul_f32 {v(UR+r)}, {v(UR+r)}, {v(RSV+r)}")
        for r in range(16): g(f"v_mul_f32 {v(UI+r)}, {v(UI+r)}, {v(RSV+r)}")
        e0, e1 = T+6, T+8
        cur = (UR, UI)
        for r in range(1, 16):
            d = e0 if r & 1 else e1
            self.cfma(d, d+1, LA, LB, cur[0], cur[1], UR+r, UI+r)
            cur = (d, d+1)
        g(f"ds_write_b64 {v(T+5)}, {v(e0,2)}")
        self.signal_cnt(C_S1, VCNT, VONE)
        E = FR
        rds = "\n".join(f"ds_read_b64 {v(E+2*k,2)}, {v(T+4)} offset:{256*k}" for k in range(8))
        self.spin_cnt(C_S1, VCNT, T+6, rds)
        for k in range(1, 8):
            self.cfma(E+2*k, E+2*k+1, L16, L16+1, E+2*k-2, E+2*k-1, E+2*k, E+2*k+1)
        lnp = g.lab("NOPUB")
        g(f"""v_lshlrev_b32 {v(T+6)}, 4, {v(T)}
              s_lshl_b32 {s(S_T4)}, {s(S_G)}, 13
              s_add_u32 {s(S_T4)}, {s(S_T4)}, {hex(WS_AGG)}
              s_cmp_lg_u32 {s(S_WI)}, 0
              s_cbranch_scc1 {lnp}
              v_mov_b32 {v(E+16)}, {s(S_TAG)}
              v_mov_b32 {v(E+17)}, {s(S_TAG)}
              s_lshl_b32 {s(S_U0)}, {s(S_MT)}, 9
              s_add_u32 {s(S_U0)}, {s(S_U0)}, {s(S_T4)}
              s_mov_b32 exec_hi, 0
              buffer_store_dwordx4 {v(E+14,4)}, {v(T+6)}, {s(R_WS,4)}, {s(S_U0)} offen sc1
              s_mov_b64 exec, -1""")
        g(f"{lnp}:")
        self.stamp(4)
        VD = 2
        PC = BA
        self.lane8_pat(T+8, T+9, T+10)
        g(f"""v_lshl_or_b32 {v(VD)}, {v(T+9)}, 10, {v(T+8)}
              v_add_u32 {v(VD+1)}, 7168, {v(VD)}
              v_xor_b32 {v(VD+1)}, 64, {v(VD+1)}
              v_add_u32 {v(VD+2)}, {2*7168}, {v(VD)}
              v_add_u32 {v(VD+3)}, {2*7168}, {v(VD+1)}
              s_mul_i32 {s(S_T2)}, {s(S_WI)}, 12288
              s_sub_u32 {s(S_U0)}, {s(S_T2)}, {16384 + 2*SLOT}
              s_lshl_b32 {s(S_WO)}, {s(S_NT)}, 16
              s_lshl_b32 {s(S_U1)}, {s(S_WI)}, 8
              s_add_u32 {s(S_WO)}, {s(S_WO)}, {s(S_U1)}
              s_and_b32 {s(S_U1)}, {s(S_WI)}, 1
              s_lshl_b32 {s(S_U1)}, {s(S_U1)}, 15
              s_xor_b32 {s(S_BO)}, {s(S_U1)}, 0x8000
              s_add_u32 {s(S_BO)}, {s(S_BO)}, {s(S_WO)}
              s_add_u32 {s(S_WO)}, {s(S_WO)}, {s(S_U1)}""")
        for k in range(4): g(f"v_add_u32 {v(PC+k)}, {s(S_U0)}, {v(PC+k)}")
        hps = [(part, kh, ct) for kh in range(2) for part in range(2) for ct in range(2)]
        def c_issue(i):
            part, kh, ct = hps[i]
            g(f"""s_add_u32 m0, {s(S_T2)}, {(i%3)*4096}
                  s_add_u32 {s(S_U1)}, {s(S_BO if ct else S_WO)}, {128*kh}""")
            for e in range(4):
                g(f"buffer_load_dwordx4 {v(VD+e)}, {s(R_B if part else R_A,4)}, {s(S_U1)} offen offset:{1024*e} lds")
        def c_read(i):
            part, kh, ct = hps[i]
            for k in range(4):
                gi = 2*kh + (k >> 1); cb = k & 1
                ks = 4*gi + 2*part + cb
                g(f"ds_read_b128 {v(BR+8*ks+4*ct,4)}, {v(PC+k)} offset:{(i%3)*4096}")
        for i in range(3): c_issue(i)
        PP = T+8
        g(f"v_mov_b32 {v(PP)}, 0\nv_mov_b32 {v(PP+1)}, 0")
        for k in range(1, 8):
            g(f"""v_cmp_eq_u32 vcc, {k}, {v(SEGV)}
                  s_nop 1
                  v_cndmask_b32 {v(PP)}, {v(PP)}, {v(E+2*k-2)}, vcc
                  v_cndmask_b32 {v(PP+1)}, {v(PP+1)}, {v(E+2*k-1)}, vcc""")
        PK = T+10
        self.cmul(PK, PK+1, KA, KA+1, PP, PP+1)
        for r in range(16):
            t = T+12 + (r & 1)
            g(f"""v_mul_f32 {v(t)}, {v(KA+1)}, {v(UR+r)}
                  v_mul_f32 {v(UR+r)}, {v(KA)}, {v(UR+r)}
                  v_fma_f32 {v(UR+r)}, -{v(KA+1)}, {v(UI+r)}, {v(UR+r)}
                  v_fma_f32 {v(UI+r)}, {v(KA)}, {v(UI+r)}, {v(t)}""")
        LBn = FR + 20
        g(f"""v_lshlrev_b32 {v(T+12)}, 1, {v(SEGV)}
              v_sub_u32 {v(T+12)}, {s(S_MT)}, {v(T+12)}
              v_cmp_le_i32 {s(S_EX,2)}, 1, {v(T+12)}
              v_cmp_le_i32 {s(S_MK,2)}, 2, {v(T+12)}
              v_subrev_u32 {v(T+13)}, 1, {v(T+12)}
              v_subrev_u32 {v(T+14)}, 2, {v(T+12)}
              v_max_i32 {v(T+13)}, 0, {v(T+13)}
              v_max_i32 {v(T+14)}, 0, {v(T+14)}
              v_lshl_add_u32 {v(T+13)}, {v(T+13)}, 9, {v(T+6)}
              v_lshl_add_u32 {v(T+14)}, {v(T+14)}, 9, {v(T+6)}""")
        for k in range(8): g(f"v_mov_b32 {v(LBn+k)}, 0")
        self.stamp(5)
        l = g.lab("LB"); d = g.lab("LBD")
        g(f"""s_mov_b32 {s(S_SPIN)}, 0x40000
              s_cmp_eq_u64 {s(S_EX,2)}, 0
              s_cbranch_scc1 {d}""")
        g(f"{l}:")
        g(f"""s_mov_b64 exec, {s(S_EX,2)}
              buffer_load_dwordx4 {v(LBn,4)}, {v(T+13)}, {s(R_WS,4)}, {s(S_T4)} offen sc1
              buffer_load_dwordx4 {v(LBn+4,4)}, {v(T+14)}, {s(R_WS,4)}, {s(S_T4)} offen sc1
              s_waitcnt vmcnt(0)
              v_cmp_ne_u32 vcc, {s(S_TAG)}, {v(LBn+2)}
              v_cmp_ne_u32 s[100:101], {s(S_TAG)}, {v(LBn+6)}
              s_mov_b64 exec, -1
              s_sub_u32 {s(S_SPIN)}, {s(S_SPIN)}, 1
              s_cbranch_scc1 {d}
              s_or_b64 vcc, vcc, s[100:101]
              s_cbranch_scc0 {d}
              s_sleep {o.get('lb_sleep', 2)}
              s_branch {l}""")
        g(f"{d}:")
        self.stamp(6)
        g(f"""v_cndmask_b32 {v(LBn+4)}, 0, {v(LBn+4)}, {s(S_MK,2)}
              v_cndmask_b32 {v(LBn+5)}, 0, {v(LBn+5)}, {s(S_MK,2)}""")
        self.cfma(LBn, LBn+1, L128, L128+1, LBn+4, LBn+5, LBn, LBn+1)
        self.cmul(LBn+2, LBn+3, W0, W0+1, LBn, LBn+1)
        g(f"""v_add_u32 {v(T+5)}, {L_LBP - L_SEG}, {v(T+5)}
              v_add_u32 {v(T+4)}, {L_LBP - L_SEG}, {v(T+4)}
              ds_write_b64 {v(T+5)}, {v(LBn+2,2)}""")
        self.signal_cnt(C_S2, VCNT, VONE)
        self.spin_cnt(C_S2, VCNT, T+12, rds)
        for w in (4, 2, 1):
            for k in range(w):
                g(f"v_add_f32 {v(E+2*k)}, {v(E+2*k)}, {v(E+2*k+2*w)}\nv_add_f32 {v(E+2*k+1)}, {v(E+2*k+1)}, {v(E+2*k+2*w+1)}")
        self.cfma(PK, PK+1, GS, GS+1, E, E+1, PK, PK+1)
        cur = (PK, PK+1)
        for r in range(16):
            self.cfma(UR+r, UI+r, LA, LB, cur[0], cur[1], UR+r, UI+r)
            cur = (UR+r, UI+r)
        H = FR
        for i in range(8): g(f"v_cvt_pk_bf16_f32 {v(H+i)}, {v(UR+2*i)}, {v(UR+2*i+1)}")
        for i in range(8): g(f"v_cvt_pk_bf16_f32 {v(H+8+i)}, -{v(UI+2*i)}, -{v(UI+2*i+1)}")
        g(f"""s_lshl_b32 {s(S_U0)}, {s(S_WI)}, 11
              s_add_u32 {s(S_U0)}, {s(S_U0)}, {L_TR}
              v_lshl_add_u32 {v(T+1)}, {v(T)}, 6, {s(S_U0)}
              v_and_b32 {v(T+2)}, 32, v0
              v_add_u32 {v(T+1)}, {v(T+1)}, {v(T+2)}
              v_lshlrev_b32 {v(T+2)}, 4, {v(T+2)}
              v_bfe_u32 {v(T+3)}, v0, 2, 2
              v_lshl_add_u32 {v(T+2)}, {v(T+3)}, 6, {v(T+2)}
              v_and_b32 {v(T+3)}, 1, v0
              v_lshl_add_u32 {v(T+2)}, {v(T+3)}, 5, {v(T+2)}
              v_and_b32 {v(T+3)}, 16, v0
              v_add_u32 {v(T+2)}, {v(T+2)}, {v(T+3)}
              v_and_b32 {v(T+3)}, 2, v0
              v_lshl_add_u32 {v(T+2)}, {v(T+3)}, 2, {v(T+2)}
              v_add_u32 {v(T+2)}, {s(S_U0)}, {v(T+2)}
              v_lshlrev_b32 {v(T+3)}, 4, v0
              s_lshl_b32 {s(S_U0)}, {s(S_MT)}, 2
              s_add_u32 {s(S_U0)}, {s(S_U0)}, {s(S_WI)}
              s_mul_i32 {s(S_U0)}, {s(S_U0)}, {NKS}
              s_lshl_b32 {s(S_U1)}, {s(S_G)}, 2
              s_add_u32 {s(S_U0)}, {s(S_U0)}, {s(S_U1)}
              s_lshl_b32 {s(S_U2)}, {s(S_U0)}, 10""")
        O = FR + 16
        for part in range(2):
            g(f"""ds_write_b128 {v(T+1)}, {v(H+8*part,4)}
                  ds_write_b128 {v(T+1)}, {v(H+8*part+4,4)} offset:16""")
            for cb in range(2):
                for u in range(2):
                    g(f"ds_read_b64_tr_b16 {v(O+8*part+4*cb+2*u,2)}, {v(T+2)} offset:{cb*1024+u*256}")
        for part in range(2):
            g(f"s_waitcnt lgkmcnt({6 if part == 0 else 0})")
            for cb in range(2):
                g(f"buffer_store_dwordx4 {v(O+8*part+4*cb,4)}, {v(T+3)}, {s(R_WS,4)}, {s(S_U2)} offen offset:{(2*part+cb)*1024} sc1")
        self.stamp(7)
        g("s_waitcnt vmcnt(4)")
        for i in range(3): c_read(i)
        self.set_flag(WS_FLAGS, VZ, T+8)
        g("s_waitcnt lgkmcnt(0)")
        for i in range(3, 6): c_issue(i)
        for i in range(3, 8):
            g(f"s_waitcnt vmcnt({8 if i < 6 else 4*(7-i)})")
            c_read(i)
            if i + 3 < 8:
                g("s_waitcnt lgkmcnt(0)")
                c_issue(i + 3)
        g.c("---------------- S phase 2 ----------------")
        A2 = 64; AB = 16; VA = 10
        g("s_waitcnt lgkmcnt(0)")
        self.a_setup(VA, 0, 16, 12)
        g(f"v_and_b32 v13, 7, v0\nv_lshlrev_b32 v13, 2, v13")
        self.stamp(8)
        self.poll_flags(WS_FLAGS, 13, 12)
        self.stamp(9)
        self.p2_loop(16, VA, AB, A2, lambda ks: BR + 8*ks, lambda ks: None)
        self.stamp(10)
        g(f"v_lshl_add_u32 v12, v0, 4, {s(S_T2)}")
        for sl in range(1, 4):
            for q in range(4):
                g(f"ds_write_b128 v12, {v(A2+16*sl+4*q,4)} offset:{(sl-1)*4096+q*1024}")
        g(f"""s_lshr_b32 {s(S_U0)}, {s(S_WI)}, 1
              s_lshl_b32 {s(S_U1)}, {s(S_RT)}, 1
              s_add_u32 {s(S_U0)}, {s(S_U0)}, {s(S_U1)}
              s_lshl_b32 {s(S_T0)}, {s(S_U0)}, 16
              s_lshl_b32 {s(S_U1)}, {s(S_NT)}, 8
              s_add_u32 {s(S_T0)}, {s(S_T0)}, {s(S_U1)}
              s_and_b32 {s(S_U1)}, {s(S_WI)}, 1
              s_lshl_b32 {s(S_U1)}, {s(S_U1)}, 7
              s_add_u32 {s(S_T0)}, {s(S_T0)}, {s(S_U1)}
              v_and_b32 v13, 31, v0
              v_lshlrev_b32 v13, 2, v13
              v_lshrrev_b32 v14, 5, v0
              v_lshl_add_u32 v13, v14, 15, v13
              s_mul_i32 {s(S_U0)}, {s(S_WI)}, {SLOT}
              s_add_u32 {s(S_U0)}, {s(S_U0)}, {W1B + 12288}
              v_lshl_add_u32 v14, v0, 4, {s(S_U0)}
              s_waitcnt lgkmcnt(0)
              s_barrier""")
        for q in range(4): g(f"ds_read_b128 {v(BR+4*q,4)}, v14 offset:{q*1024}")
        g("s_waitcnt lgkmcnt(0)")
        self.gather3(0, 12288, BR+16, 12)
        for dd in range(4):
            if dd: g(f"s_waitcnt lgkmcnt({12-4*dd})")
            for r in range(16): g(f"v_add_f32 {v(A2+r)}, {v(A2+r)}, {v(BR+16*dd+r)}")
        for r in range(16):
            if r and r % 2 == 0: g(f"s_add_u32 {s(S_T0)}, {s(S_T0)}, 4096")
            g(f"buffer_store_dword {v(A2+r)}, v13, {s(R_OUT,4)}, {s(S_T0)} offen offset:{(r%2)*2048}{o.get('out_pol','')}")
        le = g.lab("NOEP")
        g(f"""s_lshl_b32 {s(S_U0)}, {s(S_RT)}, 5
              s_lshl_b32 {s(S_U1)}, {s(S_NT)}, 2
              s_add_u32 {s(S_U0)}, {s(S_U0)}, {s(S_U1)}
              s_add_u32 {s(S_U0)}, {s(S_U0)}, {s(S_WI)}
              s_cmp_lg_u32 {s(S_U0)}, {31*32}
              s_cbranch_scc1 {le}
              v_mov_b32 v12, {s(S_TAG)}
              v_mov_b32 v13, 0
              s_mov_b32 {s(S_U0)}, {hex(WS_EPOCH)}
              s_mov_b64 exec, 1
              buffer_store_dword v12, v13, {s(R_WS,4)}, {s(S_U0)} offen
              s_mov_b64 exec, -1""")
        g(f"{le}:")
        self.stamp(11)
        self.stamps_out(12, 'S')
        g("L_END:")
        g("s_endpgm")

    def build(self):
        hdr = open("cdna_kernels/" + NAME + ".s.ref").read().split("\n")
        head = [l for l in hdr if l.startswith(";") and "@launch" not in l]
        self.prologue(); self.fwave(); self.swave()
        out = "\n".join(head) + f"\n; @launch grid=(256,1,1) block=(512,1,1) lds={LDS_BYTES}\n"
        out += f""".amdgcn_target "amdgcn-amd-amdhsa--gfx950"
.text
.globl {NAME}_kernel
.p2align 8
.type {NAME}_kernel,@function
{NAME}_kernel:
"""
        out += self.g.text()
        out += f""".section .rodata,"a"
.p2align 6
.amdhsa_kernel {NAME}_kernel
  .amdhsa_next_free_vgpr 256
  .amdhsa_next_free_sgpr 102
  .amdhsa_accum_offset 256
  .amdhsa_group_segment_fixed_size 0
  .amdhsa_kernarg_size 120
  .amdhsa_user_sgpr_count 2
  .amdhsa_user_sgpr_kernarg_segment_ptr 1
  .amdhsa_system_sgpr_workgroup_id_x 1
.end_amdhsa_kernel
"""
        return out

if __name__ == "__main__":
    path = sys.argv[1]
    opt = json.loads(sys.argv[2]) if len(sys.argv) > 2 else {}
    open(path, "w").write(Gen(opt).build())
```

```python
import sys, json

NAME = "parallel_sum__ssm_conv_s5__dense_activation_silu__prompt"

class G:
    def __init__(self):
        self.L = []
        self.nlab = 0
    def __call__(self, s):
        for ln in s.strip("\n").split("\n"):
            ln = ln.strip()
            if ln: self.L.append("    " + ln if not ln.endswith(":") else ln)
    def c(self, s): self.L.append("    ; " + s)
    def lab(self, p="L"):
        self.nlab += 1
        return f"{p}_{self.nlab}"
    def text(self): return "\n".join(self.L) + "\n"

def v(a, n=1): return f"v{a}" if n == 1 else f"v[{a}:{a+n-1}]"
def s(a, n=1): return f"s{a}" if n == 1 else f"s[{a}:{a+n-1}]"

NKS = 152
WS_INTER = 0
WS_AGG   = 0xA00000
WS_FLAGF = 0xA40000
WS_FLAGS = 0xA44000
WS_STATS = 0xA50000
WS_EPOCH = 0xA60000
WS_STAMP = 0xB00000
WS_BYTES = 0xC00000
SLOT = 24576
W1B  = 2 * SLOT
MISC = 6 * SLOT
L_RS, L_NM, L_CSS, L_CNT = MISC, MISC + 512, MISC + 1024, MISC + 1536
L_LBP = MISC + 2048
L_CSF = MISC + 4096
L_TR  = MISC + 8192
L_SEG = L_TR + 3 * 2048
LDS_BYTES = MISC + 16384
C_S1, C_S2, C_W0, C_CSF, C_W1D, C_FD = 0, 4, 8, 24, 28, 32

S_WAVE, S_WI, S_MT, S_G, S_RT, S_NT, S_C0, S_TAG = 3, 4, 5, 6, 7, 8, 9, 10
S_T0, S_T1, S_T2, S_T3, S_T4 = 11, 12, 13, 14, 15
P_X, P_LRE, P_LIM, P_BRE, P_BIM, P_CRE, P_CIM, P_LDT = 16, 18, 20, 22, 24, 26, 28, 30
P_DSK, P_BX, P_W1, P_W2, P_OUT, P_DBG, P_WS = 32, 34, 36, 38, 40, 42, 44
R_X, R_A, R_B, R_W2, R_WS, R_OUT = 48, 52, 56, 60, 64, 68
S_ONES, S_XO, S_BO, S_WO, S_SPIN = 72, 73, 74, 75, 76
S_U0, S_U1, S_U2, S_U3 = 77, 78, 79, 80
S_EX = 82
S_MK = 84
S_ST = 86

def srd(g, r, p, nbytes):
    g(f"""s_mov_b32 {s(r)}, {s(p)}
          s_mov_b32 {s(r+1)}, {s(p+1)}
          s_mov_b32 {s(r+2)}, {hex(nbytes)}
          s_mov_b32 {s(r+3)}, 0x20000""")

class Gen:
    def __init__(self, opt):
        self.o = opt
        self.g = G()
        self.nst = 0

    def stamp(self, i):
        if not self.o.get("stamps"): return
        g = self.g
        clk = "s_memrealtime" if self.o.get("rt") else "s_memtime"
        g(f"""{clk} s[100:101]
              s_waitcnt lgkmcnt(0)
              s_mov_b32 {s(S_ST+i)}, s100""")

    def stamps_out(self, vt, role):
        if not self.o.get("stamps"): return
        g = self.g
        pr = self.o.get("probe")
        if pr and pr[0] == role:
            l = g.lab("PRB")
            clk = "s_memrealtime" if self.o.get("rt") else "s_memtime"
            src = S_MK if pr[1:] == "p" else S_ST + int(pr[1:])
            g(f"""s_sub_u32 {s(S_T0)}, {s(src)}, {s(S_ST)}
                  s_lshl_b32 {s(S_T0)}, {s(S_T0)}, 4
                  {clk} s[100:101]
                  s_waitcnt lgkmcnt(0)
                  s_mov_b32 {s(S_T1)}, s100""")
            g(f"{l}:")
            g(f"""{clk} s[100:101]
                  s_waitcnt lgkmcnt(0)
                  s_sub_u32 {s(S_T2)}, s100, {s(S_T1)}
                  s_cmp_lt_u32 {s(S_T2)}, {s(S_T0)}
                  s_cbranch_scc1 {l}""")
        g(f"s_waitcnt vmcnt(0)")
        g(f"""s_memrealtime s[100:101]
              s_waitcnt lgkmcnt(0)
              s_mov_b32 {s(S_ST+13)}, s100""")
        g(f"""s_lshl_b32 {s(S_T0)}, s2, 3
              s_add_u32 {s(S_T0)}, {s(S_T0)}, {s(S_WAVE)}
              s_lshl_b32 {s(S_T0)}, {s(S_T0)}, 6
              s_add_u32 {s(S_T0)}, {s(S_T0)}, {hex(WS_STAMP)}
              v_mov_b32 {v(vt)}, 0""")
        for i in range(14):
            g(f"""v_mov_b32 {v(vt+1)}, {s(S_ST+i)}
                  buffer_store_dword {v(vt+1)}, {v(vt)}, {s(R_WS,4)}, {s(S_T0)} offen offset:{4*i}
                  s_nop 1""")

    def spin_cnt(self, cnt, vaddr_cnt, vt, reads=""):
        g = self.g
        l = g.lab("SPIN"); d = g.lab("SPD")
        g(f"s_mov_b32 {s(S_SPIN)}, 0x100000")
        g(f"{l}:")
        g(f"ds_read_b32 {v(vt)}, {v(vaddr_cnt)} offset:{cnt}")
        if reads: g(reads)
        g(f"""s_waitcnt lgkmcnt(0)
              v_readfirstlane_b32 {s(S_U3)}, {v(vt)}
              s_sub_u32 {s(S_SPIN)}, {s(S_SPIN)}, 1
              s_cbranch_scc1 {d}
              s_cmp_lg_u32 {s(S_U3)}, 4
              s_cbranch_scc1 {l}""")
        g(f"{d}:")

    def signal_cnt(self, cnt, vaddr_cnt, vone):
        g = self.g
        g(f"""s_mov_b64 exec, 1
              ds_add_u32 {v(vaddr_cnt)}, {v(vone)} offset:{cnt}
              s_mov_b64 exec, -1""")

    def cmul(self, dr, di, ar, ai, br, bi):
        self.g(f"""v_mul_f32 {v(dr)}, {v(ar)}, {v(br)}
                   v_mul_f32 {v(di)}, {v(ar)}, {v(bi)}
                   v_fma_f32 {v(dr)}, -{v(ai)}, {v(bi)}, {v(dr)}
                   v_fmac_f32 {v(di)}, {v(ai)}, {v(br)}""")

    def cfma(self, dr, di, ar, ai, br, bi, cr, ci):
        self.g(f"""v_fma_f32 {v(dr)}, {v(ar)}, {v(br)}, {v(cr)}
                   v_fma_f32 {v(di)}, {v(ar)}, {v(bi)}, {v(ci)}
                   v_fma_f32 {v(dr)}, -{v(ai)}, {v(bi)}, {v(dr)}
                   v_fmac_f32 {v(di)}, {v(ai)}, {v(br)}""")

    def poll_flags(self, base, vaddr, vt):
        g = self.g
        l = g.lab("POLL"); d = g.lab("PLD")
        g(f"""s_lshl_b32 {s(S_U0)}, {s(S_RT)}, 2
              s_add_u32 {s(S_U0)}, {s(S_U0)}, {s(S_WI)}
              s_lshl_b32 {s(S_U0)}, {s(S_U0)}, 7
              s_add_u32 {s(S_U0)}, {s(S_U0)}, {hex(base)}
              s_mov_b32 {s(S_SPIN)}, 0x40000
              s_mov_b64 exec, 0xff""")
        g(f"{l}:")
        g(f"""buffer_load_dword {v(vt)}, {v(vaddr)}, {s(R_WS,4)}, {s(S_U0)} offen sc1
              s_waitcnt vmcnt(0)
              v_cmp_ne_u32 vcc, {s(S_TAG)}, {v(vt)}
              s_sub_u32 {s(S_SPIN)}, {s(S_SPIN)}, 1
              s_cbranch_scc1 {d}
              s_cmp_eq_u64 vcc, 0
              s_cbranch_scc1 {d}
              s_sleep {self.o.get('poll_sleep', 2)}
              s_branch {l}""")
        g(f"{d}:")
        g("s_mov_b64 exec, -1")

    def set_flag(self, base, vz, vt):
        g = self.g
        g(f"""s_lshl_b32 {s(S_U0)}, {s(S_MT)}, 1
              s_lshr_b32 {s(S_U1)}, {s(S_WI)}, 1
              s_add_u32 {s(S_U0)}, {s(S_U0)}, {s(S_U1)}
              s_lshl_b32 {s(S_U0)}, {s(S_U0)}, 2
              s_lshr_b32 {s(S_U1)}, {s(S_G)}, 2
              s_add_u32 {s(S_U0)}, {s(S_U0)}, {s(S_U1)}
              s_lshl_b32 {s(S_U0)}, {s(S_U0)}, 7
              s_and_b32 {s(S_U1)}, {s(S_WI)}, 1
              s_lshl_b32 {s(S_U1)}, {s(S_U1)}, 4
              s_add_u32 {s(S_U0)}, {s(S_U0)}, {s(S_U1)}
              s_and_b32 {s(S_U1)}, {s(S_G)}, 3
              s_lshl_b32 {s(S_U1)}, {s(S_U1)}, 2
              s_add_u32 {s(S_U0)}, {s(S_U0)}, {s(S_U1)}
              s_add_u32 {s(S_U0)}, {s(S_U0)}, {hex(base)}
              v_mov_b32 {v(vt)}, {s(S_TAG)}
              s_waitcnt vmcnt(0)
              s_mov_b64 exec, 1
              buffer_store_dword {v(vt)}, {v(vz)}, {s(R_WS,4)}, {s(S_U0)} offen sc1
              s_mov_b64 exec, -1""")

    def prologue(self):
        g = self.g
        g(f"""s_cmp_ge_u32 s2, 256
              s_cbranch_scc1 L_END
              s_load_dwordx16 s[16:31], s[0:1], 0
              s_load_dwordx8 s[32:39], s[0:1], 64
              s_load_dwordx4 s[40:43], s[0:1], 96
              s_load_dwordx2 s[44:45], s[0:1], 112""")
        if self.o.get("stamps"):
            g(f"""s_memrealtime s[100:101]
                  s_waitcnt lgkmcnt(0)
                  s_mov_b32 {s(S_ST+12)}, s100""")
            for i in range(12): g(f"s_mov_b32 {s(S_ST+i)}, 0")
            self.stamp(0)
        g(f"""v_lshrrev_b32 v1, 6, v0
              v_and_b32 v0, 63, v0
              s_and_b32 {s(S_T0)}, s2, 7
              v_readfirstlane_b32 {s(S_WAVE)}, v1
              s_lshr_b32 {s(S_T1)}, s2, 3
              s_and_b32 {s(S_T2)}, {s(S_T1)}, 3
              s_lshr_b32 {s(S_NT)}, {s(S_T1)}, 2
              s_lshr_b32 {s(S_T3)}, {s(S_T0)}, 1
              s_lshl_b32 {s(S_MT)}, {s(S_T3)}, 2
              s_add_u32 {s(S_MT)}, {s(S_MT)}, {s(S_T2)}
              s_and_b32 {s(S_T4)}, {s(S_T0)}, 1
              s_lshl_b32 {s(S_G)}, {s(S_T4)}, 3
              s_add_u32 {s(S_G)}, {s(S_G)}, {s(S_NT)}
              s_lshl_b32 {s(S_RT)}, {s(S_T0)}, 2
              s_add_u32 {s(S_RT)}, {s(S_RT)}, {s(S_T2)}
              s_lshl_b32 {s(S_C0)}, {s(S_T4)}, 1
              s_add_u32 {s(S_C0)}, {s(S_C0)}, {s(S_T3)}
              s_lshl_b32 {s(S_C0)}, {s(S_C0)}, 1
              s_and_b32 {s(S_C0)}, {s(S_C0)}, 7
              s_and_b32 {s(S_WI)}, {s(S_WAVE)}, 3""")
        pre = self.o.get("pretest")
        if pre:
            pol = self.o.get("prepol", "")
            g(f"""v_lshlrev_b32 v2, 4, v0
                  s_lshl_b32 {s(S_U0)}, {s(S_WAVE)}, 8
                  s_add_u32 {s(S_U0)}, {s(S_U0)}, s2
                  s_lshl_b32 {s(S_U0)}, {s(S_U0)}, 10""")
            for i, (nm, P, nb, sh) in enumerate([("x", P_X, 2<<20, 0), ("b", P_BRE, 1<<19, 0), ("b", P_BIM, 1<<19, 2), ("1", P_W1, 1376*1024, 2),
                                  ("c", P_CRE, 1<<19, 4), ("c", P_CIM, 1<<19, 6), ("2", P_W2, 1376*1024, 0)]):
                if nm not in pre: continue
                srd(g, R_X, P, nb)
                g(f"""s_sub_u32 {s(S_U1)}, {s(S_U0)}, {sh << 18}
                      s_and_b32 {s(S_U1)}, {s(S_U1)}, {(2<<20)-1}
                      buffer_load_dwordx4 {v(4+4*i,4)}, v2, {s(R_X,4)}, {s(S_U1)} offen{pol}""")
            g("s_waitcnt vmcnt(0)")
            self.stamp(11)
            g(f"s_mov_b32 {s(S_MK)}, {s(S_ST+11)}")
        g(f"""s_cmp_ge_u32 {s(S_WAVE)}, 4
              s_cbranch_scc0 L_SWAVE""")

    def epoch(self):
        g = self.g
        g(f"""s_add_u32 {s(S_EX)}, {s(P_WS)}, {hex(WS_EPOCH)}
              s_addc_u32 {s(S_EX+1)}, {s(P_WS+1)}, 0
              s_load_dword {s(S_TAG)}, {s(S_EX,2)}, 0""")
    def epoch_fin(self):
        self.g(f"""s_mul_i32 {s(S_TAG)}, {s(S_TAG)}, 0x9E3779B1
                   s_add_u32 {s(S_TAG)}, {s(S_TAG)}, 0x7F4A7C15""")

    def frag_pat(self, P, t0, t1, xor_wi):
        g = self.g
        g(f"""v_and_b32 {v(t0)}, 31, v0
              v_lshrrev_b32 {v(t1)}, 1, v0
              v_and_b32 {v(t1)}, 7, {v(t1)}
              v_lshrrev_b32 {v(P)}, 5, v0
              v_xor_b32 {v(t1)}, {v(t1)}, {v(P)}
              v_lshlrev_b32 {v(t1)}, 4, {v(t1)}
              v_lshl_or_b32 {v(P)}, {v(t0)}, 7, {v(t1)}""")
        if xor_wi:
            g(f"""s_lshl_b32 {s(S_U0)}, {s(S_WI)}, 5
                  v_xor_b32 {v(P)}, {s(S_U0)}, {v(P)}""")
        for k in (1, 2, 3):
            g(f"v_xor_b32 {v(P+k)}, {32*k}, {v(P)}")

    def lane8_pat(self, d, t0, t1):
        self.g(f"""v_lshrrev_b32 {v(t0)}, 3, v0
                   v_and_b32 {v(d)}, 7, v0
                   v_lshrrev_b32 {v(t1)}, 4, v0
                   v_xor_b32 {v(d)}, {v(d)}, {v(t1)}
                   v_lshlrev_b32 {v(d)}, 4, {v(d)}""")

    def fwave(self):
        g = self.g; o = self.o
        X = 128
        ACC = 80
        WF = 48
        VX, VB, VW = 2, 6, 8
        P, PB = 12, 16
        SX, SQ, CA, CB = 17, 18, 19, 20
        BT = 24
        T = 32
        WA = 12
        VCNT, VONE, VZ = 21, 22, 23
        NM, RS, NRS = 44, 11, 1
        CS = 17

        g.c("---------------- F wave: stage A loader ----------------")
        self.lane8_pat(T, T+1, T+2)
        g(f"""v_lshrrev_b32 {v(T+2)}, 2, {v(T+1)}
              v_lshlrev_b32 {v(T+2)}, 4, {v(T+2)}
              v_and_b32 {v(T+3)}, 3, {v(T+1)}
              v_add_u32 {v(T+2)}, {v(T+2)}, {v(T+3)}
              v_lshl_or_b32 {v(VX)}, {v(T+2)}, 10, {v(T)}
              v_add_u32 {v(VX+1)}, 3072, {v(VX)}
              v_xor_b32 {v(VX+1)}, 64, {v(VX+1)}
              v_add_u32 {v(VX+2)}, 6144, {v(VX)}
              v_add_u32 {v(VX+3)}, 6144, {v(VX+1)}
              v_lshl_or_b32 {v(VB)}, {v(T+1)}, 10, {v(T)}
              v_add_u32 {v(VB+1)}, 7168, {v(VB)}
              v_xor_b32 {v(VB+1)}, 64, {v(VB+1)}
              s_lshl_b32 {s(S_XO)}, {s(S_MT)}, 17
              s_lshl_b32 {s(S_T0)}, {s(S_WI)}, 15
              s_add_u32 {s(S_XO)}, {s(S_XO)}, {s(S_T0)}
              s_lshl_b32 {s(S_BO)}, {s(S_G)}, 15
              s_and_b32 {s(S_T0)}, {s(S_WI)}, 1
              s_lshl_b32 {s(S_T0)}, {s(S_T0)}, 14
              s_add_u32 {s(S_BO)}, {s(S_BO)}, {s(S_T0)}
              s_lshl_b32 {s(S_T3)}, {s(S_WI)}, 12
              s_lshl_b32 {s(S_T4)}, {s(S_WI)}, 11
              s_add_u32 {s(S_T4)}, {s(S_T4)}, 16384
              s_waitcnt lgkmcnt(0)""")
        srd(g, R_X, P_X, 2048 * 512 * 2)
        g(f"""s_cmp_ge_u32 {s(S_WI)}, 2
              s_cselect_b32 {s(R_A)}, {s(P_BIM)}, {s(P_BRE)}
              s_cselect_b32 {s(R_A+1)}, {s(P_BIM+1)}, {s(P_BRE+1)}
              s_mov_b32 {s(R_A+2)}, {hex(512*512*2)}
              s_mov_b32 {s(R_A+3)}, 0x20000""")

        def issue_x(c):
            slot = (c % 6) * SLOT
            g(f"""s_add_u32 {s(S_U0)}, {s(S_C0)}, {c}
                  s_and_b32 {s(S_U0)}, {s(S_U0)}, 7
                  s_lshl_b32 {s(S_U0)}, {s(S_U0)}, 7
                  s_add_u32 m0, {s(S_T3)}, {slot}
                  s_add_u32 {s(S_U1)}, {s(S_U0)}, {s(S_XO)}""")
            for e in range(4):
                g(f"buffer_load_dwordx4 {v(VX+e)}, {s(R_X,4)}, {s(S_U1)} offen offset:{1024*e} lds")
            g(f"""s_add_u32 m0, {s(S_T4)}, {slot}
                  s_add_u32 {s(S_U1)}, {s(S_U0)}, {s(S_BO)}""")
            for e in range(2):
                g(f"buffer_load_dwordx4 {v(VB+e)}, {s(R_A,4)}, {s(S_U1)} offen offset:{1024*e} lds")

        def issue_w(j):
            g(f"""s_add_u32 {s(S_U0)}, {s(S_C0)}, {j}
                  s_and_b32 {s(S_U0)}, {s(S_U0)}, 7
                  s_mul_i32 {s(S_U0)}, {s(S_U0)}, {64*2752}
                  s_add_u32 m0, {s(S_T2)}, {W1B + j*12288}
                  s_add_u32 {s(S_U1)}, {s(S_U0)}, {s(S_WO)}""")
            for e in range(3):
                g(f"buffer_load_dwordx4 {v(VW+e)}, {s(R_B,4)}, {s(S_U1)} offen offset:{1024*e} lds")

        issue_x(0); issue_x(1)
        self.stamp(1)
        self.epoch()
        srd(g, R_B, P_W1, 512 * 1376 * 2)
        srd(g, R_W2, P_W2, 1376 * 512 * 2)
        srd(g, R_WS, P_WS, WS_BYTES)
        g(f"s_mov_b32 {s(S_T0)}, 683")
        for e in range(3):
            g(f"""v_add_u32 {v(T)}, {64*e}, v0
                  v_mul_u32_u24 {v(T+1)}, {s(S_T0)}, {v(T)}
                  v_lshrrev_b32 {v(T+1)}, 13, {v(T+1)}
                  v_mul_u32_u24 {v(T+2)}, 12, {v(T+1)}
                  v_sub_u32 {v(T+2)}, {v(T)}, {v(T+2)}
                  v_mul_u32_u24 {v(T+1)}, 2752, {v(T+1)}
                  v_lshl_add_u32 {v(VW+e)}, {v(T+2)}, 4, {v(T+1)}""")
            if e: g(f"v_subrev_u32 {v(VW+e)}, {1024*e}, {v(VW+e)}")
        g(f"""s_lshr_b32 {s(S_T0)}, {s(S_G)}, 2
              s_mul_i32 {s(S_T1)}, {s(S_T0)}, 11
              s_and_b32 {s(S_T0)}, {s(S_G)}, 3
              s_mul_i32 {s(S_T0)}, {s(S_T0)}, 3
              s_add_u32 {s(S_T1)}, {s(S_T1)}, {s(S_T0)}
              s_lshl_b32 {s(S_WO)}, {s(S_T1)}, 6
              s_mul_i32 {s(S_T0)}, {s(S_WI)}, {16*2752}
              s_add_u32 {s(S_WO)}, {s(S_WO)}, {s(S_T0)}
              s_mul_i32 {s(S_T2)}, {s(S_WI)}, 3072
              s_mov_b32 {s(S_ONES)}, 0x3f803f80""")
        self.frag_pat(P, T, T+1, True)
        for k in range(4): g(f"v_add_u32 {v(P+k)}, {s(S_T3)}, {v(P+k)}")
        g(f"""v_lshl_add_u32 {v(PB)}, v0, 4, {s(S_T4)}
              v_mov_b32 {v(SX)}, 0
              v_mov_b32 {v(SQ)}, 0
              v_mov_b32 {v(CA)}, 0
              v_mov_b32 {v(CB)}, 0
              v_mov_b32 {v(VCNT)}, {L_CNT}
              v_mov_b32 {v(VONE)}, 1
              v_mov_b32 {v(VZ)}, 0
              s_waitcnt lgkmcnt(0)""")
        self.epoch_fin()

        def stats(c):
            for k in range(16):
                r = X + 16 * c + k
                g(f"""v_dot2c_f32_bf16 {v(SX)}, {s(S_ONES)}, {v(r)}
                      v_dot2c_f32_bf16 {v(SQ)}, {v(r)}, {v(r)}""")
        def csum():
            for k in range(4):
                g(f"""v_dot2c_f32_bf16 {v(CA)}, {s(S_ONES)}, {v(BT+k)}
                      v_dot2c_f32_bf16 {v(CB)}, {s(S_ONES)}, {v(BT+4+k)}""")

        for c in range(8):
            g.c(f"chunk {c}")
            if c + 2 < 8: issue_x(c + 2)
            else: issue_w(2 * (c - 6)); issue_w(2 * (c - 6) + 1)
            if c in (3, 6):
                op = "v_add_u32" if c == 3 else "v_subrev_u32"
                for k in range(5): g(f"{op} {v(P+k)}, {3*SLOT}, {v(P+k)}")
            g("s_waitcnt vmcnt(12)\ns_barrier")
            off = (c % 3) * SLOT
            g(f"""ds_read_b128 {v(BT,4)}, {v(PB)} offset:{off}
                  ds_read_b128 {v(BT+4,4)}, {v(PB)} offset:{off+1024}""")
            for k in range(4):
                g(f"ds_read_b128 {v(X+16*c+4*k,4)}, {v(P+k)} offset:{off}")
            g("s_waitcnt lgkmcnt(4)")
            csum()
            g("s_waitcnt lgkmcnt(0)")
            stats(c)
        self.stamp(2)
        g.c("row statistics")
        g(f"""s_nop 2
              v_mov_b32 {v(T)}, {v(SX)}
              v_mov_b32 {v(T+1)}, {v(SQ)}
              v_add_f32_dpp {v(CA)}, {v(CA)}, {v(CA)} quad_perm:[1,0,3,2] row_mask:0xf bank_mask:0xf
              v_add_f32_dpp {v(CB)}, {v(CB)}, {v(CB)} quad_perm:[1,0,3,2] row_mask:0xf bank_mask:0xf
              v_permlane32_swap_b32 {v(T)}, {v(SX)}
              v_permlane32_swap_b32 {v(T+1)}, {v(SQ)}
              v_add_f32_dpp {v(CA)}, {v(CA)}, {v(CA)} quad_perm:[2,3,0,1] row_mask:0xf bank_mask:0xf
              v_add_f32_dpp {v(CB)}, {v(CB)}, {v(CB)} quad_perm:[2,3,0,1] row_mask:0xf bank_mask:0xf
              v_add_f32 {v(SX)}, {v(SX)}, {v(T)}
              v_add_f32 {v(SQ)}, {v(SQ)}, {v(T+1)}
              v_add_f32_dpp {v(CA)}, {v(CA)}, {v(CA)} row_half_mirror row_mask:0xf bank_mask:0xf
              v_add_f32_dpp {v(CB)}, {v(CB)}, {v(CB)} row_half_mirror row_mask:0xf bank_mask:0xf
              v_mul_f32 {v(SX)}, 0x3b000000, {v(SX)}
              v_mul_f32 {v(SQ)}, 0x3b000000, {v(SQ)}
              v_fma_f32 {v(SQ)}, -{v(SX)}, {v(SX)}, {v(SQ)}
              v_max_f32 {v(SQ)}, 0, {v(SQ)}
              v_cvt_pk_bf16_f32 {v(NM)}, -{v(SX)}, -{v(SX)}
              v_cvt_pk_bf16_f32 {v(T)}, {v(SQ)}, {v(SQ)}
              v_and_b32 {v(T)}, 0xffff0000, {v(T)}
              v_add_f32 {v(T)}, 0x3727c5ac, {v(T)}
              v_cvt_pk_bf16_f32 {v(T)}, {v(T)}, {v(T)}
              v_and_b32 {v(T)}, 0xffff0000, {v(T)}
              v_sqrt_f32 {v(T)}, {v(T)}
              v_and_b32 {v(T+2)}, 1, v0
              v_cvt_pk_bf16_f32 {v(T+8)}, {v(SX)}, {v(T)}
              v_and_b32 {v(T)}, 0xffff0000, {v(T+8)}
              v_rcp_f32 {v(RS)}, {v(T)}
              v_cmp_eq_u32 vcc, 1, {v(T+2)}
              v_mov_b32 {v(NM+1)}, {v(NM)}
              v_mov_b32 {v(NM+2)}, 0
              v_cndmask_b32 {v(CA)}, {v(CA)}, {v(CB)}, vcc
              v_mov_b32 {v(NM+3)}, 0""")
        def split3(src, d0, d1, t0, t1):
            g(f"""v_and_b32 {v(t0)}, 0xffff0000, {v(src)}
                  v_sub_f32 {v(t1)}, {v(src)}, {v(t0)}
                  v_and_b32 {v(d0)}, 0xffff0000, {v(t1)}
                  v_sub_f32 {v(t1)}, {v(t1)}, {v(d0)}
                  v_lshrrev_b32 {v(t0)}, 16, {v(t0)}
                  v_or_b32 {v(d0)}, {v(d0)}, {v(t0)}
                  v_lshrrev_b32 {v(d1)}, 16, {v(t1)}""")
        split3(CA, T+4, T+5, T+1, T+3)
        g(f"""v_lshrrev_b32 {v(T+1)}, 3, v0
              v_lshl_add_u32 {v(T+1)}, {v(T+2)}, 3, {v(T+1)}
              s_lshl_b32 {s(S_U0)}, {s(S_WI)}, 7
              s_add_u32 {s(S_U1)}, {s(S_U0)}, {L_CSS}
              v_lshl_add_u32 {v(T+1)}, {v(T+1)}, 3, {s(S_U1)}
              ds_write_b64 {v(T+1)}, {v(T+4,2)}
              v_and_b32 {v(T+2)}, 31, v0
              s_add_u32 {s(S_U1)}, {s(S_U0)}, {L_NM}
              v_lshl_add_u32 {v(T+3)}, {v(T+2)}, 2, {s(S_U1)}
              ds_write_b32 {v(T+3)}, {v(NM)}
              v_and_b32 {v(T+6)}, 4, v0
              v_lshlrev_b32 {v(T+6)}, 2, {v(T+6)}
              v_lshrrev_b32 {v(T+7)}, 1, {v(T+2)}
              v_and_b32 {v(T+7)}, 12, {v(T+7)}
              v_and_b32 {v(T+2)}, 3, v0
              v_or3_b32 {v(T+9)}, {v(T+6)}, {v(T+7)}, {v(T+2)}
              s_add_u32 {s(S_U1)}, {s(S_U0)}, {L_RS}
              v_lshl_add_u32 {v(T+3)}, {v(T+9)}, 2, {s(S_U1)}
              ds_write_b32 {v(T+3)}, {v(RS)}
              s_waitcnt lgkmcnt(0)
              s_barrier""")
        self.stamp(3)
        for j in range(4, 8): issue_w(j)
        lskip = g.lab("NOST")
        g(f"""s_and_b32 {s(S_U0)}, {s(S_G)}, 3
              s_cmp_lg_u32 {s(S_U0)}, 0
              s_cbranch_scc1 {lskip}
              s_lshl_b32 {s(S_U0)}, {s(S_G)}, 11
              s_lshl_b32 {s(S_U1)}, {s(S_MT)}, 9
              s_add_u32 {s(S_U0)}, {s(S_U0)}, {s(S_U1)}
              s_lshl_b32 {s(S_U1)}, {s(S_WI)}, 7
              s_add_u32 {s(S_U0)}, {s(S_U0)}, {s(S_U1)}
              s_add_u32 {s(S_U0)}, {s(S_U0)}, {hex(WS_STATS)}
              v_lshlrev_b32 {v(T+9)}, 2, {v(T+9)}
              s_mov_b32 exec_hi, 0
              buffer_store_dword {v(T+8)}, {v(T+9)}, {s(R_WS,4)}, {s(S_U0)} offen sc1
              s_mov_b64 exec, -1
              s_branch {lskip}_b""")
        g(f"{lskip}:")
        g(f"buffer_load_dword {v(T+9)}, {v(VZ)}, {s(R_X,4)}, 0 offen")
        g(f"{lskip}_b:")
        g.c("---------------- F stage: w1 GEMM ----------------")
        g(f"""v_lshrrev_b32 {v(T)}, 5, v0
              v_bfe_u32 {v(T+1)}, v0, 2, 2
              v_lshl_add_u32 {v(T)}, {v(T)}, 3, {v(T+1)}
              v_mul_u32_u24 {v(T)}, 192, {v(T)}
              v_bfe_u32 {v(T+1)}, v0, 4, 1
              v_lshl_add_u32 {v(T)}, {v(T+1)}, 5, {v(T)}
              v_and_b32 {v(T+1)}, 3, v0
              v_lshl_add_u32 {v(T)}, {v(T+1)}, 3, {v(T)}
              v_mul_f32 {v(NRS)}, 0xbfb8aa3b, {v(RS)}
              v_mov_b32 {v(CS)}, 0
              v_mov_b32 {v(CS+1)}, 0
              v_mov_b32 {v(CS+2)}, 0""")
        for k in range(4):
            g(f"""s_xor_b32 {s(S_U0)}, {s(S_WI)}, {k}
                  s_mul_i32 {s(S_U0)}, {s(S_U0)}, 3072
                  s_add_u32 {s(S_U0)}, {s(S_U0)}, {W1B}
                  v_add_u32 {v(WA+k)}, {s(S_U0)}, {v(T)}""")
        def wread(dst, j, k, tile):
            off = (j % 4) * 12288 + tile * 64
            g(f"""ds_read_b64_tr_b16 {v(dst,2)}, {v(WA+k)} offset:{off}
                  ds_read_b64_tr_b16 {v(dst+2,2)}, {v(WA+k)} offset:{off+768}""")
        first = True
        for pr in range(4):
            g.c(f"w1 pair {pr}")
            g(f"s_waitcnt vmcnt({19 - 6*pr})")
            self.signal_cnt(C_W0 + 4*pr, VCNT, VONE)
            if pr == 2:
                for k in range(4): g(f"v_add_u32 {v(WA+k)}, {4*12288}, {v(WA+k)}")
            self.spin_cnt(C_W0 + 4*pr, VCNT, T)
            steps = [(j, k) for j in (2*pr, 2*pr+1) for k in range(4)]
            def rd(idx):
                j, k = steps[idx]; b = WF + 16 * (idx & 1)
                wread(b, j, k, 0); wread(b+4, j, k, 1)
                if k == 0: wread(b+8, j, k, 2)
                return 6 if k == 0 else 4
            rd(0)
            for idx, (j, k) in enumerate(steps):
                b = WF + 16 * (idx & 1)
                n = rd(idx + 1) if idx + 1 < 8 else 0
                g(f"s_waitcnt lgkmcnt({n})")
                xr = X + 16*j + 4*k
                for t in range(2):
                    cc = "0" if first else v(ACC+16*t, 16)
                    g(f"v_mfma_f32_32x32x16_bf16 {v(ACC+16*t,16)}, {v(b+4*t,4)}, {v(xr,4)}, {cc}")
                first = False
                if k == 0:
                    for q in range(4):
                        for t in range(3):
                            g(f"v_dot2c_f32_bf16 {v(CS+t)}, {s(S_ONES)}, {v(b+4*t+q)}")
        self.stamp(4)
        g(f"""s_lshl_b32 {s(S_U0)}, {s(S_WI)}, 2
              s_add_u32 {s(S_U0)}, {s(S_U0)}, {L_CSF}
              v_lshl_add_u32 {v(T)}, v0, 4, {s(S_U0)}
              v_lshlrev_b32 {v(T+1)}, 4, v0
              v_add_u32 {v(T+1)}, {L_CSF}, {v(T+1)}""")
        for t in range(3): g(f"ds_write_b32 {v(T)}, {v(CS+t)} offset:{1024*t}")
        self.signal_cnt(C_CSF, VCNT, VONE)
        for k in range(4): g(f"v_subrev_u32 {v(WA+k)}, {4*12288}, {v(WA+k)}")
        steps = [(j, k) for j in range(8) for k in range(4)]
        def rd2(idx):
            j, k = steps[idx]
            if idx == 16:
                for kk in range(4): g(f"v_add_u32 {v(WA+kk)}, {4*12288}, {v(WA+kk)}")
            wread(WF + 4 * (idx & 3), j, k, 2)
        for i in range(3): rd2(i)
        for idx, (j, k) in enumerate(steps):
            if idx + 3 < 32: rd2(idx + 3)
            g(f"s_waitcnt lgkmcnt({2*min(3, 31-idx)})")
            cc = "0" if idx == 0 else v(ACC+32, 16)
            g(f"v_mfma_f32_32x32x16_bf16 {v(ACC+32,16)}, {v(WF+4*(idx&3),4)}, {v(X+16*j+4*k,4)}, {cc}")
        self.signal_cnt(C_W1D, VCNT, VONE)
        rds = "\n".join(f"ds_read_b128 {v(WF+16+4*t,4)}, {v(T+1)} offset:{1024*t}" for t in range(3))
        self.spin_cnt(C_CSF, VCNT, T, rds)
        for t in range(3):
            b = WF + 16 + 4*t
            g(f"""v_add_f32 {v(b)}, {v(b)}, {v(b+1)}
                  v_add_f32 {v(b+2)}, {v(b+2)}, {v(b+3)}
                  v_add_f32 {v(b+2)}, {v(b)}, {v(b+2)}""")
            split3(b+2, b, b+1, T, T+2)
            g(f"""v_mov_b32 {v(b+2)}, 0
                  v_mov_b32 {v(b+3)}, 0
                  s_nop 1
                  v_mfma_f32_32x32x16_bf16 {v(ACC+16*t,16)}, {v(b,4)}, {v(NM,4)}, {v(ACC+16*t,16)}""")
        self.stamp(5)
        g.c("SiLU + store")
        g(f"""s_lshl_b32 {s(S_U0)}, {s(S_MT)}, 2
              s_add_u32 {s(S_U0)}, {s(S_U0)}, {s(S_WI)}
              s_mul_i32 {s(S_U0)}, {s(S_U0)}, {NKS}
              s_lshl_b32 {s(S_U1)}, {s(S_T1)}, 1
              s_add_u32 {s(S_U0)}, {s(S_U0)}, {s(S_U1)}
              s_add_u32 {s(S_U0)}, {s(S_U0)}, 64
              s_lshl_b32 {s(S_U2)}, {s(S_U0)}, 10
              v_lshlrev_b32 {v(PB)}, 4, v0
              s_nop 7""")
        lsk = g.lab("NOT2")
        for t in range(3):
            a = ACC + 16*t
            if t == 2:
                g(f"""s_and_b32 {s(S_U0)}, {s(S_G)}, 3
                      s_cmp_eq_u32 {s(S_U0)}, 3
                      s_cbranch_scc1 {lsk}
                      s_add_u32 {s(S_U2)}, {s(S_U2)}, 4096""")
            for hf in range(2):
                e = WF if hf == 0 else WF + 8
                rr = range(8*hf, 8*hf + 8)
                for i, r in enumerate(rr): g(f"v_mul_f32 {v(e+i)}, {v(NRS)}, {v(a+r)}")
                for i, r in enumerate(rr): g(f"v_exp_f32 {v(e+i)}, {v(e+i)}\nv_mul_f32 {v(a+r)}, {v(RS)}, {v(a+r)}")
                for i, r in enumerate(rr): g(f"v_add_f32 {v(e+i)}, 1.0, {v(e+i)}")
                for i, r in enumerate(rr): g(f"v_rcp_f32 {v(e+i)}, {v(e+i)}")
                for i, r in enumerate(rr): g(f"v_mul_f32 {v(a+r)}, {v(a+r)}, {v(e+i)}")
                d = T + 4*hf
                for i in range(4): g(f"v_cvt_pk_bf16_f32 {v(d+i)}, {v(a+8*hf+2*i)}, {v(a+8*hf+2*i+1)}")
                g(f"buffer_store_dwordx4 {v(d,4)}, {v(PB)}, {s(R_WS,4)}, {s(S_U2)} offen offset:{((2*t+hf)&3)*1024} sc1")
        g(f"{lsk}:")
        self.stamp(6)
        self.set_flag(WS_FLAGF, VZ, T+8)
        self.stamp(7)

        g.c("---------------- F phase 2 ----------------")
        A2 = 176
        BR = 96
        AB = 48
        BTm = 240
        VD = 2
        WB = 6
        VA = 8
        NR = 10
        g(f"""v_lshrrev_b32 {v(T)}, 3, v0
              v_and_b32 {v(T+1)}, 7, v0
              v_bfe_u32 {v(T+2)}, v0, 4, 1
              v_lshlrev_b32 {v(T+2)}, 2, {v(T+2)}
              v_xor_b32 {v(T+1)}, {v(T+1)}, {v(T+2)}
              v_lshlrev_b32 {v(T+1)}, 4, {v(T+1)}
              v_lshl_or_b32 {v(VD)}, {v(T)}, 10, {v(T+1)}
              v_add_u32 {v(VD+1)}, 7168, {v(VD)}
              v_add_u32 {v(VD+2)}, {2*7168}, {v(VD)}
              v_add_u32 {v(VD+3)}, {3*7168}, {v(VD)}
              s_mul_i32 {s(S_WO)}, {s(S_WI)}, {352*1024}
              s_lshl_b32 {s(S_U0)}, {s(S_NT)}, 7
              s_add_u32 {s(S_WO)}, {s(S_WO)}, {s(S_U0)}
              s_mul_i32 {s(S_T2)}, {s(S_WI)}, {SLOT}
              s_add_u32 {s(S_T2)}, {s(S_T2)}, {W1B}""")
        g(f"""v_lshrrev_b32 {v(T)}, 5, v0
              v_bfe_u32 {v(T+1)}, v0, 2, 2
              v_lshl_add_u32 {v(T)}, {v(T)}, 2, {v(T+1)}
              v_lshlrev_b32 {v(T)}, 7, {v(T)}
              v_bfe_u32 {v(T+1)}, v0, 3, 1
              s_and_b32 {s(S_U0)}, {s(S_WI)}, 1
              v_xor_b32 {v(T+1)}, {s(S_U0)}, {v(T+1)}
              v_lshl_add_u32 {v(T)}, {v(T+1)}, 6, {v(T)}
              v_bfe_u32 {v(T+1)}, v0, 4, 1
              v_lshl_add_u32 {v(T)}, {v(T+1)}, 5, {v(T)}
              v_and_b32 {v(T+1)}, 3, v0
              v_lshl_add_u32 {v(T)}, {v(T+1)}, 3, {v(T)}
              v_add_u32 {v(WB)}, {s(S_T2)}, {v(T)}
              v_xor_b32 {v(WB+1)}, 64, {v(WB)}""")
        self.spin_cnt(C_W1D, VCNT, T)
        def issue_w2(ks0, n, lds0):
            for i in range(0, n, 2):
                g(f"""s_add_u32 m0, {s(S_T2)}, {lds0 + i*2048}
                      s_add_u32 {s(S_U1)}, {s(S_WO)}, {(ks0+i)*16384}""")
                for e in range(4):
                    g(f"buffer_load_dwordx4 {v(VD+e)}, {s(R_W2,4)}, {s(S_U1)} offen offset:{1024*e} lds")
        def bread(dst, lks):
            for ct in range(2):
                for u in range(2):
                    g(f"ds_read_b64_tr_b16 {v(dst+4*ct+2*u,2)}, {v(WB+ct)} offset:{lks*2048+u*1024}")
        issue_w2(0, NR, 0)
        g("s_waitcnt vmcnt(0)")
        for ks in range(NR):
            bread(BR + 8*ks, ks)
            if ks % 3 == 2: g("s_waitcnt lgkmcnt(0)")
        g("s_waitcnt lgkmcnt(0)")
        issue_w2(NR, 22 - NR, 0)
        self.a_setup(VA, 64, 22, T)
        g(f"v_and_b32 {v(T+1)}, 7, v0\nv_lshlrev_b32 {v(T+1)}, 2, {v(T+1)}")
        self.stamp(8)
        self.poll_flags(WS_FLAGF, T+1, T)
        self.stamp(9)
        def bsrc(ks):
            return BR + 8*ks if ks < NR else BTm + 8*(ks & 1)
        def pre(ks):
            if ks + 1 >= NR and ks + 1 < 22: bread(BTm + 8*((ks+1) & 1), ks + 1 - NR)
            if ks >= NR: g(f"s_waitcnt lgkmcnt({4 if ks + 1 < 22 else 0})")
        self.p2_loop(22, VA, AB, A2, bsrc, pre)
        self.stamp(10)
        g.c("F: dump partials, residual, pre-reduce")
        XR = 96; ST = 112; DS = 128
        g(f"""s_lshr_b32 {s(S_U0)}, {s(S_WI)}, 1
              s_lshl_b32 {s(S_U1)}, {s(S_RT)}, 1
              s_add_u32 {s(S_U0)}, {s(S_U0)}, {s(S_U1)}
              s_lshl_b32 {s(S_U1)}, {s(S_NT)}, 7
              s_and_b32 {s(S_U2)}, {s(S_WI)}, 1
              s_lshl_b32 {s(S_U2)}, {s(S_U2)}, 6
              s_add_u32 {s(S_U1)}, {s(S_U1)}, {s(S_U2)}
              s_lshl_b32 {s(S_U2)}, {s(S_U0)}, 15
              s_add_u32 {s(S_U2)}, {s(S_U2)}, {s(S_U1)}
              v_and_b32 {v(T)}, 31, v0
              v_lshlrev_b32 {v(T)}, 1, {v(T)}
              v_lshrrev_b32 {v(T+1)}, 5, v0
              v_lshl_add_u32 {v(T+2)}, {v(T+1)}, 14, {v(T)}
              v_add_u32 {v(T)}, {s(S_U1)}, {v(T)}
              v_lshlrev_b32 {v(T+1)}, 6, {v(T+1)}
              global_load_ushort {v(DS)}, {v(T)}, {s(P_DSK,2)}""")
        for r in range(16):
            if r and r % 4 == 0: g(f"s_add_u32 {s(S_U2)}, {s(S_U2)}, 4096")
            g(f"buffer_load_ushort {v(XR+r)}, {v(T+2)}, {s(R_X,4)}, {s(S_U2)} offen offset:{(r%4)*1024}")
        g(f"""s_lshl_b32 {s(S_U0)}, {s(S_U0)}, 7
              s_lshl_b32 {s(S_U1)}, {s(S_WI)}, 13
              s_add_u32 {s(S_U0)}, {s(S_U0)}, {s(S_U1)}
              s_add_u32 {s(S_U0)}, {s(S_U0)}, {hex(WS_STATS)}""")
        for k in range(4):
            g(f"buffer_load_dwordx4 {v(ST+4*k,4)}, {v(T+1)}, {s(R_WS,4)}, {s(S_U0)} offen offset:{16*k} sc1")
        g(f"v_lshl_add_u32 {v(T+3)}, v0, 4, {s(S_T2)}")
        for sl in range(1, 4):
            for q in range(4):
                g(f"ds_write_b128 {v(T+3)}, {v(A2+16*sl+4*q,4)} offset:{(sl-1)*4096+q*1024}")
        self.signal_cnt(C_FD, VCNT, VONE)
        g(f"s_waitcnt vmcnt(0)\nv_lshlrev_b32 {v(DS)}, 16, {v(DS)}")
        for r in range(16):
            x, st, t = XR + r, ST + r, T + 4 + 2*(r & 1)
            g(f"""v_lshlrev_b32 {v(x)}, 16, {v(x)}
                  v_lshlrev_b32 {v(t)}, 16, {v(st)}
                  v_and_b32 {v(st)}, 0xffff0000, {v(st)}
                  v_rcp_f32 {v(st)}, {v(st)}
                  v_sub_f32 {v(t)}, {v(x)}, {v(t)}
                  v_cvt_pk_bf16_f32 {v(t)}, {v(t)}, {v(t)}
                  v_and_b32 {v(t)}, 0xffff0000, {v(t)}
                  v_mul_f32 {v(t)}, {v(t)}, {v(st)}
                  v_cvt_pk_bf16_f32 {v(t)}, {v(t)}, {v(t)}
                  v_and_b32 {v(t)}, 0xffff0000, {v(t)}
                  v_mul_f32 {v(t)}, {v(t)}, {v(DS)}
                  v_cvt_pk_bf16_f32 {v(t)}, {v(t)}, {v(t)}
                  v_and_b32 {v(t)}, 0xffff0000, {v(t)}
                  v_add_f32 {v(x)}, {v(x)}, {v(t)}
                  v_add_f32 {v(A2+r)}, {v(A2+r)}, {v(x)}""")
        self.spin_cnt(C_FD, VCNT, T)
        self.gather3(W1B, SLOT, AB, T)
        for d in range(3):
            g(f"s_waitcnt lgkmcnt({8-4*d})")
            for r in range(16): g(f"v_add_f32 {v(A2+r)}, {v(A2+r)}, {v(AB+16*d+r)}")
        for q in range(4):
            g(f"ds_write_b128 {v(T+3)}, {v(A2+4*q,4)} offset:{12288+q*1024}")
        g("s_waitcnt lgkmcnt(0)\ns_barrier")
        self.stamp(11)
        self.stamps_out(T, 'F')
        g("s_endpgm")

    def gather3(self, base, stride, dst, T):
        g = self.g
        for d in range(1, 4):
            g(f"""s_xor_b32 {s(S_U0)}, {s(S_WI)}, {d}
                  s_mul_i32 {s(S_U0)}, {s(S_U0)}, {stride}
                  s_add_u32 {s(S_U0)}, {s(S_U0)}, {base + (d-1)*4096}
                  v_lshl_add_u32 {v(T)}, v0, 4, {s(S_U0)}""")
            for q in range(4):
                g(f"ds_read_b128 {v(dst+16*(d-1)+4*q,4)}, {v(T)} offset:{q*1024}")

    def a_setup(self, VA, ks_base, per_wave, T):
        g = self.g
        g(f"""s_lshr_b32 {s(S_U0)}, {s(S_WI)}, 1
              s_mul_i32 {s(S_U1)}, {s(S_U0)}, {NKS*1024}
              s_sub_u32 {s(S_U2)}, {NKS*1024}, {s(S_U1)}
              v_lshl_add_u32 {v(VA)}, v0, 4, {s(S_U1)}
              v_lshl_add_u32 {v(VA+1)}, v0, 4, {s(S_U2)}
              s_mul_i32 {s(S_XO)}, {s(S_RT)}, {2*NKS}
              s_mul_i32 {s(S_U0)}, {s(S_WI)}, {per_wave}
              s_add_u32 {s(S_XO)}, {s(S_XO)}, {s(S_U0)}
              s_add_u32 {s(S_XO)}, {s(S_XO)}, {ks_base}
              s_lshl_b32 {s(S_XO)}, {s(S_XO)}, 10""")

    def p2_loop(self, n, VA, AB, A2, bsrc, pre):
        g = self.g
        D = 6
        def aload(ks):
            if ks and ks % 4 == 0: g(f"s_add_u32 {s(S_XO)}, {s(S_XO)}, 4096")
            for rb in range(2):
                g(f"buffer_load_dwordx4 {v(AB+8*(ks%D)+4*rb,4)}, {v(VA+rb)}, {s(R_WS,4)}, {s(S_XO)} offen offset:{(ks%4)*1024} sc1")
        for ks in range(D): aload(ks)
        for ks in range(n):
            pre(ks)
            g(f"s_waitcnt vmcnt({2*(min(n, ks+D) - ks - 1)})")
            for rb in range(2):
                for ct in range(2):
                    d = A2 + 16*(2*rb+ct)
                    cc = "0" if ks == 0 else v(d, 16)
                    g(f"v_mfma_f32_32x32x16_bf16 {v(d,16)}, {v(AB+8*(ks%D)+4*rb,4)}, {v(bsrc(ks)+4*ct,4)}, {cc}")
            if ks + D < n: aload(ks + D)
        g("s_nop 7\ns_nop 7")

    def swave(self):
        g = self.g; o = self.o
        BR = 128
        UR, UI = 96, 112
        FR = 48
        XA, BA = 2, 6
        LA, LB = 10, 11
        L16, L128, W0, KA, GS = 12, 14, 16, 18, 20
        VCNT, VONE, VZ = 22, 23, 24
        SEGV = 25
        T = 28
        g("L_SWAVE:")
        g.c("---------------- S wave ----------------")
        if o.get("sprio", 1): g("s_setprio 2")
        g(f"""v_and_b32 {v(T)}, 31, v0
              v_lshlrev_b32 {v(T)}, 1, {v(T)}
              s_lshl_b32 {s(S_T0)}, {s(S_G)}, 6
              v_add_u32 {v(T)}, {s(S_T0)}, {v(T)}
              v_mov_b32 {v(VCNT)}, {L_CNT}
              v_mov_b32 {v(VONE)}, 1
              v_mov_b32 {v(VZ)}, 0
              v_lshlrev_b32 {v(T+4)}, 2, v0
              v_add_u32 {v(T+4)}, {L_CNT}, {v(T+4)}
              s_waitcnt lgkmcnt(0)
              global_load_ushort {v(T+1)}, {v(T)}, {s(P_LRE,2)}
              global_load_ushort {v(T+2)}, {v(T)}, {s(P_LIM,2)}
              global_load_ushort {v(T+3)}, {v(T)}, {s(P_LDT,2)}
              ds_write_b32 {v(T+4)}, {v(VZ)}""")
        self.epoch()
        srd(g, R_A, P_CRE, 512*512*2); srd(g, R_B, P_CIM, 512*512*2)
        srd(g, R_WS, P_WS, WS_BYTES); srd(g, R_OUT, P_OUT, 2048*512*4)
        self.frag_pat(BA, T+4, T+5, False)
        g(f"s_lshl_b32 {s(S_T3)}, {s(S_WI)}, 12")
        for k in range(4):
            g(f"v_add_u32 {v(XA+k)}, {s(S_T3)}, {v(BA+k)}\nv_add_u32 {v(BA+k)}, 16384, {v(BA+k)}")
        for r in range(32): g(f"v_mov_b32 {v(UR+r)}, 0")
        for r in range(24): g(f"v_mov_b32 {v(FR+24+r)}, 0")
        g(f"""v_lshrrev_b32 {v(SEGV)}, 5, v0
              s_lshl_b32 {s(S_T0)}, {s(S_WI)}, 1
              v_add_u32 {v(SEGV)}, {s(S_T0)}, {v(SEGV)}
              s_waitcnt vmcnt(0) lgkmcnt(0)""")
        self.epoch_fin()
        lr, li, dt = T+1, T+2, T+3
        g(f"""v_lshlrev_b32 {v(lr)}, 16, {v(lr)}
              v_lshlrev_b32 {v(li)}, 16, {v(li)}
              v_lshlrev_b32 {v(dt)}, 16, {v(dt)}
              v_mul_f32 {v(dt)}, 0x3fb8aa3b, {v(dt)}
              v_exp_f32 {v(dt)}, {v(dt)}
              s_nop 0
              v_cvt_pk_bf16_f32 {v(dt)}, {v(dt)}, {v(dt)}
              v_and_b32 {v(dt)}, 0xffff0000, {v(dt)}
              v_mul_f32 {v(T+4)}, {v(dt)}, {v(lr)}
              v_mul_f32 {v(T+5)}, {v(dt)}, {v(li)}
              v_mul_f32 {v(T+4)}, 0x3fb8aa3b, {v(T+4)}
              v_mul_f32 {v(T+5)}, 0.15915494, {v(T+5)}
              v_rndne_f32 {v(T+6)}, {v(T+5)}
              v_sub_f32 {v(T+5)}, {v(T+5)}, {v(T+6)}
              v_exp_f32 {v(T+4)}, {v(T+4)}
              v_cos_f32 {v(T+6)}, {v(T+5)}
              v_sin_f32 {v(T+7)}, {v(T+5)}
              v_mul_f32 {v(T+8)}, {v(lr)}, {v(lr)}
              v_mul_f32 {v(LA)}, {v(T+4)}, {v(T+6)}
              v_mul_f32 {v(LB)}, {v(T+4)}, {v(T+7)}
              v_fmac_f32 {v(T+8)}, {v(li)}, {v(li)}
              v_rcp_f32 {v(T+8)}, {v(T+8)}
              v_add_f32 {v(T+4)}, -1.0, {v(LA)}
              v_mul_f32 {v(KA)}, {v(T+4)}, {v(lr)}
              v_mul_f32 {v(KA+1)}, {v(LB)}, {v(lr)}
              v_fmac_f32 {v(KA)}, {v(LB)}, {v(li)}
              v_fma_f32 {v(KA+1)}, -{v(T+4)}, {v(li)}, {v(KA+1)}
              v_add_f32 {v(T+8)}, {v(T+8)}, {v(T+8)}
              v_mul_f32 {v(KA)}, {v(KA)}, {v(T+8)}
              v_mul_f32 {v(KA+1)}, {v(KA+1)}, {v(T+8)}""")
        a, b, c2, d2 = T, T+2, T+4, T+6
        sq = lambda d, x: self.cmul(d, d+1, x, x+1, x, x+1)
        sq(a, LA); sq(b, a); sq(a, b); sq(L16, a)
        sq(a, L16); sq(b, a); sq(L128, b)
        g(f"""v_cmp_lt_u32 vcc, 31, v0
              s_nop 1
              v_cndmask_b32 {v(c2)}, 1.0, {v(L16)}, vcc
              v_cndmask_b32 {v(c2+1)}, 0, {v(L16+1)}, vcc
              s_bitcmp1_b32 {s(S_WI)}, 0
              s_cselect_b64 vcc, -1, 0
              v_cndmask_b32 {v(a)}, 1.0, {v(a)}, vcc
              v_cndmask_b32 {v(a+1)}, 0, {v(a+1)}, vcc
              s_bitcmp1_b32 {s(S_WI)}, 1
              s_cselect_b64 vcc, -1, 0
              v_cndmask_b32 {v(b)}, 1.0, {v(b)}, vcc
              v_cndmask_b32 {v(b+1)}, 0, {v(b+1)}, vcc""")
        self.cmul(d2, d2+1, c2, c2+1, a, a+1)
        self.cmul(c2, c2+1, d2, d2+1, b, b+1)
        self.cmul(GS, GS+1, c2, c2+1, KA, KA+1)
        sq(a, c2); sq(b, a); sq(a, b); sq(W0, a)
        self.stamp(1)
        g.c("stage A loop")
        def rd(k):
            f = FR + 12*k
            g(f"""ds_read_b128 {v(f,4)}, {v(XA+k)}
                  ds_read_b128 {v(f+4,4)}, {v(BA+k)}
                  ds_read_b128 {v(f+8,4)}, {v(BA+k)} offset:4096""")
        def mm(k):
            f = FR + 12*k
            g(f"""v_mfma_f32_32x32x16_bf16 {v(UR,16)}, {v(f,4)}, {v(f+4,4)}, {v(UR,16)}
                  v_mfma_f32_32x32x16_bf16 {v(UI,16)}, {v(f,4)}, {v(f+8,4)}, {v(UI,16)}""")
        g(f"s_mov_b32 {s(S_T0)}, 0\ns_mov_b32 {s(S_T2)}, {SLOT}")
        g("L_SA:")
        g("s_barrier")
        rd(0); rd(1)
        g("s_waitcnt lgkmcnt(6)")
        mm(2); mm(3)
        rd(2); rd(3)
        g(f"""s_add_u32 {s(S_T0)}, {s(S_T0)}, 1
              s_cmp_eq_u32 {s(S_T0)}, 6
              s_cselect_b32 {s(S_T1)}, {-5*SLOT & 0xffffffff}, {s(S_T2)}
              s_waitcnt lgkmcnt(9)""")
        mm(0)
        g("s_waitcnt lgkmcnt(6)")
        mm(1)
        for k in range(8): g(f"v_add_u32 {v(XA+k)}, {s(S_T1)}, {v(XA+k)}")
        g(f"""s_cmp_lt_u32 {s(S_T0)}, 8
              s_cbranch_scc1 L_SA
              s_waitcnt lgkmcnt(0)""")
        mm(2); mm(3)
        self.stamp(2)
        g(f"""v_and_b32 {v(T)}, 31, v0
              s_lshl_b32 {s(S_U0)}, {s(S_WI)}, 7
              s_add_u32 {s(S_U1)}, {s(S_U0)}, {L_NM}
              v_lshl_add_u32 {v(T+1)}, {v(T)}, 2, {s(S_U1)}
              v_lshlrev_b32 {v(T+2)}, 3, {v(T)}
              v_add_u32 {v(T+2)}, {L_CSS}, {v(T+2)}
              v_lshlrev_b32 {v(T+3)}, 6, {v(SEGV)}
              v_add_u32 {v(T+3)}, {L_RS}, {v(T+3)}
              v_mov_b32 {v(FR+2)}, 0
              v_mov_b32 {v(FR+3)}, 0
              v_mov_b32 {v(FR+6)}, 0
              v_mov_b32 {v(FR+7)}, 0
              v_mov_b32 {v(FR+10)}, 0
              v_mov_b32 {v(FR+11)}, 0
              v_cmp_gt_u32 vcc, 32, v0
              s_barrier
              ds_read_b32 {v(FR)}, {v(T+1)}
              ds_read_b64 {v(FR+4,2)}, {v(T+2)}
              ds_read_b64 {v(FR+8,2)}, {v(T+2)} offset:256""")
        RSV = FR + 12
        for k in range(4): g(f"ds_read_b128 {v(RSV+4*k,4)}, {v(T+3)} offset:{16*k}")
        g(f"""s_waitcnt lgkmcnt(4)
              v_cndmask_b32 {v(FR)}, 0, {v(FR)}, vcc
              v_mov_b32 {v(FR+1)}, {v(FR)}
              s_nop 1""")
        mm(0)
        self.stamp(3)
        g(f"""v_lshlrev_b32 {v(T+4)}, 3, {v(T)}
              v_add_u32 {v(T+4)}, {L_SEG}, {v(T+4)}
              v_lshl_add_u32 {v(T+5)}, {v(SEGV)}, 8, {v(T+4)}
              s_waitcnt lgkmcnt(0)
              s_nop 7
              s_nop 3""")
        for r in range(16): g(f"v_mul_f32 {v(UR+r)}, {v(UR+r)}, {v(RSV+r)}")
        for r in range(16): g(f"v_mul_f32 {v(UI+r)}, {v(UI+r)}, {v(RSV+r)}")
        e0, e1 = T+6, T+8
        cur = (UR, UI)
        for r in range(1, 16):
            d = e0 if r & 1 else e1
            self.cfma(d, d+1, LA, LB, cur[0], cur[1], UR+r, UI+r)
            cur = (d, d+1)
        g(f"ds_write_b64 {v(T+5)}, {v(e0,2)}")
        self.signal_cnt(C_S1, VCNT, VONE)
        E = FR
        rds = "\n".join(f"ds_read_b64 {v(E+2*k,2)}, {v(T+4)} offset:{256*k}" for k in range(8))
        self.spin_cnt(C_S1, VCNT, T+6, rds)
        for k in range(1, 8):
            self.cfma(E+2*k, E+2*k+1, L16, L16+1, E+2*k-2, E+2*k-1, E+2*k, E+2*k+1)
        lnp = g.lab("NOPUB")
        g(f"""v_lshlrev_b32 {v(T+6)}, 4, {v(T)}
              s_lshl_b32 {s(S_T4)}, {s(S_G)}, 13
              s_add_u32 {s(S_T4)}, {s(S_T4)}, {hex(WS_AGG)}
              s_cmp_lg_u32 {s(S_WI)}, 0
              s_cbranch_scc1 {lnp}
              v_mov_b32 {v(E+16)}, {s(S_TAG)}
              v_mov_b32 {v(E+17)}, {s(S_TAG)}
              s_lshl_b32 {s(S_U0)}, {s(S_MT)}, 9
              s_add_u32 {s(S_U0)}, {s(S_U0)}, {s(S_T4)}
              s_mov_b32 exec_hi, 0
              buffer_store_dwordx4 {v(E+14,4)}, {v(T+6)}, {s(R_WS,4)}, {s(S_U0)} offen sc1
              s_mov_b64 exec, -1""")
        g(f"{lnp}:")
        self.stamp(4)
        VD = 2
        PC = BA
        self.lane8_pat(T+8, T+9, T+10)
        g(f"""v_lshl_or_b32 {v(VD)}, {v(T+9)}, 10, {v(T+8)}
              v_add_u32 {v(VD+1)}, 7168, {v(VD)}
              v_xor_b32 {v(VD+1)}, 64, {v(VD+1)}
              v_add_u32 {v(VD+2)}, {2*7168}, {v(VD)}
              v_add_u32 {v(VD+3)}, {2*7168}, {v(VD+1)}
              s_mul_i32 {s(S_T2)}, {s(S_WI)}, 12288
              s_sub_u32 {s(S_U0)}, {s(S_T2)}, {16384 + 2*SLOT}
              s_lshl_b32 {s(S_WO)}, {s(S_NT)}, 16
              s_lshl_b32 {s(S_U1)}, {s(S_WI)}, 8
              s_add_u32 {s(S_WO)}, {s(S_WO)}, {s(S_U1)}
              s_and_b32 {s(S_U1)}, {s(S_WI)}, 1
              s_lshl_b32 {s(S_U1)}, {s(S_U1)}, 15
              s_xor_b32 {s(S_BO)}, {s(S_U1)}, 0x8000
              s_add_u32 {s(S_BO)}, {s(S_BO)}, {s(S_WO)}
              s_add_u32 {s(S_WO)}, {s(S_WO)}, {s(S_U1)}""")
        for k in range(4): g(f"v_add_u32 {v(PC+k)}, {s(S_U0)}, {v(PC+k)}")
        hps = [(part, kh, ct) for kh in range(2) for part in range(2) for ct in range(2)]
        def c_issue(i):
            part, kh, ct = hps[i]
            g(f"""s_add_u32 m0, {s(S_T2)}, {(i%3)*4096}
                  s_add_u32 {s(S_U1)}, {s(S_BO if ct else S_WO)}, {128*kh}""")
            for e in range(4):
                g(f"buffer_load_dwordx4 {v(VD+e)}, {s(R_B if part else R_A,4)}, {s(S_U1)} offen offset:{1024*e} lds")
        def c_read(i):
            part, kh, ct = hps[i]
            for k in range(4):
                gi = 2*kh + (k >> 1); cb = k & 1
                ks = 4*gi + 2*part + cb
                g(f"ds_read_b128 {v(BR+8*ks+4*ct,4)}, {v(PC+k)} offset:{(i%3)*4096}")
        for i in range(3): c_issue(i)
        PP = T+8
        g(f"v_mov_b32 {v(PP)}, 0\nv_mov_b32 {v(PP+1)}, 0")
        for k in range(1, 8):
            g(f"""v_cmp_eq_u32 vcc, {k}, {v(SEGV)}
                  s_nop 1
                  v_cndmask_b32 {v(PP)}, {v(PP)}, {v(E+2*k-2)}, vcc
                  v_cndmask_b32 {v(PP+1)}, {v(PP+1)}, {v(E+2*k-1)}, vcc""")
        PK = T+10
        self.cmul(PK, PK+1, KA, KA+1, PP, PP+1)
        for r in range(16):
            t = T+12 + (r & 1)
            g(f"""v_mul_f32 {v(t)}, {v(KA+1)}, {v(UR+r)}
                  v_mul_f32 {v(UR+r)}, {v(KA)}, {v(UR+r)}
                  v_fma_f32 {v(UR+r)}, -{v(KA+1)}, {v(UI+r)}, {v(UR+r)}
                  v_fma_f32 {v(UI+r)}, {v(KA)}, {v(UI+r)}, {v(t)}""")
        LBn = FR + 20
        g(f"""v_lshlrev_b32 {v(T+12)}, 1, {v(SEGV)}
              v_sub_u32 {v(T+12)}, {s(S_MT)}, {v(T+12)}
              v_cmp_le_i32 {s(S_EX,2)}, 1, {v(T+12)}
              v_cmp_le_i32 {s(S_MK,2)}, 2, {v(T+12)}
              v_subrev_u32 {v(T+13)}, 1, {v(T+12)}
              v_subrev_u32 {v(T+14)}, 2, {v(T+12)}
              v_max_i32 {v(T+13)}, 0, {v(T+13)}
              v_max_i32 {v(T+14)}, 0, {v(T+14)}
              v_lshl_add_u32 {v(T+13)}, {v(T+13)}, 9, {v(T+6)}
              v_lshl_add_u32 {v(T+14)}, {v(T+14)}, 9, {v(T+6)}""")
        for k in range(8): g(f"v_mov_b32 {v(LBn+k)}, 0")
        self.stamp(5)
        l = g.lab("LB"); d = g.lab("LBD")
        g(f"""s_mov_b32 {s(S_SPIN)}, 0x40000
              s_cmp_eq_u64 {s(S_EX,2)}, 0
              s_cbranch_scc1 {d}""")
        g(f"{l}:")
        g(f"""s_mov_b64 exec, {s(S_EX,2)}
              buffer_load_dwordx4 {v(LBn,4)}, {v(T+13)}, {s(R_WS,4)}, {s(S_T4)} offen sc1
              buffer_load_dwordx4 {v(LBn+4,4)}, {v(T+14)}, {s(R_WS,4)}, {s(S_T4)} offen sc1
              s_waitcnt vmcnt(0)
              v_cmp_ne_u32 vcc, {s(S_TAG)}, {v(LBn+2)}
              v_cmp_ne_u32 s[100:101], {s(S_TAG)}, {v(LBn+6)}
              s_mov_b64 exec, -1
              s_sub_u32 {s(S_SPIN)}, {s(S_SPIN)}, 1
              s_cbranch_scc1 {d}
              s_or_b64 vcc, vcc, s[100:101]
              s_cbranch_scc0 {d}
              s_sleep {o.get('lb_sleep', 2)}
              s_branch {l}""")
        g(f"{d}:")
        self.stamp(6)
        g(f"""v_cndmask_b32 {v(LBn+4)}, 0, {v(LBn+4)}, {s(S_MK,2)}
              v_cndmask_b32 {v(LBn+5)}, 0, {v(LBn+5)}, {s(S_MK,2)}""")
        self.cfma(LBn, LBn+1, L128, L128+1, LBn+4, LBn+5, LBn, LBn+1)
        self.cmul(LBn+2, LBn+3, W0, W0+1, LBn, LBn+1)
        g(f"""v_add_u32 {v(T+5)}, {L_LBP - L_SEG}, {v(T+5)}
              v_add_u32 {v(T+4)}, {L_LBP - L_SEG}, {v(T+4)}
              ds_write_b64 {v(T+5)}, {v(LBn+2,2)}""")
        self.signal_cnt(C_S2, VCNT, VONE)
        self.spin_cnt(C_S2, VCNT, T+12, rds)
        for w in (4, 2, 1):
            for k in range(w):
                g(f"v_add_f32 {v(E+2*k)}, {v(E+2*k)}, {v(E+2*k+2*w)}\nv_add_f32 {v(E+2*k+1)}, {v(E+2*k+1)}, {v(E+2*k+2*w+1)}")
        self.cfma(PK, PK+1, GS, GS+1, E, E+1, PK, PK+1)
        cur = (PK, PK+1)
        for r in range(16):
            self.cfma(UR+r, UI+r, LA, LB, cur[0], cur[1], UR+r, UI+r)
            cur = (UR+r, UI+r)
        H = FR
        for i in range(8): g(f"v_cvt_pk_bf16_f32 {v(H+i)}, {v(UR+2*i)}, {v(UR+2*i+1)}")
        for i in range(8): g(f"v_cvt_pk_bf16_f32 {v(H+8+i)}, -{v(UI+2*i)}, -{v(UI+2*i+1)}")
        g(f"""s_lshl_b32 {s(S_U0)}, {s(S_WI)}, 11
              s_add_u32 {s(S_U0)}, {s(S_U0)}, {L_TR}
              v_lshl_add_u32 {v(T+1)}, {v(T)}, 6, {s(S_U0)}
              v_and_b32 {v(T+2)}, 32, v0
              v_add_u32 {v(T+1)}, {v(T+1)}, {v(T+2)}
              v_lshlrev_b32 {v(T+2)}, 4, {v(T+2)}
              v_bfe_u32 {v(T+3)}, v0, 2, 2
              v_lshl_add_u32 {v(T+2)}, {v(T+3)}, 6, {v(T+2)}
              v_and_b32 {v(T+3)}, 1, v0
              v_lshl_add_u32 {v(T+2)}, {v(T+3)}, 5, {v(T+2)}
              v_and_b32 {v(T+3)}, 16, v0
              v_add_u32 {v(T+2)}, {v(T+2)}, {v(T+3)}
              v_and_b32 {v(T+3)}, 2, v0
              v_lshl_add_u32 {v(T+2)}, {v(T+3)}, 2, {v(T+2)}
              v_add_u32 {v(T+2)}, {s(S_U0)}, {v(T+2)}
              v_lshlrev_b32 {v(T+3)}, 4, v0
              s_lshl_b32 {s(S_U0)}, {s(S_MT)}, 2
              s_add_u32 {s(S_U0)}, {s(S_U0)}, {s(S_WI)}
              s_mul_i32 {s(S_U0)}, {s(S_U0)}, {NKS}
              s_lshl_b32 {s(S_U1)}, {s(S_G)}, 2
              s_add_u32 {s(S_U0)}, {s(S_U0)}, {s(S_U1)}
              s_lshl_b32 {s(S_U2)}, {s(S_U0)}, 10""")
        O = FR + 16
        for part in range(2):
            g(f"""ds_write_b128 {v(T+1)}, {v(H+8*part,4)}
                  ds_write_b128 {v(T+1)}, {v(H+8*part+4,4)} offset:16""")
            for cb in range(2):
                for u in range(2):
                    g(f"ds_read_b64_tr_b16 {v(O+8*part+4*cb+2*u,2)}, {v(T+2)} offset:{cb*1024+u*256}")
        for part in range(2):
            g(f"s_waitcnt lgkmcnt({6 if part == 0 else 0})")
            for cb in range(2):
                g(f"buffer_store_dwordx4 {v(O+8*part+4*cb,4)}, {v(T+3)}, {s(R_WS,4)}, {s(S_U2)} offen offset:{(2*part+cb)*1024} sc1")
        self.stamp(7)
        g("s_waitcnt vmcnt(4)")
        for i in range(3): c_read(i)
        self.set_flag(WS_FLAGS, VZ, T+8)
        g("s_waitcnt lgkmcnt(0)")
        for i in range(3, 6): c_issue(i)
        for i in range(3, 8):
            g(f"s_waitcnt vmcnt({8 if i < 6 else 4*(7-i)})")
            c_read(i)
            if i + 3 < 8:
                g("s_waitcnt lgkmcnt(0)")
                c_issue(i + 3)
        g.c("---------------- S phase 2 ----------------")
        A2 = 64; AB = 16; VA = 10
        g("s_waitcnt lgkmcnt(0)")
        self.a_setup(VA, 0, 16, 12)
        g(f"v_and_b32 v13, 7, v0\nv_lshlrev_b32 v13, 2, v13")
        self.stamp(8)
        self.poll_flags(WS_FLAGS, 13, 12)
        self.stamp(9)
        self.p2_loop(16, VA, AB, A2, lambda ks: BR + 8*ks, lambda ks: None)
        self.stamp(10)
        g(f"v_lshl_add_u32 v12, v0, 4, {s(S_T2)}")
        for sl in range(1, 4):
            for q in range(4):
                g(f"ds_write_b128 v12, {v(A2+16*sl+4*q,4)} offset:{(sl-1)*4096+q*1024}")
        g(f"""s_lshr_b32 {s(S_U0)}, {s(S_WI)}, 1
              s_lshl_b32 {s(S_U1)}, {s(S_RT)}, 1
              s_add_u32 {s(S_U0)}, {s(S_U0)}, {s(S_U1)}
              s_lshl_b32 {s(S_T0)}, {s(S_U0)}, 16
              s_lshl_b32 {s(S_U1)}, {s(S_NT)}, 8
              s_add_u32 {s(S_T0)}, {s(S_T0)}, {s(S_U1)}
              s_and_b32 {s(S_U1)}, {s(S_WI)}, 1
              s_lshl_b32 {s(S_U1)}, {s(S_U1)}, 7
              s_add_u32 {s(S_T0)}, {s(S_T0)}, {s(S_U1)}
              v_and_b32 v13, 31, v0
              v_lshlrev_b32 v13, 2, v13
              v_lshrrev_b32 v14, 5, v0
              v_lshl_add_u32 v13, v14, 15, v13
              s_mul_i32 {s(S_U0)}, {s(S_WI)}, {SLOT}
              s_add_u32 {s(S_U0)}, {s(S_U0)}, {W1B + 12288}
              v_lshl_add_u32 v14, v0, 4, {s(S_U0)}
              s_waitcnt lgkmcnt(0)
              s_barrier""")
        for q in range(4): g(f"ds_read_b128 {v(BR+4*q,4)}, v14 offset:{q*1024}")
        g("s_waitcnt lgkmcnt(0)")
        self.gather3(0, 12288, BR+16, 12)
        for dd in range(4):
            if dd: g(f"s_waitcnt lgkmcnt({12-4*dd})")
            for r in range(16): g(f"v_add_f32 {v(A2+r)}, {v(A2+r)}, {v(BR+16*dd+r)}")
        for r in range(16):
            if r and r % 2 == 0: g(f"s_add_u32 {s(S_T0)}, {s(S_T0)}, 4096")
            g(f"buffer_store_dword {v(A2+r)}, v13, {s(R_OUT,4)}, {s(S_T0)} offen offset:{(r%2)*2048}{o.get('out_pol','')}")
        le = g.lab("NOEP")
        g(f"""s_lshl_b32 {s(S_U0)}, {s(S_RT)}, 5
              s_lshl_b32 {s(S_U1)}, {s(S_NT)}, 2
              s_add_u32 {s(S_U0)}, {s(S_U0)}, {s(S_U1)}
              s_add_u32 {s(S_U0)}, {s(S_U0)}, {s(S_WI)}
              s_cmp_lg_u32 {s(S_U0)}, {31*32}
              s_cbranch_scc1 {le}
              v_mov_b32 v12, {s(S_TAG)}
              v_mov_b32 v13, 0
              s_mov_b32 {s(S_U0)}, {hex(WS_EPOCH)}
              s_mov_b64 exec, 1
              buffer_store_dword v12, v13, {s(R_WS,4)}, {s(S_U0)} offen
              s_mov_b64 exec, -1""")
        g(f"{le}:")
        self.stamp(11)
        self.stamps_out(12, 'S')
        g("L_END:")
        g("s_endpgm")

    def build(self):
        hdr = open("cdna_kernels/" + NAME + ".s.ref").read().split("\n")
        head = [l for l in hdr if l.startswith(";") and "@launch" not in l]
        self.prologue(); self.fwave(); self.swave()
        out = "\n".join(head) + f"\n; @launch grid=(256,1,1) block=(512,1,1) lds={LDS_BYTES}\n"
        out += f""".amdgcn_target "amdgcn-amd-amdhsa--gfx950"
.text
.globl {NAME}_kernel
.p2align 8
.type {NAME}_kernel,@function
{NAME}_kernel:
"""
        out += self.g.text()
        out += f""".section .rodata,"a"
.p2align 6
.amdhsa_kernel {NAME}_kernel
  .amdhsa_next_free_vgpr 256
  .amdhsa_next_free_sgpr 102
  .amdhsa_accum_offset 256
  .amdhsa_group_segment_fixed_size 0
  .amdhsa_kernarg_size 120
  .amdhsa_user_sgpr_count 2
  .amdhsa_user_sgpr_kernarg_segment_ptr 1
  .amdhsa_system_sgpr_workgroup_id_x 1
.end_amdhsa_kernel
"""
        return out

if __name__ == "__main__":
    path = sys.argv[1]
    opt = json.loads(sys.argv[2]) if len(sys.argv) > 2 else {}
    open(path, "w").write(Gen(opt).build())
```

```python
import sys, json

NAME = "parallel_sum__ssm_conv_s5__dense_activation_silu__prompt"

class G:
    def __init__(self):
        self.L = []
        self.nlab = 0
    def __call__(self, s):
        for ln in s.strip("\n").split("\n"):
            ln = ln.strip()
            if ln: self.L.append("    " + ln if not ln.endswith(":") else ln)
    def c(self, s): self.L.append("    ; " + s)
    def lab(self, p="L"):
        self.nlab += 1
        return f"{p}_{self.nlab}"
    def text(self): return "\n".join(self.L) + "\n"

def v(a, n=1): return f"v{a}" if n == 1 else f"v[{a}:{a+n-1}]"
def s(a, n=1): return f"s{a}" if n == 1 else f"s[{a}:{a+n-1}]"

NKS = 152
WS_INTER = 0
WS_AGG   = 0xA00000
WS_FLAGF = 0xA40000
WS_FLAGS = 0xA44000
WS_XS    = 0xA50000
WS_CSG   = 0xA58000
WS_EPOCH = 0xA60000
WS_STAMP = 0xB00000
WS_BYTES = 0xC00000
SLOT = 24576
W1B  = 2 * SLOT
MISC = 6 * SLOT
L_RS, L_NM, L_CSS, L_CNT = MISC, MISC + 512, MISC + 1024, MISC + 1536
L_LBP = MISC + 2048
L_CSF = MISC + 4096
L_TR  = MISC + 8192
L_SEG = L_TR + 3 * 2048
LDS_BYTES = MISC + 16384
C_S1, C_S2, C_W0, C_CSF, C_W1D, C_SD, C_B1 = 0, 4, 8, 24, 28, 32, 48

S_WAVE, S_WI, S_MT, S_G, S_RT, S_NT, S_C0, S_TAG = 3, 4, 5, 6, 7, 8, 9, 10
S_T0, S_T1, S_T2, S_T3, S_T4 = 11, 12, 13, 14, 15
P_X, P_LRE, P_LIM, P_BRE, P_BIM, P_CRE, P_CIM, P_LDT = 16, 18, 20, 22, 24, 26, 28, 30
P_DSK, P_BX, P_W1, P_W2, P_OUT, P_DBG, P_WS = 32, 34, 36, 38, 40, 42, 44
R_X, R_A, R_B, R_W2, R_WS, R_OUT = 48, 52, 56, 60, 64, 68
S_ONES, S_XO, S_BO, S_WO, S_SPIN = 72, 73, 74, 75, 76
S_U0, S_U1, S_U2, S_U3 = 77, 78, 79, 80
S_EX = 82
S_MK = 84
S_ST = 86

def srd(g, r, p, nbytes):
    g(f"""s_mov_b32 {s(r)}, {s(p)}
          s_mov_b32 {s(r+1)}, {s(p+1)}
          s_mov_b32 {s(r+2)}, {hex(nbytes)}
          s_mov_b32 {s(r+3)}, 0x20000""")

class Gen:
    def __init__(self, opt):
        self.o = opt
        self.g = G()
        self.nst = 0

    def stamp(self, i, force=False):
        if not self.o.get("stamps"): return
        if getattr(self, "mute", False) and not force: return
        g = self.g
        clk = "s_memrealtime" if self.o.get("rt") else "s_memtime"
        g(f"""{clk} s[100:101]
              s_waitcnt lgkmcnt(0)
              s_mov_b32 {s(S_ST+i)}, s100""")

    def stamps_out(self, vt, role):
        if not self.o.get("stamps"): return
        g = self.g
        pr = self.o.get("probe")
        if pr and pr[0] == role:
            l = g.lab("PRB")
            clk = "s_memrealtime" if self.o.get("rt") else "s_memtime"
            src = S_MK if pr[1:] == "p" else S_ST + int(pr[1:])
            g(f"""s_sub_u32 {s(S_T0)}, {s(src)}, {s(S_ST)}
                  s_lshl_b32 {s(S_T0)}, {s(S_T0)}, 4
                  {clk} s[100:101]
                  s_waitcnt lgkmcnt(0)
                  s_mov_b32 {s(S_T1)}, s100""")
            g(f"{l}:")
            g(f"""{clk} s[100:101]
                  s_waitcnt lgkmcnt(0)
                  s_sub_u32 {s(S_T2)}, s100, {s(S_T1)}
                  s_cmp_lt_u32 {s(S_T2)}, {s(S_T0)}
                  s_cbranch_scc1 {l}""")
        g(f"s_waitcnt vmcnt(0)")
        g(f"""s_memrealtime s[100:101]
              s_waitcnt lgkmcnt(0)
              s_mov_b32 {s(S_ST+13)}, s100""")
        g(f"""s_lshl_b32 {s(S_T0)}, s2, 3
              s_add_u32 {s(S_T0)}, {s(S_T0)}, {s(S_WAVE)}
              s_lshl_b32 {s(S_T0)}, {s(S_T0)}, 6
              s_add_u32 {s(S_T0)}, {s(S_T0)}, {hex(WS_STAMP)}
              v_mov_b32 {v(vt)}, 0""")
        for i in range(14):
            g(f"""v_mov_b32 {v(vt+1)}, {s(S_ST+i)}
                  buffer_store_dword {v(vt+1)}, {v(vt)}, {s(R_WS,4)}, {s(S_T0)} offen offset:{4*i}
                  s_nop 1""")

    def spin_cnt(self, cnt, vaddr_cnt, vt, reads="", tgt=4):
        g = self.g
        l = g.lab("SPIN"); d = g.lab("SPD")
        g(f"s_mov_b32 {s(S_SPIN)}, 0x100000")
        g(f"{l}:")
        g(f"ds_read_b32 {v(vt)}, {v(vaddr_cnt)} offset:{cnt}")
        if reads: g(reads)
        g(f"""s_waitcnt lgkmcnt(0)
              v_readfirstlane_b32 {s(S_U3)}, {v(vt)}
              s_sub_u32 {s(S_SPIN)}, {s(S_SPIN)}, 1
              s_cbranch_scc1 {d}
              s_cmp_eq_u32 {s(S_U3)}, {tgt}
              s_cbranch_scc1 {d}
              s_sleep 1
              s_branch {l}""")
        g(f"{d}:")

    def signal_cnt(self, cnt, vaddr_cnt, vone):
        g = self.g
        g(f"""s_mov_b64 exec, 1
              ds_add_u32 {v(vaddr_cnt)}, {v(vone)} offset:{cnt}
              s_mov_b64 exec, -1""")

    def cmul(self, dr, di, ar, ai, br, bi):
        self.g(f"""v_mul_f32 {v(dr)}, {v(ar)}, {v(br)}
                   v_mul_f32 {v(di)}, {v(ar)}, {v(bi)}
                   v_fma_f32 {v(dr)}, -{v(ai)}, {v(bi)}, {v(dr)}
                   v_fmac_f32 {v(di)}, {v(ai)}, {v(br)}""")

    def cfma(self, dr, di, ar, ai, br, bi, cr, ci):
        self.g(f"""v_fma_f32 {v(dr)}, {v(ar)}, {v(br)}, {v(cr)}
                   v_fma_f32 {v(di)}, {v(ar)}, {v(bi)}, {v(ci)}
                   v_fma_f32 {v(dr)}, -{v(ai)}, {v(bi)}, {v(dr)}
                   v_fmac_f32 {v(di)}, {v(ai)}, {v(br)}""")

    def poll_flags(self, base, vaddr=None, vt=None):
        g = self.g
        l = g.lab("POLL"); d = g.lab("PLD")
        F = 16
        g(f"""s_lshl_b32 {s(S_U0)}, {s(S_RT)}, 2
              s_add_u32 {s(S_U0)}, {s(S_U0)}, {s(S_WI)}
              s_lshl_b32 {s(S_U0)}, {s(S_U0)}, 7
              s_add_u32 {s(S_U0)}, {s(S_U0)}, {hex(base)}
              s_mov_b32 {s(S_SPIN)}, 0x40000
              s_mov_b32 s24, {s(S_TAG)}
              s_mov_b32 s25, {s(S_TAG)}""")
        g(f"{l}:")
        g(f"""s_load_dwordx8 {s(F,8)}, {s(P_WS,2)}, {s(S_U0)} glc
              s_waitcnt lgkmcnt(0)
              s_xor_b64 s[16:17], s[16:17], s[24:25]
              s_xor_b64 s[18:19], s[18:19], s[24:25]
              s_xor_b64 s[20:21], s[20:21], s[24:25]
              s_xor_b64 s[22:23], s[22:23], s[24:25]
              s_or_b64 s[16:17], s[16:17], s[18:19]
              s_or_b64 s[20:21], s[20:21], s[22:23]
              s_or_b64 s[16:17], s[16:17], s[20:21]
              s_cbranch_scc0 {d}
              s_sub_u32 {s(S_SPIN)}, {s(S_SPIN)}, 1
              s_cbranch_scc0 {l}""")
        g(f"{d}:")

    def set_flag(self, base, vz, vt, vm=0):
        g = self.g
        g(f"""s_lshl_b32 {s(S_U0)}, {s(S_MT)}, 1
              s_lshr_b32 {s(S_U1)}, {s(S_WI)}, 1
              s_add_u32 {s(S_U0)}, {s(S_U0)}, {s(S_U1)}
              s_lshl_b32 {s(S_U0)}, {s(S_U0)}, 2
              s_lshr_b32 {s(S_U1)}, {s(S_G)}, 2
              s_add_u32 {s(S_U0)}, {s(S_U0)}, {s(S_U1)}
              s_lshl_b32 {s(S_U0)}, {s(S_U0)}, 7
              s_and_b32 {s(S_U1)}, {s(S_WI)}, 1
              s_lshl_b32 {s(S_U1)}, {s(S_U1)}, 4
              s_add_u32 {s(S_U0)}, {s(S_U0)}, {s(S_U1)}
              s_and_b32 {s(S_U1)}, {s(S_G)}, 3
              s_lshl_b32 {s(S_U1)}, {s(S_U1)}, 2
              s_add_u32 {s(S_U0)}, {s(S_U0)}, {s(S_U1)}
              s_add_u32 {s(S_U0)}, {s(S_U0)}, {hex(base)}
              v_mov_b32 {v(vt)}, {s(S_TAG)}
              s_waitcnt vmcnt({vm})
              s_mov_b64 exec, 1
              buffer_store_dword {v(vt)}, {v(vz)}, {s(R_WS,4)}, {s(S_U0)} offen sc1
              s_mov_b64 exec, -1""")

    def prologue(self):
        g = self.g
        g(f"""s_cmp_ge_u32 s2, 256
              s_cbranch_scc1 L_END
              s_load_dwordx16 s[16:31], s[0:1], 0
              s_load_dwordx8 s[32:39], s[0:1], 64
              s_load_dwordx4 s[40:43], s[0:1], 96
              s_load_dwordx2 s[44:45], s[0:1], 112""")
        if self.o.get("stamps"):
            g(f"""s_memrealtime s[100:101]
                  s_waitcnt lgkmcnt(0)
                  s_mov_b32 {s(S_ST+12)}, s100""")
            for i in range(12): g(f"s_mov_b32 {s(S_ST+i)}, 0")
            self.stamp(0)
        g(f"""v_lshrrev_b32 v1, 6, v0
              v_and_b32 v0, 63, v0
              s_and_b32 {s(S_T0)}, s2, 7
              v_readfirstlane_b32 {s(S_WAVE)}, v1
              s_lshr_b32 {s(S_T1)}, s2, 3
              s_and_b32 {s(S_T2)}, {s(S_T1)}, 3
              s_lshr_b32 {s(S_NT)}, {s(S_T1)}, 2
              s_lshr_b32 {s(S_T3)}, {s(S_T0)}, 1
              s_lshl_b32 {s(S_MT)}, {s(S_T3)}, 2
              s_add_u32 {s(S_MT)}, {s(S_MT)}, {s(S_T2)}
              s_and_b32 {s(S_T4)}, {s(S_T0)}, 1
              s_lshl_b32 {s(S_G)}, {s(S_T4)}, 3
              s_add_u32 {s(S_G)}, {s(S_G)}, {s(S_NT)}
              s_lshl_b32 {s(S_RT)}, {s(S_T0)}, 2
              s_add_u32 {s(S_RT)}, {s(S_RT)}, {s(S_T2)}
              s_and_b32 {s(S_WI)}, {s(S_WAVE)}, 3""")
        rot = self.o.get("rot", 2)
        if rot == 0:
            g(f"""s_lshl_b32 {s(S_C0)}, {s(S_T4)}, 1
                  s_add_u32 {s(S_C0)}, {s(S_C0)}, {s(S_T3)}
                  s_lshl_b32 {s(S_C0)}, {s(S_C0)}, 1""")
        elif rot == 8:
            g(f"""s_lshl_b32 {s(S_C0)}, {s(S_MT)}, 1
                  s_add_u32 {s(S_C0)}, {s(S_C0)}, {s(S_G)}""")
        elif rot == 4:
            g(f"""s_add_u32 {s(S_C0)}, {s(S_MT)}, {s(S_G)}
                  s_lshl_b32 {s(S_C0)}, {s(S_C0)}, 1""")
        elif rot == 2:
            g(f"""s_add_u32 {s(S_C0)}, {s(S_MT)}, {s(S_G)}
                  s_lshl_b32 {s(S_C0)}, {s(S_C0)}, 1
                  s_add_u32 {s(S_C0)}, {s(S_C0)}, {s(S_T4)}
                  s_add_u32 {s(S_C0)}, {s(S_C0)}, {s(S_T3)}
                  s_lshl_b32 {s(S_C0)}, {s(S_C0)}, 1""")
        pre = self.o.get("pretest")
        if pre:
            pol = self.o.get("prepol", "")
            g(f"""v_lshlrev_b32 v2, 4, v0
                  s_lshl_b32 {s(S_U0)}, {s(S_WAVE)}, 8
                  s_add_u32 {s(S_U0)}, {s(S_U0)}, s2
                  s_lshl_b32 {s(S_U0)}, {s(S_U0)}, 10""")
            for i, (nm, P, nb, sh) in enumerate([("x", P_X, 2<<20, 0), ("b", P_BRE, 1<<19, 0), ("b", P_BIM, 1<<19, 2), ("1", P_W1, 1376*1024, 2),
                                  ("c", P_CRE, 1<<19, 4), ("c", P_CIM, 1<<19, 6), ("2", P_W2, 1376*1024, 0)]):
                if nm not in pre: continue
                srd(g, R_X, P, nb)
                g(f"""s_sub_u32 {s(S_U1)}, {s(S_U0)}, {sh << 18}
                      s_and_b32 {s(S_U1)}, {s(S_U1)}, {(2<<20)-1}
                      buffer_load_dwordx4 {v(4+4*i,4)}, v2, {s(R_X,4)}, {s(S_U1)} offen{pol}""")
            g("s_waitcnt vmcnt(0)")
            self.stamp(11)
            g(f"s_mov_b32 {s(S_MK)}, {s(S_ST+11)}")
        g(f"""s_cmp_ge_u32 {s(S_WAVE)}, 4
              s_cbranch_scc0 L_SWAVE""")

    def epoch(self):
        g = self.g
        g(f"""s_add_u32 {s(S_EX)}, {s(P_WS)}, {hex(WS_EPOCH)}
              s_addc_u32 {s(S_EX+1)}, {s(P_WS+1)}, 0
              s_load_dword {s(S_TAG)}, {s(S_EX,2)}, 0""")
    def epoch_fin(self):
        self.g(f"""s_mul_i32 {s(S_TAG)}, {s(S_TAG)}, 0x9E3779B1
                   s_add_u32 {s(S_TAG)}, {s(S_TAG)}, 0x7F4A7C15""")

    def frag_pat(self, P, t0, t1, xor_wi):
        g = self.g
        g(f"""v_and_b32 {v(t0)}, 31, v0
              v_lshrrev_b32 {v(t1)}, 1, v0
              v_and_b32 {v(t1)}, 7, {v(t1)}
              v_lshrrev_b32 {v(P)}, 5, v0
              v_xor_b32 {v(t1)}, {v(t1)}, {v(P)}
              v_lshlrev_b32 {v(t1)}, 4, {v(t1)}
              v_lshl_or_b32 {v(P)}, {v(t0)}, 7, {v(t1)}""")
        if xor_wi:
            g(f"""s_lshl_b32 {s(S_U0)}, {s(S_WI)}, 5
                  v_xor_b32 {v(P)}, {s(S_U0)}, {v(P)}""")
        for k in (1, 2, 3):
            g(f"v_xor_b32 {v(P+k)}, {32*k}, {v(P)}")

    def lane8_pat(self, d, t0, t1):
        self.g(f"""v_lshrrev_b32 {v(t0)}, 3, v0
                   v_and_b32 {v(d)}, 7, v0
                   v_lshrrev_b32 {v(t1)}, 4, v0
                   v_xor_b32 {v(d)}, {v(d)}, {v(t1)}
                   v_lshlrev_b32 {v(d)}, 4, {v(d)}""")

    def split3(self, src, d0, d1, t0, t1):
        self.g(f"""v_and_b32 {v(t0)}, 0xffff0000, {v(src)}
                  v_sub_f32 {v(t1)}, {v(src)}, {v(t0)}
                  v_and_b32 {v(d0)}, 0xffff0000, {v(t1)}
                  v_sub_f32 {v(t1)}, {v(t1)}, {v(d0)}
                  v_lshrrev_b32 {v(t0)}, 16, {v(t0)}
                  v_or_b32 {v(d0)}, {v(d0)}, {v(t0)}
                  v_lshrrev_b32 {v(d1)}, 16, {v(t1)}""")

    def tau(self, d, t):
        self.g(f"""v_and_b32 {v(d)}, 4, v0
                   v_lshlrev_b32 {v(d)}, 2, {v(d)}
                   v_lshrrev_b32 {v(t)}, 1, v0
                   v_and_b32 {v(t)}, 12, {v(t)}
                   v_or_b32 {v(d)}, {v(d)}, {v(t)}
                   v_and_b32 {v(t)}, 3, v0
                   v_or_b32 {v(d)}, {v(d)}, {v(t)}""")

    def w2_dma_setup(self, VD, T, sreg_lds, sreg_glb):
        g = self.g
        g(f"""v_lshrrev_b32 {v(T)}, 3, v0
              v_and_b32 {v(T+1)}, 7, v0
              v_bfe_u32 {v(T+2)}, v0, 4, 1
              v_lshlrev_b32 {v(T+2)}, 2, {v(T+2)}
              v_xor_b32 {v(T+1)}, {v(T+1)}, {v(T+2)}
              v_lshlrev_b32 {v(T+1)}, 4, {v(T+1)}
              v_lshl_or_b32 {v(VD)}, {v(T)}, 10, {v(T+1)}
              v_add_u32 {v(VD+1)}, 7168, {v(VD)}
              v_add_u32 {v(VD+2)}, {2*7168}, {v(VD)}
              v_add_u32 {v(VD+3)}, {3*7168}, {v(VD)}
              s_mul_i32 {s(sreg_glb)}, {s(S_WI)}, {352*1024}
              s_lshl_b32 {s(S_U0)}, {s(S_NT)}, 7
              s_add_u32 {s(sreg_glb)}, {s(sreg_glb)}, {s(S_U0)}
              s_mul_i32 {s(sreg_lds)}, {s(S_WI)}, {SLOT}
              s_add_u32 {s(sreg_lds)}, {s(sreg_lds)}, {W1B}""")

    def w2_issue(self, VD, sreg_lds, sreg_glb, ks0, n, lslot0):
        g = self.g
        for i in range(0, n, 2):
            g(f"""s_add_u32 m0, {s(sreg_lds)}, {(lslot0 + i)*2048}
                  s_add_u32 {s(S_U1)}, {s(sreg_glb)}, {(ks0+i)*16384}""")
            for e in range(4):
                g(f"buffer_load_dwordx4 {v(VD+e)}, {s(R_W2,4)}, {s(S_U1)} offen offset:{1024*e} lds")

    def recheck(self, loads, tagregs, vm=0):
        g = self.g
        l = g.lab("RC"); d = g.lab("RCD")
        g(f"s_mov_b32 {s(S_SPIN)}, 0x40000\ns_waitcnt vmcnt({vm})")
        g(f"{l}:")
        g(f"v_cmp_ne_u32 vcc, {s(S_TAG)}, {v(tagregs[0])}")
        for r in tagregs[1:]:
            g(f"v_cmp_ne_u32 s[100:101], {s(S_TAG)}, {v(r)}\ns_or_b64 vcc, vcc, s[100:101]")
        g(f"""s_cmp_eq_u64 vcc, 0
              s_cbranch_scc1 {d}
              s_sub_u32 {s(S_SPIN)}, {s(S_SPIN)}, 1
              s_cbranch_scc1 {d}
              s_sleep 2""")
        g(loads)
        g(f"s_waitcnt vmcnt(0)\ns_branch {l}")
        g(f"{d}:")

    def w1_setup(self, VW, T, s_lds, s_glb, s_f0):
        g = self.g
        g(f"s_mov_b32 {s(S_U2)}, 683")
        for e in range(3):
            g(f"""v_add_u32 {v(T)}, {64*e}, v0
                  v_mul_u32_u24 {v(T+1)}, {s(S_U2)}, {v(T)}
                  v_lshrrev_b32 {v(T+1)}, 13, {v(T+1)}
                  v_mul_u32_u24 {v(T+2)}, 12, {v(T+1)}
                  v_sub_u32 {v(T+2)}, {v(T)}, {v(T+2)}
                  v_mul_u32_u24 {v(T+1)}, 2752, {v(T+1)}
                  v_lshl_add_u32 {v(VW+e)}, {v(T+2)}, 4, {v(T+1)}""")
            if e: g(f"v_subrev_u32 {v(VW+e)}, {1024*e}, {v(VW+e)}")
        g(f"""s_lshr_b32 {s(S_U2)}, {s(S_G)}, 2
              s_mul_i32 {s(s_f0)}, {s(S_U2)}, 11
              s_and_b32 {s(S_U2)}, {s(S_G)}, 3
              s_mul_i32 {s(S_U2)}, {s(S_U2)}, 3
              s_add_u32 {s(s_f0)}, {s(s_f0)}, {s(S_U2)}
              s_lshl_b32 {s(s_glb)}, {s(s_f0)}, 6
              s_mul_i32 {s(S_U2)}, {s(S_WI)}, {16*2752}
              s_add_u32 {s(s_glb)}, {s(s_glb)}, {s(S_U2)}
              s_mul_i32 {s(s_lds)}, {s(S_WI)}, 3072""")

    def w1_pre(self, j, s_lds, s_glb):
        return f"""s_add_u32 {s(S_U0)}, {s(S_C0)}, {j}
                  s_and_b32 {s(S_U0)}, {s(S_U0)}, 7
                  s_mul_i32 {s(S_U0)}, {s(S_U0)}, {64*2752}
                  s_add_u32 m0, {s(s_lds)}, {W1B + j*12288}
                  s_add_u32 {s(S_U1)}, {s(S_U0)}, {s(s_glb)}"""

    def fwave(self):
        g = self.g; o = self.o
        X = 128
        ACC = 80
        WF = 44
        VX, VB, VW = 2, 6, 8
        P = 12
        WA = 16
        VCNT, VONE, VZ = 20, 21, 22
        XS = 24
        RS, NRS = 26, 27
        NM = 28
        CS = 32
        T = 2
        TA = 32

        g.c("---------------- F wave: stage A loader ----------------")
        self.lane8_pat(TA, TA+1, TA+2)
        g(f"""v_lshrrev_b32 {v(TA+2)}, 2, {v(TA+1)}
              v_lshlrev_b32 {v(TA+2)}, 4, {v(TA+2)}
              v_and_b32 {v(TA+3)}, 3, {v(TA+1)}
              v_add_u32 {v(TA+2)}, {v(TA+2)}, {v(TA+3)}
              v_lshl_or_b32 {v(VX)}, {v(TA+2)}, 10, {v(TA)}
              v_add_u32 {v(VX+1)}, 3072, {v(VX)}
              v_xor_b32 {v(VX+1)}, 64, {v(VX+1)}
              v_add_u32 {v(VX+2)}, 6144, {v(VX)}
              v_add_u32 {v(VX+3)}, 6144, {v(VX+1)}
              v_lshl_or_b32 {v(VB)}, {v(TA+1)}, 10, {v(TA)}
              v_add_u32 {v(VB+1)}, 7168, {v(VB)}
              v_xor_b32 {v(VB+1)}, 64, {v(VB+1)}
              s_lshl_b32 {s(S_XO)}, {s(S_MT)}, 17
              s_lshl_b32 {s(S_T0)}, {s(S_WI)}, 15
              s_add_u32 {s(S_XO)}, {s(S_XO)}, {s(S_T0)}
              s_lshl_b32 {s(S_BO)}, {s(S_G)}, 15
              s_and_b32 {s(S_T0)}, {s(S_WI)}, 1
              s_lshl_b32 {s(S_T0)}, {s(S_T0)}, 14
              s_add_u32 {s(S_BO)}, {s(S_BO)}, {s(S_T0)}
              s_lshl_b32 {s(S_T3)}, {s(S_WI)}, 12
              s_lshl_b32 {s(S_T4)}, {s(S_WI)}, 11
              s_add_u32 {s(S_T4)}, {s(S_T4)}, 16384
              s_mov_b32 {s(R_X+2)}, {hex(2048*512*2)}
              s_mov_b32 {s(R_X+3)}, 0x20000
              s_mov_b32 {s(R_A+2)}, {hex(512*512*2)}
              s_mov_b32 {s(R_A+3)}, 0x20000
              s_cmp_ge_u32 {s(S_WI)}, 2
              s_waitcnt lgkmcnt(0)
              s_mov_b32 {s(R_X)}, {s(P_X)}
              s_mov_b32 {s(R_X+1)}, {s(P_X+1)}
              s_cselect_b32 {s(R_A)}, {s(P_BIM)}, {s(P_BRE)}
              s_cselect_b32 {s(R_A+1)}, {s(P_BIM+1)}, {s(P_BRE+1)}""")

        def issue_x(c):
            slot = (c % 6) * SLOT
            g(f"""s_add_u32 {s(S_U0)}, {s(S_C0)}, {c}
                  s_and_b32 {s(S_U0)}, {s(S_U0)}, 7
                  s_lshl_b32 {s(S_U0)}, {s(S_U0)}, 7
                  s_add_u32 m0, {s(S_T3)}, {slot}
                  s_add_u32 {s(S_U1)}, {s(S_U0)}, {s(S_XO)}""")
            for e in range(4):
                g(f"buffer_load_dwordx4 {v(VX+e)}, {s(R_X,4)}, {s(S_U1)} offen offset:{1024*e} lds")
            g(f"""s_add_u32 m0, {s(S_T4)}, {slot}
                  s_add_u32 {s(S_U1)}, {s(S_U0)}, {s(S_BO)}""")
            for e in range(2):
                g(f"buffer_load_dwordx4 {v(VB+e)}, {s(R_A,4)}, {s(S_U1)} offen offset:{1024*e} lds")

        def w_pre(j): return self.w1_pre(j, S_T2, S_WO)
        def w_one(e):
            return f"buffer_load_dwordx4 {v(VW+e)}, {s(R_B,4)}, {s(S_U1)} offen offset:{1024*e} lds"
        def issue_w(j):
            g(w_pre(j))
            for e in range(3): g(w_one(e))

        issue_x(0); issue_x(1)
        self.stamp(1)
        self.epoch()
        srd(g, R_B, P_W1, 512 * 1376 * 2)
        srd(g, R_W2, P_W2, 1376 * 512 * 2)
        srd(g, R_WS, P_WS, WS_BYTES)
        srd(g, R_OUT, P_OUT, 2048*512*4)
        self.w1_setup(VW, TA, S_T2, S_WO, S_T1)
        self.frag_pat(P, TA, TA+1, True)
        for k in range(4): g(f"v_add_u32 {v(P+k)}, {s(S_T3)}, {v(P+k)}")
        g(f"""v_lshrrev_b32 {v(TA)}, 5, v0
              v_bfe_u32 {v(TA+1)}, v0, 2, 2
              v_lshl_add_u32 {v(TA)}, {v(TA)}, 3, {v(TA+1)}
              v_mul_u32_u24 {v(TA)}, 192, {v(TA)}
              v_bfe_u32 {v(TA+1)}, v0, 4, 1
              v_lshl_add_u32 {v(TA)}, {v(TA+1)}, 5, {v(TA)}
              v_and_b32 {v(TA+1)}, 3, v0
              v_lshl_add_u32 {v(TA)}, {v(TA+1)}, 3, {v(TA)}
              v_mov_b32 {v(VCNT)}, {L_CNT}
              v_mov_b32 {v(VONE)}, 1
              v_mov_b32 {v(VZ)}, 0
              v_bfe_u32 {v(TA+1)}, v0, 2, 2
              v_lshrrev_b32 {v(TA+2)}, 4, v0
              v_cmp_eq_u32 vcc, {v(TA+1)}, {v(TA+2)}
              v_mov_b32 {v(TA+1)}, 0x3f803f80
              s_nop 0
              v_cndmask_b32 {v(NM)}, 0, {v(TA+1)}, vcc
              v_cndmask_b32 {v(NM+1)}, 0, {v(TA+1)}, vcc
              v_cndmask_b32 {v(NM+2)}, 0, {v(TA+1)}, vcc
              v_cndmask_b32 {v(NM+3)}, 0, {v(TA+1)}, vcc""")
        for k in range(4):
            g(f"""s_xor_b32 {s(S_U0)}, {s(S_WI)}, {k}
                  s_mul_i32 {s(S_U0)}, {s(S_U0)}, 3072
                  s_add_u32 {s(S_U0)}, {s(S_U0)}, {W1B}
                  v_add_u32 {v(WA+k)}, {s(S_U0)}, {v(TA)}""")
        self.tau(RS, TA)
        g(f"""s_lshr_b32 {s(S_U0)}, {s(S_XO)}, 7
              s_add_u32 {s(S_U0)}, {s(S_U0)}, {hex(WS_XS)}
              v_lshl_add_u32 {v(RS)}, {v(RS)}, 3, {s(S_U0)}
              s_waitcnt lgkmcnt(0)""")
        self.epoch_fin()
        xs_load = f"buffer_load_dwordx2 {v(XS,2)}, {v(RS)}, {s(R_WS,4)}, 0 offen sc1"

        for c in range(8):
            g.c(f"chunk {c}")
            if c + 2 < 8: issue_x(c + 2)
            else: issue_w(2 * (c - 6)); issue_w(2 * (c - 6) + 1)
            if c in (3, 6):
                op = "v_add_u32" if c == 3 else "v_subrev_u32"
                for k in range(4): g(f"{op} {v(P+k)}, {3*SLOT}, {v(P+k)}")
            g("s_waitcnt vmcnt(12) lgkmcnt(0)")
            if o.get("adetail") == 1:
                self.mute = True; self.stamp(2 + c, True)
            g("s_barrier")
            if o.get("adetail") == 2:
                self.mute = True; self.stamp(2 + c, True)
            off = (c % 3) * SLOT
            for k in range(4):
                g(f"ds_read_b128 {v(X+16*c+4*k,4)}, {v(P+k)} offset:{off}")
        self.signal_cnt(C_S1, VCNT, VONE)
        self.stamp(2)
        g.c("---------------- F stage: w1 GEMM ----------------")
        g("s_setprio 1\ns_waitcnt vmcnt(6)")
        self.signal_cnt(C_W0, VCNT, VONE)
        self.spin_cnt(C_W0, VCNT, T)
        self.stamp(3)
        steps = [(j, k) for j in range(8) for k in range(4)]
        def rd(idx, t):
            j, k = steps[idx]
            if idx == 16 and t == 0:
                for kk in range(4): g(f"v_add_u32 {v(WA+kk)}, {4*12288}, {v(WA+kk)}")
            dst = WF + 12 * (idx % 3) + 4 * t
            off = (j % 4) * 12288 + t * 64
            g(f"""ds_read_b64_tr_b16 {v(dst,2)}, {v(WA+k)} offset:{off}
                  ds_read_b64_tr_b16 {v(dst+2,2)}, {v(WA+k)} offset:{off+768}""")
        for i in range(2):
            for t in range(3): rd(i, t)
        dma = {}
        q = []
        for j in range(4, 6):
            q += [w_pre(j) + "\n" + w_one(0), w_one(1), w_one(2)]
        q.append(xs_load)
        slots = [0, 1, 2, 4, 5, 6, 20]
        for sl, ins in zip(slots, q): dma[sl] = ins
        issued = 12
        extra = 0
        for idx, (j, k) in enumerate(steps):
            b = WF + 12 * (idx % 3)
            nxt = 6 if idx + 1 < 32 else 0
            g(f"s_waitcnt lgkmcnt({nxt + extra})")
            extra = 0
            xr = X + 16*j + 4*k
            ph = idx % 8; pr = idx // 8
            for t in range(3):
                cc = "0" if idx == 0 else v(ACC+16*t, 16)
                g(f"v_mfma_f32_32x32x16_bf16 {v(ACC+16*t,16)}, {v(b+4*t,4)}, {v(xr,4)}, {cc}")
                if t == 0 and ph == 6 and pr < 3:
                    lo = g.lab("WOK")
                    g(f"""v_readfirstlane_b32 {s(S_U3)}, {v(T)}
                          s_cmp_eq_u32 {s(S_U3)}, 4
                          s_cbranch_scc1 {lo}""")
                    self.spin_cnt(C_W0 + 4*(pr+1), VCNT, T)
                    g(f"{lo}:")
                if idx + 2 < 32: rd(idx + 2, t)
                if t == 1 and idx in dma:
                    g(dma[idx]); issued += 1
            if ph == 3 and pr < 2:
                g(f"s_waitcnt vmcnt({issued - 6*(pr+2)})")
                self.signal_cnt(C_W0 + 4*(pr+1), VCNT, VONE)
                extra = 1
            if ph == 4 and pr < 3:
                g(f"ds_read_b32 {v(T)}, {v(VCNT)} offset:{C_W0 + 4*(pr+1)}")
                extra = 1
            if o.get("fdetail") and idx % 4 == 3:
                self.mute = True
                self.stamp(4 + idx // 4, True)
            if k == 0:
                for t in range(3):
                    cc = "0" if idx == 0 else v(CS+4*t, 4)
                    g(f"v_mfma_f32_16x16x32_bf16 {v(CS+4*t,4)}, {v(NM,4)}, {v(b+4*t,4)}, {cc}")
            if idx == 29:
                g(f"""s_lshl_b32 {s(S_U0)}, {s(S_WI)}, 2
                      s_add_u32 {s(S_U0)}, {s(S_U0)}, {L_CSF}
                      v_lshl_add_u32 {v(T)}, v0, 4, {s(S_U0)}
                      v_lshlrev_b32 {v(T+1)}, 4, v0
                      v_add_u32 {v(T+1)}, {L_CSF}, {v(T+1)}""")
                for t in range(3): g(f"ds_write_b32 {v(T)}, {v(CS+4*t)} offset:{1024*t}")
                self.signal_cnt(C_CSF, VCNT, VONE)
                self.signal_cnt(C_W1D, VCNT, VONE)
                extra = 5
            if idx == 30:
                extra = 0
                self.recheck(xs_load, [XS+1])
                g(f"""v_lshlrev_b32 {v(T+2)}, 16, {v(XS)}
                      v_and_b32 {v(RS)}, 0xffff0000, {v(XS)}
                      v_rcp_f32 {v(RS)}, {v(RS)}
                      v_cvt_pk_bf16_f32 {v(NM)}, -{v(T+2)}, -{v(T+2)}
                      v_mul_f32 {v(NRS)}, 0xbfb8aa3b, {v(RS)}
                      v_mov_b32 {v(NM+1)}, {v(NM)}
                      v_mov_b32 {v(NM+2)}, 0
                      v_mov_b32 {v(NM+3)}, 0""")
        self.stamp(4)
        CB = WF + 24
        rds = "\n".join(f"ds_read_b128 {v(CB+4*t,4)}, {v(T+1)} offset:{1024*t}" for t in range(3))
        self.spin_cnt(C_CSF, VCNT, T, rds)
        for t in range(3):
            b = CB + 4*t
            g(f"""v_add_f32 {v(b)}, {v(b)}, {v(b+1)}
                  v_add_f32 {v(b+2)}, {v(b+2)}, {v(b+3)}
                  v_add_f32 {v(b+2)}, {v(b)}, {v(b+2)}""")
            self.split3(b+2, b, b+1, T, T+2)
            g(f"""v_mov_b32 {v(b+2)}, 0
                  v_mov_b32 {v(b+3)}, 0
                  s_nop 1
                  v_mfma_f32_32x32x16_bf16 {v(ACC+16*t,16)}, {v(b,4)}, {v(NM,4)}, {v(ACC+16*t,16)}""")
        self.stamp(5)
        g.c("SiLU + store")
        PB = P
        g(f"""s_lshl_b32 {s(S_U0)}, {s(S_MT)}, 2
              s_add_u32 {s(S_U0)}, {s(S_U0)}, {s(S_WI)}
              s_mul_i32 {s(S_U0)}, {s(S_U0)}, {NKS}
              s_lshl_b32 {s(S_U1)}, {s(S_T1)}, 1
              s_add_u32 {s(S_U0)}, {s(S_U0)}, {s(S_U1)}
              s_add_u32 {s(S_U0)}, {s(S_U0)}, 64
              s_lshl_b32 {s(S_U2)}, {s(S_U0)}, 10
              v_lshlrev_b32 {v(PB)}, 4, v0""")
        lsk = g.lab("NOT2")
        for t in range(3):
            a = ACC + 16*t
            if t == 2:
                g(f"""s_and_b32 {s(S_U0)}, {s(S_G)}, 3
                      s_cmp_eq_u32 {s(S_U0)}, 3
                      s_cbranch_scc1 {lsk}
                      s_add_u32 {s(S_U2)}, {s(S_U2)}, 4096""")
            for hf in range(2):
                e = WF if hf == 0 else WF + 8
                z = a + 8*hf
                for i in range(0, 8, 2): g(f"v_pk_mul_f32 {v(e+i,2)}, {v(z+i,2)}, {v(RS,2)} op_sel:[0,1] op_sel_hi:[1,1]")
                for i in range(8):
                    g(f"v_exp_f32 {v(e+i)}, {v(e+i)}")
                    if i & 1: g(f"v_pk_mul_f32 {v(z+i-1,2)}, {v(z+i-1,2)}, {v(RS,2)} op_sel_hi:[1,0]")
                for i in range(0, 8, 2): g(f"v_pk_add_f32 {v(e+i,2)}, {v(e+i,2)}, 1.0 op_sel_hi:[1,0]")
                for i in range(8): g(f"v_rcp_f32 {v(e+i)}, {v(e+i)}")
                for i in range(0, 8, 2): g(f"v_pk_mul_f32 {v(z+i,2)}, {v(z+i,2)}, {v(e+i,2)}")
                d = CS + 4*hf
                for i in range(4): g(f"v_cvt_pk_bf16_f32 {v(d+i)}, {v(a+8*hf+2*i)}, {v(a+8*hf+2*i+1)}")
                g(f"buffer_store_dwordx4 {v(d,4)}, {v(PB)}, {s(R_WS,4)}, {s(S_U2)} offen offset:{((2*t+hf)&3)*1024} sc1")
        g(f"{lsk}:")
        self.stamp(6)

        g.c("---------------- F phase 2 ----------------")
        A2 = 176
        BR = 96
        AB = 48
        BTm = 240
        VD = 2
        WB = 6
        VA = 8
        T2 = 40
        T = 44
        NR = 10
        self.w2_dma_setup(VD, T2, S_T2, S_WO)
        g(f"""v_lshrrev_b32 {v(T2)}, 5, v0
              v_bfe_u32 {v(T2+1)}, v0, 2, 2
              v_lshl_add_u32 {v(T2)}, {v(T2)}, 2, {v(T2+1)}
              v_lshlrev_b32 {v(T2)}, 7, {v(T2)}
              v_bfe_u32 {v(T2+1)}, v0, 3, 1
              s_and_b32 {s(S_U0)}, {s(S_WI)}, 1
              v_xor_b32 {v(T2+1)}, {s(S_U0)}, {v(T2+1)}
              v_lshl_add_u32 {v(T2)}, {v(T2+1)}, 6, {v(T2)}
              v_bfe_u32 {v(T2+1)}, v0, 4, 1
              v_lshl_add_u32 {v(T2)}, {v(T2+1)}, 5, {v(T2)}
              v_and_b32 {v(T2+1)}, 3, v0
              v_lshl_add_u32 {v(T2)}, {v(T2+1)}, 3, {v(T2)}
              v_add_u32 {v(WB)}, {s(S_T2)}, {v(T2)}
              v_xor_b32 {v(WB+1)}, 64, {v(WB)}
              s_lshl_b32 {s(S_U0)}, {s(S_WI)}, 2
              v_add_u32 {v(T2+2)}, {s(S_U0)}, {v(VCNT)}""")
        def bread(dst, lks):
            for ct in range(2):
                for u in range(2):
                    g(f"ds_read_b64_tr_b16 {v(dst+4*ct+2*u,2)}, {v(WB+ct)} offset:{lks*2048+u*1024}")
        if o.get("fflag_first"):
            self.set_flag(WS_FLAGF, VZ, T2+3, 0)
        self.spin_cnt(C_B1, T2+2, T2, tgt=1)
        self.stamp(7)
        for ks in range(NR):
            bread(BR + 8*ks, ks)
            if ks % 2 == 1: g("s_waitcnt lgkmcnt(4)")
        g("s_waitcnt lgkmcnt(0)")
        fb = o.get("f_b2a", 10)
        self.w2_issue(VD, S_T2, S_WO, 12, fb, 0)
        if not o.get("fflag_first"):
            self.set_flag(WS_FLAGF, VZ, T2+3, 2*fb)
        self.w2_issue(VD, S_T2, S_WO, 12 + fb, 10 - fb, fb)
        self.a_setup(VA, 64, 22, T)
        self.stamp(8)
        self.poll_flags(WS_FLAGF, T+1, T)
        self.stamp(9)
        def bsrc(ks):
            return BR + 8*ks if ks < NR else BTm + 8*(ks & 1)
        def mid(ks):
            if ks + 1 >= NR and ks + 1 < 22: bread(BTm + 8*((ks+1) & 1), (ks + 1) % 12)
        def pre(ks):
            if ks >= NR: g(f"s_waitcnt lgkmcnt(0)")
        self.p2_loop(22, VA, AB, A2, bsrc, pre, mid)
        self.stamp(10)
        g(f"v_lshl_add_u32 {v(T)}, v0, 4, {s(S_T2)}")
        for sl in range(1, 4):
            for qq in range(4):
                g(f"ds_write_b128 {v(T)}, {v(A2+16*sl+4*qq,4)} offset:{(sl-1)*4096+qq*1024}")
        g(f"""s_lshr_b32 {s(S_U0)}, {s(S_WI)}, 1
              s_lshl_b32 {s(S_U1)}, {s(S_RT)}, 1
              s_add_u32 {s(S_U0)}, {s(S_U0)}, {s(S_U1)}
              s_lshl_b32 {s(S_T0)}, {s(S_U0)}, 16
              s_lshl_b32 {s(S_U1)}, {s(S_NT)}, 8
              s_add_u32 {s(S_T0)}, {s(S_T0)}, {s(S_U1)}
              s_and_b32 {s(S_U1)}, {s(S_WI)}, 1
              s_lshl_b32 {s(S_U1)}, {s(S_U1)}, 7
              s_add_u32 {s(S_T0)}, {s(S_T0)}, {s(S_U1)}
              v_and_b32 {v(T+1)}, 31, v0
              v_lshlrev_b32 {v(T+1)}, 2, {v(T+1)}
              v_lshrrev_b32 {v(T+2)}, 5, v0
              v_lshl_add_u32 {v(T+1)}, {v(T+2)}, 15, {v(T+1)}
              s_xor_b32 {s(S_U0)}, {s(S_WI)}, 1
              s_mul_i32 {s(S_U0)}, {s(S_U0)}, 12288
              v_lshl_add_u32 {v(T+2)}, v0, 4, {s(S_U0)}
              s_waitcnt lgkmcnt(0)
              s_barrier""")
        self.gather3(W1B, SLOT, BR, T)
        for dd in range(3):
            g(f"s_waitcnt lgkmcnt({8 if dd < 2 else 4})")
            if dd == 0:
                for qq in range(4): g(f"ds_read_b128 {v(BR+48+4*qq,4)}, {v(T+2)} offset:{qq*1024}")
            for r in range(16): g(f"v_add_f32 {v(A2+r)}, {v(A2+r)}, {v(BR+16*dd+r)}")
        g("s_waitcnt lgkmcnt(0)")
        for r in range(16):
            if r and r % 2 == 0: g(f"s_add_u32 {s(S_T0)}, {s(S_T0)}, 4096")
            g(f"v_add_f32 {v(A2+r)}, {v(A2+r)}, {v(BR+48+r)}")
            g(f"buffer_store_dword {v(A2+r)}, {v(T+1)}, {s(R_OUT,4)}, {s(S_T0)} offen offset:{(r%2)*2048}{o.get('out_pol','')}")
        le = g.lab("NOEP")
        g(f"""s_lshl_b32 {s(S_U0)}, {s(S_RT)}, 5
              s_lshl_b32 {s(S_U1)}, {s(S_NT)}, 2
              s_add_u32 {s(S_U0)}, {s(S_U0)}, {s(S_U1)}
              s_add_u32 {s(S_U0)}, {s(S_U0)}, {s(S_WI)}
              s_cmp_lg_u32 {s(S_U0)}, {31*32}
              s_cbranch_scc1 {le}
              v_mov_b32 {v(T)}, {s(S_TAG)}
              s_mov_b32 {s(S_U0)}, {hex(WS_EPOCH)}
              s_mov_b64 exec, 1
              buffer_store_dword {v(T)}, {v(VZ)}, {s(R_WS,4)}, {s(S_U0)} offen
              s_mov_b64 exec, -1""")
        g(f"{le}:")
        self.stamp(11)
        self.stamps_out(T, 'F')
        g("s_endpgm")

    def gather3(self, base, stride, dst, T):
        g = self.g
        for d in range(1, 4):
            g(f"""s_xor_b32 {s(S_U0)}, {s(S_WI)}, {d}
                  s_mul_i32 {s(S_U0)}, {s(S_U0)}, {stride}
                  s_add_u32 {s(S_U0)}, {s(S_U0)}, {base + (d-1)*4096}
                  v_lshl_add_u32 {v(T)}, v0, 4, {s(S_U0)}""")
            for q in range(4):
                g(f"ds_read_b128 {v(dst+16*(d-1)+4*q,4)}, {v(T)} offset:{q*1024}")

    def a_setup(self, VA, ks_base, per_wave, T):
        g = self.g
        g(f"""s_lshr_b32 {s(S_U0)}, {s(S_WI)}, 1
              s_mul_i32 {s(S_U1)}, {s(S_U0)}, {NKS*1024}
              s_sub_u32 {s(S_U2)}, {NKS*1024}, {s(S_U1)}
              v_lshl_add_u32 {v(VA)}, v0, 4, {s(S_U1)}
              v_lshl_add_u32 {v(VA+1)}, v0, 4, {s(S_U2)}
              s_mul_i32 {s(S_XO)}, {s(S_RT)}, {2*NKS}
              s_mul_i32 {s(S_U0)}, {s(S_WI)}, {per_wave}
              s_add_u32 {s(S_XO)}, {s(S_XO)}, {s(S_U0)}
              s_add_u32 {s(S_XO)}, {s(S_XO)}, {ks_base}
              s_lshl_b32 {s(S_XO)}, {s(S_XO)}, 10""")

    def p2_loop(self, n, VA, AB, A2, bsrc, pre, mid):
        g = self.g
        D = 6
        def aload(ks):
            if ks and ks % 4 == 0: g(f"s_add_u32 {s(S_XO)}, {s(S_XO)}, 4096")
            for rb in range(2):
                g(f"buffer_load_dwordx4 {v(AB+8*(ks%D)+4*rb,4)}, {v(VA+rb)}, {s(R_WS,4)}, {s(S_XO)} offen offset:{(ks%4)*1024} sc1")
        for ks in range(D): aload(ks)
        for ks in range(n):
            pre(ks)
            g(f"s_waitcnt vmcnt({2*(min(n, ks+D) - ks - 1)})")
            for rb in range(2):
                for ct in range(2):
                    d = A2 + 16*(2*rb+ct)
                    cc = "0" if ks == 0 else v(d, 16)
                    g(f"v_mfma_f32_32x32x16_bf16 {v(d,16)}, {v(AB+8*(ks%D)+4*rb,4)}, {v(bsrc(ks)+4*ct,4)}, {cc}")
                    if rb == 0 and ct == 0: mid(ks)
            if ks + D < n: aload(ks + D)
        g("s_nop 7\ns_nop 7")

    def swave(self):
        g = self.g; o = self.o
        BR = 128
        WR, WI_ = BR + 80, BR + 112
        UR, UI = 96, 112
        FR = 48
        XA, BA = 2, 6
        LA, LB = 10, 11
        L16, L128, W0, KA, GS = 12, 14, 16, 18, 20
        VCNT, VONE, VZ = 22, 23, 24
        SEGV, NLB = 25, 26
        VXS, VCS = 1, 27
        T = 28
        XS, CG = BR, BR + 2
        OP = BR + 4
        RSV = BR + 16
        VD, TRW, TRR, LB1, LB2, VW, VL16 = 36, 40, 41, 42, 43, 44, 47
        R_W1 = R_OUT
        self.mute = False
        g("L_SWAVE:")
        g.c("---------------- S wave ----------------")
        g(f"""v_lshlrev_b32 {v(T+4)}, 4, v0
              s_lshl_b32 {s(S_T0)}, {s(S_MT)}, 7
              s_lshl_b32 {s(S_T1)}, {s(S_G)}, 3
              s_add_u32 {s(S_T0)}, {s(S_T0)}, {s(S_T1)}
              s_lshl_b32 {s(S_T1)}, {s(S_WI)}, 1
              s_add_u32 {s(S_T0)}, {s(S_T0)}, {s(S_T1)}
              s_lshl_b32 {s(S_U0)}, {s(S_T0)}, 10
              s_lshl_b32 {s(S_T1)}, {s(S_MT)}, 2
              s_add_u32 {s(S_T1)}, {s(S_T1)}, {s(S_WI)}
              s_and_b32 {s(S_U1)}, {s(S_T1)}, 31
              s_lshl_b32 {s(S_U2)}, {s(S_G)}, 5
              s_add_u32 {s(S_U1)}, {s(S_U1)}, {s(S_U2)}
              s_lshl_b32 {s(S_U1)}, {s(S_U1)}, 10
              s_mov_b32 {s(R_X+2)}, {hex(2048*512*2)}
              s_mov_b32 {s(R_X+3)}, 0x20000
              s_mov_b32 {s(R_A+2)}, {hex(512*512*2)}
              s_mov_b32 {s(R_A+3)}, 0x20000
              v_and_b32 {v(T)}, 31, v0
              v_lshlrev_b32 {v(T)}, 1, {v(T)}
              s_lshl_b32 {s(S_U2)}, {s(S_G)}, 6
              v_add_u32 {v(T)}, {s(S_U2)}, {v(T)}
              s_cmp_ge_u32 {s(S_MT)}, 8
              s_waitcnt lgkmcnt(0)
              s_mov_b32 {s(R_X)}, {s(P_X)}
              s_mov_b32 {s(R_X+1)}, {s(P_X+1)}
              s_cselect_b32 {s(R_A)}, {s(P_BIM)}, {s(P_BRE)}
              s_cselect_b32 {s(R_A+1)}, {s(P_BIM+1)}, {s(P_BRE+1)}
              buffer_load_dwordx4 {v(FR,4)}, {v(T+4)}, {s(R_X,4)}, {s(S_U0)} offen
              buffer_load_dwordx4 {v(FR+4,4)}, {v(T+4)}, {s(R_X,4)}, {s(S_U0)} offen offset:1024
              buffer_load_dwordx4 {v(FR+8,4)}, {v(T+4)}, {s(R_A,4)}, {s(S_U1)} offen
              global_load_ushort {v(T+1)}, {v(T)}, {s(P_LRE,2)}
              global_load_ushort {v(T+2)}, {v(T)}, {s(P_LIM,2)}
              global_load_ushort {v(T+3)}, {v(T)}, {s(P_LDT,2)}""")
        self.epoch()
        if o.get("codepf", 1):
            lp = g.lab("NOPF")
            g(f"""s_cmp_lg_u32 {s(S_WI)}, 0
                  s_cbranch_scc1 {lp}
                  s_getpc_b64 {s(R_B,2)}""")
            g("L_PC:")
            g(f"""s_sub_u32 {s(R_B)}, {s(R_B)}, L_PC-{NAME}_kernel
                  s_subb_u32 {s(R_B+1)}, {s(R_B+1)}, 0
                  s_mov_b32 {s(R_B+2)}, L_CODE_END-{NAME}_kernel
                  s_mov_b32 {s(R_B+3)}, 0x20000
                  s_lshr_b32 {s(S_U0)}, s2, 3
                  s_lshl_b32 {s(S_U0)}, {s(S_U0)}, 10
                  buffer_load_dwordx4 {v(FR+12,4)}, {v(T+4)}, {s(R_B,4)}, {s(S_U0)} offen""")
            g(f"{lp}:")
        g(f"""v_mov_b32 {v(VCNT)}, {L_CNT}
              v_mov_b32 {v(VONE)}, 1
              v_mov_b32 {v(VZ)}, 0
              v_lshlrev_b32 {v(T+5)}, 2, v0
              v_add_u32 {v(T+5)}, {L_CNT}, {v(T+5)}
              ds_write_b32 {v(T+5)}, {v(VZ)}
              s_mov_b32 {s(S_ONES)}, 0x3f803f80""")
        srd(g, R_WS, P_WS, WS_BYTES); srd(g, R_W2, P_W2, 1376 * 512 * 2)
        self.frag_pat(BA, T+6, T+7, False)
        g(f"s_lshl_b32 {s(S_T3)}, {s(S_WI)}, 12")
        for k in range(4):
            g(f"v_add_u32 {v(XA+k)}, {s(S_T3)}, {v(BA+k)}\nv_add_u32 {v(BA+k)}, 16384, {v(BA+k)}")
        for r in range(32): g(f"v_mov_b32 {v(UR+r)}, 0")
        for r in (2, 3, 6, 7, 10, 11): g(f"v_mov_b32 {v(OP+r)}, 0")
        self.tau(VXS, T+6)
        A5 = T + 8
        g(f"""s_lshl_b32 {s(S_U0)}, {s(S_MT)}, 10
              s_lshl_b32 {s(S_U1)}, {s(S_WI)}, 8
              s_add_u32 {s(S_U0)}, {s(S_U0)}, {s(S_U1)}
              s_add_u32 {s(S_U0)}, {s(S_U0)}, {hex(WS_XS)}
              v_lshl_add_u32 {v(VXS)}, {v(VXS)}, 3, {s(S_U0)}
              s_lshl_b32 {s(S_T4)}, {s(S_G)}, 9
              s_add_u32 {s(S_T4)}, {s(S_T4)}, {hex(WS_CSG)}
              v_lshl_add_u32 {v(VCS)}, v0, 3, {s(S_T4)}
              v_lshrrev_b32 {v(SEGV)}, 5, v0
              v_lshlrev_b32 {v(T+6)}, 3, {v(SEGV)}
              s_lshl_b32 {s(S_U0)}, {s(S_WI)}, 1
              v_add_u32 {v(SEGV)}, {s(S_U0)}, {v(SEGV)}""")
        for k in range(5): g(f"v_mov_b32 {v(A5+k)}, 0")
        g("s_waitcnt vmcnt(0) lgkmcnt(0)")
        self.epoch_fin()
        for k in range(4):
            g(f"""v_dot2c_f32_bf16 {v(A5)}, {s(S_ONES)}, {v(FR+k)}
                  v_dot2c_f32_bf16 {v(A5+1)}, {s(S_ONES)}, {v(FR+4+k)}
                  v_dot2c_f32_bf16 {v(A5+2)}, {v(FR+k)}, {v(FR+k)}
                  v_dot2c_f32_bf16 {v(A5+3)}, {v(FR+4+k)}, {v(FR+4+k)}
                  v_dot2c_f32_bf16 {v(A5+4)}, {s(S_ONES)}, {v(FR+8+k)}""")
        SX, SQ, CC = A5, A5+2, A5+4
        g(f"""s_nop 2
              v_mov_b32 {v(A5+5)}, {v(CC)}
              v_permlane32_swap_b32 {v(A5)}, {v(A5+1)}
              v_permlane32_swap_b32 {v(A5+2)}, {v(A5+3)}
              v_permlane32_swap_b32 {v(CC)}, {v(A5+5)}
              v_add_f32 {v(SX)}, {v(A5)}, {v(A5+1)}
              v_add_f32 {v(SQ)}, {v(A5+2)}, {v(A5+3)}
              v_add_f32 {v(CC)}, {v(CC)}, {v(A5+5)}
              v_mov_b32 {v(SX+1)}, {v(SX)}
              v_mov_b32 {v(SQ+1)}, {v(SQ)}
              v_mov_b32 {v(CC+1)}, {v(CC)}
              v_permlane16_swap_b32 {v(SX)}, {v(SX+1)}
              s_nop 0
              v_permlane16_swap_b32 {v(SQ)}, {v(SQ+1)}
              v_permlane16_swap_b32 {v(CC)}, {v(CC+1)}
              v_add_f32 {v(SX)}, {v(SX)}, {v(SX+1)}
              v_add_f32 {v(SQ)}, {v(SQ)}, {v(SQ+1)}
              v_add_f32 {v(CC)}, {v(CC)}, {v(CC+1)}""")
        for m in ("quad_perm:[1,0,3,2]", "quad_perm:[2,3,0,1]", "row_half_mirror", "row_mirror"):
            for r in (SX, SQ, CC):
                g(f"v_add_f32_dpp {v(r)}, {v(r)}, {v(r)} {m} row_mask:0xf bank_mask:0xf")
        g(f"""v_mul_f32 {v(SX)}, 0x3b000000, {v(SX)}
              v_mul_f32 {v(SQ)}, 0x3b000000, {v(SQ)}
              v_fma_f32 {v(SQ)}, -{v(SX)}, {v(SX)}, {v(SQ)}
              v_max_f32 {v(SQ)}, 0, {v(SQ)}
              v_cvt_pk_bf16_f32 {v(SQ)}, {v(SQ)}, {v(SQ)}
              v_and_b32 {v(SQ)}, 0xffff0000, {v(SQ)}
              v_add_f32 {v(SQ)}, 0x3727c5ac, {v(SQ)}
              v_cvt_pk_bf16_f32 {v(SQ)}, {v(SQ)}, {v(SQ)}
              v_and_b32 {v(SQ)}, 0xffff0000, {v(SQ)}
              v_sqrt_f32 {v(SQ)}, {v(SQ)}
              v_mov_b32 {v(SX+1)}, {s(S_TAG)}
              v_mov_b32 {v(CC+1)}, {s(S_TAG)}
              v_cvt_pk_bf16_f32 {v(SX)}, {v(SX)}, {v(SQ)}
              s_lshl_b32 {s(S_U0)}, {s(S_T0)}, 3
              s_add_u32 {s(S_U0)}, {s(S_U0)}, {hex(WS_XS)}
              s_lshl_b32 {s(S_U1)}, {s(S_T1)}, 3
              s_add_u32 {s(S_U1)}, {s(S_U1)}, {s(S_T4)}
              s_mov_b32 exec_lo, 1
              s_mov_b32 exec_hi, 1
              buffer_store_dwordx2 {v(SX,2)}, {v(T+6)}, {s(R_WS,4)}, {s(S_U0)} offen sc1
              s_mov_b32 exec_hi, 0
              buffer_store_dwordx2 {v(CC,2)}, {v(VZ)}, {s(R_WS,4)}, {s(S_U1)} offen sc1
              s_mov_b64 exec, -1""")
        srd(g, R_A, P_CRE, 512*512*2); srd(g, R_B, P_CIM, 512*512*2)
        self.stamp(1)

        lr, li, dt = T+1, T+2, T+3
        def consts():
            g(f"""v_lshlrev_b32 {v(lr)}, 16, {v(lr)}
              v_lshlrev_b32 {v(li)}, 16, {v(li)}
              v_lshlrev_b32 {v(dt)}, 16, {v(dt)}
              v_mul_f32 {v(dt)}, 0x3fb8aa3b, {v(dt)}
              v_exp_f32 {v(dt)}, {v(dt)}
              s_nop 0
              v_cvt_pk_bf16_f32 {v(dt)}, {v(dt)}, {v(dt)}
              v_and_b32 {v(dt)}, 0xffff0000, {v(dt)}
              v_mul_f32 {v(T+4)}, {v(dt)}, {v(lr)}
              v_mul_f32 {v(T+5)}, {v(dt)}, {v(li)}
              v_mul_f32 {v(T+4)}, 0x3fb8aa3b, {v(T+4)}
              v_mul_f32 {v(T+5)}, 0.15915494, {v(T+5)}
              v_rndne_f32 {v(T+6)}, {v(T+5)}
              v_sub_f32 {v(T+5)}, {v(T+5)}, {v(T+6)}
              v_exp_f32 {v(T+4)}, {v(T+4)}
              v_cos_f32 {v(T+6)}, {v(T+5)}
              v_sin_f32 {v(T+7)}, {v(T+5)}
              v_mul_f32 {v(T+8)}, {v(lr)}, {v(lr)}
              v_mul_f32 {v(LA)}, {v(T+4)}, {v(T+6)}
              v_mul_f32 {v(LB)}, {v(T+4)}, {v(T+7)}
              v_fmac_f32 {v(T+8)}, {v(li)}, {v(li)}
              v_rcp_f32 {v(T+8)}, {v(T+8)}
              v_add_f32 {v(T+4)}, -1.0, {v(LA)}
              v_mul_f32 {v(KA)}, {v(T+4)}, {v(lr)}
              v_mul_f32 {v(KA+1)}, {v(LB)}, {v(lr)}
              v_fmac_f32 {v(KA)}, {v(LB)}, {v(li)}
              v_fma_f32 {v(KA+1)}, -{v(T+4)}, {v(li)}, {v(KA+1)}
              v_add_f32 {v(T+8)}, {v(T+8)}, {v(T+8)}
              v_mul_f32 {v(KA)}, {v(KA)}, {v(T+8)}
              v_mul_f32 {v(KA+1)}, {v(KA+1)}, {v(T+8)}
              v_sub_f32 {v(NLB)}, 0, {v(LB)}""")
            a, b, c2 = T, T+2, T+4
            sq = lambda d, x: self.cmul(d, d+1, x, x+1, x, x+1)
            sq(a, LA); sq(b, a); sq(a, b); sq(L16, a)
            sq(a, L16); sq(b, a); sq(L128, b)
            g(f"""v_cmp_lt_u32 vcc, 31, v0
              s_nop 1
              v_cndmask_b32 {v(GS)}, 1.0, {v(L16)}, vcc
              v_cndmask_b32 {v(GS+1)}, 0, {v(L16+1)}, vcc
              s_bitcmp1_b32 {s(S_WI)}, 0
              s_cselect_b64 vcc, -1, 0
              v_cndmask_b32 {v(a)}, 1.0, {v(a)}, vcc
              v_cndmask_b32 {v(a+1)}, 0, {v(a+1)}, vcc
              s_bitcmp1_b32 {s(S_WI)}, 1
              s_cselect_b64 vcc, -1, 0
              v_cndmask_b32 {v(b)}, 1.0, {v(b)}, vcc
              v_cndmask_b32 {v(b+1)}, 0, {v(b+1)}, vcc""")
            self.cmul(c2, c2+1, GS, GS+1, a, a+1)
            self.cmul(GS, GS+1, c2, c2+1, b, b+1)
            sq(a, GS); sq(b, a); sq(a, b); sq(W0, a)
        def table():
            pr_, pi_ = KA, KA+1
            for j in range(16):
                g(f"""v_mul_f32 {v(WR+j)}, {v(LA)}, {v(pr_)}
                      v_mul_f32 {v(WI_+j)}, {v(LA)}, {v(pi_)}
                      v_fmac_f32 {v(WR+j)}, {v(NLB)}, {v(pi_)}
                      v_fmac_f32 {v(WI_+j)}, {v(LB)}, {v(pr_)}""")
                pr_, pi_ = WR+j, WI_+j
        def addrs():
            self.w1_setup(VW, T, S_T3, S_T1, S_XO)
            srd(g, R_W1, P_W1, 512 * 1376 * 2)
            self.lane8_pat(T, T+1, T+2)
            g(f"""v_lshl_or_b32 {v(VD)}, {v(T+1)}, 10, {v(T)}
              v_add_u32 {v(VD+1)}, 7168, {v(VD)}
              v_xor_b32 {v(VD+1)}, 64, {v(VD+1)}
              v_add_u32 {v(VD+2)}, {2*7168}, {v(VD)}
              v_add_u32 {v(VD+3)}, {2*7168}, {v(VD+1)}
              s_mul_i32 {s(S_T2)}, {s(S_WI)}, 12288
              s_lshl_b32 {s(S_WO)}, {s(S_NT)}, 16
              s_lshl_b32 {s(S_U1)}, {s(S_WI)}, 8
              s_add_u32 {s(S_WO)}, {s(S_WO)}, {s(S_U1)}
              s_and_b32 {s(S_U1)}, {s(S_WI)}, 1
              s_lshl_b32 {s(S_U1)}, {s(S_U1)}, 15
              s_xor_b32 {s(S_BO)}, {s(S_U1)}, 0x8000
              s_add_u32 {s(S_BO)}, {s(S_BO)}, {s(S_WO)}
              s_add_u32 {s(S_WO)}, {s(S_WO)}, {s(S_U1)}
              v_and_b32 {v(T)}, 31, v0
              v_lshlrev_b32 {v(T+1)}, 1, {v(SEGV)}
              v_sub_u32 {v(T+1)}, {s(S_MT)}, {v(T+1)}
              v_cmp_le_i32 {s(S_EX,2)}, 1, {v(T+1)}
              v_cmp_le_i32 {s(S_MK,2)}, 2, {v(T+1)}
              v_lshlrev_b32 {v(T+1)}, 9, {v(T+1)}
              v_lshl_add_u32 {v(T+1)}, {v(T)}, 4, {v(T+1)}
              v_subrev_u32 {v(LB1)}, 512, {v(T+1)}
              v_subrev_u32 {v(LB2)}, 1024, {v(T+1)}
              v_mov_b32 {v(T+2)}, 0x40000000
              v_cndmask_b32 {v(LB1)}, {v(T+2)}, {v(LB1)}, {s(S_EX,2)}
              v_cndmask_b32 {v(LB2)}, {v(T+2)}, {v(LB2)}, {s(S_MK,2)}
              s_lshl_b32 {s(S_U0)}, {s(S_WI)}, 11
              s_add_u32 {s(S_U0)}, {s(S_U0)}, {L_TR}
              v_lshl_add_u32 {v(TRW)}, {v(T)}, 6, {s(S_U0)}
              v_and_b32 {v(TRR)}, 32, v0
              v_add_u32 {v(TRW)}, {v(TRW)}, {v(TRR)}
              v_lshlrev_b32 {v(TRR)}, 4, {v(TRR)}
              v_bfe_u32 {v(T+3)}, v0, 2, 2
              v_lshl_add_u32 {v(TRR)}, {v(T+3)}, 6, {v(TRR)}
              v_and_b32 {v(T+3)}, 1, v0
              v_lshl_add_u32 {v(TRR)}, {v(T+3)}, 5, {v(TRR)}
              v_and_b32 {v(T+3)}, 16, v0
              v_add_u32 {v(TRR)}, {v(TRR)}, {v(T+3)}
              v_and_b32 {v(T+3)}, 2, v0
              v_lshl_add_u32 {v(TRR)}, {v(T+3)}, 2, {v(TRR)}
              v_add_u32 {v(TRR)}, {s(S_U0)}, {v(TRR)}
              v_lshlrev_b32 {v(VL16)}, 4, v0
              s_lshl_b32 {s(S_U0)}, {s(S_MT)}, 2
              s_add_u32 {s(S_U0)}, {s(S_U0)}, {s(S_WI)}
              s_mul_i32 {s(S_U0)}, {s(S_U0)}, {NKS}
              s_lshl_b32 {s(S_U1)}, {s(S_G)}, 2
              s_add_u32 {s(S_U0)}, {s(S_U0)}, {s(S_U1)}
              s_lshl_b32 {s(S_T0)}, {s(S_U0)}, 10""")
        save = g.L; g.L = []
        consts(); table(); addrs()
        fill = g.L; g.L = save
        def take(n):
            for _ in range(min(n, len(fill))): g.L.append(fill.pop(0))

        NF = o.get("nfill", 7)
        g.c("stage A")
        if o.get("sprio", 1): g("s_setprio 2")
        def rd(k, off):
            f = FR + 12*k
            g(f"""ds_read_b128 {v(f,4)}, {v(XA+k)} offset:{off}
                  ds_read_b128 {v(f+4,4)}, {v(BA+k)} offset:{off}
                  ds_read_b128 {v(f+8,4)}, {v(BA+k)} offset:{off+4096}""")
        def m1(k, im):
            f = FR + 12*k; d = UI if im else UR
            g(f"v_mfma_f32_32x32x16_bf16 {v(d,16)}, {v(f,4)}, {v(f+4+4*im,4)}, {v(d,16)}")
        gl = f"""buffer_load_dwordx2 {v(XS,2)}, {v(VXS)}, {s(R_WS,4)}, 0 offen sc1
                 buffer_load_dwordx2 {v(CG,2)}, {v(VCS)}, {s(R_WS,4)}, 0 offen sc1"""
        for c in range(8):
            off = (c % 3) * SLOT
            if c in (3, 6):
                op = "v_add_u32" if c == 3 else "v_subrev_u32"
                for k in range(8): g(f"{op} {v(XA+k)}, {3*SLOT}, {v(XA+k)}")
            g("s_barrier")
            rd(0, off); rd(1, off)
            if c == o.get("gl_at", 6): g(gl)
            if c:
                g("s_waitcnt lgkmcnt(6)")
                m1(2, 0); take(NF); m1(2, 1); rd(2, off); m1(3, 0); take(NF); m1(3, 1); rd(3, off)
            else:
                rd(2, off); rd(3, off)
            if c < 7:
                g("s_waitcnt lgkmcnt(9)")
                m1(0, 0); take(NF); m1(0, 1); take(NF)
                g("s_waitcnt lgkmcnt(6)")
                m1(1, 0); take(NF); m1(1, 1); take(NF)
        take(1000)
        g("s_waitcnt lgkmcnt(9)")
        m1(0, 0)
        self.recheck(gl, [XS+1, CG+1])
        m1(0, 1)
        g(f"""v_and_b32 {v(T+1)}, 0xffff0000, {v(XS)}
              v_rcp_f32 {v(T+1)}, {v(T+1)}
              v_lshrrev_b32 {v(T+2)}, 1, {v(VXS)}
              v_and_b32 {v(T+2)}, 0x1fc, {v(T+2)}
              v_add_u32 {v(T+2)}, {L_RS}, {v(T+2)}
              s_waitcnt lgkmcnt(6)""")
        m1(1, 0)
        g(f"""ds_write_b32 {v(T+2)}, {v(T+1)}
              v_lshlrev_b32 {v(T+3)}, 6, {v(SEGV)}
              v_add_u32 {v(T+3)}, {L_RS}, {v(T+3)}
              v_lshlrev_b32 {v(T+4)}, 16, {v(XS)}""")
        m1(1, 1)
        for k in range(4): g(f"ds_read_b128 {v(RSV+4*k,4)}, {v(T+3)} offset:{16*k}")
        g(f"""v_cvt_pk_bf16_f32 {v(OP)}, -{v(T+4)}, -{v(T+4)}
              s_waitcnt lgkmcnt(8)""")
        m1(2, 0)
        self.split3(CG, T+6, T+7, T+4, T+5)
        m1(2, 1)
        g(f"""v_cmp_gt_u32 vcc, 32, v0
              v_mov_b32 {v(OP+1)}, {v(OP)}
              v_and_b32 {v(T)}, 31, v0
              v_cndmask_b32 {v(OP+4)}, 0, {v(T+6)}, vcc
              v_cndmask_b32 {v(OP+5)}, 0, {v(T+7)}, vcc
              s_waitcnt lgkmcnt(5)""")
        m1(3, 0)
        g(f"""v_cndmask_b32 {v(OP+8)}, {v(T+6)}, {v(VZ)}, vcc
              v_cndmask_b32 {v(OP+9)}, {v(T+7)}, {v(VZ)}, vcc
              v_lshlrev_b32 {v(T+4)}, 3, {v(T)}
              v_add_u32 {v(T+4)}, {L_SEG}, {v(T+4)}
              v_lshl_add_u32 {v(T+5)}, {v(SEGV)}, 8, {v(T+4)}
              v_mfma_f32_32x32x16_bf16 {v(UR,16)}, {v(OP,4)}, {v(OP+4,4)}, {v(UR,16)}""")
        m1(3, 1)
        g(f"v_mfma_f32_32x32x16_bf16 {v(UI,16)}, {v(OP,4)}, {v(OP+8,4)}, {v(UI,16)}")
        self.stamp(2)
        g(f"""v_lshlrev_b32 {v(T+6)}, 4, {v(T)}
              s_lshl_b32 {s(S_T4)}, {s(S_G)}, 13
              s_add_u32 {s(S_T4)}, {s(S_T4)}, {hex(WS_AGG)}
              s_lshl_b32 {s(S_U0)}, {s(S_MT)}, 9
              s_add_u32 {s(S_U0)}, {s(S_U0)}, {s(S_T4)}
              s_waitcnt lgkmcnt(0)
              s_nop 3""")
        for r in range(16): g(f"v_mul_f32 {v(UR+r)}, {v(UR+r)}, {v(RSV+r)}")
        for r in range(16): g(f"v_mul_f32 {v(UI+r)}, {v(UI+r)}, {v(RSV+r)}")
        for r in range(1, 16):
            g(f"""v_fmac_f32 {v(UR+r)}, {v(LA)}, {v(UR+r-1)}
                  v_fmac_f32 {v(UI+r)}, {v(LA)}, {v(UI+r-1)}
                  v_fmac_f32 {v(UR+r)}, {v(NLB)}, {v(UI+r-1)}
                  v_fmac_f32 {v(UI+r)}, {v(LB)}, {v(UR+r-1)}""")
        g(f"ds_write2_b32 {v(T+5)}, {v(UR+15)}, {v(UI+15)} offset0:0 offset1:1")
        self.signal_cnt(C_S1, VCNT, VONE)
        E = FR
        g(f"""v_sub_f32 {v(T+7)}, 0, {v(L16+1)}
              v_mov_b32 {v(E+16)}, {s(S_TAG)}
              v_mov_b32 {v(E+17)}, {s(S_TAG)}""")
        self.stamp(3)
        rds = "\n".join(f"ds_read_b64 {v(E+2*k,2)}, {v(T+4)} offset:{256*k}" for k in range(8))
        self.spin_cnt(C_S1, VCNT, T+1, rds, tgt=8)
        for k in range(1, 8):
            g(f"""v_fmac_f32 {v(E+2*k)}, {v(L16)}, {v(E+2*k-2)}
                  v_fmac_f32 {v(E+2*k+1)}, {v(L16)}, {v(E+2*k-1)}
                  v_fmac_f32 {v(E+2*k)}, {v(T+7)}, {v(E+2*k-1)}
                  v_fmac_f32 {v(E+2*k+1)}, {v(L16+1)}, {v(E+2*k-2)}""")
        lnp = g.lab("NOPUB")
        g(f"""s_cmp_lg_u32 {s(S_WI)}, 0
              s_cbranch_scc1 {lnp}
              s_mov_b32 exec_hi, 0
              buffer_store_dwordx4 {v(E+14,4)}, {v(T+6)}, {s(R_WS,4)}, {s(S_U0)} offen sc1
              s_mov_b64 exec, -1""")
        g(f"{lnp}:")
        if o.get("sprio", 1): g("s_setprio 0")
        self.stamp(4)
        PC = BA
        for j in (6, 7):
            g(self.w1_pre(j, S_T3, S_T1))
            for e in range(3):
                g(f"buffer_load_dwordx4 {v(VW+e)}, {s(R_W1,4)}, {s(S_U1)} offen offset:{1024*e} lds")
        hps = [(part, kh, ct) for kh in range(2) for part in range(2) for ct in range(2)]
        def c_issue(i):
            part, kh, ct = hps[i]
            g(f"""s_add_u32 m0, {s(S_T2)}, {(i%3)*4096}
                  s_add_u32 {s(S_U1)}, {s(S_BO if ct else S_WO)}, {128*kh}""")
            for e in range(4):
                g(f"buffer_load_dwordx4 {v(VD+e)}, {s(R_B if part else R_A,4)}, {s(S_U1)} offen offset:{1024*e} lds")
        def c_read(i):
            part, kh, ct = hps[i]
            for k in range(4):
                gi = 2*kh + (k >> 1); cb = k & 1
                ks = 4*gi + 2*part + cb
                g(f"ds_read_b128 {v(BR+8*ks+4*ct,4)}, {v(PC+k)} offset:{(i%3)*4096}")
        PP, NG, TT = FR + 32, FR + 34, FR + 36
        def idle_a():
            g(f"""s_sub_u32 {s(S_U0)}, {s(S_T2)}, 16384
                  v_mov_b32 {v(PP)}, 0
                  v_mov_b32 {v(PP+1)}, 0
                  v_sub_f32 {v(NG)}, 0, {v(KA+1)}
                  v_add_u32 {v(T+5)}, {L_LBP - L_SEG}, {v(T+5)}
                  v_add_u32 {v(T+4)}, {L_LBP - L_SEG}, {v(T+4)}""")
            for k in range(4): g(f"v_add_u32 {v(PC+k)}, {s(S_U0)}, {v(PC+k)}")
        def kap(r):
            t = TT + (r & 1)
            if 1 <= r < 8: g(f"v_cmp_eq_u32 vcc, {r}, {v(SEGV)}")
            g(f"""v_mul_f32 {v(t)}, {v(KA+1)}, {v(UR+r)}
                  v_mul_f32 {v(UR+r)}, {v(KA)}, {v(UR+r)}
                  v_fmac_f32 {v(UR+r)}, {v(NG)}, {v(UI+r)}
                  v_fma_f32 {v(UI+r)}, {v(KA)}, {v(UI+r)}, {v(t)}""")
            if 1 <= r < 8:
                g(f"""v_cndmask_b32 {v(PP)}, {v(PP)}, {v(E+2*r-2)}, vcc
                      v_cndmask_b32 {v(PP+1)}, {v(PP+1)}, {v(E+2*r-1)}, vcc""")
        idle_a()
        c_issue(0)
        for r in range(0, 5): kap(r)
        c_issue(1)
        for r in range(5, 10): kap(r)
        c_issue(2)
        g("s_waitcnt vmcnt(12)")
        self.signal_cnt(C_W0 + 12, VCNT, VONE)
        for r in range(10, 16): kap(r)
        LBn = FR + 20
        lbl = f"""buffer_load_dwordx4 {v(LBn,4)}, {v(LB1)}, {s(R_WS,4)}, {s(S_T4)} offen sc1
                  buffer_load_dwordx4 {v(LBn+4,4)}, {v(LB2)}, {s(R_WS,4)}, {s(S_T4)} offen sc1"""
        npre = o.get("c_pre", 1)
        for i in range(5):
            if i == npre:
                self.stamp(5)
                g(lbl)
            g(f"s_waitcnt vmcnt({8 + (2 if npre <= i < npre + 3 else 0)})")
            c_read(i)
            g("s_waitcnt lgkmcnt(0)")
            c_issue(i + 3)
            if i == npre + 2 or i == 4: break
        ndone = i + 1
        if npre > i: g(lbl)
        l = g.lab("LB"); d = g.lab("LBD")
        g(f"""s_mov_b32 {s(S_SPIN)}, 0x40000
              s_waitcnt vmcnt({4*max(0, ndone - npre)})""")
        g(f"{l}:")
        g(f"""v_cmp_ne_u32 vcc, {s(S_TAG)}, {v(LBn+2)}
              v_cmp_ne_u32 s[100:101], {s(S_TAG)}, {v(LBn+6)}
              s_and_b64 vcc, vcc, {s(S_EX,2)}
              s_and_b64 s[100:101], s[100:101], {s(S_MK,2)}
              s_or_b64 vcc, vcc, s[100:101]
              s_cbranch_scc0 {d}
              s_sub_u32 {s(S_SPIN)}, {s(S_SPIN)}, 1
              s_cbranch_scc1 {d}
              s_sleep {o.get('lb_sleep', 2)}""")
        g(lbl)
        g(f"s_waitcnt vmcnt(0)\ns_branch {l}")
        g(f"{d}:")
        if o.get("sprio", 1): g("s_setprio 2")
        self.stamp(6)
        self.cfma(LBn, LBn+1, L128, L128+1, LBn+4, LBn+5, LBn, LBn+1)
        self.cmul(LBn+2, LBn+3, W0, W0+1, LBn, LBn+1)
        g(f"ds_write_b64 {v(T+5)}, {v(LBn+2,2)}")
        self.signal_cnt(C_S2, VCNT, VONE)
        self.spin_cnt(C_S2, VCNT, T+1, rds)
        for w in (4, 2, 1):
            for k in range(w):
                g(f"v_add_f32 {v(E+2*k)}, {v(E+2*k)}, {v(E+2*k+2*w)}\nv_add_f32 {v(E+2*k+1)}, {v(E+2*k+1)}, {v(E+2*k+2*w+1)}")
        self.cfma(PP, PP+1, GS, GS+1, E, E+1, PP, PP+1)
        g(f"v_sub_f32 {v(NG)}, 0, {v(PP+1)}")
        H = FR; O = FR + 16
        for part in range(2):
            U = UI if part else UR
            c1, c2_ = (PP+1, PP) if part else (PP, NG)
            for r in range(16): g(f"v_fmac_f32 {v(U+r)}, {v(WR+r)}, {v(c1)}")
            if part:
                g("s_waitcnt lgkmcnt(0)")
                for cb in range(2):
                    g(f"buffer_store_dwordx4 {v(O+4*cb,4)}, {v(VL16)}, {s(R_WS,4)}, {s(S_T0)} offen offset:{cb*1024} sc1")
            for r in range(16): g(f"v_fmac_f32 {v(U+r)}, {v(WI_+r)}, {v(c2_)}")
            ng = "-" if part else ""
            for i in range(8): g(f"v_cvt_pk_bf16_f32 {v(H+8*part+i)}, {ng}{v(U+2*i)}, {ng}{v(U+2*i+1)}")
            g(f"""ds_write_b128 {v(TRW)}, {v(H+8*part,4)}
                  ds_write_b128 {v(TRW)}, {v(H+8*part+4,4)} offset:16""")
            for cb in range(2):
                for u in range(2):
                    g(f"ds_read_b64_tr_b16 {v(O+8*part+4*cb+2*u,2)}, {v(TRR)} offset:{cb*1024+u*256}")
        VD2 = 2
        self.w2_dma_setup(VD2, T, S_T3, S_T1)
        g("s_waitcnt lgkmcnt(0)")
        for cb in range(2):
            g(f"buffer_store_dwordx4 {v(O+8+4*cb,4)}, {v(VL16)}, {s(R_WS,4)}, {s(S_T0)} offen offset:{(2+cb)*1024} sc1")
        if o.get("sprio", 1): g("s_setprio 0")
        self.stamp(7)
        nl = 0
        if ndone + 3 < 8:
            g("s_waitcnt vmcnt(4)")
            rest = list(range(ndone + 3, 8))
            for i in rest: c_read(i - 3)
            g("s_waitcnt lgkmcnt(0)")
            for i in rest: c_issue(i)
            nl = 4 * len(rest)
        self.spin_cnt(C_W1D, VCNT, T)
        n1 = o.get("s_b1a", 12)
        self.w2_issue(VD2, S_T3, S_T1, 0, n1, 0)
        self.set_flag(WS_FLAGS, VZ, T, nl + 2*n1)
        self.w2_issue(VD2, S_T3, S_T1, n1, 12 - n1, n1)
        g(f"s_waitcnt vmcnt(25)")
        for i in range(5, 8): c_read(i)
        g(f"""s_lshl_b32 {s(S_U0)}, {s(S_WI)}, 2
              v_add_u32 {v(T+1)}, {s(S_U0)}, {v(VCNT)}
              s_waitcnt vmcnt({1 if n1 == 12 else 0})""")
        self.signal_cnt(C_B1, T+1, VONE)
        g.c("---------------- S phase 2 ----------------")
        A2 = 64; AB = 16; VA = 10
        VC2, VO2 = 14, 15
        self.a_setup(VA, 0, 16, 12)
        g(f"""v_mov_b32 {v(VC2)}, {L_CNT}
              v_mov_b32 {v(VO2)}, 1
              s_waitcnt lgkmcnt(0)""")
        self.stamp(8)
        self.poll_flags(WS_FLAGS, 13, 12)
        self.stamp(9)
        self.p2_loop(16, VA, AB, A2, lambda ks: BR + 8*ks, lambda ks: None, lambda ks: None)
        self.stamp(10)
        g.c("S: dump partials, residual, pre-reduce")
        XR = BR; ST = BR + 16; DS = BR + 48; T = 2
        g(f"""s_lshr_b32 {s(S_U0)}, {s(S_WI)}, 1
              s_lshl_b32 {s(S_U1)}, {s(S_RT)}, 1
              s_add_u32 {s(S_U0)}, {s(S_U0)}, {s(S_U1)}
              s_lshl_b32 {s(S_U1)}, {s(S_NT)}, 7
              s_and_b32 {s(S_U2)}, {s(S_WI)}, 1
              s_lshl_b32 {s(S_U2)}, {s(S_U2)}, 6
              s_add_u32 {s(S_U1)}, {s(S_U1)}, {s(S_U2)}
              s_lshl_b32 {s(S_U2)}, {s(S_U0)}, 15
              s_add_u32 {s(S_U2)}, {s(S_U2)}, {s(S_U1)}
              v_and_b32 {v(T)}, 31, v0
              v_lshlrev_b32 {v(T)}, 1, {v(T)}
              v_lshrrev_b32 {v(T+1)}, 5, v0
              v_lshl_add_u32 {v(T+2)}, {v(T+1)}, 14, {v(T)}
              v_add_u32 {v(T)}, {s(S_U1)}, {v(T)}
              v_lshlrev_b32 {v(T+1)}, 7, {v(T+1)}
              global_load_ushort {v(DS)}, {v(T)}, {s(P_DSK,2)}""")
        for r in range(16):
            if r and r % 4 == 0: g(f"s_add_u32 {s(S_U2)}, {s(S_U2)}, 4096")
            g(f"buffer_load_ushort {v(XR+r)}, {v(T+2)}, {s(R_X,4)}, {s(S_U2)} offen offset:{(r%4)*1024}")
        g(f"""s_lshl_b32 {s(S_U0)}, {s(S_U0)}, 8
              s_add_u32 {s(S_U0)}, {s(S_U0)}, {hex(WS_XS)}""")
        for k in range(8):
            g(f"buffer_load_dwordx4 {v(ST+4*k,4)}, {v(T+1)}, {s(R_WS,4)}, {s(S_U0)} offen offset:{16*k} sc1")
        g(f"v_lshl_add_u32 {v(T+3)}, v0, 4, {s(S_T2)}")
        for sl in range(1, 4):
            for q in range(4):
                g(f"ds_write_b128 {v(T+3)}, {v(A2+16*sl+4*q,4)} offset:{(sl-1)*4096+q*1024}")
        self.signal_cnt(C_SD, VC2, VO2)
        g(f"s_waitcnt vmcnt(0)\nv_lshlrev_b32 {v(DS)}, 16, {v(DS)}")
        for r in range(16):
            x, st, t = XR + r, ST + 2*r, T + 4 + (r & 1)
            g(f"""v_lshlrev_b32 {v(x)}, 16, {v(x)}
                  v_lshlrev_b32 {v(t)}, 16, {v(st)}
                  v_and_b32 {v(st)}, 0xffff0000, {v(st)}
                  v_rcp_f32 {v(st)}, {v(st)}
                  v_sub_f32 {v(t)}, {v(x)}, {v(t)}
                  v_cvt_pk_bf16_f32 {v(t)}, {v(t)}, {v(t)}
                  v_and_b32 {v(t)}, 0xffff0000, {v(t)}
                  v_mul_f32 {v(t)}, {v(t)}, {v(st)}
                  v_cvt_pk_bf16_f32 {v(t)}, {v(t)}, {v(t)}
                  v_and_b32 {v(t)}, 0xffff0000, {v(t)}
                  v_mul_f32 {v(t)}, {v(t)}, {v(DS)}
                  v_cvt_pk_bf16_f32 {v(t)}, {v(t)}, {v(t)}
                  v_and_b32 {v(t)}, 0xffff0000, {v(t)}
                  v_add_f32 {v(x)}, {v(x)}, {v(t)}
                  v_add_f32 {v(A2+r)}, {v(A2+r)}, {v(x)}""")
        self.spin_cnt(C_SD, VC2, T)
        self.gather3(0, 12288, AB, T)
        g(f"""s_xor_b32 {s(S_U0)}, {s(S_WI)}, 1
              s_mul_i32 {s(S_U0)}, {s(S_U0)}, 12288
              v_lshl_add_u32 {v(T+3)}, v0, 4, {s(S_U0)}""")
        for dd in range(3):
            g(f"s_waitcnt lgkmcnt({8-4*dd})")
            for r in range(16): g(f"v_add_f32 {v(A2+r)}, {v(A2+r)}, {v(AB+16*dd+r)}")
        for q in range(4):
            g(f"ds_write_b128 {v(T+3)}, {v(A2+4*q,4)} offset:{q*1024}")
        g("s_waitcnt lgkmcnt(0)\ns_barrier")
        self.stamp(11)
        self.stamps_out(T, 'S')
        g("L_END:")
        g("s_endpgm")
        g("L_CODE_END:")

    def build(self):
        hdr = open("cdna_kernels/" + NAME + ".s.ref").read().split("\n")
        head = [l for l in hdr if l.startswith(";") and "@launch" not in l]
        self.prologue(); self.fwave(); self.swave()
        lst = self.o.get("list")
        if lst:
            out = "\n".join(head) + "\n"
            for ch in lst:
                if ch == "m": out += f"; @launch kernel={NAME}_kernel grid=(256,1,1) block=(512,1,1) lds={LDS_BYTES}\n"
                else: out += f"; @launch kernel=null_kernel grid=(1,1,1) block=(64,1,1) lds=0\n"
        else:
            out = "\n".join(head) + f"\n; @launch grid=(256,1,1) block=(512,1,1) lds={LDS_BYTES}\n"
        out += f""".amdgcn_target "amdgcn-amd-amdhsa--gfx950"
.text
.globl {NAME}_kernel
.p2align 8
.type {NAME}_kernel,@function
{NAME}_kernel:
"""
        out += self.g.text()
        if lst:
            out += """.p2align 8
.globl null_kernel
.type null_kernel,@function
null_kernel:
    s_endpgm
.section .rodata,"a"
.p2align 6
.amdhsa_kernel null_kernel
  .amdhsa_next_free_vgpr 8
  .amdhsa_next_free_sgpr 16
  .amdhsa_accum_offset 8
  .amdhsa_group_segment_fixed_size 0
  .amdhsa_kernarg_size 120
  .amdhsa_user_sgpr_count 2
  .amdhsa_user_sgpr_kernarg_segment_ptr 1
  .amdhsa_system_sgpr_workgroup_id_x 1
.end_amdhsa_kernel
"""
        out += f""".section .rodata,"a"
.p2align 6
.amdhsa_kernel {NAME}_kernel
  .amdhsa_next_free_vgpr 256
  .amdhsa_next_free_sgpr 102
  .amdhsa_accum_offset 256
  .amdhsa_group_segment_fixed_size 0
  .amdhsa_kernarg_size 120
  .amdhsa_user_sgpr_count 2
  .amdhsa_user_sgpr_kernarg_segment_ptr 1
  .amdhsa_system_sgpr_workgroup_id_x 1
.end_amdhsa_kernel
"""
        return out

if __name__ == "__main__":
    path = sys.argv[1]
    opt = json.loads(sys.argv[2]) if len(sys.argv) > 2 else {}
    open(path, "w").write(Gen(opt).build())
```

```python
import sys, json

NAME = "parallel_sum__ssm_conv_s5__dense_activation_silu__prompt"

class G:
    def __init__(self):
        self.L = []
        self.nlab = 0
    def __call__(self, s):
        for ln in s.strip("\n").split("\n"):
            ln = ln.strip()
            if ln: self.L.append("    " + ln if not ln.endswith(":") else ln)
    def c(self, s): self.L.append("    ; " + s)
    def lab(self, p="L"):
        self.nlab += 1
        return f"{p}_{self.nlab}"
    def text(self): return "\n".join(self.L) + "\n"

def v(a, n=1): return f"v{a}" if n == 1 else f"v[{a}:{a+n-1}]"
def s(a, n=1): return f"s{a}" if n == 1 else f"s[{a}:{a+n-1}]"

NKS = 152
WS_INTER = 0
WS_AGG   = 0xA00000
WS_FLAGF = 0xA40000
WS_FLAGS = 0xA44000
WS_XS    = 0xA50000
WS_CSG   = 0xA58000
WS_EPOCH = 0xA60000
WS_STAMP = 0xB00000
WS_BYTES = 0xC00000
SLOT = 24576
W1B  = 2 * SLOT
MISC = 6 * SLOT
L_RS, L_NM, L_CSS, L_CNT = MISC, MISC + 512, MISC + 1024, MISC + 1536
L_LBP = MISC + 2048
L_CSF = MISC + 4096
L_TR  = MISC + 8192
L_SEG = L_TR + 3 * 2048
LDS_BYTES = MISC + 16384
C_S1, C_S2, C_W0, C_CSF, C_W1D, C_SD, C_B1 = 0, 4, 8, 24, 28, 32, 48

S_WAVE, S_WI, S_MT, S_G, S_RT, S_NT, S_C0, S_TAG = 3, 4, 5, 6, 7, 8, 9, 10
S_T0, S_T1, S_T2, S_T3, S_T4 = 11, 12, 13, 14, 15
P_X, P_LRE, P_LIM, P_BRE, P_BIM, P_CRE, P_CIM, P_LDT = 16, 18, 20, 22, 24, 26, 28, 30
P_DSK, P_BX, P_W1, P_W2, P_OUT, P_DBG, P_WS = 32, 34, 36, 38, 40, 42, 44
R_X, R_A, R_B, R_W2, R_WS, R_OUT = 48, 52, 56, 60, 64, 68
S_ONES, S_XO, S_BO, S_WO, S_SPIN = 72, 73, 74, 75, 76
S_U0, S_U1, S_U2, S_U3 = 77, 78, 79, 80
S_EX = 82
S_MK = 84
S_ST = 86

def srd(g, r, p, nbytes):
    g(f"""s_mov_b32 {s(r)}, {s(p)}
          s_mov_b32 {s(r+1)}, {s(p+1)}
          s_mov_b32 {s(r+2)}, {hex(nbytes)}
          s_mov_b32 {s(r+3)}, 0x20000""")

class Gen:
    def __init__(self, opt):
        self.o = opt
        self.g = G()
        self.nst = 0

    def stamp(self, i, force=False):
        if not self.o.get("stamps"): return
        if getattr(self, "mute", False) and not force: return
        g = self.g
        clk = "s_memrealtime" if self.o.get("rt") else "s_memtime"
        g(f"""{clk} s[100:101]
              s_waitcnt lgkmcnt(0)
              s_mov_b32 {s(S_ST+i)}, s100""")

    def stamps_out(self, vt, role):
        if not self.o.get("stamps"): return
        g = self.g
        pr = self.o.get("probe")
        if pr and pr[0] == role:
            l = g.lab("PRB")
            clk = "s_memrealtime" if self.o.get("rt") else "s_memtime"
            base = S_ST
            if pr[1:] in ("k", "e"):
                g(f"""s_load_dword {s(S_U0)}, {s(P_DBG,2)}, 0 glc
                      s_load_dword {s(S_U1)}, {s(P_DBG,2)}, 128 glc
                      s_waitcnt lgkmcnt(0)
                      s_not_b32 {s(S_U1)}, {s(S_U1)}""")
                src = S_U0 if pr[1:] == "k" else S_ST + 11
                base = S_U1
            elif pr[1:] == "z":
                src = S_ST; base = S_ST + 12
            else:
                src = S_MK if pr[1:] == "p" else S_ST + int(pr[1:])
            g(f"""s_sub_u32 {s(S_T0)}, {s(src)}, {s(base)}
                  s_lshl_b32 {s(S_T0)}, {s(S_T0)}, 4
                  {clk} s[100:101]
                  s_waitcnt lgkmcnt(0)
                  s_mov_b32 {s(S_T1)}, s100""")
            g(f"{l}:")
            g(f"""{clk} s[100:101]
                  s_waitcnt lgkmcnt(0)
                  s_sub_u32 {s(S_T2)}, s100, {s(S_T1)}
                  s_cmp_lt_u32 {s(S_T2)}, {s(S_T0)}
                  s_cbranch_scc1 {l}""")
        g(f"s_waitcnt vmcnt(0)")
        g(f"""s_memrealtime s[100:101]
              s_waitcnt lgkmcnt(0)
              s_mov_b32 {s(S_ST+13)}, s100""")
        g(f"""s_lshl_b32 {s(S_T0)}, s2, 3
              s_add_u32 {s(S_T0)}, {s(S_T0)}, {s(S_WAVE)}
              s_lshl_b32 {s(S_T0)}, {s(S_T0)}, 6
              s_add_u32 {s(S_T0)}, {s(S_T0)}, {hex(WS_STAMP)}
              v_mov_b32 {v(vt)}, 0""")
        for i in range(14):
            g(f"""v_mov_b32 {v(vt+1)}, {s(S_ST+i)}
                  buffer_store_dword {v(vt+1)}, {v(vt)}, {s(R_WS,4)}, {s(S_T0)} offen offset:{4*i}
                  s_nop 1""")

    def spin_cnt(self, cnt, vaddr_cnt, vt, reads="", tgt=4):
        g = self.g
        l = g.lab("SPIN"); d = g.lab("SPD")
        g(f"s_mov_b32 {s(S_SPIN)}, 0x100000")
        g(f"{l}:")
        g(f"ds_read_b32 {v(vt)}, {v(vaddr_cnt)} offset:{cnt}")
        if reads: g(reads)
        g(f"""s_waitcnt lgkmcnt(0)
              v_readfirstlane_b32 {s(S_U3)}, {v(vt)}
              s_sub_u32 {s(S_SPIN)}, {s(S_SPIN)}, 1
              s_cbranch_scc1 {d}
              s_cmp_eq_u32 {s(S_U3)}, {tgt}
              s_cbranch_scc1 {d}
              s_sleep 1
              s_branch {l}""")
        g(f"{d}:")

    def signal_cnt(self, cnt, vaddr_cnt, vone):
        g = self.g
        g(f"""s_mov_b64 exec, 1
              ds_add_u32 {v(vaddr_cnt)}, {v(vone)} offset:{cnt}
              s_mov_b64 exec, -1""")

    def cmul(self, dr, di, ar, ai, br, bi):
        self.g(f"""v_mul_f32 {v(dr)}, {v(ar)}, {v(br)}
                   v_mul_f32 {v(di)}, {v(ar)}, {v(bi)}
                   v_fma_f32 {v(dr)}, -{v(ai)}, {v(bi)}, {v(dr)}
                   v_fmac_f32 {v(di)}, {v(ai)}, {v(br)}""")

    def cfma(self, dr, di, ar, ai, br, bi, cr, ci):
        self.g(f"""v_fma_f32 {v(dr)}, {v(ar)}, {v(br)}, {v(cr)}
                   v_fma_f32 {v(di)}, {v(ar)}, {v(bi)}, {v(ci)}
                   v_fma_f32 {v(dr)}, -{v(ai)}, {v(bi)}, {v(dr)}
                   v_fmac_f32 {v(di)}, {v(ai)}, {v(br)}""")

    def poll_flags(self, base, vaddr=None, vt=None):
        g = self.g
        l = g.lab("POLL"); d = g.lab("PLD")
        F = 16
        g(f"""s_lshl_b32 {s(S_U0)}, {s(S_RT)}, 2
              s_add_u32 {s(S_U0)}, {s(S_U0)}, {s(S_WI)}
              s_lshl_b32 {s(S_U0)}, {s(S_U0)}, 7
              s_add_u32 {s(S_U0)}, {s(S_U0)}, {hex(base)}
              s_mov_b32 {s(S_SPIN)}, 0x40000
              s_mov_b32 s24, {s(S_TAG)}
              s_mov_b32 s25, {s(S_TAG)}""")
        g(f"{l}:")
        g(f"""s_load_dwordx8 {s(F,8)}, {s(P_WS,2)}, {s(S_U0)} glc
              s_waitcnt lgkmcnt(0)
              s_xor_b64 s[16:17], s[16:17], s[24:25]
              s_xor_b64 s[18:19], s[18:19], s[24:25]
              s_xor_b64 s[20:21], s[20:21], s[24:25]
              s_xor_b64 s[22:23], s[22:23], s[24:25]
              s_or_b64 s[16:17], s[16:17], s[18:19]
              s_or_b64 s[20:21], s[20:21], s[22:23]
              s_or_b64 s[16:17], s[16:17], s[20:21]
              s_cbranch_scc0 {d}
              s_sub_u32 {s(S_SPIN)}, {s(S_SPIN)}, 1
              s_cbranch_scc0 {l}""")
        g(f"{d}:")

    def set_flag(self, base, vz, vt, vm=0):
        g = self.g
        g(f"""s_lshl_b32 {s(S_U0)}, {s(S_MT)}, 1
              s_lshr_b32 {s(S_U1)}, {s(S_WI)}, 1
              s_add_u32 {s(S_U0)}, {s(S_U0)}, {s(S_U1)}
              s_lshl_b32 {s(S_U0)}, {s(S_U0)}, 2
              s_lshr_b32 {s(S_U1)}, {s(S_G)}, 2
              s_add_u32 {s(S_U0)}, {s(S_U0)}, {s(S_U1)}
              s_lshl_b32 {s(S_U0)}, {s(S_U0)}, 7
              s_and_b32 {s(S_U1)}, {s(S_WI)}, 1
              s_lshl_b32 {s(S_U1)}, {s(S_U1)}, 4
              s_add_u32 {s(S_U0)}, {s(S_U0)}, {s(S_U1)}
              s_and_b32 {s(S_U1)}, {s(S_G)}, 3
              s_lshl_b32 {s(S_U1)}, {s(S_U1)}, 2
              s_add_u32 {s(S_U0)}, {s(S_U0)}, {s(S_U1)}
              s_add_u32 {s(S_U0)}, {s(S_U0)}, {hex(base)}
              v_mov_b32 {v(vt)}, {s(S_TAG)}
              s_waitcnt vmcnt({vm})
              s_mov_b64 exec, 1
              buffer_store_dword {v(vt)}, {v(vz)}, {s(R_WS,4)}, {s(S_U0)} offen sc1
              s_mov_b64 exec, -1""")

    def prologue(self):
        g = self.g
        if self.o.get("stamps"): g("s_memrealtime s[98:99]")
        g(f"""s_cmp_ge_u32 s2, 256
              s_cbranch_scc1 L_END
              s_load_dwordx16 s[16:31], s[0:1], 0
              s_load_dwordx8 s[32:39], s[0:1], 64
              s_load_dwordx4 s[40:43], s[0:1], 96
              s_load_dwordx2 s[44:45], s[0:1], 112""")
        if self.o.get("stamps"):
            g(f"""s_waitcnt lgkmcnt(0)""")
            if self.o.get("probe", "")[1:] in ("k", "e"):
                g(f"""v_mov_b32 v2, 0
                      v_mov_b32 v3, s98
                      v_not_b32 v4, v3
                      s_mov_b64 exec, 1
                      global_atomic_umax v2, v3, {s(P_DBG,2)} sc1
                      global_atomic_umax v2, v4, {s(P_DBG,2)} offset:128 sc1
                      s_mov_b64 exec, -1""")
            for i in range(12): g(f"s_mov_b32 {s(S_ST+i)}, 0")
            self.stamp(0)
        g(f"""v_lshrrev_b32 v1, 6, v0
              v_and_b32 v0, 63, v0
              s_and_b32 {s(S_T0)}, s2, 7
              v_readfirstlane_b32 {s(S_WAVE)}, v1
              s_lshr_b32 {s(S_T1)}, s2, 3
              s_and_b32 {s(S_T2)}, {s(S_T1)}, 3
              s_lshr_b32 {s(S_NT)}, {s(S_T1)}, 2
              s_lshr_b32 {s(S_T3)}, {s(S_T0)}, 1
              s_lshl_b32 {s(S_MT)}, {s(S_T3)}, 2
              s_add_u32 {s(S_MT)}, {s(S_MT)}, {s(S_T2)}
              s_and_b32 {s(S_T4)}, {s(S_T0)}, 1
              s_lshl_b32 {s(S_G)}, {s(S_T4)}, 3
              s_add_u32 {s(S_G)}, {s(S_G)}, {s(S_NT)}
              s_lshl_b32 {s(S_RT)}, {s(S_T0)}, 2
              s_add_u32 {s(S_RT)}, {s(S_RT)}, {s(S_T2)}
              s_and_b32 {s(S_WI)}, {s(S_WAVE)}, 3""")
        rot = self.o.get("rot", 2)
        if rot == 0:
            g(f"""s_lshl_b32 {s(S_C0)}, {s(S_T4)}, 1
                  s_add_u32 {s(S_C0)}, {s(S_C0)}, {s(S_T3)}
                  s_lshl_b32 {s(S_C0)}, {s(S_C0)}, 1""")
        elif rot == 8:
            g(f"""s_lshl_b32 {s(S_C0)}, {s(S_MT)}, 1
                  s_add_u32 {s(S_C0)}, {s(S_C0)}, {s(S_G)}""")
        elif rot == 4:
            g(f"""s_add_u32 {s(S_C0)}, {s(S_MT)}, {s(S_G)}
                  s_lshl_b32 {s(S_C0)}, {s(S_C0)}, 1""")
        elif rot == 2:
            g(f"""s_add_u32 {s(S_C0)}, {s(S_MT)}, {s(S_G)}
                  s_lshl_b32 {s(S_C0)}, {s(S_C0)}, 1
                  s_add_u32 {s(S_C0)}, {s(S_C0)}, {s(S_T4)}
                  s_add_u32 {s(S_C0)}, {s(S_C0)}, {s(S_T3)}
                  s_lshl_b32 {s(S_C0)}, {s(S_C0)}, 1""")
        pre = self.o.get("pretest")
        if pre:
            pol = self.o.get("prepol", "")
            g(f"""v_lshlrev_b32 v2, 4, v0
                  s_lshl_b32 {s(S_U0)}, {s(S_WAVE)}, 8
                  s_add_u32 {s(S_U0)}, {s(S_U0)}, s2
                  s_lshl_b32 {s(S_U0)}, {s(S_U0)}, 10""")
            for i, (nm, P, nb, sh) in enumerate([("x", P_X, 2<<20, 0), ("b", P_BRE, 1<<19, 0), ("b", P_BIM, 1<<19, 2), ("1", P_W1, 1376*1024, 2),
                                  ("c", P_CRE, 1<<19, 4), ("c", P_CIM, 1<<19, 6), ("2", P_W2, 1376*1024, 0)]):
                if nm not in pre: continue
                srd(g, R_X, P, nb)
                g(f"""s_sub_u32 {s(S_U1)}, {s(S_U0)}, {sh << 18}
                      s_and_b32 {s(S_U1)}, {s(S_U1)}, {(2<<20)-1}
                      buffer_load_dwordx4 {v(4+4*i,4)}, v2, {s(R_X,4)}, {s(S_U1)} offen{pol}""")
            g("s_waitcnt vmcnt(0)")
            self.stamp(11)
            g(f"s_mov_b32 {s(S_MK)}, {s(S_ST+11)}")
        g(f"""s_cmp_ge_u32 {s(S_WAVE)}, 4
              s_cbranch_scc0 L_SWAVE""")

    def epoch(self):
        g = self.g
        g(f"""s_add_u32 {s(S_EX)}, {s(P_WS)}, {hex(WS_EPOCH)}
              s_addc_u32 {s(S_EX+1)}, {s(P_WS+1)}, 0
              s_load_dword {s(S_TAG)}, {s(S_EX,2)}, 0""")
    def epoch_fin(self):
        self.g(f"""s_mul_i32 {s(S_TAG)}, {s(S_TAG)}, 0x9E3779B1
                   s_add_u32 {s(S_TAG)}, {s(S_TAG)}, 0x7F4A7C15""")

    def frag_pat(self, P, t0, t1, xor_wi):
        g = self.g
        g(f"""v_and_b32 {v(t0)}, 31, v0
              v_lshrrev_b32 {v(t1)}, 1, v0
              v_and_b32 {v(t1)}, 7, {v(t1)}
              v_lshrrev_b32 {v(P)}, 5, v0
              v_xor_b32 {v(t1)}, {v(t1)}, {v(P)}
              v_lshlrev_b32 {v(t1)}, 4, {v(t1)}
              v_lshl_or_b32 {v(P)}, {v(t0)}, 7, {v(t1)}""")
        if xor_wi:
            g(f"""s_lshl_b32 {s(S_U0)}, {s(S_WI)}, 5
                  v_xor_b32 {v(P)}, {s(S_U0)}, {v(P)}""")
        for k in (1, 2, 3):
            g(f"v_xor_b32 {v(P+k)}, {32*k}, {v(P)}")

    def lane8_pat(self, d, t0, t1):
        self.g(f"""v_lshrrev_b32 {v(t0)}, 3, v0
                   v_and_b32 {v(d)}, 7, v0
                   v_lshrrev_b32 {v(t1)}, 4, v0
                   v_xor_b32 {v(d)}, {v(d)}, {v(t1)}
                   v_lshlrev_b32 {v(d)}, 4, {v(d)}""")

    def split3(self, src, d0, d1, t0, t1):
        self.g(f"""v_and_b32 {v(t0)}, 0xffff0000, {v(src)}
                  v_sub_f32 {v(t1)}, {v(src)}, {v(t0)}
                  v_and_b32 {v(d0)}, 0xffff0000, {v(t1)}
                  v_sub_f32 {v(t1)}, {v(t1)}, {v(d0)}
                  v_lshrrev_b32 {v(t0)}, 16, {v(t0)}
                  v_or_b32 {v(d0)}, {v(d0)}, {v(t0)}
                  v_lshrrev_b32 {v(d1)}, 16, {v(t1)}""")

    def tau(self, d, t):
        self.g(f"""v_and_b32 {v(d)}, 4, v0
                   v_lshlrev_b32 {v(d)}, 2, {v(d)}
                   v_lshrrev_b32 {v(t)}, 1, v0
                   v_and_b32 {v(t)}, 12, {v(t)}
                   v_or_b32 {v(d)}, {v(d)}, {v(t)}
                   v_and_b32 {v(t)}, 3, v0
                   v_or_b32 {v(d)}, {v(d)}, {v(t)}""")

    def w2_dma_setup(self, VD, T, sreg_lds, sreg_glb):
        g = self.g
        g(f"""v_lshrrev_b32 {v(T)}, 3, v0
              v_and_b32 {v(T+1)}, 7, v0
              v_bfe_u32 {v(T+2)}, v0, 4, 1
              v_lshlrev_b32 {v(T+2)}, 2, {v(T+2)}
              v_xor_b32 {v(T+1)}, {v(T+1)}, {v(T+2)}
              v_lshlrev_b32 {v(T+1)}, 4, {v(T+1)}
              v_lshl_or_b32 {v(VD)}, {v(T)}, 10, {v(T+1)}
              v_add_u32 {v(VD+1)}, 7168, {v(VD)}
              v_add_u32 {v(VD+2)}, {2*7168}, {v(VD)}
              v_add_u32 {v(VD+3)}, {3*7168}, {v(VD)}
              s_mul_i32 {s(sreg_glb)}, {s(S_WI)}, {352*1024}
              s_lshl_b32 {s(S_U0)}, {s(S_NT)}, 7
              s_add_u32 {s(sreg_glb)}, {s(sreg_glb)}, {s(S_U0)}
              s_mul_i32 {s(sreg_lds)}, {s(S_WI)}, {SLOT}
              s_add_u32 {s(sreg_lds)}, {s(sreg_lds)}, {W1B}""")

    def w2_issue(self, VD, sreg_lds, sreg_glb, ks0, n, lslot0):
        g = self.g
        for i in range(0, n, 2):
            g(f"""s_add_u32 m0, {s(sreg_lds)}, {(lslot0 + i)*2048}
                  s_add_u32 {s(S_U1)}, {s(sreg_glb)}, {(ks0+i)*16384}""")
            for e in range(4):
                g(f"buffer_load_dwordx4 {v(VD+e)}, {s(R_W2,4)}, {s(S_U1)} offen offset:{1024*e} lds")

    def recheck(self, loads, tagregs, vm=0):
        g = self.g
        l = g.lab("RC"); d = g.lab("RCD")
        g(f"s_mov_b32 {s(S_SPIN)}, 0x40000\ns_waitcnt vmcnt({vm})")
        g(f"{l}:")
        g(f"v_cmp_ne_u32 vcc, {s(S_TAG)}, {v(tagregs[0])}")
        for r in tagregs[1:]:
            g(f"v_cmp_ne_u32 s[100:101], {s(S_TAG)}, {v(r)}\ns_or_b64 vcc, vcc, s[100:101]")
        g(f"""s_cmp_eq_u64 vcc, 0
              s_cbranch_scc1 {d}
              s_sub_u32 {s(S_SPIN)}, {s(S_SPIN)}, 1
              s_cbranch_scc1 {d}
              s_sleep 2""")
        g(loads)
        g(f"s_waitcnt vmcnt(0)\ns_branch {l}")
        g(f"{d}:")

    def w1_setup(self, VW, T, s_lds, s_glb, s_f0):
        g = self.g
        g(f"s_mov_b32 {s(S_U2)}, 683")
        for e in range(3):
            g(f"""v_add_u32 {v(T)}, {64*e}, v0
                  v_mul_u32_u24 {v(T+1)}, {s(S_U2)}, {v(T)}
                  v_lshrrev_b32 {v(T+1)}, 13, {v(T+1)}
                  v_mul_u32_u24 {v(T+2)}, 12, {v(T+1)}
                  v_sub_u32 {v(T+2)}, {v(T)}, {v(T+2)}
                  v_mul_u32_u24 {v(T+1)}, 2752, {v(T+1)}
                  v_lshl_add_u32 {v(VW+e)}, {v(T+2)}, 4, {v(T+1)}""")
            if e: g(f"v_subrev_u32 {v(VW+e)}, {1024*e}, {v(VW+e)}")
        g(f"""s_lshr_b32 {s(S_U2)}, {s(S_G)}, 2
              s_mul_i32 {s(s_f0)}, {s(S_U2)}, 11
              s_and_b32 {s(S_U2)}, {s(S_G)}, 3
              s_mul_i32 {s(S_U2)}, {s(S_U2)}, 3
              s_add_u32 {s(s_f0)}, {s(s_f0)}, {s(S_U2)}
              s_lshl_b32 {s(s_glb)}, {s(s_f0)}, 6
              s_mul_i32 {s(S_U2)}, {s(S_WI)}, {16*2752}
              s_add_u32 {s(s_glb)}, {s(s_glb)}, {s(S_U2)}
              s_mul_i32 {s(s_lds)}, {s(S_WI)}, 3072""")

    def w1_pre(self, j, s_lds, s_glb):
        return f"""s_add_u32 {s(S_U0)}, {s(S_C0)}, {j}
                  s_and_b32 {s(S_U0)}, {s(S_U0)}, 7
                  s_mul_i32 {s(S_U0)}, {s(S_U0)}, {64*2752}
                  s_add_u32 m0, {s(s_lds)}, {W1B + j*12288}
                  s_add_u32 {s(S_U1)}, {s(S_U0)}, {s(s_glb)}"""

    def fwave(self):
        g = self.g; o = self.o
        X = 128
        ACC = 80
        WF = 44
        VX, VB, VW = 2, 6, 8
        P = 12
        WA = 16
        VCNT, VONE, VZ = 20, 21, 22
        XS = 24
        RS, NRS = 26, 27
        NM = 28
        CS = 32
        T = 2
        TA = 32

        g.c("---------------- F wave: stage A loader ----------------")
        self.lane8_pat(TA, TA+1, TA+2)
        g(f"""v_lshrrev_b32 {v(TA+2)}, 2, {v(TA+1)}
              v_lshlrev_b32 {v(TA+2)}, 4, {v(TA+2)}
              v_and_b32 {v(TA+3)}, 3, {v(TA+1)}
              v_add_u32 {v(TA+2)}, {v(TA+2)}, {v(TA+3)}
              v_lshl_or_b32 {v(VX)}, {v(TA+2)}, 10, {v(TA)}
              v_add_u32 {v(VX+1)}, 3072, {v(VX)}
              v_xor_b32 {v(VX+1)}, 64, {v(VX+1)}
              v_add_u32 {v(VX+2)}, 6144, {v(VX)}
              v_add_u32 {v(VX+3)}, 6144, {v(VX+1)}
              v_lshl_or_b32 {v(VB)}, {v(TA+1)}, 10, {v(TA)}
              v_add_u32 {v(VB+1)}, 7168, {v(VB)}
              v_xor_b32 {v(VB+1)}, 64, {v(VB+1)}
              s_lshl_b32 {s(S_XO)}, {s(S_MT)}, 17
              s_lshl_b32 {s(S_T0)}, {s(S_WI)}, 15
              s_add_u32 {s(S_XO)}, {s(S_XO)}, {s(S_T0)}
              s_lshl_b32 {s(S_BO)}, {s(S_G)}, 15
              s_and_b32 {s(S_T0)}, {s(S_WI)}, 1
              s_lshl_b32 {s(S_T0)}, {s(S_T0)}, 14
              s_add_u32 {s(S_BO)}, {s(S_BO)}, {s(S_T0)}
              s_lshl_b32 {s(S_T3)}, {s(S_WI)}, 12
              s_lshl_b32 {s(S_T4)}, {s(S_WI)}, 11
              s_add_u32 {s(S_T4)}, {s(S_T4)}, 16384
              s_mov_b32 {s(R_X+2)}, {hex(2048*512*2)}
              s_mov_b32 {s(R_X+3)}, 0x20000
              s_mov_b32 {s(R_A+2)}, {hex(512*512*2)}
              s_mov_b32 {s(R_A+3)}, 0x20000
              s_cmp_ge_u32 {s(S_WI)}, 2
              s_waitcnt lgkmcnt(0)
              s_mov_b32 {s(R_X)}, {s(P_X)}
              s_mov_b32 {s(R_X+1)}, {s(P_X+1)}
              s_cselect_b32 {s(R_A)}, {s(P_BIM)}, {s(P_BRE)}
              s_cselect_b32 {s(R_A+1)}, {s(P_BIM+1)}, {s(P_BRE+1)}""")

        def issue_x(c):
            slot = (c % 6) * SLOT
            g(f"""s_add_u32 {s(S_U0)}, {s(S_C0)}, {c}
                  s_and_b32 {s(S_U0)}, {s(S_U0)}, 7
                  s_lshl_b32 {s(S_U0)}, {s(S_U0)}, 7
                  s_add_u32 m0, {s(S_T3)}, {slot}
                  s_add_u32 {s(S_U1)}, {s(S_U0)}, {s(S_XO)}""")
            for e in range(4):
                g(f"buffer_load_dwordx4 {v(VX+e)}, {s(R_X,4)}, {s(S_U1)} offen offset:{1024*e} lds")
            g(f"""s_add_u32 m0, {s(S_T4)}, {slot}
                  s_add_u32 {s(S_U1)}, {s(S_U0)}, {s(S_BO)}""")
            for e in range(2):
                g(f"buffer_load_dwordx4 {v(VB+e)}, {s(R_A,4)}, {s(S_U1)} offen offset:{1024*e} lds")

        def w_pre(j): return self.w1_pre(j, S_T2, S_WO)
        def w_one(e):
            return f"buffer_load_dwordx4 {v(VW+e)}, {s(R_B,4)}, {s(S_U1)} offen offset:{1024*e} lds"
        def issue_w(j):
            g(w_pre(j))
            for e in range(3): g(w_one(e))

        issue_x(0); issue_x(1)
        self.stamp(1)
        self.epoch()
        srd(g, R_B, P_W1, 512 * 1376 * 2)
        srd(g, R_W2, P_W2, 1376 * 512 * 2)
        srd(g, R_WS, P_WS, WS_BYTES)
        srd(g, R_OUT, P_OUT, 2048*512*4)
        self.w1_setup(VW, TA, S_T2, S_WO, S_T1)
        self.frag_pat(P, TA, TA+1, True)
        for k in range(4): g(f"v_add_u32 {v(P+k)}, {s(S_T3)}, {v(P+k)}")
        g(f"""v_lshrrev_b32 {v(TA)}, 5, v0
              v_bfe_u32 {v(TA+1)}, v0, 2, 2
              v_lshl_add_u32 {v(TA)}, {v(TA)}, 3, {v(TA+1)}
              v_mul_u32_u24 {v(TA)}, 192, {v(TA)}
              v_bfe_u32 {v(TA+1)}, v0, 4, 1
              v_lshl_add_u32 {v(TA)}, {v(TA+1)}, 5, {v(TA)}
              v_and_b32 {v(TA+1)}, 3, v0
              v_lshl_add_u32 {v(TA)}, {v(TA+1)}, 3, {v(TA)}
              v_mov_b32 {v(VCNT)}, {L_CNT}
              v_mov_b32 {v(VONE)}, 1
              v_mov_b32 {v(VZ)}, 0
              v_bfe_u32 {v(TA+1)}, v0, 2, 2
              v_lshrrev_b32 {v(TA+2)}, 4, v0
              v_cmp_eq_u32 vcc, {v(TA+1)}, {v(TA+2)}
              v_mov_b32 {v(TA+1)}, 0x3f803f80
              s_nop 0
              v_cndmask_b32 {v(NM)}, 0, {v(TA+1)}, vcc
              v_cndmask_b32 {v(NM+1)}, 0, {v(TA+1)}, vcc
              v_cndmask_b32 {v(NM+2)}, 0, {v(TA+1)}, vcc
              v_cndmask_b32 {v(NM+3)}, 0, {v(TA+1)}, vcc""")
        for k in range(4):
            g(f"""s_xor_b32 {s(S_U0)}, {s(S_WI)}, {k}
                  s_mul_i32 {s(S_U0)}, {s(S_U0)}, 3072
                  s_add_u32 {s(S_U0)}, {s(S_U0)}, {W1B}
                  v_add_u32 {v(WA+k)}, {s(S_U0)}, {v(TA)}""")
        self.tau(RS, TA)
        g(f"""s_lshr_b32 {s(S_U0)}, {s(S_XO)}, 7
              s_add_u32 {s(S_U0)}, {s(S_U0)}, {hex(WS_XS)}
              v_lshl_add_u32 {v(RS)}, {v(RS)}, 3, {s(S_U0)}
              s_waitcnt lgkmcnt(0)""")
        self.epoch_fin()
        xs_load = f"buffer_load_dwordx2 {v(XS,2)}, {v(RS)}, {s(R_WS,4)}, 0 offen sc1"

        for c in range(8):
            g.c(f"chunk {c}")
            if c + 2 < 8: issue_x(c + 2)
            else: issue_w(2 * (c - 6)); issue_w(2 * (c - 6) + 1)
            if c in (3, 6):
                op = "v_add_u32" if c == 3 else "v_subrev_u32"
                for k in range(4): g(f"{op} {v(P+k)}, {3*SLOT}, {v(P+k)}")
            g("s_waitcnt vmcnt(12) lgkmcnt(0)")
            if o.get("adetail") == 1:
                self.mute = True; self.stamp(2 + c, True)
            g("s_barrier")
            if o.get("adetail") == 2:
                self.mute = True; self.stamp(2 + c, True)
            off = (c % 3) * SLOT
            for k in range(4):
                g(f"ds_read_b128 {v(X+16*c+4*k,4)}, {v(P+k)} offset:{off}")
        self.signal_cnt(C_S1, VCNT, VONE)
        self.stamp(2)
        g.c("---------------- F stage: w1 GEMM ----------------")
        g("s_setprio 1\ns_waitcnt vmcnt(6)")
        self.signal_cnt(C_W0, VCNT, VONE)
        self.spin_cnt(C_W0, VCNT, T)
        self.stamp(3)
        steps = [(j, k) for j in range(8) for k in range(4)]
        def rd(idx, t):
            j, k = steps[idx]
            if idx == 16 and t == 0:
                for kk in range(4): g(f"v_add_u32 {v(WA+kk)}, {4*12288}, {v(WA+kk)}")
            dst = WF + 12 * (idx % 3) + 4 * t
            off = (j % 4) * 12288 + t * 64
            g(f"""ds_read_b64_tr_b16 {v(dst,2)}, {v(WA+k)} offset:{off}
                  ds_read_b64_tr_b16 {v(dst+2,2)}, {v(WA+k)} offset:{off+768}""")
        for i in range(2):
            for t in range(3): rd(i, t)
        dma = {}
        q = []
        for j in range(4, 6):
            q += [w_pre(j) + "\n" + w_one(0), w_one(1), w_one(2)]
        q.append(xs_load)
        slots = [0, 1, 2, 4, 5, 6, 20]
        for sl, ins in zip(slots, q): dma[sl] = ins
        issued = 12
        extra = 0
        for idx, (j, k) in enumerate(steps):
            b = WF + 12 * (idx % 3)
            nxt = 6 if idx + 1 < 32 else 0
            g(f"s_waitcnt lgkmcnt({nxt + extra})")
            extra = 0
            xr = X + 16*j + 4*k
            ph = idx % 8; pr = idx // 8
            for t in range(3):
                cc = "0" if idx == 0 else v(ACC+16*t, 16)
                g(f"v_mfma_f32_32x32x16_bf16 {v(ACC+16*t,16)}, {v(b+4*t,4)}, {v(xr,4)}, {cc}")
                if t == 0 and ph == 6 and pr < 3:
                    lo = g.lab("WOK")
                    g(f"""v_readfirstlane_b32 {s(S_U3)}, {v(T)}
                          s_cmp_eq_u32 {s(S_U3)}, 4
                          s_cbranch_scc1 {lo}""")
                    self.spin_cnt(C_W0 + 4*(pr+1), VCNT, T)
                    g(f"{lo}:")
                if idx + 2 < 32: rd(idx + 2, t)
                if t == 1 and idx in dma:
                    g(dma[idx]); issued += 1
            if ph == 3 and pr < 2:
                g(f"s_waitcnt vmcnt({issued - 6*(pr+2)})")
                self.signal_cnt(C_W0 + 4*(pr+1), VCNT, VONE)
                extra = 1
            if ph == 4 and pr < 3:
                g(f"ds_read_b32 {v(T)}, {v(VCNT)} offset:{C_W0 + 4*(pr+1)}")
                extra = 1
            if o.get("fdetail") and idx % 4 == 3:
                self.mute = True
                self.stamp(4 + idx // 4, True)
            if k == 0:
                for t in range(3):
                    cc = "0" if idx == 0 else v(CS+4*t, 4)
                    g(f"v_mfma_f32_16x16x32_bf16 {v(CS+4*t,4)}, {v(NM,4)}, {v(b+4*t,4)}, {cc}")
            if idx == 29:
                g(f"""s_lshl_b32 {s(S_U0)}, {s(S_WI)}, 2
                      s_add_u32 {s(S_U0)}, {s(S_U0)}, {L_CSF}
                      v_lshl_add_u32 {v(T)}, v0, 4, {s(S_U0)}
                      v_lshlrev_b32 {v(T+1)}, 4, v0
                      v_add_u32 {v(T+1)}, {L_CSF}, {v(T+1)}""")
                for t in range(3): g(f"ds_write_b32 {v(T)}, {v(CS+4*t)} offset:{1024*t}")
                self.signal_cnt(C_CSF, VCNT, VONE)
                self.signal_cnt(C_W1D, VCNT, VONE)
                extra = 5
            if idx == 30:
                extra = 0
                self.recheck(xs_load, [XS+1])
                g(f"""v_lshlrev_b32 {v(T+2)}, 16, {v(XS)}
                      v_and_b32 {v(RS)}, 0xffff0000, {v(XS)}
                      v_rcp_f32 {v(RS)}, {v(RS)}
                      v_cvt_pk_bf16_f32 {v(NM)}, -{v(T+2)}, -{v(T+2)}
                      v_mul_f32 {v(NRS)}, 0xbfb8aa3b, {v(RS)}
                      v_mov_b32 {v(NM+1)}, {v(NM)}
                      v_mov_b32 {v(NM+2)}, 0
                      v_mov_b32 {v(NM+3)}, 0""")
        self.stamp(4)
        CB = WF + 24
        rds = "\n".join(f"ds_read_b128 {v(CB+4*t,4)}, {v(T+1)} offset:{1024*t}" for t in range(3))
        self.spin_cnt(C_CSF, VCNT, T, rds)
        for t in range(3):
            b = CB + 4*t
            g(f"""v_add_f32 {v(b)}, {v(b)}, {v(b+1)}
                  v_add_f32 {v(b+2)}, {v(b+2)}, {v(b+3)}
                  v_add_f32 {v(b+2)}, {v(b)}, {v(b+2)}""")
            self.split3(b+2, b, b+1, T, T+2)
            g(f"""v_mov_b32 {v(b+2)}, 0
                  v_mov_b32 {v(b+3)}, 0
                  s_nop 1
                  v_mfma_f32_32x32x16_bf16 {v(ACC+16*t,16)}, {v(b,4)}, {v(NM,4)}, {v(ACC+16*t,16)}""")
        self.stamp(5)
        g.c("SiLU + store")
        PB = P
        g(f"""s_lshl_b32 {s(S_U0)}, {s(S_MT)}, 2
              s_add_u32 {s(S_U0)}, {s(S_U0)}, {s(S_WI)}
              s_mul_i32 {s(S_U0)}, {s(S_U0)}, {NKS}
              s_lshl_b32 {s(S_U1)}, {s(S_T1)}, 1
              s_add_u32 {s(S_U0)}, {s(S_U0)}, {s(S_U1)}
              s_add_u32 {s(S_U0)}, {s(S_U0)}, 64
              s_lshl_b32 {s(S_U2)}, {s(S_U0)}, 10
              v_lshlrev_b32 {v(PB)}, 4, v0""")
        lsk = g.lab("NOT2")
        for t in range(3):
            a = ACC + 16*t
            if t == 2:
                g(f"""s_and_b32 {s(S_U0)}, {s(S_G)}, 3
                      s_cmp_eq_u32 {s(S_U0)}, 3
                      s_cbranch_scc1 {lsk}
                      s_add_u32 {s(S_U2)}, {s(S_U2)}, 4096""")
            for hf in range(2):
                e = WF if hf == 0 else WF + 8
                z = a + 8*hf
                for i in range(0, 8, 2): g(f"v_pk_mul_f32 {v(e+i,2)}, {v(z+i,2)}, {v(RS,2)} op_sel:[0,1] op_sel_hi:[1,1]")
                for i in range(8):
                    g(f"v_exp_f32 {v(e+i)}, {v(e+i)}")
                    if i & 1: g(f"v_pk_mul_f32 {v(z+i-1,2)}, {v(z+i-1,2)}, {v(RS,2)} op_sel_hi:[1,0]")
                for i in range(0, 8, 2): g(f"v_pk_add_f32 {v(e+i,2)}, {v(e+i,2)}, 1.0 op_sel_hi:[1,0]")
                for i in range(8): g(f"v_rcp_f32 {v(e+i)}, {v(e+i)}")
                for i in range(0, 8, 2): g(f"v_pk_mul_f32 {v(z+i,2)}, {v(z+i,2)}, {v(e+i,2)}")
                d = CS + 4*hf
                for i in range(4): g(f"v_cvt_pk_bf16_f32 {v(d+i)}, {v(a+8*hf+2*i)}, {v(a+8*hf+2*i+1)}")
                g(f"buffer_store_dwordx4 {v(d,4)}, {v(PB)}, {s(R_WS,4)}, {s(S_U2)} offen offset:{((2*t+hf)&3)*1024} sc1")
        g(f"{lsk}:")
        self.stamp(6)

        g.c("---------------- F phase 2 ----------------")
        A2 = 176
        BR = 96
        AB = 48
        BTm = 240
        VD = 2
        WB = 6
        VA = 8
        T2 = 40
        T = 44
        NR = 10
        self.w2_dma_setup(VD, T2, S_T2, S_WO)
        g(f"""v_lshrrev_b32 {v(T2)}, 5, v0
              v_bfe_u32 {v(T2+1)}, v0, 2, 2
              v_lshl_add_u32 {v(T2)}, {v(T2)}, 2, {v(T2+1)}
              v_lshlrev_b32 {v(T2)}, 7, {v(T2)}
              v_bfe_u32 {v(T2+1)}, v0, 3, 1
              s_and_b32 {s(S_U0)}, {s(S_WI)}, 1
              v_xor_b32 {v(T2+1)}, {s(S_U0)}, {v(T2+1)}
              v_lshl_add_u32 {v(T2)}, {v(T2+1)}, 6, {v(T2)}
              v_bfe_u32 {v(T2+1)}, v0, 4, 1
              v_lshl_add_u32 {v(T2)}, {v(T2+1)}, 5, {v(T2)}
              v_and_b32 {v(T2+1)}, 3, v0
              v_lshl_add_u32 {v(T2)}, {v(T2+1)}, 3, {v(T2)}
              v_add_u32 {v(WB)}, {s(S_T2)}, {v(T2)}
              v_xor_b32 {v(WB+1)}, 64, {v(WB)}
              s_lshl_b32 {s(S_U0)}, {s(S_WI)}, 2
              v_add_u32 {v(T2+2)}, {s(S_U0)}, {v(VCNT)}""")
        def bread(dst, lks):
            for ct in range(2):
                for u in range(2):
                    g(f"ds_read_b64_tr_b16 {v(dst+4*ct+2*u,2)}, {v(WB+ct)} offset:{lks*2048+u*1024}")
        if o.get("fflag_first"):
            self.set_flag(WS_FLAGF, VZ, T2+3, 0)
        self.spin_cnt(C_B1, T2+2, T2, tgt=1)
        self.stamp(7)
        for ks in range(NR):
            bread(BR + 8*ks, ks)
            if ks % 2 == 1: g("s_waitcnt lgkmcnt(4)")
        g("s_waitcnt lgkmcnt(0)")
        fb = o.get("f_b2a", 10)
        self.w2_issue(VD, S_T2, S_WO, 12, fb, 0)
        if not o.get("fflag_first"):
            self.set_flag(WS_FLAGF, VZ, T2+3, 2*fb)
        self.w2_issue(VD, S_T2, S_WO, 12 + fb, 10 - fb, fb)
        self.a_setup(VA, 64, 22, T)
        self.stamp(8)
        self.poll_flags(WS_FLAGF, T+1, T)
        self.stamp(9)
        def bsrc(ks):
            return BR + 8*ks if ks < NR else BTm + 8*(ks & 1)
        def mid(ks):
            if ks + 1 >= NR and ks + 1 < 22: bread(BTm + 8*((ks+1) & 1), (ks + 1) % 12)
        def pre(ks):
            if ks >= NR: g(f"s_waitcnt lgkmcnt(0)")
        self.p2_loop(22, VA, AB, A2, bsrc, pre, mid)
        self.stamp(10)
        g(f"v_lshl_add_u32 {v(T)}, v0, 4, {s(S_T2)}")
        for sl in range(1, 4):
            for qq in range(4):
                g(f"ds_write_b128 {v(T)}, {v(A2+16*sl+4*qq,4)} offset:{(sl-1)*4096+qq*1024}")
        g(f"""s_lshr_b32 {s(S_U0)}, {s(S_WI)}, 1
              s_lshl_b32 {s(S_U1)}, {s(S_RT)}, 1
              s_add_u32 {s(S_U0)}, {s(S_U0)}, {s(S_U1)}
              s_lshl_b32 {s(S_T0)}, {s(S_U0)}, 16
              s_lshl_b32 {s(S_U1)}, {s(S_NT)}, 8
              s_add_u32 {s(S_T0)}, {s(S_T0)}, {s(S_U1)}
              s_and_b32 {s(S_U1)}, {s(S_WI)}, 1
              s_lshl_b32 {s(S_U1)}, {s(S_U1)}, 7
              s_add_u32 {s(S_T0)}, {s(S_T0)}, {s(S_U1)}
              v_and_b32 {v(T+1)}, 31, v0
              v_lshlrev_b32 {v(T+1)}, 2, {v(T+1)}
              v_lshrrev_b32 {v(T+2)}, 5, v0
              v_lshl_add_u32 {v(T+1)}, {v(T+2)}, 15, {v(T+1)}
              s_xor_b32 {s(S_U0)}, {s(S_WI)}, 1
              s_mul_i32 {s(S_U0)}, {s(S_U0)}, 12288
              v_lshl_add_u32 {v(T+2)}, v0, 4, {s(S_U0)}
              s_waitcnt lgkmcnt(0)
              s_barrier""")
        self.gather3(W1B, SLOT, BR, T)
        for dd in range(3):
            g(f"s_waitcnt lgkmcnt({8 if dd < 2 else 4})")
            if dd == 0:
                for qq in range(4): g(f"ds_read_b128 {v(BR+48+4*qq,4)}, {v(T+2)} offset:{qq*1024}")
            for r in range(16): g(f"v_add_f32 {v(A2+r)}, {v(A2+r)}, {v(BR+16*dd+r)}")
        g("s_waitcnt lgkmcnt(0)")
        for r in range(16):
            if r and r % 2 == 0: g(f"s_add_u32 {s(S_T0)}, {s(S_T0)}, 4096")
            g(f"v_add_f32 {v(A2+r)}, {v(A2+r)}, {v(BR+48+r)}")
            g(f"buffer_store_dword {v(A2+r)}, {v(T+1)}, {s(R_OUT,4)}, {s(S_T0)} offen offset:{(r%2)*2048}{o.get('out_pol','')}")
        le = g.lab("NOEP")
        g(f"""s_lshl_b32 {s(S_U0)}, {s(S_RT)}, 5
              s_lshl_b32 {s(S_U1)}, {s(S_NT)}, 2
              s_add_u32 {s(S_U0)}, {s(S_U0)}, {s(S_U1)}
              s_add_u32 {s(S_U0)}, {s(S_U0)}, {s(S_WI)}
              s_cmp_lg_u32 {s(S_U0)}, {31*32}
              s_cbranch_scc1 {le}
              v_mov_b32 {v(T)}, {s(S_TAG)}
              s_mov_b32 {s(S_U0)}, {hex(WS_EPOCH)}
              s_mov_b64 exec, 1
              buffer_store_dword {v(T)}, {v(VZ)}, {s(R_WS,4)}, {s(S_U0)} offen
              s_mov_b64 exec, -1""")
        g(f"{le}:")
        self.stamp(11)
        self.stamps_out(T, 'F')
        g("s_endpgm")

    def gather3(self, base, stride, dst, T):
        g = self.g
        for d in range(1, 4):
            g(f"""s_xor_b32 {s(S_U0)}, {s(S_WI)}, {d}
                  s_mul_i32 {s(S_U0)}, {s(S_U0)}, {stride}
                  s_add_u32 {s(S_U0)}, {s(S_U0)}, {base + (d-1)*4096}
                  v_lshl_add_u32 {v(T)}, v0, 4, {s(S_U0)}""")
            for q in range(4):
                g(f"ds_read_b128 {v(dst+16*(d-1)+4*q,4)}, {v(T)} offset:{q*1024}")

    def a_setup(self, VA, ks_base, per_wave, T):
        g = self.g
        g(f"""s_lshr_b32 {s(S_U0)}, {s(S_WI)}, 1
              s_mul_i32 {s(S_U1)}, {s(S_U0)}, {NKS*1024}
              s_sub_u32 {s(S_U2)}, {NKS*1024}, {s(S_U1)}
              v_lshl_add_u32 {v(VA)}, v0, 4, {s(S_U1)}
              v_lshl_add_u32 {v(VA+1)}, v0, 4, {s(S_U2)}
              s_mul_i32 {s(S_XO)}, {s(S_RT)}, {2*NKS}
              s_mul_i32 {s(S_U0)}, {s(S_WI)}, {per_wave}
              s_add_u32 {s(S_XO)}, {s(S_XO)}, {s(S_U0)}
              s_add_u32 {s(S_XO)}, {s(S_XO)}, {ks_base}
              s_lshl_b32 {s(S_XO)}, {s(S_XO)}, 10""")

    def p2_loop(self, n, VA, AB, A2, bsrc, pre, mid):
        g = self.g
        D = 6
        def aload(ks):
            if ks and ks % 4 == 0: g(f"s_add_u32 {s(S_XO)}, {s(S_XO)}, 4096")
            for rb in range(2):
                g(f"buffer_load_dwordx4 {v(AB+8*(ks%D)+4*rb,4)}, {v(VA+rb)}, {s(R_WS,4)}, {s(S_XO)} offen offset:{(ks%4)*1024} sc1")
        for ks in range(D): aload(ks)
        for ks in range(n):
            pre(ks)
            g(f"s_waitcnt vmcnt({2*(min(n, ks+D) - ks - 1)})")
            for rb in range(2):
                for ct in range(2):
                    d = A2 + 16*(2*rb+ct)
                    cc = "0" if ks == 0 else v(d, 16)
                    g(f"v_mfma_f32_32x32x16_bf16 {v(d,16)}, {v(AB+8*(ks%D)+4*rb,4)}, {v(bsrc(ks)+4*ct,4)}, {cc}")
                    if rb == 0 and ct == 0: mid(ks)
            if ks + D < n: aload(ks + D)
        g("s_nop 7\ns_nop 7")

    def swave(self):
        g = self.g; o = self.o
        BR = 128
        WR, WI_ = BR + 80, BR + 112
        UR, UI = 96, 112
        FR = 48
        XA, BA = 2, 6
        LA, LB = 10, 11
        L16, L128, W0, KA, GS = 12, 14, 16, 18, 20
        VCNT, VONE, VZ = 22, 23, 24
        SEGV, NLB = 25, 26
        VXS, VCS = 1, 27
        T = 28
        XS, CG = BR, BR + 2
        OP = BR + 4
        RSV = BR + 16
        VD, TRW, TRR, LB1, LB2, VW, VL16 = 36, 40, 41, 42, 43, 44, 47
        R_W1 = R_OUT
        self.mute = False
        g("L_SWAVE:")
        g.c("---------------- S wave ----------------")
        g(f"""v_lshlrev_b32 {v(T+4)}, 4, v0
              s_lshl_b32 {s(S_T0)}, {s(S_MT)}, 7
              s_lshl_b32 {s(S_T1)}, {s(S_G)}, 3
              s_add_u32 {s(S_T0)}, {s(S_T0)}, {s(S_T1)}
              s_lshl_b32 {s(S_T1)}, {s(S_WI)}, 1
              s_add_u32 {s(S_T0)}, {s(S_T0)}, {s(S_T1)}
              s_lshl_b32 {s(S_U0)}, {s(S_T0)}, 10
              s_lshl_b32 {s(S_T1)}, {s(S_MT)}, 2
              s_add_u32 {s(S_T1)}, {s(S_T1)}, {s(S_WI)}
              s_and_b32 {s(S_U1)}, {s(S_T1)}, 31
              s_lshl_b32 {s(S_U2)}, {s(S_G)}, 5
              s_add_u32 {s(S_U1)}, {s(S_U1)}, {s(S_U2)}
              s_lshl_b32 {s(S_U1)}, {s(S_U1)}, 10
              s_mov_b32 {s(R_X+2)}, {hex(2048*512*2)}
              s_mov_b32 {s(R_X+3)}, 0x20000
              s_mov_b32 {s(R_A+2)}, {hex(512*512*2)}
              s_mov_b32 {s(R_A+3)}, 0x20000
              v_and_b32 {v(T)}, 31, v0
              v_lshlrev_b32 {v(T)}, 1, {v(T)}
              s_lshl_b32 {s(S_U2)}, {s(S_G)}, 6
              v_add_u32 {v(T)}, {s(S_U2)}, {v(T)}
              s_cmp_ge_u32 {s(S_MT)}, 8
              s_waitcnt lgkmcnt(0)
              s_mov_b32 {s(R_X)}, {s(P_X)}
              s_mov_b32 {s(R_X+1)}, {s(P_X+1)}
              s_cselect_b32 {s(R_A)}, {s(P_BIM)}, {s(P_BRE)}
              s_cselect_b32 {s(R_A+1)}, {s(P_BIM+1)}, {s(P_BRE+1)}
              buffer_load_dwordx4 {v(FR,4)}, {v(T+4)}, {s(R_X,4)}, {s(S_U0)} offen
              buffer_load_dwordx4 {v(FR+4,4)}, {v(T+4)}, {s(R_X,4)}, {s(S_U0)} offen offset:1024
              buffer_load_dwordx4 {v(FR+8,4)}, {v(T+4)}, {s(R_A,4)}, {s(S_U1)} offen
              global_load_ushort {v(T+1)}, {v(T)}, {s(P_LRE,2)}
              global_load_ushort {v(T+2)}, {v(T)}, {s(P_LIM,2)}
              global_load_ushort {v(T+3)}, {v(T)}, {s(P_LDT,2)}""")
        self.epoch()
        if o.get("codepf", 1):
            lp = g.lab("NOPF")
            g(f"""s_cmp_lg_u32 {s(S_WI)}, 0
                  s_cbranch_scc1 {lp}
                  s_getpc_b64 {s(R_B,2)}""")
            g("L_PC:")
            g(f"""s_sub_u32 {s(R_B)}, {s(R_B)}, L_PC-{NAME}_kernel
                  s_subb_u32 {s(R_B+1)}, {s(R_B+1)}, 0
                  s_mov_b32 {s(R_B+2)}, L_CODE_END-{NAME}_kernel
                  s_mov_b32 {s(R_B+3)}, 0x20000
                  s_lshr_b32 {s(S_U0)}, s2, 3
                  s_lshl_b32 {s(S_U0)}, {s(S_U0)}, 10
                  buffer_load_dwordx4 {v(FR+12,4)}, {v(T+4)}, {s(R_B,4)}, {s(S_U0)} offen""")
            g(f"{lp}:")
        g(f"""v_mov_b32 {v(VCNT)}, {L_CNT}
              v_mov_b32 {v(VONE)}, 1
              v_mov_b32 {v(VZ)}, 0
              v_lshlrev_b32 {v(T+5)}, 2, v0
              v_add_u32 {v(T+5)}, {L_CNT}, {v(T+5)}
              ds_write_b32 {v(T+5)}, {v(VZ)}
              s_mov_b32 {s(S_ONES)}, 0x3f803f80""")
        srd(g, R_WS, P_WS, WS_BYTES); srd(g, R_W2, P_W2, 1376 * 512 * 2)
        self.frag_pat(BA, T+6, T+7, False)
        g(f"s_lshl_b32 {s(S_T3)}, {s(S_WI)}, 12")
        for k in range(4):
            g(f"v_add_u32 {v(XA+k)}, {s(S_T3)}, {v(BA+k)}\nv_add_u32 {v(BA+k)}, 16384, {v(BA+k)}")
        for r in range(32): g(f"v_mov_b32 {v(UR+r)}, 0")
        for r in (2, 3, 6, 7, 10, 11): g(f"v_mov_b32 {v(OP+r)}, 0")
        self.tau(VXS, T+6)
        A5 = T + 8
        g(f"""s_lshl_b32 {s(S_U0)}, {s(S_MT)}, 10
              s_lshl_b32 {s(S_U1)}, {s(S_WI)}, 8
              s_add_u32 {s(S_U0)}, {s(S_U0)}, {s(S_U1)}
              s_add_u32 {s(S_U0)}, {s(S_U0)}, {hex(WS_XS)}
              v_lshl_add_u32 {v(VXS)}, {v(VXS)}, 3, {s(S_U0)}
              s_lshl_b32 {s(S_T4)}, {s(S_G)}, 9
              s_add_u32 {s(S_T4)}, {s(S_T4)}, {hex(WS_CSG)}
              v_lshl_add_u32 {v(VCS)}, v0, 3, {s(S_T4)}
              v_lshrrev_b32 {v(SEGV)}, 5, v0
              v_lshlrev_b32 {v(T+6)}, 3, {v(SEGV)}
              s_lshl_b32 {s(S_U0)}, {s(S_WI)}, 1
              v_add_u32 {v(SEGV)}, {s(S_U0)}, {v(SEGV)}""")
        for k in range(5): g(f"v_mov_b32 {v(A5+k)}, 0")
        g("s_waitcnt vmcnt(0) lgkmcnt(0)")
        self.epoch_fin()
        for k in range(4):
            g(f"""v_dot2c_f32_bf16 {v(A5)}, {s(S_ONES)}, {v(FR+k)}
                  v_dot2c_f32_bf16 {v(A5+1)}, {s(S_ONES)}, {v(FR+4+k)}
                  v_dot2c_f32_bf16 {v(A5+2)}, {v(FR+k)}, {v(FR+k)}
                  v_dot2c_f32_bf16 {v(A5+3)}, {v(FR+4+k)}, {v(FR+4+k)}
                  v_dot2c_f32_bf16 {v(A5+4)}, {s(S_ONES)}, {v(FR+8+k)}""")
        SX, SQ, CC = A5, A5+2, A5+4
        g(f"""s_nop 2
              v_mov_b32 {v(A5+5)}, {v(CC)}
              v_permlane32_swap_b32 {v(A5)}, {v(A5+1)}
              v_permlane32_swap_b32 {v(A5+2)}, {v(A5+3)}
              v_permlane32_swap_b32 {v(CC)}, {v(A5+5)}
              v_add_f32 {v(SX)}, {v(A5)}, {v(A5+1)}
              v_add_f32 {v(SQ)}, {v(A5+2)}, {v(A5+3)}
              v_add_f32 {v(CC)}, {v(CC)}, {v(A5+5)}
              v_mov_b32 {v(SX+1)}, {v(SX)}
              v_mov_b32 {v(SQ+1)}, {v(SQ)}
              v_mov_b32 {v(CC+1)}, {v(CC)}
              v_permlane16_swap_b32 {v(SX)}, {v(SX+1)}
              s_nop 0
              v_permlane16_swap_b32 {v(SQ)}, {v(SQ+1)}
              v_permlane16_swap_b32 {v(CC)}, {v(CC+1)}
              v_add_f32 {v(SX)}, {v(SX)}, {v(SX+1)}
              v_add_f32 {v(SQ)}, {v(SQ)}, {v(SQ+1)}
              v_add_f32 {v(CC)}, {v(CC)}, {v(CC+1)}""")
        for m in ("quad_perm:[1,0,3,2]", "quad_perm:[2,3,0,1]", "row_half_mirror", "row_mirror"):
            for r in (SX, SQ, CC):
                g(f"v_add_f32_dpp {v(r)}, {v(r)}, {v(r)} {m} row_mask:0xf bank_mask:0xf")
        g(f"""v_mul_f32 {v(SX)}, 0x3b000000, {v(SX)}
              v_mul_f32 {v(SQ)}, 0x3b000000, {v(SQ)}
              v_fma_f32 {v(SQ)}, -{v(SX)}, {v(SX)}, {v(SQ)}
              v_max_f32 {v(SQ)}, 0, {v(SQ)}
              v_cvt_pk_bf16_f32 {v(SQ)}, {v(SQ)}, {v(SQ)}
              v_and_b32 {v(SQ)}, 0xffff0000, {v(SQ)}
              v_add_f32 {v(SQ)}, 0x3727c5ac, {v(SQ)}
              v_cvt_pk_bf16_f32 {v(SQ)}, {v(SQ)}, {v(SQ)}
              v_and_b32 {v(SQ)}, 0xffff0000, {v(SQ)}
              v_sqrt_f32 {v(SQ)}, {v(SQ)}
              v_mov_b32 {v(SX+1)}, {s(S_TAG)}
              v_mov_b32 {v(CC+1)}, {s(S_TAG)}
              v_cvt_pk_bf16_f32 {v(SX)}, {v(SX)}, {v(SQ)}
              s_lshl_b32 {s(S_U0)}, {s(S_T0)}, 3
              s_add_u32 {s(S_U0)}, {s(S_U0)}, {hex(WS_XS)}
              s_lshl_b32 {s(S_U1)}, {s(S_T1)}, 3
              s_add_u32 {s(S_U1)}, {s(S_U1)}, {s(S_T4)}
              s_mov_b32 exec_lo, 1
              s_mov_b32 exec_hi, 1
              buffer_store_dwordx2 {v(SX,2)}, {v(T+6)}, {s(R_WS,4)}, {s(S_U0)} offen sc1
              s_mov_b32 exec_hi, 0
              buffer_store_dwordx2 {v(CC,2)}, {v(VZ)}, {s(R_WS,4)}, {s(S_U1)} offen sc1
              s_mov_b64 exec, -1""")
        srd(g, R_A, P_CRE, 512*512*2); srd(g, R_B, P_CIM, 512*512*2)
        self.stamp(1)

        lr, li, dt = T+1, T+2, T+3
        def consts():
            g(f"""v_lshlrev_b32 {v(lr)}, 16, {v(lr)}
              v_lshlrev_b32 {v(li)}, 16, {v(li)}
              v_lshlrev_b32 {v(dt)}, 16, {v(dt)}
              v_mul_f32 {v(dt)}, 0x3fb8aa3b, {v(dt)}
              v_exp_f32 {v(dt)}, {v(dt)}
              s_nop 0
              v_cvt_pk_bf16_f32 {v(dt)}, {v(dt)}, {v(dt)}
              v_and_b32 {v(dt)}, 0xffff0000, {v(dt)}
              v_mul_f32 {v(T+4)}, {v(dt)}, {v(lr)}
              v_mul_f32 {v(T+5)}, {v(dt)}, {v(li)}
              v_mul_f32 {v(T+4)}, 0x3fb8aa3b, {v(T+4)}
              v_mul_f32 {v(T+5)}, 0.15915494, {v(T+5)}
              v_rndne_f32 {v(T+6)}, {v(T+5)}
              v_sub_f32 {v(T+5)}, {v(T+5)}, {v(T+6)}
              v_exp_f32 {v(T+4)}, {v(T+4)}
              v_cos_f32 {v(T+6)}, {v(T+5)}
              v_sin_f32 {v(T+7)}, {v(T+5)}
              v_mul_f32 {v(T+8)}, {v(lr)}, {v(lr)}
              v_mul_f32 {v(LA)}, {v(T+4)}, {v(T+6)}
              v_mul_f32 {v(LB)}, {v(T+4)}, {v(T+7)}
              v_fmac_f32 {v(T+8)}, {v(li)}, {v(li)}
              v_rcp_f32 {v(T+8)}, {v(T+8)}
              v_add_f32 {v(T+4)}, -1.0, {v(LA)}
              v_mul_f32 {v(KA)}, {v(T+4)}, {v(lr)}
              v_mul_f32 {v(KA+1)}, {v(LB)}, {v(lr)}
              v_fmac_f32 {v(KA)}, {v(LB)}, {v(li)}
              v_fma_f32 {v(KA+1)}, -{v(T+4)}, {v(li)}, {v(KA+1)}
              v_add_f32 {v(T+8)}, {v(T+8)}, {v(T+8)}
              v_mul_f32 {v(KA)}, {v(KA)}, {v(T+8)}
              v_mul_f32 {v(KA+1)}, {v(KA+1)}, {v(T+8)}
              v_sub_f32 {v(NLB)}, 0, {v(LB)}""")
            a, b, c2 = T, T+2, T+4
            sq = lambda d, x: self.cmul(d, d+1, x, x+1, x, x+1)
            sq(a, LA); sq(b, a); sq(a, b); sq(L16, a)
            sq(a, L16); sq(b, a); sq(L128, b)
            g(f"""v_cmp_lt_u32 vcc, 31, v0
              s_nop 1
              v_cndmask_b32 {v(GS)}, 1.0, {v(L16)}, vcc
              v_cndmask_b32 {v(GS+1)}, 0, {v(L16+1)}, vcc
              s_bitcmp1_b32 {s(S_WI)}, 0
              s_cselect_b64 vcc, -1, 0
              v_cndmask_b32 {v(a)}, 1.0, {v(a)}, vcc
              v_cndmask_b32 {v(a+1)}, 0, {v(a+1)}, vcc
              s_bitcmp1_b32 {s(S_WI)}, 1
              s_cselect_b64 vcc, -1, 0
              v_cndmask_b32 {v(b)}, 1.0, {v(b)}, vcc
              v_cndmask_b32 {v(b+1)}, 0, {v(b+1)}, vcc""")
            self.cmul(c2, c2+1, GS, GS+1, a, a+1)
            self.cmul(GS, GS+1, c2, c2+1, b, b+1)
            sq(a, GS); sq(b, a); sq(a, b); sq(W0, a)
        def table():
            pr_, pi_ = KA, KA+1
            for j in range(16):
                g(f"""v_mul_f32 {v(WR+j)}, {v(LA)}, {v(pr_)}
                      v_mul_f32 {v(WI_+j)}, {v(LA)}, {v(pi_)}
                      v_fmac_f32 {v(WR+j)}, {v(NLB)}, {v(pi_)}
                      v_fmac_f32 {v(WI_+j)}, {v(LB)}, {v(pr_)}""")
                pr_, pi_ = WR+j, WI_+j
        def addrs():
            self.w1_setup(VW, T, S_T3, S_T1, S_XO)
            srd(g, R_W1, P_W1, 512 * 1376 * 2)
            self.lane8_pat(T, T+1, T+2)
            g(f"""v_lshl_or_b32 {v(VD)}, {v(T+1)}, 10, {v(T)}
              v_add_u32 {v(VD+1)}, 7168, {v(VD)}
              v_xor_b32 {v(VD+1)}, 64, {v(VD+1)}
              v_add_u32 {v(VD+2)}, {2*7168}, {v(VD)}
              v_add_u32 {v(VD+3)}, {2*7168}, {v(VD+1)}
              s_mul_i32 {s(S_T2)}, {s(S_WI)}, 12288
              s_lshl_b32 {s(S_WO)}, {s(S_NT)}, 16
              s_lshl_b32 {s(S_U1)}, {s(S_WI)}, 8
              s_add_u32 {s(S_WO)}, {s(S_WO)}, {s(S_U1)}
              s_and_b32 {s(S_U1)}, {s(S_WI)}, 1
              s_lshl_b32 {s(S_U1)}, {s(S_U1)}, 15
              s_xor_b32 {s(S_BO)}, {s(S_U1)}, 0x8000
              s_add_u32 {s(S_BO)}, {s(S_BO)}, {s(S_WO)}
              s_add_u32 {s(S_WO)}, {s(S_WO)}, {s(S_U1)}
              v_and_b32 {v(T)}, 31, v0
              v_lshlrev_b32 {v(T+1)}, 1, {v(SEGV)}
              v_sub_u32 {v(T+1)}, {s(S_MT)}, {v(T+1)}
              v_cmp_le_i32 {s(S_EX,2)}, 1, {v(T+1)}
              v_cmp_le_i32 {s(S_MK,2)}, 2, {v(T+1)}
              v_lshlrev_b32 {v(T+1)}, 9, {v(T+1)}
              v_lshl_add_u32 {v(T+1)}, {v(T)}, 4, {v(T+1)}
              v_subrev_u32 {v(LB1)}, 512, {v(T+1)}
              v_subrev_u32 {v(LB2)}, 1024, {v(T+1)}
              v_mov_b32 {v(T+2)}, 0x40000000
              v_cndmask_b32 {v(LB1)}, {v(T+2)}, {v(LB1)}, {s(S_EX,2)}
              v_cndmask_b32 {v(LB2)}, {v(T+2)}, {v(LB2)}, {s(S_MK,2)}
              s_lshl_b32 {s(S_U0)}, {s(S_WI)}, 11
              s_add_u32 {s(S_U0)}, {s(S_U0)}, {L_TR}
              v_lshl_add_u32 {v(TRW)}, {v(T)}, 6, {s(S_U0)}
              v_and_b32 {v(TRR)}, 32, v0
              v_add_u32 {v(TRW)}, {v(TRW)}, {v(TRR)}
              v_lshlrev_b32 {v(TRR)}, 4, {v(TRR)}
              v_bfe_u32 {v(T+3)}, v0, 2, 2
              v_lshl_add_u32 {v(TRR)}, {v(T+3)}, 6, {v(TRR)}
              v_and_b32 {v(T+3)}, 1, v0
              v_lshl_add_u32 {v(TRR)}, {v(T+3)}, 5, {v(TRR)}
              v_and_b32 {v(T+3)}, 16, v0
              v_add_u32 {v(TRR)}, {v(TRR)}, {v(T+3)}
              v_and_b32 {v(T+3)}, 2, v0
              v_lshl_add_u32 {v(TRR)}, {v(T+3)}, 2, {v(TRR)}
              v_add_u32 {v(TRR)}, {s(S_U0)}, {v(TRR)}
              v_lshlrev_b32 {v(VL16)}, 4, v0
              s_lshl_b32 {s(S_U0)}, {s(S_MT)}, 2
              s_add_u32 {s(S_U0)}, {s(S_U0)}, {s(S_WI)}
              s_mul_i32 {s(S_U0)}, {s(S_U0)}, {NKS}
              s_lshl_b32 {s(S_U1)}, {s(S_G)}, 2
              s_add_u32 {s(S_U0)}, {s(S_U0)}, {s(S_U1)}
              s_lshl_b32 {s(S_T0)}, {s(S_U0)}, 10""")
        save = g.L; g.L = []
        consts(); table(); addrs()
        fill = g.L; g.L = save
        def take(n):
            for _ in range(min(n, len(fill))): g.L.append(fill.pop(0))

        NF = o.get("nfill", 7)
        g.c("stage A")
        if o.get("sprio", 1): g("s_setprio 2")
        def rd(k, off):
            f = FR + 12*k
            g(f"""ds_read_b128 {v(f,4)}, {v(XA+k)} offset:{off}
                  ds_read_b128 {v(f+4,4)}, {v(BA+k)} offset:{off}
                  ds_read_b128 {v(f+8,4)}, {v(BA+k)} offset:{off+4096}""")
        def m1(k, im):
            f = FR + 12*k; d = UI if im else UR
            g(f"v_mfma_f32_32x32x16_bf16 {v(d,16)}, {v(f,4)}, {v(f+4+4*im,4)}, {v(d,16)}")
        gl = f"""buffer_load_dwordx2 {v(XS,2)}, {v(VXS)}, {s(R_WS,4)}, 0 offen sc1
                 buffer_load_dwordx2 {v(CG,2)}, {v(VCS)}, {s(R_WS,4)}, 0 offen sc1"""
        for c in range(8):
            off = (c % 3) * SLOT
            if c in (3, 6):
                op = "v_add_u32" if c == 3 else "v_subrev_u32"
                for k in range(8): g(f"{op} {v(XA+k)}, {3*SLOT}, {v(XA+k)}")
            g("s_barrier")
            rd(0, off); rd(1, off)
            if c == o.get("gl_at", 6): g(gl)
            if c:
                g("s_waitcnt lgkmcnt(6)")
                m1(2, 0); take(NF); m1(2, 1); rd(2, off); m1(3, 0); take(NF); m1(3, 1); rd(3, off)
            else:
                rd(2, off); rd(3, off)
            if c < 7:
                g("s_waitcnt lgkmcnt(9)")
                m1(0, 0); take(NF); m1(0, 1); take(NF)
                g("s_waitcnt lgkmcnt(6)")
                m1(1, 0); take(NF); m1(1, 1); take(NF)
        take(1000)
        g("s_waitcnt lgkmcnt(9)")
        m1(0, 0)
        self.recheck(gl, [XS+1, CG+1])
        m1(0, 1)
        g(f"""v_and_b32 {v(T+1)}, 0xffff0000, {v(XS)}
              v_rcp_f32 {v(T+1)}, {v(T+1)}
              v_lshrrev_b32 {v(T+2)}, 1, {v(VXS)}
              v_and_b32 {v(T+2)}, 0x1fc, {v(T+2)}
              v_add_u32 {v(T+2)}, {L_RS}, {v(T+2)}
              s_waitcnt lgkmcnt(6)""")
        m1(1, 0)
        g(f"""ds_write_b32 {v(T+2)}, {v(T+1)}
              v_lshlrev_b32 {v(T+3)}, 6, {v(SEGV)}
              v_add_u32 {v(T+3)}, {L_RS}, {v(T+3)}
              v_lshlrev_b32 {v(T+4)}, 16, {v(XS)}""")
        m1(1, 1)
        for k in range(4): g(f"ds_read_b128 {v(RSV+4*k,4)}, {v(T+3)} offset:{16*k}")
        g(f"""v_cvt_pk_bf16_f32 {v(OP)}, -{v(T+4)}, -{v(T+4)}
              s_waitcnt lgkmcnt(8)""")
        m1(2, 0)
        self.split3(CG, T+6, T+7, T+4, T+5)
        m1(2, 1)
        g(f"""v_cmp_gt_u32 vcc, 32, v0
              v_mov_b32 {v(OP+1)}, {v(OP)}
              v_and_b32 {v(T)}, 31, v0
              v_cndmask_b32 {v(OP+4)}, 0, {v(T+6)}, vcc
              v_cndmask_b32 {v(OP+5)}, 0, {v(T+7)}, vcc
              s_waitcnt lgkmcnt(5)""")
        m1(3, 0)
        g(f"""v_cndmask_b32 {v(OP+8)}, {v(T+6)}, {v(VZ)}, vcc
              v_cndmask_b32 {v(OP+9)}, {v(T+7)}, {v(VZ)}, vcc
              v_lshlrev_b32 {v(T+4)}, 3, {v(T)}
              v_add_u32 {v(T+4)}, {L_SEG}, {v(T+4)}
              v_lshl_add_u32 {v(T+5)}, {v(SEGV)}, 8, {v(T+4)}
              v_mfma_f32_32x32x16_bf16 {v(UR,16)}, {v(OP,4)}, {v(OP+4,4)}, {v(UR,16)}""")
        m1(3, 1)
        g(f"v_mfma_f32_32x32x16_bf16 {v(UI,16)}, {v(OP,4)}, {v(OP+8,4)}, {v(UI,16)}")
        self.stamp(2)
        g(f"""v_lshlrev_b32 {v(T+6)}, 4, {v(T)}
              s_lshl_b32 {s(S_T4)}, {s(S_G)}, 13
              s_add_u32 {s(S_T4)}, {s(S_T4)}, {hex(WS_AGG)}
              s_lshl_b32 {s(S_U0)}, {s(S_MT)}, 9
              s_add_u32 {s(S_U0)}, {s(S_U0)}, {s(S_T4)}
              s_waitcnt lgkmcnt(0)
              s_nop 3""")
        for r in range(16): g(f"v_mul_f32 {v(UR+r)}, {v(UR+r)}, {v(RSV+r)}")
        for r in range(16): g(f"v_mul_f32 {v(UI+r)}, {v(UI+r)}, {v(RSV+r)}")
        for r in range(1, 16):
            g(f"""v_fmac_f32 {v(UR+r)}, {v(LA)}, {v(UR+r-1)}
                  v_fmac_f32 {v(UI+r)}, {v(LA)}, {v(UI+r-1)}
                  v_fmac_f32 {v(UR+r)}, {v(NLB)}, {v(UI+r-1)}
                  v_fmac_f32 {v(UI+r)}, {v(LB)}, {v(UR+r-1)}""")
        g(f"ds_write2_b32 {v(T+5)}, {v(UR+15)}, {v(UI+15)} offset0:0 offset1:1")
        self.signal_cnt(C_S1, VCNT, VONE)
        E = FR
        g(f"""v_sub_f32 {v(T+7)}, 0, {v(L16+1)}
              v_mov_b32 {v(E+16)}, {s(S_TAG)}
              v_mov_b32 {v(E+17)}, {s(S_TAG)}""")
        self.stamp(3)
        rds = "\n".join(f"ds_read_b64 {v(E+2*k,2)}, {v(T+4)} offset:{256*k}" for k in range(8))
        self.spin_cnt(C_S1, VCNT, T+1, rds, tgt=8)
        for k in range(1, 8):
            g(f"""v_fmac_f32 {v(E+2*k)}, {v(L16)}, {v(E+2*k-2)}
                  v_fmac_f32 {v(E+2*k+1)}, {v(L16)}, {v(E+2*k-1)}
                  v_fmac_f32 {v(E+2*k)}, {v(T+7)}, {v(E+2*k-1)}
                  v_fmac_f32 {v(E+2*k+1)}, {v(L16+1)}, {v(E+2*k-2)}""")
        lnp = g.lab("NOPUB")
        g(f"""s_cmp_lg_u32 {s(S_WI)}, 0
              s_cbranch_scc1 {lnp}
              s_mov_b32 exec_hi, 0
              buffer_store_dwordx4 {v(E+14,4)}, {v(T+6)}, {s(R_WS,4)}, {s(S_U0)} offen sc1
              s_mov_b64 exec, -1""")
        g(f"{lnp}:")
        if o.get("sprio", 1): g("s_setprio 0")
        self.stamp(4)
        PC = BA
        for j in (6, 7):
            g(self.w1_pre(j, S_T3, S_T1))
            for e in range(3):
                g(f"buffer_load_dwordx4 {v(VW+e)}, {s(R_W1,4)}, {s(S_U1)} offen offset:{1024*e} lds")
        hps = [(part, kh, ct) for kh in range(2) for part in range(2) for ct in range(2)]
        def c_issue(i):
            part, kh, ct = hps[i]
            g(f"""s_add_u32 m0, {s(S_T2)}, {(i%3)*4096}
                  s_add_u32 {s(S_U1)}, {s(S_BO if ct else S_WO)}, {128*kh}""")
            for e in range(4):
                g(f"buffer_load_dwordx4 {v(VD+e)}, {s(R_B if part else R_A,4)}, {s(S_U1)} offen offset:{1024*e} lds")
        def c_read(i):
            part, kh, ct = hps[i]
            for k in range(4):
                gi = 2*kh + (k >> 1); cb = k & 1
                ks = 4*gi + 2*part + cb
                g(f"ds_read_b128 {v(BR+8*ks+4*ct,4)}, {v(PC+k)} offset:{(i%3)*4096}")
        PP, NG, TT = FR + 32, FR + 34, FR + 36
        def idle_a():
            g(f"""s_sub_u32 {s(S_U0)}, {s(S_T2)}, 16384
                  v_mov_b32 {v(PP)}, 0
                  v_mov_b32 {v(PP+1)}, 0
                  v_sub_f32 {v(NG)}, 0, {v(KA+1)}
                  v_add_u32 {v(T+5)}, {L_LBP - L_SEG}, {v(T+5)}
                  v_add_u32 {v(T+4)}, {L_LBP - L_SEG}, {v(T+4)}""")
            for k in range(4): g(f"v_add_u32 {v(PC+k)}, {s(S_U0)}, {v(PC+k)}")
        def kap(r):
            t = TT + (r & 1)
            if 1 <= r < 8: g(f"v_cmp_eq_u32 vcc, {r}, {v(SEGV)}")
            g(f"""v_mul_f32 {v(t)}, {v(KA+1)}, {v(UR+r)}
                  v_mul_f32 {v(UR+r)}, {v(KA)}, {v(UR+r)}
                  v_fmac_f32 {v(UR+r)}, {v(NG)}, {v(UI+r)}
                  v_fma_f32 {v(UI+r)}, {v(KA)}, {v(UI+r)}, {v(t)}""")
            if 1 <= r < 8:
                g(f"""v_cndmask_b32 {v(PP)}, {v(PP)}, {v(E+2*r-2)}, vcc
                      v_cndmask_b32 {v(PP+1)}, {v(PP+1)}, {v(E+2*r-1)}, vcc""")
        idle_a()
        c_issue(0)
        for r in range(0, 5): kap(r)
        c_issue(1)
        for r in range(5, 10): kap(r)
        c_issue(2)
        g("s_waitcnt vmcnt(12)")
        self.signal_cnt(C_W0 + 12, VCNT, VONE)
        for r in range(10, 16): kap(r)
        LBn = FR + 20
        lbl = f"""buffer_load_dwordx4 {v(LBn,4)}, {v(LB1)}, {s(R_WS,4)}, {s(S_T4)} offen sc1
                  buffer_load_dwordx4 {v(LBn+4,4)}, {v(LB2)}, {s(R_WS,4)}, {s(S_T4)} offen sc1"""
        npre = o.get("c_pre", 1)
        for i in range(5):
            if i == npre:
                self.stamp(5)
                g(lbl)
            g(f"s_waitcnt vmcnt({8 + (2 if npre <= i < npre + 3 else 0)})")
            c_read(i)
            g("s_waitcnt lgkmcnt(0)")
            c_issue(i + 3)
            if i == npre + 2 or i == 4: break
        ndone = i + 1
        if npre > i: g(lbl)
        l = g.lab("LB"); d = g.lab("LBD")
        g(f"""s_mov_b32 {s(S_SPIN)}, 0x40000
              s_waitcnt vmcnt({4*max(0, ndone - npre)})""")
        g(f"{l}:")
        g(f"""v_cmp_ne_u32 vcc, {s(S_TAG)}, {v(LBn+2)}
              v_cmp_ne_u32 s[100:101], {s(S_TAG)}, {v(LBn+6)}
              s_and_b64 vcc, vcc, {s(S_EX,2)}
              s_and_b64 s[100:101], s[100:101], {s(S_MK,2)}
              s_or_b64 vcc, vcc, s[100:101]
              s_cbranch_scc0 {d}
              s_sub_u32 {s(S_SPIN)}, {s(S_SPIN)}, 1
              s_cbranch_scc1 {d}
              s_sleep {o.get('lb_sleep', 2)}""")
        g(lbl)
        g(f"s_waitcnt vmcnt(0)\ns_branch {l}")
        g(f"{d}:")
        if o.get("sprio", 1): g("s_setprio 2")
        self.stamp(6)
        self.cfma(LBn, LBn+1, L128, L128+1, LBn+4, LBn+5, LBn, LBn+1)
        self.cmul(LBn+2, LBn+3, W0, W0+1, LBn, LBn+1)
        g(f"ds_write_b64 {v(T+5)}, {v(LBn+2,2)}")
        self.signal_cnt(C_S2, VCNT, VONE)
        self.spin_cnt(C_S2, VCNT, T+1, rds)
        for w in (4, 2, 1):
            for k in range(w):
                g(f"v_add_f32 {v(E+2*k)}, {v(E+2*k)}, {v(E+2*k+2*w)}\nv_add_f32 {v(E+2*k+1)}, {v(E+2*k+1)}, {v(E+2*k+2*w+1)}")
        self.cfma(PP, PP+1, GS, GS+1, E, E+1, PP, PP+1)
        g(f"v_sub_f32 {v(NG)}, 0, {v(PP+1)}")
        H = FR; O = FR + 16
        for part in range(2):
            U = UI if part else UR
            c1, c2_ = (PP+1, PP) if part else (PP, NG)
            for r in range(16): g(f"v_fmac_f32 {v(U+r)}, {v(WR+r)}, {v(c1)}")
            if part:
                g("s_waitcnt lgkmcnt(0)")
                for cb in range(2):
                    g(f"buffer_store_dwordx4 {v(O+4*cb,4)}, {v(VL16)}, {s(R_WS,4)}, {s(S_T0)} offen offset:{cb*1024} sc1")
            for r in range(16): g(f"v_fmac_f32 {v(U+r)}, {v(WI_+r)}, {v(c2_)}")
            ng = "-" if part else ""
            for i in range(8): g(f"v_cvt_pk_bf16_f32 {v(H+8*part+i)}, {ng}{v(U+2*i)}, {ng}{v(U+2*i+1)}")
            g(f"""ds_write_b128 {v(TRW)}, {v(H+8*part,4)}
                  ds_write_b128 {v(TRW)}, {v(H+8*part+4,4)} offset:16""")
            for cb in range(2):
                for u in range(2):
                    g(f"ds_read_b64_tr_b16 {v(O+8*part+4*cb+2*u,2)}, {v(TRR)} offset:{cb*1024+u*256}")
        VD2 = 2
        self.w2_dma_setup(VD2, T, S_T3, S_T1)
        g("s_waitcnt lgkmcnt(0)")
        for cb in range(2):
            g(f"buffer_store_dwordx4 {v(O+8+4*cb,4)}, {v(VL16)}, {s(R_WS,4)}, {s(S_T0)} offen offset:{(2+cb)*1024} sc1")
        if o.get("sprio", 1): g("s_setprio 0")
        self.stamp(7)
        nl = 0
        if ndone + 3 < 8:
            g("s_waitcnt vmcnt(4)")
            rest = list(range(ndone + 3, 8))
            for i in rest: c_read(i - 3)
            g("s_waitcnt lgkmcnt(0)")
            for i in rest: c_issue(i)
            nl = 4 * len(rest)
        self.spin_cnt(C_W1D, VCNT, T)
        n1 = o.get("s_b1a", 12)
        self.w2_issue(VD2, S_T3, S_T1, 0, n1, 0)
        self.set_flag(WS_FLAGS, VZ, T, nl + 2*n1)
        self.w2_issue(VD2, S_T3, S_T1, n1, 12 - n1, n1)
        g(f"s_waitcnt vmcnt(25)")
        for i in range(5, 8): c_read(i)
        g(f"""s_lshl_b32 {s(S_U0)}, {s(S_WI)}, 2
              v_add_u32 {v(T+1)}, {s(S_U0)}, {v(VCNT)}
              s_waitcnt vmcnt({1 if n1 == 12 else 0})""")
        self.signal_cnt(C_B1, T+1, VONE)
        g.c("---------------- S phase 2 ----------------")
        A2 = 64; AB = 16; VA = 10
        VC2, VO2 = 14, 15
        self.a_setup(VA, 0, 16, 12)
        g(f"""v_mov_b32 {v(VC2)}, {L_CNT}
              v_mov_b32 {v(VO2)}, 1
              s_waitcnt lgkmcnt(0)""")
        self.stamp(8)
        self.poll_flags(WS_FLAGS, 13, 12)
        self.stamp(9)
        self.p2_loop(16, VA, AB, A2, lambda ks: BR + 8*ks, lambda ks: None, lambda ks: None)
        self.stamp(10)
        g.c("S: dump partials, residual, pre-reduce")
        XR = BR; ST = BR + 16; DS = BR + 48; T = 2
        g(f"""s_lshr_b32 {s(S_U0)}, {s(S_WI)}, 1
              s_lshl_b32 {s(S_U1)}, {s(S_RT)}, 1
              s_add_u32 {s(S_U0)}, {s(S_U0)}, {s(S_U1)}
              s_lshl_b32 {s(S_U1)}, {s(S_NT)}, 7
              s_and_b32 {s(S_U2)}, {s(S_WI)}, 1
              s_lshl_b32 {s(S_U2)}, {s(S_U2)}, 6
              s_add_u32 {s(S_U1)}, {s(S_U1)}, {s(S_U2)}
              s_lshl_b32 {s(S_U2)}, {s(S_U0)}, 15
              s_add_u32 {s(S_U2)}, {s(S_U2)}, {s(S_U1)}
              v_and_b32 {v(T)}, 31, v0
              v_lshlrev_b32 {v(T)}, 1, {v(T)}
              v_lshrrev_b32 {v(T+1)}, 5, v0
              v_lshl_add_u32 {v(T+2)}, {v(T+1)}, 14, {v(T)}
              v_add_u32 {v(T)}, {s(S_U1)}, {v(T)}
              v_lshlrev_b32 {v(T+1)}, 7, {v(T+1)}
              global_load_ushort {v(DS)}, {v(T)}, {s(P_DSK,2)}""")
        for r in range(16):
            if r and r % 4 == 0: g(f"s_add_u32 {s(S_U2)}, {s(S_U2)}, 4096")
            g(f"buffer_load_ushort {v(XR+r)}, {v(T+2)}, {s(R_X,4)}, {s(S_U2)} offen offset:{(r%4)*1024}")
        g(f"""s_lshl_b32 {s(S_U0)}, {s(S_U0)}, 8
              s_add_u32 {s(S_U0)}, {s(S_U0)}, {hex(WS_XS)}""")
        for k in range(8):
            g(f"buffer_load_dwordx4 {v(ST+4*k,4)}, {v(T+1)}, {s(R_WS,4)}, {s(S_U0)} offen offset:{16*k} sc1")
        g(f"v_lshl_add_u32 {v(T+3)}, v0, 4, {s(S_T2)}")
        for sl in range(1, 4):
            for q in range(4):
                g(f"ds_write_b128 {v(T+3)}, {v(A2+16*sl+4*q,4)} offset:{(sl-1)*4096+q*1024}")
        self.signal_cnt(C_SD, VC2, VO2)
        g(f"s_waitcnt vmcnt(0)\nv_lshlrev_b32 {v(DS)}, 16, {v(DS)}")
        for r in range(16):
            x, st, t = XR + r, ST + 2*r, T + 4 + (r & 1)
            g(f"""v_lshlrev_b32 {v(x)}, 16, {v(x)}
                  v_lshlrev_b32 {v(t)}, 16, {v(st)}
                  v_and_b32 {v(st)}, 0xffff0000, {v(st)}
                  v_rcp_f32 {v(st)}, {v(st)}
                  v_sub_f32 {v(t)}, {v(x)}, {v(t)}
                  v_cvt_pk_bf16_f32 {v(t)}, {v(t)}, {v(t)}
                  v_and_b32 {v(t)}, 0xffff0000, {v(t)}
                  v_mul_f32 {v(t)}, {v(t)}, {v(st)}
                  v_cvt_pk_bf16_f32 {v(t)}, {v(t)}, {v(t)}
                  v_and_b32 {v(t)}, 0xffff0000, {v(t)}
                  v_mul_f32 {v(t)}, {v(t)}, {v(DS)}
                  v_cvt_pk_bf16_f32 {v(t)}, {v(t)}, {v(t)}
                  v_and_b32 {v(t)}, 0xffff0000, {v(t)}
                  v_add_f32 {v(x)}, {v(x)}, {v(t)}
                  v_add_f32 {v(A2+r)}, {v(A2+r)}, {v(x)}""")
        self.spin_cnt(C_SD, VC2, T)
        self.gather3(0, 12288, AB, T)
        g(f"""s_xor_b32 {s(S_U0)}, {s(S_WI)}, 1
              s_mul_i32 {s(S_U0)}, {s(S_U0)}, 12288
              v_lshl_add_u32 {v(T+3)}, v0, 4, {s(S_U0)}""")
        for dd in range(3):
            g(f"s_waitcnt lgkmcnt({8-4*dd})")
            for r in range(16): g(f"v_add_f32 {v(A2+r)}, {v(A2+r)}, {v(AB+16*dd+r)}")
        for q in range(4):
            g(f"ds_write_b128 {v(T+3)}, {v(A2+4*q,4)} offset:{q*1024}")
        g("s_waitcnt lgkmcnt(0)\ns_barrier")
        self.stamp(11)
        self.stamps_out(T, 'S')
        g("L_END:")
        g("s_endpgm")
        g("L_CODE_END:")

    def build(self):
        hdr = open("cdna_kernels/" + NAME + ".s.ref").read().split("\n")
        head = [l for l in hdr if l.startswith(";") and "@launch" not in l]
        self.prologue(); self.fwave(); self.swave()
        lst = self.o.get("list")
        if lst:
            out = "\n".join(head) + "\n"
            for ch in lst:
                if ch == "m": out += f"; @launch kernel={NAME}_kernel grid=(256,1,1) block=(512,1,1) lds={LDS_BYTES}\n"
                else: out += f"; @launch kernel=null_kernel grid=(1,1,1) block=(64,1,1) lds=0\n"
        else:
            out = "\n".join(head) + f"\n; @launch grid=(256,1,1) block=(512,1,1) lds={LDS_BYTES}\n"
        out += f""".amdgcn_target "amdgcn-amd-amdhsa--gfx950"
.text
.globl {NAME}_kernel
.p2align 8
.type {NAME}_kernel,@function
{NAME}_kernel:
"""
        out += self.g.text()
        if lst:
            out += """.p2align 8
.globl null_kernel
.type null_kernel,@function
null_kernel:
    s_endpgm
.section .rodata,"a"
.p2align 6
.amdhsa_kernel null_kernel
  .amdhsa_next_free_vgpr 8
  .amdhsa_next_free_sgpr 16
  .amdhsa_accum_offset 8
  .amdhsa_group_segment_fixed_size 0
  .amdhsa_kernarg_size 120
  .amdhsa_user_sgpr_count 2
  .amdhsa_user_sgpr_kernarg_segment_ptr 1
  .amdhsa_system_sgpr_workgroup_id_x 1
.end_amdhsa_kernel
"""
        out += f""".section .rodata,"a"
.p2align 6
.amdhsa_kernel {NAME}_kernel
  .amdhsa_next_free_vgpr 256
  .amdhsa_next_free_sgpr 102
  .amdhsa_accum_offset 256
  .amdhsa_group_segment_fixed_size 0
  .amdhsa_kernarg_size 120
  .amdhsa_user_sgpr_count 2
  .amdhsa_user_sgpr_kernarg_segment_ptr 1
  .amdhsa_system_sgpr_workgroup_id_x 1
.end_amdhsa_kernel
"""
        return out

if __name__ == "__main__":
    path = sys.argv[1]
    opt = json.loads(sys.argv[2]) if len(sys.argv) > 2 else {}
    open(path, "w").write(Gen(opt).build())
```

```python
import sys, json

NAME = "parallel_sum__ssm_conv_s5__dense_activation_silu__prompt"

class G:
    def __init__(self):
        self.L = []
        self.nlab = 0
    def __call__(self, s):
        for ln in s.strip("\n").split("\n"):
            ln = ln.strip()
            if ln: self.L.append("    " + ln if not ln.endswith(":") else ln)
    def c(self, s): self.L.append("    ; " + s)
    def lab(self, p="L"):
        self.nlab += 1
        return f"{p}_{self.nlab}"
    def text(self): return "\n".join(self.L) + "\n"

def v(a, n=1): return f"v{a}" if n == 1 else f"v[{a}:{a+n-1}]"
def s(a, n=1): return f"s{a}" if n == 1 else f"s[{a}:{a+n-1}]"

NKS = 152
WS_INTER = 0
WS_AGG   = 0xA00000
WS_FLAGF = 0xA40000
WS_FLAGS = 0xA44000
WS_XS    = 0xA50000
WS_CSG   = 0xA58000
WS_EPOCH = 0xA60000
WS_STAMP = 0xB00000
WS_BYTES = 0xC00000
SLOT = 24576
W1B  = 2 * SLOT
MISC = 6 * SLOT
L_RS, L_NM, L_CSS, L_CNT = MISC, MISC + 512, MISC + 1024, MISC + 1536
L_LBP = MISC + 2048
L_CSF = MISC + 4096
L_TR  = MISC + 8192
L_SEG = L_TR + 3 * 2048
LDS_BYTES = MISC + 16384
C_S1, C_S2, C_W0, C_CSF, C_W1D, C_SD, C_SR, C_FM, C_B1 = 0, 4, 8, 24, 28, 32, 36, 40, 48

S_WAVE, S_WI, S_MT, S_G, S_RT, S_NT, S_C0, S_TAG = 3, 4, 5, 6, 7, 8, 9, 10
S_T0, S_T1, S_T2, S_T3, S_T4 = 11, 12, 13, 14, 15
P_X, P_LRE, P_LIM, P_BRE, P_BIM, P_CRE, P_CIM, P_LDT = 16, 18, 20, 22, 24, 26, 28, 30
P_DSK, P_BX, P_W1, P_W2, P_OUT, P_DBG, P_WS = 32, 34, 36, 38, 40, 42, 44
R_X, R_A, R_B, R_W2, R_WS, R_OUT = 48, 52, 56, 60, 64, 68
S_ONES, S_XO, S_BO, S_WO, S_SPIN = 72, 73, 74, 75, 76
S_U0, S_U1, S_U2, S_U3 = 77, 78, 79, 80
S_V0, S_V1, S_ROT = 46, 47, 81
S_EX = 82
S_MK = 84
S_ST = 86

def srd(g, r, p, nbytes):
    g(f"""s_mov_b32 {s(r)}, {s(p)}
          s_mov_b32 {s(r+1)}, {s(p+1)}
          s_mov_b32 {s(r+2)}, {hex(nbytes)}
          s_mov_b32 {s(r+3)}, 0x20000""")

class Gen:
    def __init__(self, opt):
        self.o = opt
        self.g = G()
        self.nst = 0

    def stamp(self, i, force=False):
        if not self.o.get("stamps"): return
        if getattr(self, "mute", False) and not force: return
        g = self.g
        clk = "s_memrealtime" if self.o.get("rt") else "s_memtime"
        g(f"""{clk} s[100:101]
              s_waitcnt lgkmcnt(0)
              s_mov_b32 {s(S_ST+i)}, s100""")

    def stamps_out(self, vt, role):
        if not self.o.get("stamps"): return
        g = self.g
        pr = self.o.get("probe")
        if pr and pr[0] == role:
            l = g.lab("PRB")
            clk = "s_memrealtime" if self.o.get("rt") else "s_memtime"
            base = S_ST
            if pr[1:] in ("k", "e"):
                g(f"""s_load_dword {s(S_U0)}, {s(P_DBG,2)}, 0 glc
                      s_load_dword {s(S_U1)}, {s(P_DBG,2)}, 128 glc
                      s_waitcnt lgkmcnt(0)
                      s_not_b32 {s(S_U1)}, {s(S_U1)}""")
                src = S_U0 if pr[1:] == "k" else S_ST + 11
                base = S_U1
            elif pr[1:] == "z":
                src = S_ST; base = S_ST + 12
            else:
                src = S_MK if pr[1:] == "p" else S_ST + int(pr[1:])
            g(f"""s_sub_u32 {s(S_T0)}, {s(src)}, {s(base)}
                  s_lshl_b32 {s(S_T0)}, {s(S_T0)}, 4
                  {clk} s[100:101]
                  s_waitcnt lgkmcnt(0)
                  s_mov_b32 {s(S_T1)}, s100""")
            g(f"{l}:")
            g(f"""{clk} s[100:101]
                  s_waitcnt lgkmcnt(0)
                  s_sub_u32 {s(S_T2)}, s100, {s(S_T1)}
                  s_cmp_lt_u32 {s(S_T2)}, {s(S_T0)}
                  s_cbranch_scc1 {l}""")
        g(f"s_waitcnt vmcnt(0)")
        g(f"""s_memrealtime s[100:101]
              s_waitcnt lgkmcnt(0)
              s_mov_b32 {s(S_ST+13)}, s100""")
        g(f"""s_lshl_b32 {s(S_T0)}, s2, 3
              s_add_u32 {s(S_T0)}, {s(S_T0)}, {s(S_WAVE)}
              s_lshl_b32 {s(S_T0)}, {s(S_T0)}, 6
              s_add_u32 {s(S_T0)}, {s(S_T0)}, {hex(WS_STAMP)}
              v_mov_b32 {v(vt)}, 0""")
        for i in range(14):
            g(f"""v_mov_b32 {v(vt+1)}, {s(S_ST+i)}
                  buffer_store_dword {v(vt+1)}, {v(vt)}, {s(R_WS,4)}, {s(S_T0)} offen offset:{4*i}
                  s_nop 1""")

    def spin_cnt(self, cnt, vaddr_cnt, vt, reads="", tgt=4):
        g = self.g
        l = g.lab("SPIN"); d = g.lab("SPD")
        g(f"s_mov_b32 {s(S_SPIN)}, 0x100000")
        g(f"{l}:")
        g(f"ds_read_b32 {v(vt)}, {v(vaddr_cnt)} offset:{cnt}")
        if reads: g(reads)
        g(f"""s_waitcnt lgkmcnt(0)
              v_readfirstlane_b32 {s(S_U3)}, {v(vt)}
              s_sub_u32 {s(S_SPIN)}, {s(S_SPIN)}, 1
              s_cbranch_scc1 {d}
              s_cmp_eq_u32 {s(S_U3)}, {tgt}
              s_cbranch_scc1 {d}
              s_sleep 1
              s_branch {l}""")
        g(f"{d}:")

    def signal_cnt(self, cnt, vaddr_cnt, vone):
        g = self.g
        g(f"""s_mov_b64 exec, 1
              ds_add_u32 {v(vaddr_cnt)}, {v(vone)} offset:{cnt}
              s_mov_b64 exec, -1""")

    def collect(self, fn):
        g = self.g
        save = g.L; g.L = []
        fn()
        out = g.L; g.L = save
        items = []; cur = None
        for ln in out:
            if ln.strip() == "; {": cur = []
            elif ln.strip() == "; }": items.append(cur); cur = None
            elif cur is not None: cur.append(ln)
            else: items.append([ln])
        return items
    def take(self, fill, n):
        while n > 0 and fill:
            it = fill.pop(0); self.g.L += it; n -= len(it)

    def cmul(self, dr, di, ar, ai, br, bi):
        self.g(f"""v_mul_f32 {v(dr)}, {v(ar)}, {v(br)}
                   v_mul_f32 {v(di)}, {v(ar)}, {v(bi)}
                   v_fma_f32 {v(dr)}, -{v(ai)}, {v(bi)}, {v(dr)}
                   v_fmac_f32 {v(di)}, {v(ai)}, {v(br)}""")

    def cfma(self, dr, di, ar, ai, br, bi, cr, ci):
        self.g(f"""v_fma_f32 {v(dr)}, {v(ar)}, {v(br)}, {v(cr)}
                   v_fma_f32 {v(di)}, {v(ar)}, {v(bi)}, {v(ci)}
                   v_fma_f32 {v(dr)}, -{v(ai)}, {v(bi)}, {v(dr)}
                   v_fmac_f32 {v(di)}, {v(ai)}, {v(br)}""")

    def poll_issue(self, base):
        self.g(f"""s_lshl_b32 s26, {s(S_RT)}, 2
              s_add_u32 s26, s26, {s(S_WI)}
              s_lshl_b32 s26, s26, 7
              s_add_u32 s26, s26, {hex(base)}
              s_mov_b32 s24, {s(S_TAG)}
              s_mov_b32 s25, {s(S_TAG)}
              s_load_dwordx8 s[16:23], {s(P_WS,2)}, s26 glc""")

    def poll_finish(self):
        g = self.g
        l = g.lab("POLL"); d = g.lab("PLD")
        g(f"s_mov_b32 {s(S_SPIN)}, 0x40000")
        g(f"{l}:")
        g(f"""s_waitcnt lgkmcnt(0)
              s_xor_b64 s[16:17], s[16:17], s[24:25]
              s_xor_b64 s[18:19], s[18:19], s[24:25]
              s_xor_b64 s[20:21], s[20:21], s[24:25]
              s_xor_b64 s[22:23], s[22:23], s[24:25]
              s_or_b64 s[16:17], s[16:17], s[18:19]
              s_or_b64 s[20:21], s[20:21], s[22:23]
              s_or_b64 s[16:17], s[16:17], s[20:21]
              s_cbranch_scc0 {d}
              s_sub_u32 {s(S_SPIN)}, {s(S_SPIN)}, 1
              s_cbranch_scc1 {d}
              s_load_dwordx8 s[16:23], {s(P_WS,2)}, s26 glc
              s_branch {l}""")
        g(f"{d}:")

    def set_flag(self, base, vz, vt, vm=0):
        g = self.g
        g(f"""s_lshl_b32 {s(S_U0)}, {s(S_MT)}, 1
              s_lshr_b32 {s(S_U1)}, {s(S_WI)}, 1
              s_add_u32 {s(S_U0)}, {s(S_U0)}, {s(S_U1)}
              s_lshl_b32 {s(S_U0)}, {s(S_U0)}, 2
              s_lshr_b32 {s(S_U1)}, {s(S_G)}, 2
              s_add_u32 {s(S_U0)}, {s(S_U0)}, {s(S_U1)}
              s_lshl_b32 {s(S_U0)}, {s(S_U0)}, 7
              s_and_b32 {s(S_U1)}, {s(S_WI)}, 1
              s_lshl_b32 {s(S_U1)}, {s(S_U1)}, 4
              s_add_u32 {s(S_U0)}, {s(S_U0)}, {s(S_U1)}
              s_and_b32 {s(S_U1)}, {s(S_G)}, 3
              s_lshl_b32 {s(S_U1)}, {s(S_U1)}, 2
              s_add_u32 {s(S_U0)}, {s(S_U0)}, {s(S_U1)}
              s_add_u32 {s(S_U0)}, {s(S_U0)}, {hex(base)}
              v_mov_b32 {v(vt)}, {s(S_TAG)}
              s_waitcnt vmcnt({vm})
              s_mov_b64 exec, 1
              buffer_store_dword {v(vt)}, {v(vz)}, {s(R_WS,4)}, {s(S_U0)} offen sc1
              s_mov_b64 exec, -1""")

    def prologue(self):
        g = self.g
        if self.o.get("stamps"): g("s_memrealtime s[98:99]")
        g(f"""s_cmp_ge_u32 s2, 256
              s_cbranch_scc1 L_END
              s_load_dwordx16 s[16:31], s[0:1], 0
              s_load_dwordx8 s[32:39], s[0:1], 64
              s_load_dwordx4 s[40:43], s[0:1], 96
              s_load_dwordx2 s[44:45], s[0:1], 112""")
        if self.o.get("stamps"):
            g(f"""s_waitcnt lgkmcnt(0)""")
            if self.o.get("probe", "")[1:] in ("k", "e"):
                g(f"""v_mov_b32 v2, 0
                      v_mov_b32 v3, s98
                      v_not_b32 v4, v3
                      s_mov_b64 exec, 1
                      global_atomic_umax v2, v3, {s(P_DBG,2)} sc1
                      global_atomic_umax v2, v4, {s(P_DBG,2)} offset:128 sc1
                      s_mov_b64 exec, -1""")
            for i in range(12): g(f"s_mov_b32 {s(S_ST+i)}, 0")
            self.stamp(0)
        g(f"""v_lshrrev_b32 v1, 6, v0
              v_and_b32 v0, 63, v0
              s_and_b32 {s(S_T0)}, s2, 7
              v_readfirstlane_b32 {s(S_WAVE)}, v1
              s_lshr_b32 {s(S_T1)}, s2, 3
              s_and_b32 {s(S_T2)}, {s(S_T1)}, 3
              s_lshr_b32 {s(S_NT)}, {s(S_T1)}, 2
              s_lshr_b32 {s(S_T3)}, {s(S_T0)}, 1
              s_lshl_b32 {s(S_MT)}, {s(S_T3)}, 2
              s_add_u32 {s(S_MT)}, {s(S_MT)}, {s(S_T2)}
              s_and_b32 {s(S_T4)}, {s(S_T0)}, 1
              s_lshl_b32 {s(S_G)}, {s(S_T4)}, 3
              s_add_u32 {s(S_G)}, {s(S_G)}, {s(S_NT)}
              s_lshl_b32 {s(S_RT)}, {s(S_T0)}, 2
              s_add_u32 {s(S_RT)}, {s(S_RT)}, {s(S_T2)}
              s_and_b32 {s(S_WI)}, {s(S_WAVE)}, 3""")
        if self.o.get("rot2", 0):
            g(f"""s_add_u32 {s(S_ROT)}, {s(S_T2)}, {s(S_NT)}
                  s_and_b32 {s(S_ROT)}, {s(S_ROT)}, 3""")
        else: g(f"s_mov_b32 {s(S_ROT)}, 0")
        rot = self.o.get("rot", 2)
        if rot == 0:
            g(f"""s_lshl_b32 {s(S_C0)}, {s(S_T4)}, 1
                  s_add_u32 {s(S_C0)}, {s(S_C0)}, {s(S_T3)}
                  s_lshl_b32 {s(S_C0)}, {s(S_C0)}, 1""")
        elif rot == 8:
            g(f"""s_lshl_b32 {s(S_C0)}, {s(S_MT)}, 1
                  s_add_u32 {s(S_C0)}, {s(S_C0)}, {s(S_G)}""")
        elif rot == 4:
            g(f"""s_add_u32 {s(S_C0)}, {s(S_MT)}, {s(S_G)}
                  s_lshl_b32 {s(S_C0)}, {s(S_C0)}, 1""")
        elif rot == 2:
            g(f"""s_add_u32 {s(S_C0)}, {s(S_MT)}, {s(S_G)}
                  s_lshl_b32 {s(S_C0)}, {s(S_C0)}, 1
                  s_add_u32 {s(S_C0)}, {s(S_C0)}, {s(S_T4)}
                  s_add_u32 {s(S_C0)}, {s(S_C0)}, {s(S_T3)}
                  s_lshl_b32 {s(S_C0)}, {s(S_C0)}, 1""")
        pre = self.o.get("pretest")
        if pre:
            pol = self.o.get("prepol", "")
            g(f"""v_lshlrev_b32 v2, 4, v0
                  s_lshl_b32 {s(S_U0)}, {s(S_WAVE)}, 8
                  s_add_u32 {s(S_U0)}, {s(S_U0)}, s2
                  s_lshl_b32 {s(S_U0)}, {s(S_U0)}, 10""")
            for i, (nm, P, nb, sh) in enumerate([("x", P_X, 2<<20, 0), ("b", P_BRE, 1<<19, 0), ("b", P_BIM, 1<<19, 2), ("1", P_W1, 1376*1024, 2),
                                  ("c", P_CRE, 1<<19, 4), ("c", P_CIM, 1<<19, 6), ("2", P_W2, 1376*1024, 0)]):
                if nm not in pre: continue
                srd(g, R_X, P, nb)
                g(f"""s_sub_u32 {s(S_U1)}, {s(S_U0)}, {sh << 18}
                      s_and_b32 {s(S_U1)}, {s(S_U1)}, {(2<<20)-1}
                      buffer_load_dwordx4 {v(4+4*i,4)}, v2, {s(R_X,4)}, {s(S_U1)} offen{pol}""")
            g("s_waitcnt vmcnt(0)")
            self.stamp(11)
            g(f"s_mov_b32 {s(S_MK)}, {s(S_ST+11)}")
        g(f"""s_cmp_ge_u32 {s(S_WAVE)}, 4
              s_cbranch_scc0 L_SWAVE""")

    def epoch(self):
        self.g(f"""s_mov_b32 {s(S_TAG)}, {hex(WS_EPOCH)}
                   s_load_dword {s(S_TAG)}, {s(P_WS,2)}, {s(S_TAG)}""")
    def epoch_fin(self):
        self.g(f"""s_mul_i32 {s(S_TAG)}, {s(S_TAG)}, 0x9E3779B1
                   s_add_u32 {s(S_TAG)}, {s(S_TAG)}, 0x7F4A7C15""")

    def frag_pat(self, P, t0, t1, xor_wi):
        g = self.g
        g(f"""v_and_b32 {v(t0)}, 31, v0
              v_lshrrev_b32 {v(t1)}, 1, v0
              v_and_b32 {v(t1)}, 7, {v(t1)}
              v_lshrrev_b32 {v(P)}, 5, v0
              v_xor_b32 {v(t1)}, {v(t1)}, {v(P)}
              v_lshlrev_b32 {v(t1)}, 4, {v(t1)}
              v_lshl_or_b32 {v(P)}, {v(t0)}, 7, {v(t1)}""")
        if xor_wi:
            g(f"""s_lshl_b32 {s(S_V0)}, {s(S_WI)}, 5
                  v_xor_b32 {v(P)}, {s(S_V0)}, {v(P)}""")
        for k in (1, 2, 3):
            g(f"v_xor_b32 {v(P+k)}, {32*k}, {v(P)}")

    def lane8_pat(self, d, t0, t1):
        self.g(f"""v_lshrrev_b32 {v(t0)}, 3, v0
                   v_and_b32 {v(d)}, 7, v0
                   v_lshrrev_b32 {v(t1)}, 4, v0
                   v_xor_b32 {v(d)}, {v(d)}, {v(t1)}
                   v_lshlrev_b32 {v(d)}, 4, {v(d)}""")

    def split3(self, src, d0, d1, t0, t1):
        self.g(f"""v_and_b32 {v(t0)}, 0xffff0000, {v(src)}
                  v_sub_f32 {v(t1)}, {v(src)}, {v(t0)}
                  v_and_b32 {v(d0)}, 0xffff0000, {v(t1)}
                  v_sub_f32 {v(t1)}, {v(t1)}, {v(d0)}
                  v_lshrrev_b32 {v(t0)}, 16, {v(t0)}
                  v_or_b32 {v(d0)}, {v(d0)}, {v(t0)}
                  v_lshrrev_b32 {v(d1)}, 16, {v(t1)}""")

    def tau(self, d, t):
        self.g(f"""v_and_b32 {v(d)}, 4, v0
                   v_lshlrev_b32 {v(d)}, 2, {v(d)}
                   v_lshrrev_b32 {v(t)}, 1, v0
                   v_and_b32 {v(t)}, 12, {v(t)}
                   v_or_b32 {v(d)}, {v(d)}, {v(t)}
                   v_and_b32 {v(t)}, 3, v0
                   v_or_b32 {v(d)}, {v(d)}, {v(t)}""")

    def w2_voff(self, VD, T):
        self.g(f"""v_lshrrev_b32 {v(T)}, 3, v0
              v_and_b32 {v(T+1)}, 7, v0
              v_bfe_u32 {v(T+2)}, v0, 4, 1
              v_lshlrev_b32 {v(T+2)}, 2, {v(T+2)}
              v_xor_b32 {v(T+1)}, {v(T+1)}, {v(T+2)}
              v_lshlrev_b32 {v(T+1)}, 4, {v(T+1)}
              v_lshl_or_b32 {v(VD)}, {v(T)}, 10, {v(T+1)}
              v_add_u32 {v(VD+1)}, 7168, {v(VD)}
              v_add_u32 {v(VD+2)}, {2*7168}, {v(VD)}
              v_add_u32 {v(VD+3)}, {3*7168}, {v(VD)}""")

    def w2_coop_setup(self, s_lds, s_glb):
        self.g(f"""s_mul_i32 {s(s_lds)}, {s(S_WI)}, 6144
              s_mul_i32 {s(s_glb)}, {s(S_WI)}, {48*1024}
              s_lshl_b32 {s(S_V0)}, {s(S_NT)}, 7
              s_add_u32 {s(s_glb)}, {s(s_glb)}, {s(S_V0)}""")

    def w2_coop(self, VD, s_lds, s_glb, q):
        out = []
        for e in range(6):
            pre = ""
            if e % 3 == 0:
                pre = f"""s_add_u32 m0, {s(s_lds)}, {W1B + q*SLOT + e*1024}
                          s_add_u32 {s(S_U1)}, {s(s_glb)}, {q*352*1024 + e*8192}
                       """
            out.append(pre + f"buffer_load_dwordx4 {v(VD+e%3)}, {s(R_W2,4)}, {s(S_U1)} offen offset:{1024*(e%3)} lds")
        return out

    def w2_own_setup(self, sreg_lds, sreg_glb):
        self.g(f"""s_mul_i32 {s(sreg_glb)}, {s(S_WI)}, {352*1024}
              s_lshl_b32 {s(S_U0)}, {s(S_NT)}, 7
              s_add_u32 {s(sreg_glb)}, {s(sreg_glb)}, {s(S_U0)}
              s_mul_i32 {s(sreg_lds)}, {s(S_WI)}, {SLOT}
              s_add_u32 {s(sreg_lds)}, {s(sreg_lds)}, {W1B}""")

    def w2_issue(self, VD, sreg_lds, sreg_glb, ks0, n, lslot0):
        g = self.g
        for i in range(0, n, 2):
            g(f"""s_add_u32 m0, {s(sreg_lds)}, {(lslot0 + i)*2048}
                  s_add_u32 {s(S_U1)}, {s(sreg_glb)}, {(ks0+i)*16384}""")
            for e in range(4):
                g(f"buffer_load_dwordx4 {v(VD+e)}, {s(R_W2,4)}, {s(S_U1)} offen offset:{1024*e} lds")

    def recheck(self, loads, tagregs, vm=0):
        g = self.g
        l = g.lab("RC"); d = g.lab("RCD")
        g(f"s_mov_b32 {s(S_SPIN)}, 0x40000\ns_waitcnt vmcnt({vm})")
        g(f"{l}:")
        g(f"v_cmp_ne_u32 vcc, {s(S_TAG)}, {v(tagregs[0])}")
        for r in tagregs[1:]:
            g(f"v_cmp_ne_u32 s[100:101], {s(S_TAG)}, {v(r)}\ns_or_b64 vcc, vcc, s[100:101]")
        g(f"""s_cmp_eq_u64 vcc, 0
              s_cbranch_scc1 {d}
              s_sub_u32 {s(S_SPIN)}, {s(S_SPIN)}, 1
              s_cbranch_scc1 {d}
              s_sleep 2""")
        g(loads)
        g(f"s_waitcnt vmcnt(0)\ns_branch {l}")
        g(f"{d}:")

    def w1_setup(self, VW, T, s_lds, s_glb, s_f0):
        g = self.g
        g(f"s_mov_b32 {s(S_V0)}, 683")
        for e in range(3):
            g(f"""v_add_u32 {v(T)}, {64*e}, v0
                  v_mul_u32_u24 {v(T+1)}, {s(S_V0)}, {v(T)}
                  v_lshrrev_b32 {v(T+1)}, 13, {v(T+1)}
                  v_mul_u32_u24 {v(T+2)}, 12, {v(T+1)}
                  v_sub_u32 {v(T+2)}, {v(T)}, {v(T+2)}
                  v_mul_u32_u24 {v(T+1)}, 2752, {v(T+1)}
                  v_lshl_add_u32 {v(VW+e)}, {v(T+2)}, 4, {v(T+1)}""")
            if e: g(f"v_subrev_u32 {v(VW+e)}, {1024*e}, {v(VW+e)}")
        g(f"""s_lshr_b32 {s(S_V0)}, {s(S_G)}, 2
              s_mul_i32 {s(s_f0)}, {s(S_V0)}, 11
              s_and_b32 {s(S_V0)}, {s(S_G)}, 3
              s_mul_i32 {s(S_V0)}, {s(S_V0)}, 3
              s_add_u32 {s(s_f0)}, {s(s_f0)}, {s(S_V0)}
              s_lshl_b32 {s(s_glb)}, {s(s_f0)}, 6
              s_mul_i32 {s(S_V0)}, {s(S_WI)}, {16*2752}
              s_add_u32 {s(s_glb)}, {s(s_glb)}, {s(S_V0)}
              s_mul_i32 {s(s_lds)}, {s(S_WI)}, 3072""")

    def w1_pre(self, j, s_lds, s_glb):
        return f"""s_add_u32 {s(S_U0)}, {s(S_C0)}, {j}
                  s_and_b32 {s(S_U0)}, {s(S_U0)}, 7
                  s_mul_i32 {s(S_U0)}, {s(S_U0)}, {64*2752}
                  s_add_u32 m0, {s(s_lds)}, {W1B + j*12288}
                  s_add_u32 {s(S_U1)}, {s(S_U0)}, {s(s_glb)}"""

    def fwave(self):
        g = self.g; o = self.o
        X = 128
        ACC = 80
        WF = 44
        VX, VB, VW = 2, 6, 8
        P = 12
        WA = 16
        VCNT, VONE, VZ = 20, 21, 22
        XS = 24
        RS, NRS = 26, 27
        NM = 28
        CS = 32
        T = 2
        TA = 32

        g.c("---------------- F wave: stage A loader ----------------")
        self.lane8_pat(TA, TA+1, TA+2)
        g(f"""v_lshrrev_b32 {v(TA+2)}, 2, {v(TA+1)}
              v_lshlrev_b32 {v(TA+2)}, 4, {v(TA+2)}
              v_and_b32 {v(TA+3)}, 3, {v(TA+1)}
              v_add_u32 {v(TA+2)}, {v(TA+2)}, {v(TA+3)}
              v_lshl_or_b32 {v(VX)}, {v(TA+2)}, 10, {v(TA)}
              v_add_u32 {v(VX+1)}, 3072, {v(VX)}
              v_xor_b32 {v(VX+1)}, 64, {v(VX+1)}
              v_add_u32 {v(VX+2)}, 6144, {v(VX)}
              v_add_u32 {v(VX+3)}, 6144, {v(VX+1)}
              v_lshl_or_b32 {v(VB)}, {v(TA+1)}, 10, {v(TA)}
              v_add_u32 {v(VB+1)}, 7168, {v(VB)}
              v_xor_b32 {v(VB+1)}, 64, {v(VB+1)}
              s_lshl_b32 {s(S_XO)}, {s(S_MT)}, 17
              s_lshl_b32 {s(S_T0)}, {s(S_WI)}, 15
              s_add_u32 {s(S_XO)}, {s(S_XO)}, {s(S_T0)}
              s_lshl_b32 {s(S_BO)}, {s(S_G)}, 15
              s_and_b32 {s(S_T0)}, {s(S_WI)}, 1
              s_lshl_b32 {s(S_T0)}, {s(S_T0)}, 14
              s_add_u32 {s(S_BO)}, {s(S_BO)}, {s(S_T0)}
              s_lshl_b32 {s(S_T3)}, {s(S_WI)}, 12
              s_lshl_b32 {s(S_T4)}, {s(S_WI)}, 11
              s_add_u32 {s(S_T4)}, {s(S_T4)}, 16384
              s_mov_b32 {s(R_X+2)}, {hex(2048*512*2)}
              s_mov_b32 {s(R_X+3)}, 0x20000
              s_mov_b32 {s(R_A+2)}, {hex(512*512*2)}
              s_mov_b32 {s(R_A+3)}, 0x20000
              s_cmp_ge_u32 {s(S_WI)}, 2
              s_waitcnt lgkmcnt(0)
              s_mov_b32 {s(R_X)}, {s(P_X)}
              s_mov_b32 {s(R_X+1)}, {s(P_X+1)}
              s_cselect_b32 {s(R_A)}, {s(P_BIM)}, {s(P_BRE)}
              s_cselect_b32 {s(R_A+1)}, {s(P_BIM+1)}, {s(P_BRE+1)}""")

        def x_pre(c):
            g(f"""s_add_u32 {s(S_U0)}, {s(S_C0)}, {c}
                  s_and_b32 {s(S_U0)}, {s(S_U0)}, 7
                  s_lshl_b32 {s(S_U0)}, {s(S_U0)}, 7
                  s_add_u32 m0, {s(S_T3)}, {(c % 6) * SLOT}
                  s_add_u32 {s(S_U1)}, {s(S_U0)}, {s(S_XO)}""")
        def x_go(c, nf):
            for e in range(4):
                g(f"buffer_load_dwordx4 {v(VX+e)}, {s(R_X,4)}, {s(S_U1)} offen offset:{1024*e} lds")
                self.take(fill, nf)
            g(f"""s_add_u32 m0, {s(S_T4)}, {(c % 6) * SLOT}
                  s_add_u32 {s(S_U1)}, {s(S_U0)}, {s(S_BO)}""")
            for e in range(2):
                g(f"buffer_load_dwordx4 {v(VB+e)}, {s(R_A,4)}, {s(S_U1)} offen offset:{1024*e} lds")
                self.take(fill, nf)
        def w_pre(j): return self.w1_pre(j, S_T2, S_WO)
        def w_one(e):
            return f"buffer_load_dwordx4 {v(VW+e)}, {s(R_B,4)}, {s(S_U1)} offen offset:{1024*e} lds"

        def setup():
            g.c("{"); self.epoch(); g.c("}")
            self.frag_pat(P, TA, TA+1, True)
            for k in range(4): g(f"v_add_u32 {v(P+k)}, {s(S_T3)}, {v(P+k)}")
            srd(g, R_B, P_W1, 512 * 1376 * 2)
            self.w1_setup(VW, TA, S_T2, S_WO, S_T1)
            srd(g, R_W2, P_W2, 1376 * 512 * 2)
            srd(g, R_WS, P_WS, WS_BYTES)
            srd(g, R_OUT, P_OUT, 2048*512*4)
            g(f"""v_lshrrev_b32 {v(TA)}, 5, v0
              v_bfe_u32 {v(TA+1)}, v0, 2, 2
              v_lshl_add_u32 {v(TA)}, {v(TA)}, 3, {v(TA+1)}
              v_mul_u32_u24 {v(TA)}, 192, {v(TA)}
              v_bfe_u32 {v(TA+1)}, v0, 4, 1
              v_lshl_add_u32 {v(TA)}, {v(TA+1)}, 5, {v(TA)}
              v_and_b32 {v(TA+1)}, 3, v0
              v_lshl_add_u32 {v(TA)}, {v(TA+1)}, 3, {v(TA)}
              v_mov_b32 {v(VCNT)}, {L_CNT}
              v_mov_b32 {v(VONE)}, 1
              v_mov_b32 {v(VZ)}, 0
              v_bfe_u32 {v(TA+1)}, v0, 2, 2
              v_lshrrev_b32 {v(TA+2)}, 4, v0
              v_cmp_eq_u32 vcc, {v(TA+1)}, {v(TA+2)}
              v_mov_b32 {v(TA+1)}, 0x3f803f80
              s_nop 0
              v_cndmask_b32 {v(NM)}, 0, {v(TA+1)}, vcc
              v_cndmask_b32 {v(NM+1)}, 0, {v(TA+1)}, vcc
              v_cndmask_b32 {v(NM+2)}, 0, {v(TA+1)}, vcc
              v_cndmask_b32 {v(NM+3)}, 0, {v(TA+1)}, vcc""")
            for k in range(4):
                g(f"""s_xor_b32 {s(S_V0)}, {s(S_WI)}, {k}
                  s_mul_i32 {s(S_V0)}, {s(S_V0)}, 3072
                  s_add_u32 {s(S_V0)}, {s(S_V0)}, {W1B}
                  v_add_u32 {v(WA+k)}, {s(S_V0)}, {v(TA)}""")
            self.tau(RS, TA)
            g(f"""s_lshr_b32 {s(S_V0)}, {s(S_XO)}, 7
              s_add_u32 {s(S_V0)}, {s(S_V0)}, {hex(WS_XS)}
              v_lshl_add_u32 {v(RS)}, {v(RS)}, 3, {s(S_V0)}""")
        fill = self.collect(setup)
        xs_load = f"buffer_load_dwordx2 {v(XS,2)}, {v(RS)}, {s(R_WS,4)}, 0 offen sc1"
        x_pre(0); x_go(0, 0)
        x_pre(1); x_go(1, 5)
        self.stamp(1)
        x_pre(2); x_go(2, 5)
        for c in range(8):
            g.c(f"chunk {c}")
            n = c + 3
            if n < 8: x_pre(n)
            else: g(w_pre(2 * (n - 8)))
            g(f"s_waitcnt vmcnt(12) lgkmcnt({0 if c == 0 else 4})")
            if o.get("adetail") == 1:
                self.mute = True; self.stamp(2 + c, True)
            g("s_barrier")
            if c == 0: self.epoch_fin()
            off = (c % 3) * SLOT
            def xread():
                if c in (3, 6):
                    op = "v_add_u32" if c == 3 else "v_subrev_u32"
                    for k in range(4): g(f"{op} {v(P+k)}, {3*SLOT}, {v(P+k)}")
                for k in range(4):
                    g(f"ds_read_b128 {v(X+16*c+4*k,4)}, {v(P+k)} offset:{off}")
            if n < 8:
                x_go(n, 5)
                if n == 7: self.take(fill, 1000)
                xread()
            else:
                for e in range(3): g(w_one(e))
                if c == 7:
                    xread()
                    self.signal_cnt(C_S1, VCNT, VONE)
                g(w_pre(2 * (n - 8) + 1))
                for e in range(3): g(w_one(e))
                if c < 7: xread()
        self.stamp(2)
        g.c("---------------- F stage: w1 GEMM ----------------")
        g(f"s_setprio {o.get('fprio', 1)}\ns_waitcnt vmcnt(12)")
        self.signal_cnt(C_W0, VCNT, VONE)
        self.spin_cnt(C_W0, VCNT, T)
        self.stamp(3)
        steps = [(j, k) for j in range(8) for k in range(4)]
        def rd(idx, t):
            j, k = steps[idx]
            if idx == 16 and t == 0:
                for kk in range(4): g(f"v_add_u32 {v(WA+kk)}, {4*12288}, {v(WA+kk)}")
            dst = WF + 12 * (idx % 3) + 4 * t
            off = (j % 4) * 12288 + t * 64
            g(f"""ds_read_b64_tr_b16 {v(dst,2)}, {v(WA+k)} offset:{off}
                  ds_read_b64_tr_b16 {v(dst+2,2)}, {v(WA+k)} offset:{off+768}""")
        for i in range(2):
            for t in range(3): rd(i, t)
        dma = {}
        q = []
        for j in range(6, 8):
            q += [w_pre(j) + "\n" + w_one(0), w_one(1), w_one(2)]
        q.append(xs_load)
        VD = 12
        q += self.w2_coop(VD, S_T3, S_T4, 0) + self.w2_coop(VD, S_T3, S_T4, 1)
        r0 = o.get("f_r0", 18)
        slots = [0, 1, 2, 4, 5, 6, 12] + list(range(r0, r0 + 6)) + list(range(max(23, r0 + 6), max(23, r0 + 6) + 6))
        assert slots[-1] < 30
        f3fill = self.collect(lambda: (self.w2_voff(VD, T+2), self.w2_coop_setup(S_T3, S_T4)))
        for sl, ins in zip(slots, q): dma[sl] = ins
        issued = 18
        extra = 0
        for idx, (j, k) in enumerate(steps):
            b = WF + 12 * (idx % 3)
            nxt = 6 if idx + 1 < 32 else 0
            g(f"s_waitcnt lgkmcnt({nxt + extra})")
            extra = 0
            xr = X + 16*j + 4*k
            ph = idx % 8; pr = idx // 8
            for t in range(3):
                cc = "0" if idx == 0 else v(ACC+16*t, 16)
                g(f"v_mfma_f32_32x32x16_bf16 {v(ACC+16*t,16)}, {v(b+4*t,4)}, {v(xr,4)}, {cc}")
                if t == 0 and ph == 6 and pr < 3:
                    lo = g.lab("WOK")
                    g(f"""v_readfirstlane_b32 {s(S_U3)}, {v(T)}
                          s_cmp_eq_u32 {s(S_U3)}, 4
                          s_cbranch_scc1 {lo}""")
                    self.spin_cnt(C_W0 + 4*(pr+1), VCNT, T)
                    g(f"{lo}:")
                if idx + 2 < 32: rd(idx + 2, t)
                if t == 1 and idx in dma:
                    g(dma[idx]); issued += 1
                if 7 <= idx < 14 and t != 1: self.take(f3fill, 2)
            if ph == 3 and pr < 3:
                g(f"s_waitcnt vmcnt({issued - 6*(pr+2)})")
                self.signal_cnt(C_W0 + 4*(pr+1), VCNT, VONE)
                extra = 1
            if ph == 4 and pr < 3:
                g(f"ds_read_b32 {v(T)}, {v(VCNT)} offset:{C_W0 + 4*(pr+1)}")
                extra = 1
            if o.get("fdetail") and idx % 4 == 3:
                self.mute = True
                self.stamp(4 + idx // 4, True)
            if k == 0 and not o.get("x_nocs"):
                for t in range(3):
                    cc = "0" if idx == 0 else v(CS+4*t, 4)
                    g(f"v_mfma_f32_16x16x32_bf16 {v(CS+4*t,4)}, {v(NM,4)}, {v(b+4*t,4)}, {cc}")
            if idx == 29:
                g(f"""s_lshl_b32 {s(S_U0)}, {s(S_WI)}, 2
                      s_add_u32 {s(S_U0)}, {s(S_U0)}, {L_CSF}
                      v_lshl_add_u32 {v(T)}, v0, 4, {s(S_U0)}
                      v_lshlrev_b32 {v(T+1)}, 4, v0
                      v_add_u32 {v(T+1)}, {L_CSF}, {v(T+1)}""")
                for t in range(3): g(f"ds_write_b32 {v(T)}, {v(CS+4*t)} offset:{1024*t}")
                self.signal_cnt(C_CSF, VCNT, VONE)
                self.signal_cnt(C_W1D, VCNT, VONE)
                extra = 5
            if idx == 30:
                extra = 0
                self.recheck(xs_load, [XS+1], 12)
                g(f"""v_lshlrev_b32 {v(T+2)}, 16, {v(XS)}
                      v_and_b32 {v(RS)}, 0xffff0000, {v(XS)}
                      v_rcp_f32 {v(RS)}, {v(RS)}
                      v_cvt_pk_bf16_f32 {v(NM)}, -{v(T+2)}, -{v(T+2)}
                      v_mul_f32 {v(NRS)}, 0xbfb8aa3b, {v(RS)}
                      v_mov_b32 {v(NM+1)}, {v(NM)}
                      v_mov_b32 {v(NM+2)}, 0
                      v_mov_b32 {v(NM+3)}, 0""")
        self.stamp(4)
        CB = WF + 24
        rds = "\n".join(f"ds_read_b128 {v(CB+4*t,4)}, {v(T+1)} offset:{1024*t}" for t in range(3))
        self.spin_cnt(C_CSF, VCNT, T, rds)
        for t in range(3):
            b = CB + 4*t
            g(f"""v_add_f32 {v(b)}, {v(b)}, {v(b+1)}
                  v_add_f32 {v(b+2)}, {v(b+2)}, {v(b+3)}
                  v_add_f32 {v(b+2)}, {v(b)}, {v(b+2)}""")
            self.split3(b+2, b, b+1, T, T+2)
            g(f"""v_mov_b32 {v(b+2)}, 0
                  v_mov_b32 {v(b+3)}, 0
                  s_nop 1
                  v_mfma_f32_32x32x16_bf16 {v(ACC+16*t,16)}, {v(b,4)}, {v(NM,4)}, {v(ACC+16*t,16)}""")
        self.stamp(5)
        g.c("SiLU + store")
        g(f"s_setprio {o.get('fprio_silu', 3)}")
        PB = 11
        g(f"""s_lshl_b32 {s(S_U0)}, {s(S_MT)}, 2
              s_add_u32 {s(S_U0)}, {s(S_U0)}, {s(S_WI)}
              s_mul_i32 {s(S_U0)}, {s(S_U0)}, {NKS}
              s_lshl_b32 {s(S_U1)}, {s(S_T1)}, 1
              s_add_u32 {s(S_U0)}, {s(S_U0)}, {s(S_U1)}
              s_add_u32 {s(S_U0)}, {s(S_U0)}, 64
              s_lshl_b32 {s(S_U2)}, {s(S_U0)}, 10
              v_lshlrev_b32 {v(PB)}, 4, v0""")
        lsk = g.lab("NOT2")
        for t in range(3):
            a = ACC + 16*t
            if t == 2:
                g(f"""s_and_b32 {s(S_U0)}, {s(S_G)}, 3
                      s_cmp_eq_u32 {s(S_U0)}, 3
                      s_cbranch_scc1 {lsk}
                      s_add_u32 {s(S_U2)}, {s(S_U2)}, 4096""")
            for hf in range(2):
                e = WF if hf == 0 else WF + 8
                z = a + 8*hf
                for i in range(0, 8, 2): g(f"v_pk_mul_f32 {v(e+i,2)}, {v(z+i,2)}, {v(RS,2)} op_sel:[0,1] op_sel_hi:[1,1]")
                for i in range(8):
                    g(f"v_exp_f32 {v(e+i)}, {v(e+i)}")
                    if i & 1: g(f"v_pk_mul_f32 {v(z+i-1,2)}, {v(z+i-1,2)}, {v(RS,2)} op_sel_hi:[1,0]")
                for i in range(0, 8, 2): g(f"v_pk_add_f32 {v(e+i,2)}, {v(e+i,2)}, 1.0 op_sel_hi:[1,0]")
                for i in range(8): g(f"v_rcp_f32 {v(e+i)}, {v(e+i)}")
                for i in range(0, 8, 2): g(f"v_pk_mul_f32 {v(z+i,2)}, {v(z+i,2)}, {v(e+i,2)}")
                d = CS + 4*hf
                for i in range(4): g(f"v_cvt_pk_bf16_f32 {v(d+i)}, {v(a+8*hf+2*i)}, {v(a+8*hf+2*i+1)}")
                if 2*t + hf == 2:
                    g("s_waitcnt vmcnt(2)")
                    self.signal_cnt(C_B1, VCNT, VONE)
                g(f"buffer_store_dwordx4 {v(d,4)}, {v(PB)}, {s(R_WS,4)}, {s(S_U2)} offen offset:{((2*t+hf)&3)*1024} sc1")
        g(f"{lsk}:")
        self.stamp(6)

        g.c("---------------- F phase 2 ----------------")
        A2 = 176
        BR = 96
        AB = 48
        BTm = 240
        WB = 6
        VA = 8
        T2 = 40
        T = 44
        NR = 10
        self.w2_own_setup(S_T2, S_WO)
        g(f"""v_lshrrev_b32 {v(T2)}, 5, v0
              v_bfe_u32 {v(T2+1)}, v0, 2, 2
              v_lshl_add_u32 {v(T2)}, {v(T2)}, 2, {v(T2+1)}
              v_lshlrev_b32 {v(T2)}, 7, {v(T2)}
              v_bfe_u32 {v(T2+1)}, v0, 3, 1
              v_lshl_add_u32 {v(T2)}, {v(T2+1)}, 6, {v(T2)}
              v_bfe_u32 {v(T2+1)}, v0, 4, 1
              v_lshl_add_u32 {v(T2)}, {v(T2+1)}, 5, {v(T2)}
              v_and_b32 {v(T2+1)}, 3, v0
              v_lshl_add_u32 {v(T2)}, {v(T2+1)}, 3, {v(T2)}
              v_add_u32 {v(WB)}, {s(S_T2)}, {v(T2)}
              v_xor_b32 {v(WB+1)}, 64, {v(WB)}
              s_and_b32 {s(S_U0)}, {s(S_WI)}, 2
              s_lshl_b32 {s(S_U0)}, {s(S_U0)}, 1
              v_add_u32 {v(T2+2)}, {s(S_U0)}, {v(VCNT)}""")
        def bread(dst, lks):
            for ct in range(2):
                for u in range(2):
                    g(f"ds_read_b64_tr_b16 {v(dst+4*ct+2*u,2)}, {v(WB+ct)} offset:{lks*2048+u*1024}")
        g(f"""s_mul_i32 {s(S_XO)}, {s(S_RT)}, {2*NKS}
              s_mul_i32 {s(S_U0)}, {s(S_WI)}, 22
              s_add_u32 {s(S_XO)}, {s(S_XO)}, {s(S_U0)}
              s_add_u32 {s(S_XO)}, {s(S_XO)}, 64
              s_lshl_b32 {s(S_XO)}, {s(S_XO)}, 10
              s_mul_i32 {s(S_U0)}, {s(S_WI)}, 12288
              v_add_u32 {v(T)}, {s(S_U0)}, {v(PB)}
              v_add_u32 {v(T+1)}, {s(S_T2)}, {v(PB)}""")
        self.out_setup(VA, 2, PB)
        self.set_flag(WS_FLAGF, VZ, T2+3, 0)
        g(f"s_setprio {o.get('fprio2', 0)}")
        self.spin_cnt(C_B1, T2+2, T2)
        self.stamp(7)
        for ks in range(NR):
            bread(BR + 8*ks, ks)
            if ks % 2 == 1: g("s_waitcnt lgkmcnt(4)")
        g("s_waitcnt lgkmcnt(0)")
        fb = o.get("f_b2a", 6)
        self.w2_issue(VD, S_T2, S_WO, 12, fb, 0)
        self.poll_issue(WS_FLAGF)
        self.w2_issue(VD, S_T2, S_WO, 12 + fb, 10 - fb, fb)
        self.stamp(8)
        self.poll_finish()
        self.stamp(9)
        BT = [240, 248, 32]
        N2, D = 44, 12
        def aload(i):
            rb, ks = divmod(i, 22)
            if ks % 4 == 0: g(f"s_add_u32 {s(S_U0)}, {s(S_XO)}, {(rb*NKS + ks)*1024}")
            g(f"buffer_load_dwordx4 {v(AB+4*(i%D),4)}, {v(PB)}, {s(R_WS,4)}, {s(S_U0)} offen offset:{(ks%4)*1024} sc1")
        for i in range(D): aload(i)
        for i in range(N2):
            rb, ks = divmod(i, 22)
            inl = lambda j: j < N2 and j % 22 >= NR
            w = f"s_waitcnt vmcnt({min(N2, i+D) - i - 1})"
            if inl(i): w += f" lgkmcnt({4 if inl(i+1) else 0})"
            g(w)
            bs = BT[i % 3] if inl(i) else BR + 8*ks
            for ct in range(2):
                d = A2 + 16*(2*rb+ct)
                g(f"v_mfma_f32_32x32x16_bf16 {v(d,16)}, {v(AB+4*(i%D),4)}, {v(bs+4*ct,4)}, {'0' if ks == 0 else v(d,16)}")
                if ct == 0 and inl(i+2): bread(BT[(i+2) % 3], ((i+2) % 22) % 12)
                if ct == 0 and 24 <= i < 28:
                    for u in range(2):
                        x = 2*(i-24) + u
                        g(f"ds_write_b128 {v(T)}, {v(A2+4*x,4)} offset:{4096 + x*1024}")
            if i + D < N2: aload(i + D)
            if i == 23: self.spin_cnt(C_SR, VCNT, T+2)
            if i == 27:
                self.signal_cnt(C_FM, VCNT, VONE)
                g(f"ds_read_b128 {v(40,4)}, v4 offset:{2*12288}")
        self.stamp(10)
        g("s_nop 7\ns_nop 3")
        for x in range(8):
            g(f"ds_write_b128 {v(T+1)}, {v(A2+32+4*x,4)} offset:{x*1024}")
        g("s_waitcnt lgkmcnt(0)\ns_barrier")
        self.final_piece(1, 40, BR, VA, 2)
        le = g.lab("NOEP")
        g(f"""s_lshl_b32 {s(S_U0)}, {s(S_RT)}, 5
              s_lshl_b32 {s(S_U1)}, {s(S_NT)}, 2
              s_add_u32 {s(S_U0)}, {s(S_U0)}, {s(S_U1)}
              s_add_u32 {s(S_U0)}, {s(S_U0)}, {s(S_WI)}
              s_cmp_lg_u32 {s(S_U0)}, {31*32}
              s_cbranch_scc1 {le}
              v_mov_b32 {v(T)}, {s(S_TAG)}
              s_mov_b32 {s(S_U0)}, {hex(WS_EPOCH)}
              s_mov_b64 exec, 1
              buffer_store_dword {v(T)}, {v(VZ)}, {s(R_WS,4)}, {s(S_U0)} offen
              s_mov_b64 exec, -1""")
        g(f"{le}:")
        self.stamp(11)
        self.stamps_out(T, 'F')
        g("s_endpgm")

    def out_setup(self, VO, VL, VL16):
        self.g(f"""v_and_b32 {v(VO)}, 31, v0
              v_lshlrev_b32 {v(VO)}, 2, {v(VO)}
              v_and_b32 {v(VL)}, 32, v0
              v_lshl_add_u32 {v(VO)}, {v(VL)}, 10, {v(VO)}
              s_lshl_b32 {s(S_U0)}, {s(S_WI)}, 10
              v_add_u32 {v(VL+2)}, {s(S_U0)}, {v(VL16)}
              v_add_u32 {v(VL)}, {W1B}, {v(VL+2)}
              v_add_u32 {v(VL+1)}, {W1B + 3*SLOT}, {v(VL+2)}
              s_lshl_b32 {s(S_T0)}, {s(S_RT)}, 17
              s_lshl_b32 {s(S_U0)}, {s(S_WI)}, 13
              s_add_u32 {s(S_T0)}, {s(S_T0)}, {s(S_U0)}
              s_lshl_b32 {s(S_U0)}, {s(S_NT)}, 8
              s_add_u32 {s(S_T0)}, {s(S_T0)}, {s(S_U0)}""")

    def sum_store(self, ACC, TMP, VO, rb, ct, first_wait):
        g = self.g
        g(f"""s_add_u32 {s(S_U0)}, {s(S_T0)}, {rb*65536 + ct*128}
              s_add_u32 {s(S_U1)}, {s(S_U0)}, 4096
              s_waitcnt lgkmcnt({first_wait + 2})""")
        for j in range(4): g(f"v_add_f32 {v(ACC+j)}, {v(ACC+j)}, {v(TMP+j)}")
        for j in range(4): g(f"v_add_f32 {v(ACC+j)}, {v(ACC+j)}, {v(TMP+4+j)}")
        g(f"s_waitcnt lgkmcnt({first_wait})")
        for j in range(4): g(f"v_add_f32 {v(TMP+8+j)}, {v(TMP+8+j)}, {v(TMP+12+j)}")
        for j in range(4):
            g(f"""v_add_f32 {v(ACC+j)}, {v(ACC+j)}, {v(TMP+8+j)}
                  buffer_store_dword {v(ACC+j)}, {v(VO)}, {s(R_OUT,4)}, {s(S_U0 if j < 2 else S_U1)} offen offset:{(j&1)*2048}{self.o.get('out_pol','')}""")

    def final_piece(self, ct, ACC, TMP, VO, VL):
        g = self.g
        for q in range(4):
            g(f"ds_read_b128 {v(TMP+4*q,4)}, {v(VL + (q == 3))} offset:{(q % 3)*SLOT + ct*4096}")
        self.sum_store(ACC, TMP, VO, 1, ct, 0)

    def gather3(self, base, stride, dst, T):
        g = self.g
        for d in range(1, 4):
            g(f"""s_xor_b32 {s(S_U0)}, {s(S_WI)}, {d}
                  s_mul_i32 {s(S_U0)}, {s(S_U0)}, {stride}
                  s_add_u32 {s(S_U0)}, {s(S_U0)}, {base + (d-1)*4096}
                  v_lshl_add_u32 {v(T)}, v0, 4, {s(S_U0)}""")
            for q in range(4):
                g(f"ds_read_b128 {v(dst+16*(d-1)+4*q,4)}, {v(T)} offset:{q*1024}")

    def a_setup(self, VA, ks_base, per_wave, T):
        g = self.g
        g(f"""s_lshr_b32 {s(S_U0)}, {s(S_WI)}, 1
              s_mul_i32 {s(S_U1)}, {s(S_U0)}, {NKS*1024}
              s_sub_u32 {s(S_U2)}, {NKS*1024}, {s(S_U1)}
              v_lshl_add_u32 {v(VA)}, v0, 4, {s(S_U1)}
              v_lshl_add_u32 {v(VA+1)}, v0, 4, {s(S_U2)}
              s_mul_i32 {s(S_XO)}, {s(S_RT)}, {2*NKS}
              s_mul_i32 {s(S_U0)}, {s(S_WI)}, {per_wave}
              s_add_u32 {s(S_XO)}, {s(S_XO)}, {s(S_U0)}
              s_add_u32 {s(S_XO)}, {s(S_XO)}, {ks_base}
              s_lshl_b32 {s(S_XO)}, {s(S_XO)}, 10""")

    def p2_loop(self, n, VA, AB, A2, bsrc, pre, mid, soff, init0=False):
        g = self.g
        D = 6
        def aload(ks):
            if ks % 2 == 0: soff(ks)
            for rb in range(2):
                g(f"buffer_load_dwordx4 {v(AB+8*(ks%D)+4*rb,4)}, {v(VA+rb)}, {s(R_WS,4)}, {s(S_U0)} offen offset:{(ks%2)*1024} sc1")
        for ks in range(D): aload(ks)
        for ks in range(n):
            pre(ks)
            g(f"s_waitcnt vmcnt({2*(min(n, ks+D) - ks - 1)})")
            for rb in range(2):
                for ct in range(2):
                    d = A2 + 16*(2*rb+ct)
                    cc = "0" if ks == 0 and not (init0 and rb == 0 and ct == 0) else v(d, 16)
                    g(f"v_mfma_f32_32x32x16_bf16 {v(d,16)}, {v(AB+8*(ks%D)+4*rb,4)}, {v(bsrc(ks)+4*ct,4)}, {cc}")
                    if rb == 0 and ct == 0: mid(ks)
            if ks + D < n: aload(ks + D)
        g("s_nop 7\ns_nop 7")

    def swave(self):
        g = self.g; o = self.o
        BR = 128
        WR, WI_ = BR + 80, BR + 112
        UR, UI = 96, 112
        FR = 48
        XA, BA = 2, 6
        LA, LB = 10, 11
        L16, L128, W0, KA, GS = 12, 14, 16, 18, 20
        VCNT, VONE, VZ = 22, 23, 24
        SEGV, NLB = 25, 26
        VXS, VCS = 1, 27
        T = 28
        XS, CG = BR, BR + 2
        OP = BR + 4
        RSV = BR + 16
        VD, TRW, TRR, LB1, LB2, VW, VL16 = 36, 40, 41, 42, 43, 44, 47
        R_W1 = R_OUT
        self.mute = False
        g("L_SWAVE:")
        g.c("---------------- S wave ----------------")
        g(f"""v_lshlrev_b32 {v(T+4)}, 4, v0
              s_lshl_b32 {s(S_T0)}, {s(S_MT)}, 7
              s_lshl_b32 {s(S_T1)}, {s(S_G)}, 3
              s_add_u32 {s(S_T0)}, {s(S_T0)}, {s(S_T1)}
              s_lshl_b32 {s(S_T1)}, {s(S_WI)}, 1
              s_add_u32 {s(S_T0)}, {s(S_T0)}, {s(S_T1)}
              s_lshl_b32 {s(S_U0)}, {s(S_T0)}, 10
              s_lshl_b32 {s(S_T1)}, {s(S_MT)}, 2
              s_add_u32 {s(S_T1)}, {s(S_T1)}, {s(S_WI)}
              s_and_b32 {s(S_U1)}, {s(S_T1)}, 31
              s_lshl_b32 {s(S_U2)}, {s(S_G)}, 5
              s_add_u32 {s(S_U1)}, {s(S_U1)}, {s(S_U2)}
              s_lshl_b32 {s(S_U1)}, {s(S_U1)}, 10
              s_mov_b32 {s(R_X+2)}, {hex(2048*512*2)}
              s_mov_b32 {s(R_X+3)}, 0x20000
              s_mov_b32 {s(R_A+2)}, {hex(512*512*2)}
              s_mov_b32 {s(R_A+3)}, 0x20000
              v_and_b32 {v(T)}, 31, v0
              v_lshlrev_b32 {v(T)}, 1, {v(T)}
              s_lshl_b32 {s(S_U2)}, {s(S_G)}, 6
              v_add_u32 {v(T)}, {s(S_U2)}, {v(T)}
              s_cmp_ge_u32 {s(S_MT)}, 8
              s_waitcnt lgkmcnt(0)
              s_mov_b32 {s(R_X)}, {s(P_X)}
              s_mov_b32 {s(R_X+1)}, {s(P_X+1)}
              s_cselect_b32 {s(R_A)}, {s(P_BIM)}, {s(P_BRE)}
              s_cselect_b32 {s(R_A+1)}, {s(P_BIM+1)}, {s(P_BRE+1)}
              buffer_load_dwordx4 {v(FR,4)}, {v(T+4)}, {s(R_X,4)}, {s(S_U0)} offen
              buffer_load_dwordx4 {v(FR+4,4)}, {v(T+4)}, {s(R_X,4)}, {s(S_U0)} offen offset:1024
              buffer_load_dwordx4 {v(FR+8,4)}, {v(T+4)}, {s(R_A,4)}, {s(S_U1)} offen
              global_load_ushort {v(T+1)}, {v(T)}, {s(P_LRE,2)}
              global_load_ushort {v(T+2)}, {v(T)}, {s(P_LIM,2)}
              global_load_ushort {v(T+3)}, {v(T)}, {s(P_LDT,2)}""")
        self.epoch()
        if o.get("codepf", 1):
            lp = g.lab("NOPF")
            g(f"""s_cmp_lg_u32 {s(S_WI)}, 0
                  s_cbranch_scc1 {lp}
                  s_getpc_b64 {s(R_B,2)}""")
            g("L_PC:")
            g(f"""s_sub_u32 {s(R_B)}, {s(R_B)}, L_PC-{NAME}_kernel
                  s_subb_u32 {s(R_B+1)}, {s(R_B+1)}, 0
                  s_mov_b32 {s(R_B+2)}, L_CODE_END-{NAME}_kernel
                  s_mov_b32 {s(R_B+3)}, 0x20000
                  s_lshr_b32 {s(S_U0)}, s2, 3
                  s_lshl_b32 {s(S_U0)}, {s(S_U0)}, 10
                  buffer_load_dwordx4 {v(FR+12,4)}, {v(T+4)}, {s(R_B,4)}, {s(S_U0)} offen""")
            g(f"{lp}:")
        g(f"""v_mov_b32 {v(VCNT)}, {L_CNT}
              v_mov_b32 {v(VONE)}, 1
              v_mov_b32 {v(VZ)}, 0
              v_lshlrev_b32 {v(T+5)}, 2, v0
              v_add_u32 {v(T+5)}, {L_CNT}, {v(T+5)}
              ds_write_b32 {v(T+5)}, {v(VZ)}
              s_mov_b32 {s(S_ONES)}, 0x3f803f80""")
        srd(g, R_WS, P_WS, WS_BYTES); srd(g, R_W2, P_W2, 1376 * 512 * 2)
        self.frag_pat(BA, T+6, T+7, False)
        g(f"s_lshl_b32 {s(S_T3)}, {s(S_WI)}, 12")
        for k in range(4):
            g(f"v_add_u32 {v(XA+k)}, {s(S_T3)}, {v(BA+k)}\nv_add_u32 {v(BA+k)}, 16384, {v(BA+k)}")
        for r in (2, 3, 6, 7, 10, 11): g(f"v_mov_b32 {v(OP+r)}, 0")
        self.tau(VXS, T+6)
        A5 = BR + 32
        SO = BR + 38
        g(f"""s_lshl_b32 {s(S_U0)}, {s(S_MT)}, 10
              s_lshl_b32 {s(S_U1)}, {s(S_WI)}, 8
              s_add_u32 {s(S_U0)}, {s(S_U0)}, {s(S_U1)}
              s_add_u32 {s(S_U0)}, {s(S_U0)}, {hex(WS_XS)}
              v_lshl_add_u32 {v(VXS)}, {v(VXS)}, 3, {s(S_U0)}
              s_lshl_b32 {s(S_T4)}, {s(S_G)}, 9
              s_add_u32 {s(S_T4)}, {s(S_T4)}, {hex(WS_CSG)}
              v_lshl_add_u32 {v(VCS)}, v0, 3, {s(S_T4)}
              v_lshrrev_b32 {v(SEGV)}, 5, v0
              v_lshlrev_b32 {v(SO)}, 3, {v(SEGV)}
              s_lshl_b32 {s(S_U0)}, {s(S_WI)}, 1
              v_add_u32 {v(SEGV)}, {s(S_U0)}, {v(SEGV)}""")
        for k in range(5): g(f"v_mov_b32 {v(A5+k)}, 0")
        g(f"""s_lshl_b32 {s(S_V1)}, {s(S_T0)}, 3
              s_add_u32 {s(S_V1)}, {s(S_V1)}, {hex(WS_XS)}
              s_lshl_b32 {s(S_XO)}, {s(S_T1)}, 3
              s_add_u32 {s(S_XO)}, {s(S_XO)}, {s(S_T4)}""")
        TB = BR + 40
        def addrs():
            self.lane8_pat(TB, TB+1, TB+2)
            g(f"""v_lshl_or_b32 {v(VD)}, {v(TB+1)}, 10, {v(TB)}
              v_add_u32 {v(VD+1)}, 7168, {v(VD)}
              v_xor_b32 {v(VD+1)}, 64, {v(VD+1)}
              v_add_u32 {v(VD+2)}, {2*7168}, {v(VD)}
              v_add_u32 {v(VD+3)}, {2*7168}, {v(VD+1)}
              s_mul_i32 {s(S_T2)}, {s(S_WI)}, 12288
              s_lshl_b32 {s(S_WO)}, {s(S_NT)}, 16
              s_lshl_b32 {s(S_U1)}, {s(S_WI)}, 8
              s_add_u32 {s(S_WO)}, {s(S_WO)}, {s(S_U1)}
              s_and_b32 {s(S_U1)}, {s(S_ROT)}, 2
              s_lshl_b32 {s(S_U1)}, {s(S_U1)}, 6
              s_add_u32 {s(S_WO)}, {s(S_WO)}, {s(S_U1)}
              s_and_b32 {s(S_U1)}, {s(S_WI)}, 1
              s_lshl_b32 {s(S_U1)}, {s(S_U1)}, 15
              s_xor_b32 {s(S_BO)}, {s(S_U1)}, 0x8000
              s_add_u32 {s(S_BO)}, {s(S_BO)}, {s(S_WO)}
              s_add_u32 {s(S_WO)}, {s(S_WO)}, {s(S_U1)}
              v_and_b32 {v(TB)}, 31, v0
              v_lshlrev_b32 {v(TB+1)}, 1, {v(SEGV)}
              v_sub_u32 {v(TB+1)}, {s(S_MT)}, {v(TB+1)}
              v_cmp_le_i32 {s(S_EX,2)}, 1, {v(TB+1)}
              v_cmp_le_i32 {s(S_MK,2)}, 2, {v(TB+1)}
              v_lshlrev_b32 {v(TB+1)}, 9, {v(TB+1)}
              v_lshl_add_u32 {v(TB+1)}, {v(TB)}, 4, {v(TB+1)}
              v_subrev_u32 {v(LB1)}, 512, {v(TB+1)}
              v_subrev_u32 {v(LB2)}, 1024, {v(TB+1)}
              v_mov_b32 {v(TB+2)}, 0x40000000
              v_cndmask_b32 {v(LB1)}, {v(TB+2)}, {v(LB1)}, {s(S_EX,2)}
              v_cndmask_b32 {v(LB2)}, {v(TB+2)}, {v(LB2)}, {s(S_MK,2)}
              s_lshl_b32 {s(S_U0)}, {s(S_WI)}, 11
              s_add_u32 {s(S_U0)}, {s(S_U0)}, {L_TR}
              v_lshl_add_u32 {v(TRW)}, {v(TB)}, 6, {s(S_U0)}
              v_and_b32 {v(TRR)}, 32, v0
              v_add_u32 {v(TRW)}, {v(TRW)}, {v(TRR)}
              v_lshlrev_b32 {v(TRR)}, 4, {v(TRR)}
              v_bfe_u32 {v(TB+3)}, v0, 2, 2
              v_lshl_add_u32 {v(TRR)}, {v(TB+3)}, 6, {v(TRR)}
              v_and_b32 {v(TB+3)}, 1, v0
              v_lshl_add_u32 {v(TRR)}, {v(TB+3)}, 5, {v(TRR)}
              v_and_b32 {v(TB+3)}, 16, v0
              v_add_u32 {v(TRR)}, {v(TRR)}, {v(TB+3)}
              v_and_b32 {v(TB+3)}, 2, v0
              v_lshl_add_u32 {v(TRR)}, {v(TB+3)}, 2, {v(TRR)}
              v_add_u32 {v(TRR)}, {s(S_U0)}, {v(TRR)}
              v_lshlrev_b32 {v(VL16)}, 4, v0
              s_lshl_b32 {s(S_U0)}, {s(S_MT)}, 2
              s_add_u32 {s(S_U0)}, {s(S_U0)}, {s(S_WI)}
              s_mul_i32 {s(S_U0)}, {s(S_U0)}, {NKS}
              s_lshl_b32 {s(S_U1)}, {s(S_G)}, 2
              s_add_u32 {s(S_U0)}, {s(S_U0)}, {s(S_U1)}
              s_lshl_b32 {s(S_T0)}, {s(S_U0)}, 10""")
        addrs()
        g("s_waitcnt vmcnt(0) lgkmcnt(0)")
        self.epoch_fin()
        for k in range(4):
            g(f"""v_dot2c_f32_bf16 {v(A5)}, {s(S_ONES)}, {v(FR+k)}
                  v_dot2c_f32_bf16 {v(A5+1)}, {s(S_ONES)}, {v(FR+4+k)}
                  v_dot2c_f32_bf16 {v(A5+2)}, {v(FR+k)}, {v(FR+k)}
                  v_dot2c_f32_bf16 {v(A5+3)}, {v(FR+4+k)}, {v(FR+4+k)}
                  v_dot2c_f32_bf16 {v(A5+4)}, {s(S_ONES)}, {v(FR+8+k)}""")
        SX, SQ, CC = A5, A5+2, A5+4
        def stats():
            g(f"""s_nop 2
              v_mov_b32 {v(A5+5)}, {v(CC)}
              v_permlane32_swap_b32 {v(A5)}, {v(A5+1)}
              v_permlane32_swap_b32 {v(A5+2)}, {v(A5+3)}
              v_permlane32_swap_b32 {v(CC)}, {v(A5+5)}
              v_add_f32 {v(SX)}, {v(A5)}, {v(A5+1)}
              v_add_f32 {v(SQ)}, {v(A5+2)}, {v(A5+3)}
              v_add_f32 {v(CC)}, {v(CC)}, {v(A5+5)}
              v_mov_b32 {v(SX+1)}, {v(SX)}
              v_mov_b32 {v(SQ+1)}, {v(SQ)}
              v_mov_b32 {v(CC+1)}, {v(CC)}
              v_permlane16_swap_b32 {v(SX)}, {v(SX+1)}
              s_nop 0
              v_permlane16_swap_b32 {v(SQ)}, {v(SQ+1)}
              v_permlane16_swap_b32 {v(CC)}, {v(CC+1)}
              v_add_f32 {v(SX)}, {v(SX)}, {v(SX+1)}
              v_add_f32 {v(SQ)}, {v(SQ)}, {v(SQ+1)}
              v_add_f32 {v(CC)}, {v(CC)}, {v(CC+1)}""")
            for m in ("quad_perm:[1,0,3,2]", "quad_perm:[2,3,0,1]", "row_half_mirror", "row_mirror"):
                for r in (SX, SQ, CC):
                    g(f"v_add_f32_dpp {v(r)}, {v(r)}, {v(r)} {m} row_mask:0xf bank_mask:0xf")
            g(f"""v_mul_f32 {v(SX)}, 0x3b000000, {v(SX)}
              v_mul_f32 {v(SQ)}, 0x3b000000, {v(SQ)}
              v_fma_f32 {v(SQ)}, -{v(SX)}, {v(SX)}, {v(SQ)}
              v_max_f32 {v(SQ)}, 0, {v(SQ)}
              v_cvt_pk_bf16_f32 {v(SQ)}, {v(SQ)}, {v(SQ)}
              v_and_b32 {v(SQ)}, 0xffff0000, {v(SQ)}
              v_add_f32 {v(SQ)}, 0x3727c5ac, {v(SQ)}
              v_cvt_pk_bf16_f32 {v(SQ)}, {v(SQ)}, {v(SQ)}
              v_and_b32 {v(SQ)}, 0xffff0000, {v(SQ)}
              v_sqrt_f32 {v(SQ)}, {v(SQ)}
              v_mov_b32 {v(SX+1)}, {s(S_TAG)}
              v_mov_b32 {v(CC+1)}, {s(S_TAG)}
              v_cvt_pk_bf16_f32 {v(SX)}, {v(SX)}, {v(SQ)}
              ; {{
              s_mov_b32 exec_lo, 1
              s_mov_b32 exec_hi, 1
              buffer_store_dwordx2 {v(SX,2)}, {v(SO)}, {s(R_WS,4)}, {s(S_V1)} offen sc1
              s_mov_b32 exec_hi, 0
              buffer_store_dwordx2 {v(CC,2)}, {v(VZ)}, {s(R_WS,4)}, {s(S_XO)} offen sc1
              s_mov_b64 exec, -1
              ; }}""")
            g(f"""; {{
              s_bitcmp1_b32 {s(S_ROT)}, 0
              s_cselect_b32 {s(R_A)}, {s(P_CIM)}, {s(P_CRE)}
              s_cselect_b32 {s(R_A+1)}, {s(P_CIM+1)}, {s(P_CRE+1)}
              s_cselect_b32 {s(R_B)}, {s(P_CRE)}, {s(P_CIM)}
              s_cselect_b32 {s(R_B+1)}, {s(P_CRE+1)}, {s(P_CIM+1)}
              ; }}
              s_mov_b32 {s(R_B+2)}, {hex(512*512*2)}
              s_mov_b32 {s(R_B+3)}, 0x20000""")

        lr, li, dt = T+1, T+2, T+3
        def consts():
            g(f"""v_lshlrev_b32 {v(lr)}, 16, {v(lr)}
              v_lshlrev_b32 {v(li)}, 16, {v(li)}
              v_lshlrev_b32 {v(dt)}, 16, {v(dt)}
              v_mul_f32 {v(dt)}, 0x3fb8aa3b, {v(dt)}
              v_exp_f32 {v(dt)}, {v(dt)}
              s_nop 0
              v_cvt_pk_bf16_f32 {v(dt)}, {v(dt)}, {v(dt)}
              v_and_b32 {v(dt)}, 0xffff0000, {v(dt)}
              v_mul_f32 {v(T+4)}, {v(dt)}, {v(lr)}
              v_mul_f32 {v(T+5)}, {v(dt)}, {v(li)}
              v_mul_f32 {v(T+4)}, 0x3fb8aa3b, {v(T+4)}
              v_mul_f32 {v(T+5)}, 0.15915494, {v(T+5)}
              v_rndne_f32 {v(T+6)}, {v(T+5)}
              v_sub_f32 {v(T+5)}, {v(T+5)}, {v(T+6)}
              v_exp_f32 {v(T+4)}, {v(T+4)}
              v_cos_f32 {v(T+6)}, {v(T+5)}
              v_sin_f32 {v(T+7)}, {v(T+5)}
              v_mul_f32 {v(TB)}, {v(lr)}, {v(lr)}
              v_mul_f32 {v(LA)}, {v(T+4)}, {v(T+6)}
              v_mul_f32 {v(LB)}, {v(T+4)}, {v(T+7)}
              v_fmac_f32 {v(TB)}, {v(li)}, {v(li)}
              v_rcp_f32 {v(TB)}, {v(TB)}
              v_add_f32 {v(T+4)}, -1.0, {v(LA)}
              v_mul_f32 {v(KA)}, {v(T+4)}, {v(lr)}
              v_mul_f32 {v(KA+1)}, {v(LB)}, {v(lr)}
              v_fmac_f32 {v(KA)}, {v(LB)}, {v(li)}
              v_fma_f32 {v(KA+1)}, -{v(T+4)}, {v(li)}, {v(KA+1)}
              v_add_f32 {v(TB)}, {v(TB)}, {v(TB)}
              v_mul_f32 {v(KA)}, {v(KA)}, {v(TB)}
              v_mul_f32 {v(KA+1)}, {v(KA+1)}, {v(TB)}
              v_sub_f32 {v(NLB)}, 0, {v(LB)}""")
            a, b, c2 = T, T+2, T+4
            sq = lambda d, x: self.cmul(d, d+1, x, x+1, x, x+1)
            sq(a, LA); sq(b, a); sq(a, b); sq(L16, a)
            sq(a, L16); sq(b, a); sq(L128, b)
            g(f"""v_cmp_lt_u32 vcc, 31, v0
              s_nop 1
              v_cndmask_b32 {v(GS)}, 1.0, {v(L16)}, vcc
              v_cndmask_b32 {v(GS+1)}, 0, {v(L16+1)}, vcc
              s_bitcmp1_b32 {s(S_WI)}, 0
              s_cselect_b64 vcc, -1, 0
              v_cndmask_b32 {v(a)}, 1.0, {v(a)}, vcc
              v_cndmask_b32 {v(a+1)}, 0, {v(a+1)}, vcc
              s_bitcmp1_b32 {s(S_WI)}, 1
              s_cselect_b64 vcc, -1, 0
              v_cndmask_b32 {v(b)}, 1.0, {v(b)}, vcc
              v_cndmask_b32 {v(b+1)}, 0, {v(b+1)}, vcc""")
            self.cmul(c2, c2+1, GS, GS+1, a, a+1)
            self.cmul(GS, GS+1, c2, c2+1, b, b+1)
            sq(a, GS); sq(b, a); sq(a, b); sq(W0, a)
        def table():
            pr_, pi_ = KA, KA+1
            for j in range(16):
                g(f"""v_mul_f32 {v(WR+j)}, {v(LA)}, {v(pr_)}
                      v_mul_f32 {v(WI_+j)}, {v(LA)}, {v(pi_)}
                      v_fmac_f32 {v(WR+j)}, {v(NLB)}, {v(pi_)}
                      v_fmac_f32 {v(WI_+j)}, {v(LB)}, {v(pr_)}""")
                pr_, pi_ = WR+j, WI_+j
        fill = self.collect(lambda: (stats(), consts(), table()))
        take = lambda n: self.take(fill, n)
        self.stamp(1)

        NF = o.get("nfill", 7)
        g.c("stage A")
        if o.get("sprio", 1): g("s_setprio 2")
        def rd(k, off):
            f = FR + 12*k
            if o.get("x_nord"): return
            g(f"""ds_read_b128 {v(f,4)}, {v(XA+k)} offset:{off}
                  ds_read_b128 {v(f+4,4)}, {v(BA+k)} offset:{off}
                  ds_read_b128 {v(f+8,4)}, {v(BA+k)} offset:{off+4096}""")
        def m1(k, im):
            f = FR + 12*k; d = UI if im else UR
            if o.get("x_nomfma"): return
            cc = v(d,16) if started[im] else "0"
            started[im] = True
            g(f"v_mfma_f32_32x32x16_bf16 {v(d,16)}, {v(f,4)}, {v(f+4+4*im,4)}, {cc}")
        started = [False, False]
        gl = f"""buffer_load_dwordx2 {v(XS,2)}, {v(VXS)}, {s(R_WS,4)}, 0 offen sc1
                 buffer_load_dwordx2 {v(CG,2)}, {v(VCS)}, {s(R_WS,4)}, 0 offen sc1"""
        for c in range(8):
            off = (c % 3) * SLOT
            if c in (3, 6):
                op = "v_add_u32" if c == 3 else "v_subrev_u32"
                for k in range(8): g(f"{op} {v(XA+k)}, {3*SLOT}, {v(XA+k)}")
            g("s_barrier")
            rd(0, off); rd(1, off)
            if c == o.get("gl_at", 6): g(gl)
            if c:
                g("s_waitcnt lgkmcnt(6)")
                m1(2, 0); take(NF); m1(2, 1); rd(2, off); m1(3, 0); take(NF); m1(3, 1); rd(3, off)
            else:
                rd(2, off); rd(3, off)
            if c < 7:
                g("s_waitcnt lgkmcnt(9)")
                m1(0, 0); take(NF); m1(0, 1); take(NF)
                g("s_waitcnt lgkmcnt(6)")
                m1(1, 0); take(NF); m1(1, 1); take(NF)
        take(1000)
        g("s_waitcnt lgkmcnt(9)")
        m1(0, 0)
        self.recheck(gl, [XS+1, CG+1])
        m1(0, 1)
        g(f"""v_and_b32 {v(T+1)}, 0xffff0000, {v(XS)}
              v_rcp_f32 {v(T+1)}, {v(T+1)}
              v_lshrrev_b32 {v(T+2)}, 1, {v(VXS)}
              v_and_b32 {v(T+2)}, 0x1fc, {v(T+2)}
              v_add_u32 {v(T+2)}, {L_RS}, {v(T+2)}
              s_waitcnt lgkmcnt(6)""")
        m1(1, 0)
        g(f"""ds_write_b32 {v(T+2)}, {v(T+1)}
              v_lshlrev_b32 {v(T+3)}, 6, {v(SEGV)}
              v_add_u32 {v(T+3)}, {L_RS}, {v(T+3)}
              v_lshlrev_b32 {v(T+4)}, 16, {v(XS)}""")
        m1(1, 1)
        for k in range(4): g(f"ds_read_b128 {v(RSV+4*k,4)}, {v(T+3)} offset:{16*k}")
        g(f"""v_cvt_pk_bf16_f32 {v(OP)}, -{v(T+4)}, -{v(T+4)}
              s_waitcnt lgkmcnt(8)""")
        m1(2, 0)
        self.split3(CG, T+6, T+7, T+4, T+5)
        m1(2, 1)
        g(f"""v_cmp_gt_u32 vcc, 32, v0
              v_mov_b32 {v(OP+1)}, {v(OP)}
              v_and_b32 {v(T)}, 31, v0
              v_cndmask_b32 {v(OP+4)}, 0, {v(T+6)}, vcc
              v_cndmask_b32 {v(OP+5)}, 0, {v(T+7)}, vcc
              s_waitcnt lgkmcnt(5)""")
        m1(3, 0)
        g(f"""v_cndmask_b32 {v(OP+8)}, {v(T+6)}, {v(VZ)}, vcc
              v_cndmask_b32 {v(OP+9)}, {v(T+7)}, {v(VZ)}, vcc
              v_lshlrev_b32 {v(T+4)}, 3, {v(T)}
              v_add_u32 {v(T+4)}, {L_SEG}, {v(T+4)}
              v_lshl_add_u32 {v(T+5)}, {v(SEGV)}, 8, {v(T+4)}
              v_mfma_f32_32x32x16_bf16 {v(UR,16)}, {v(OP,4)}, {v(OP+4,4)}, {v(UR,16)}""")
        m1(3, 1)
        g(f"v_mfma_f32_32x32x16_bf16 {v(UI,16)}, {v(OP,4)}, {v(OP+8,4)}, {v(UI,16)}")
        self.stamp(2)
        if o.get("x_park"):
            g("s_sleep 100")
        g(f"""v_lshlrev_b32 {v(T+6)}, 4, {v(T)}
              s_lshl_b32 {s(S_T4)}, {s(S_G)}, 13
              s_add_u32 {s(S_T4)}, {s(S_T4)}, {hex(WS_AGG)}
              s_lshl_b32 {s(S_U0)}, {s(S_MT)}, 9
              s_add_u32 {s(S_U0)}, {s(S_U0)}, {s(S_T4)}
              s_waitcnt lgkmcnt(0)
              s_nop 3""")
        for r in range(16): g(f"v_mul_f32 {v(UR+r)}, {v(UR+r)}, {v(RSV+r)}")
        for r in range(16): g(f"v_mul_f32 {v(UI+r)}, {v(UI+r)}, {v(RSV+r)}")
        for r in range(1, 16):
            g(f"""v_fmac_f32 {v(UR+r)}, {v(LA)}, {v(UR+r-1)}
                  v_fmac_f32 {v(UI+r)}, {v(LA)}, {v(UI+r-1)}
                  v_fmac_f32 {v(UR+r)}, {v(NLB)}, {v(UI+r-1)}
                  v_fmac_f32 {v(UI+r)}, {v(LB)}, {v(UR+r-1)}""")
        g(f"ds_write2_b32 {v(T+5)}, {v(UR+15)}, {v(UI+15)} offset0:0 offset1:1")
        self.signal_cnt(C_S1, VCNT, VONE)
        E = FR
        g(f"""v_sub_f32 {v(T+7)}, 0, {v(L16+1)}
              v_mov_b32 {v(E+16)}, {s(S_TAG)}
              v_mov_b32 {v(E+17)}, {s(S_TAG)}""")
        self.stamp(3)
        rds = "\n".join(f"ds_read_b64 {v(E+2*k,2)}, {v(T+4)} offset:{256*k}" for k in range(8))
        self.spin_cnt(C_S1, VCNT, T+1, rds, tgt=8)
        for k in range(1, 8):
            g(f"""v_fmac_f32 {v(E+2*k)}, {v(L16)}, {v(E+2*k-2)}
                  v_fmac_f32 {v(E+2*k+1)}, {v(L16)}, {v(E+2*k-1)}
                  v_fmac_f32 {v(E+2*k)}, {v(T+7)}, {v(E+2*k-1)}
                  v_fmac_f32 {v(E+2*k+1)}, {v(L16+1)}, {v(E+2*k-2)}""")
        lnp = g.lab("NOPUB")
        g(f"""s_cmp_lg_u32 {s(S_WI)}, 0
              s_cbranch_scc1 {lnp}
              s_mov_b32 exec_hi, 0
              buffer_store_dwordx4 {v(E+14,4)}, {v(T+6)}, {s(R_WS,4)}, {s(S_U0)} offen sc1
              s_mov_b64 exec, -1""")
        g(f"{lnp}:")
        if o.get("sprio", 1): g("s_setprio 0")
        self.stamp(4)
        PC = BA
        hps = [(part, kh, ct) for kh in range(2) for part in range(2) for ct in range(2)]
        def c_issue(i):
            part, kh, ct = hps[i]
            g(f"""s_add_u32 m0, {s(S_T2)}, {(i%3)*4096}
                  s_xor_b32 {s(S_U1)}, {s(S_BO if ct else S_WO)}, {128*kh}""")
            for e in range(4):
                g(f"buffer_load_dwordx4 {v(VD+e)}, {s(R_B if part else R_A,4)}, {s(S_U1)} offen offset:{1024*e} lds")
        def c_read(i):
            part, kh, ct = hps[i]
            for k in range(4):
                gi = 2*kh + (k >> 1); cb = k & 1
                ks = 4*gi + 2*part + cb
                g(f"ds_read_b128 {v(BR+8*ks+4*ct,4)}, {v(PC+k)} offset:{(i%3)*4096}")
        PP, NG, TT = FR + 32, FR + 34, FR + 36
        def idle_a():
            g(f"""s_sub_u32 {s(S_U0)}, {s(S_T2)}, 16384
                  v_mov_b32 {v(PP)}, 0
                  v_mov_b32 {v(PP+1)}, 0
                  v_sub_f32 {v(NG)}, 0, {v(KA+1)}
                  v_add_u32 {v(T+5)}, {L_LBP - L_SEG}, {v(T+5)}
                  v_add_u32 {v(T+4)}, {L_LBP - L_SEG}, {v(T+4)}""")
            for k in range(4): g(f"v_add_u32 {v(PC+k)}, {s(S_U0)}, {v(PC+k)}")
        def kap(r):
            t = TT + (r & 1)
            if 1 <= r < 8: g(f"v_cmp_eq_u32 vcc, {r}, {v(SEGV)}")
            g(f"""v_mul_f32 {v(t)}, {v(KA+1)}, {v(UR+r)}
                  v_mul_f32 {v(UR+r)}, {v(KA)}, {v(UR+r)}
                  v_fmac_f32 {v(UR+r)}, {v(NG)}, {v(UI+r)}
                  v_fma_f32 {v(UI+r)}, {v(KA)}, {v(UI+r)}, {v(t)}""")
            if 1 <= r < 8:
                g(f"""v_cndmask_b32 {v(PP)}, {v(PP)}, {v(E+2*r-2)}, vcc
                      v_cndmask_b32 {v(PP+1)}, {v(PP+1)}, {v(E+2*r-1)}, vcc""")
        idle_a()
        c_issue(0)
        for r in range(0, 5): kap(r)
        c_issue(1)
        for r in range(5, 10): kap(r)
        c_issue(2)
        for r in range(10, 16): kap(r)
        LBn = FR + 20
        lbl = f"""buffer_load_dwordx4 {v(LBn,4)}, {v(LB1)}, {s(R_WS,4)}, {s(S_T4)} offen sc1
                  buffer_load_dwordx4 {v(LBn+4,4)}, {v(LB2)}, {s(R_WS,4)}, {s(S_T4)} offen sc1"""
        nrec = o.get("c_rec", 2)
        self.stamp(5)
        g(lbl)
        for i in range(nrec):
            g(f"s_waitcnt vmcnt(10)")
            c_read(i)
            g("s_waitcnt lgkmcnt(0)")
            c_issue(i + 3)
        l = g.lab("LB"); d = g.lab("LBD")
        g(f"""s_mov_b32 {s(S_SPIN)}, 0x40000
              s_waitcnt vmcnt({4*nrec})""")
        g(f"{l}:")
        g(f"""v_cmp_ne_u32 vcc, {s(S_TAG)}, {v(LBn+2)}
              v_cmp_ne_u32 s[100:101], {s(S_TAG)}, {v(LBn+6)}
              s_and_b64 vcc, vcc, {s(S_EX,2)}
              s_and_b64 s[100:101], s[100:101], {s(S_MK,2)}
              s_or_b64 vcc, vcc, s[100:101]
              s_cbranch_scc0 {d}
              s_sub_u32 {s(S_SPIN)}, {s(S_SPIN)}, 1
              s_cbranch_scc1 {d}
              s_sleep {o.get('lb_sleep', 2)}""")
        g(lbl)
        g(f"s_waitcnt vmcnt(0)\ns_branch {l}")
        g(f"{d}:")
        if o.get("sprio", 1): g("s_setprio 2")
        self.stamp(6)
        self.cfma(LBn, LBn+1, L128, L128+1, LBn+4, LBn+5, LBn, LBn+1)
        self.cmul(LBn+2, LBn+3, W0, W0+1, LBn, LBn+1)
        g(f"ds_write_b64 {v(T+5)}, {v(LBn+2,2)}")
        self.signal_cnt(C_S2, VCNT, VONE)
        self.spin_cnt(C_S2, VCNT, T+1, rds)
        if o.get("pdetail"): self.mute = True; self.stamp(7, True)
        for w in (4, 2, 1):
            for k in range(w):
                g(f"v_add_f32 {v(E+2*k)}, {v(E+2*k)}, {v(E+2*k+2*w)}\nv_add_f32 {v(E+2*k+1)}, {v(E+2*k+1)}, {v(E+2*k+2*w+1)}")
        self.cfma(PP, PP+1, GS, GS+1, E, E+1, PP, PP+1)
        g(f"v_sub_f32 {v(NG)}, 0, {v(PP+1)}")
        H = FR; O = FR + 16
        for part in range(2):
            U = UI if part else UR
            c1, c2_ = (PP+1, PP) if part else (PP, NG)
            for r in range(16): g(f"v_fmac_f32 {v(U+r)}, {v(WR+r)}, {v(c1)}")
            if part:
                g("s_waitcnt lgkmcnt(0)")
                if o.get("pdetail"): self.stamp(8, True)
                for cb in range(2):
                    g(f"buffer_store_dwordx4 {v(O+4*cb,4)}, {v(VL16)}, {s(R_WS,4)}, {s(S_T0)} offen offset:{cb*1024} sc1")
                if o.get("pdetail"): self.stamp(9, True)
            for r in range(16): g(f"v_fmac_f32 {v(U+r)}, {v(WI_+r)}, {v(c2_)}")
            ng = "-" if part else ""
            for i in range(8): g(f"v_cvt_pk_bf16_f32 {v(H+8*part+i)}, {ng}{v(U+2*i)}, {ng}{v(U+2*i+1)}")
            g(f"""ds_write_b128 {v(TRW)}, {v(H+8*part,4)}
                  ds_write_b128 {v(TRW)}, {v(H+8*part+4,4)} offset:16""")
            for cb in range(2):
                for u in range(2):
                    g(f"ds_read_b64_tr_b16 {v(O+8*part+4*cb+2*u,2)}, {v(TRR)} offset:{cb*1024+u*256}")
        VD2 = 2
        self.w2_voff(VD2, T); self.w2_coop_setup(S_T3, S_T1)
        g("s_waitcnt lgkmcnt(0)")
        if o.get("pdetail"): self.stamp(10, True)
        for cb in range(2):
            g(f"buffer_store_dwordx4 {v(O+8+4*cb,4)}, {v(VL16)}, {s(R_WS,4)}, {s(S_T0)} offen offset:{(2+cb)*1024} sc1")
        if o.get("sprio", 1): g("s_setprio 0")
        self.stamp(7)
        nl = 0
        G2, DS = 12, 17
        g(f"""s_lshr_b32 {s(S_U0)}, {s(S_WI)}, 1
              s_lshl_b32 {s(S_U1)}, {s(S_RT)}, 1
              s_add_u32 {s(S_U0)}, {s(S_U0)}, {s(S_U1)}
              s_lshl_b32 {s(S_U1)}, {s(S_NT)}, 7
              s_and_b32 {s(S_U2)}, {s(S_WI)}, 1
              s_lshl_b32 {s(S_U2)}, {s(S_U2)}, 6
              s_add_u32 {s(S_U1)}, {s(S_U1)}, {s(S_U2)}
              s_lshl_b32 {s(S_U2)}, {s(S_U0)}, 15
              s_add_u32 {s(S_U2)}, {s(S_U2)}, {s(S_U1)}
              s_lshl_b32 {s(S_U0)}, {s(S_U0)}, 8
              s_add_u32 {s(S_U0)}, {s(S_U0)}, {hex(WS_XS)}
              v_and_b32 {v(T)}, 31, v0
              v_lshl_add_u32 v16, {v(T)}, 3, {s(S_U0)}
              v_lshl_add_u32 {v(T)}, {v(T)}, 1, {s(S_U1)}
              v_lshrrev_b32 {v(T+1)}, 2, v0
              v_and_b32 {v(T+2)}, 3, v0
              v_lshlrev_b32 {v(T+2)}, 4, {v(T+2)}
              v_lshl_or_b32 {v(T+1)}, {v(T+1)}, 10, {v(T+2)}
              v_add_u32 {v(T+2)}, {15*1024}, {v(T+1)}
              s_lshl_b32 {s(S_V1)}, {s(S_WI)}, 11
              s_add_u32 {s(S_V1)}, {s(S_V1)}, {L_TR}
              s_mov_b32 m0, {s(S_V1)}
              global_load_ushort {v(DS)}, {v(T)}, {s(P_DSK,2)}
              buffer_load_dwordx4 {v(T+1)}, {s(R_X,4)}, {s(S_U2)} offen lds
              buffer_load_dwordx4 {v(T+2)}, {s(R_X,4)}, {s(S_U2)} offen offset:1024 lds""")
        xs2 = f"buffer_load_dwordx2 {v(G2,2)}, v16, {s(R_WS,4)}, 0 offen sc1"
        g(xs2)
        nl = 4
        g("s_waitcnt vmcnt(8)")
        nxt = list(range(nrec + 3, min(8, nrec + 6)))
        for i in range(nrec, nrec + 3): c_read(i)
        g("s_waitcnt lgkmcnt(0)")
        npf = o.get("s_pre_flag", 1)
        for i in nxt[:npf]: c_issue(i)
        if o.get("qdetail"): self.mute = True; self.stamp(8, True)
        self.set_flag(WS_FLAGS, VZ, T, nl + 4*len(nxt[:npf]))
        if o.get("pdetail"): self.stamp(11, True)
        if o.get("qdetail"): self.stamp(9, True)
        for i in nxt[npf:]: c_issue(i)
        assert nrec + 6 >= 8
        self.spin_cnt(C_W1D, VCNT, T)
        for ins in self.w2_coop(VD2, S_T3, S_T1, 2) + self.w2_coop(VD2, S_T3, S_T1, 3): g(ins)
        g(f"s_waitcnt vmcnt(12)")
        for i in nxt: c_read(i)
        g.c("---------------- S phase 2 ----------------")
        A2 = 64; AB = 16; VA = 10
        VC2, VO2 = 14, 15
        g.c("residual x + bf16(xn * D) of the own tile")
        self.recheck(xs2, [G2+1], 12)
        XP, MM, RR = A2 + 16, A2 + 32, A2 + 48
        g(f"""v_lshlrev_b32 {v(T+4)}, 16, {v(G2)}
              v_and_b32 {v(T+5)}, 0xffff0000, {v(G2)}
              v_rcp_f32 {v(T+5)}, {v(T+5)}
              v_and_b32 {v(T+2)}, 31, v0
              s_lshl_b32 {s(S_U0)}, {s(S_WI)}, 7
              s_add_u32 {s(S_U0)}, {s(S_U0)}, {L_RS}
              v_lshl_add_u32 {v(T+2)}, {v(T+2)}, 2, {s(S_U0)}
              ds_write2st64_b32 {v(T+2)}, {v(T+4)}, {v(T+5)} offset0:0 offset1:2
              v_lshlrev_b32 {v(T+3)}, 6, {v(SEGV)}
              v_add_u32 {v(T+3)}, {L_RS}, {v(T+3)}
              v_and_b32 {v(T+6)}, 32, v0
              v_lshlrev_b32 {v(T+6)}, 5, {v(T+6)}
              v_bfe_u32 {v(T+7)}, v0, 2, 2
              v_lshl_add_u32 {v(T+6)}, {v(T+7)}, 6, {v(T+6)}
              v_and_b32 {v(T+7)}, 16, v0
              v_lshl_add_u32 {v(T+6)}, {v(T+7)}, 1, {v(T+6)}
              v_and_b32 {v(T+7)}, 3, v0
              v_lshl_add_u32 {v(T+6)}, {v(T+7)}, 3, {v(T+6)}
              v_add_u32 {v(T+6)}, {s(S_V1)}, {v(T+6)}
              s_waitcnt lgkmcnt(1)""")
        for u in range(4): g(f"ds_read_b64_tr_b16 {v(XP+2*u,2)}, {v(T+6)} offset:{256*u}")
        for k in range(4): g(f"ds_read_b128 {v(MM+4*k,4)}, {v(T+3)} offset:{16*k}")
        for k in range(4): g(f"ds_read_b128 {v(RR+4*k,4)}, {v(T+3)} offset:{512+16*k}")
        self.a_setup(VA, 0, 16, 12)
        g(f"""v_mov_b32 {v(VC2)}, {L_CNT}
              v_mov_b32 {v(VO2)}, 1
              v_lshlrev_b32 {v(DS)}, 16, {v(DS)}
              s_mov_b32 {s(S_V0)}, 0xffff0000
              s_waitcnt lgkmcnt(0)""")
        self.poll_issue(WS_FLAGS)
        for i in range(8):
            x = A2 + 2*i; m = MM + 2*i; r = RR + 2*i
            g(f"""v_lshlrev_b32 {v(x)}, 16, {v(XP+i)}
                  v_and_b32 {v(x+1)}, {s(S_V0)}, {v(XP+i)}
                  v_sub_f32 {v(m)}, {v(x)}, {v(m)}
                  v_sub_f32 {v(m+1)}, {v(x+1)}, {v(m+1)}
                  v_cvt_pk_bf16_f32 {v(m+1)}, {v(m)}, {v(m+1)}
                  v_lshlrev_b32 {v(m)}, 16, {v(m+1)}
                  v_and_b32 {v(m+1)}, {s(S_V0)}, {v(m+1)}
                  v_mul_f32 {v(m)}, {v(m)}, {v(r)}
                  v_mul_f32 {v(m+1)}, {v(m+1)}, {v(r+1)}
                  v_cvt_pk_bf16_f32 {v(m+1)}, {v(m)}, {v(m+1)}
                  v_lshlrev_b32 {v(m)}, 16, {v(m+1)}
                  v_and_b32 {v(m+1)}, {s(S_V0)}, {v(m+1)}
                  v_mul_f32 {v(m)}, {v(m)}, {v(DS)}
                  v_mul_f32 {v(m+1)}, {v(m+1)}, {v(DS)}
                  v_cvt_pk_bf16_f32 {v(m+1)}, {v(m)}, {v(m+1)}
                  v_lshlrev_b32 {v(m)}, 16, {v(m+1)}
                  v_and_b32 {v(m+1)}, {s(S_V0)}, {v(m+1)}
                  v_add_f32 {v(x)}, {v(x)}, {v(m)}
                  v_add_f32 {v(x+1)}, {v(x+1)}, {v(m+1)}""")
        if o.get("s_sig_early", 0):
            g("s_waitcnt vmcnt(0)")
            self.signal_cnt(C_B1 + 4, VC2, VO2)
        self.stamp(8)
        self.poll_finish()
        self.stamp(9)
        g(f"s_setprio {o.get('sprio2', 2)}")
        def soff(ks):
            g(f"""s_xor_b32 {s(S_U0)}, {s(S_V1)}, {ks*1024}
                  s_add_u32 {s(S_U0)}, {s(S_U0)}, {s(S_XO)}""")
        g(f"""s_and_b32 {s(S_V1)}, {s(S_ROT)}, 2
              s_lshl_b32 {s(S_V1)}, {s(S_V1)}, 12
              s_and_b32 {s(S_U0)}, {s(S_ROT)}, 1
              s_lshl_b32 {s(S_U0)}, {s(S_U0)}, 11
              s_or_b32 {s(S_V1)}, {s(S_V1)}, {s(S_U0)}""")
        def pre(ks):
            if ks == 0 and not o.get("s_sig_early", 0):
                g("s_waitcnt vmcnt(12)")
                self.signal_cnt(C_B1 + 4, VC2, VO2)
        self.p2_loop(16, VA, AB, A2, lambda ks: BR + 8*ks, pre, lambda ks: None, soff, True)
        self.stamp(10)
        g.c("S: dump partials, pre-reduce")
        T = 2
        g(f"v_lshl_add_u32 {v(T+3)}, v0, 4, {s(S_T2)}")
        for sl in range(1, 4):
            for q in range(4):
                g(f"ds_write_b128 {v(T+3)}, {v(A2+16*sl+4*q,4)} offset:{(sl-1)*4096+q*1024}")
        self.signal_cnt(C_SD, VC2, VO2)
        self.spin_cnt(C_SD, VC2, T)
        self.gather3(0, 12288, AB, T)
        g(f"""s_xor_b32 {s(S_U0)}, {s(S_WI)}, 1
              s_mul_i32 {s(S_U0)}, {s(S_U0)}, 12288
              v_lshl_add_u32 {v(T+3)}, v0, 4, {s(S_U0)}""")
        for dd in range(3):
            g(f"s_waitcnt lgkmcnt({8-4*dd})")
            for r in range(16): g(f"v_add_f32 {v(A2+r)}, {v(A2+r)}, {v(AB+16*dd+r)}")
        for q in range(4):
            g(f"ds_write_b128 {v(T+3)}, {v(A2+4*q,4)} offset:{q*1024}")
        self.signal_cnt(C_SR, VC2, VO2)
        g("s_setprio 0")
        srd(g, R_OUT, P_OUT, 2048*512*4)
        g(f"v_lshlrev_b32 v9, 4, v0")
        self.out_setup(8, 4, 9)
        self.spin_cnt(C_FM, VC2, T)
        for k, tile in enumerate((0, 1, 2)):
            g(f"ds_read_b128 {v(A2+4*k,4)}, v6 offset:{(tile^1)*12288}")
        for ct in range(2):
            for q in range(4):
                g(f"ds_read_b128 {v(AB+16*ct+4*q,4)}, v6 offset:{q*12288 + 4096 + ct*4096}")
        self.sum_store(A2, AB, 8, 0, 0, 4)
        self.sum_store(A2+4, AB+16, 8, 0, 1, 0)
        g("s_barrier")
        self.final_piece(0, A2+8, AB, 8, 4)
        self.stamp(11)
        self.stamps_out(T, 'S')
        g("L_END:")
        g("s_endpgm")
        g("L_CODE_END:")

    def build(self):
        hdr = open("cdna_kernels/" + NAME + ".s.ref").read().split("\n")
        head = [l for l in hdr if l.startswith(";") and "@launch" not in l]
        self.prologue(); self.fwave(); self.swave()
        lst = self.o.get("list")
        if lst:
            out = "\n".join(head) + "\n"
            for ch in lst:
                if ch == "m": out += f"; @launch kernel={NAME}_kernel grid=(256,1,1) block=(512,1,1) lds={LDS_BYTES}\n"
                else: out += f"; @launch kernel=null_kernel grid=(1,1,1) block=(64,1,1) lds=0\n"
        else:
            out = "\n".join(head) + f"\n; @launch grid=(256,1,1) block=(512,1,1) lds={LDS_BYTES}\n"
        out += f""".amdgcn_target "amdgcn-amd-amdhsa--gfx950"
.text
.globl {NAME}_kernel
.p2align 8
.type {NAME}_kernel,@function
{NAME}_kernel:
"""
        out += self.g.text()
        if lst:
            out += """.p2align 8
.globl null_kernel
.type null_kernel,@function
null_kernel:
    s_endpgm
.section .rodata,"a"
.p2align 6
.amdhsa_kernel null_kernel
  .amdhsa_next_free_vgpr 8
  .amdhsa_next_free_sgpr 16
  .amdhsa_accum_offset 8
  .amdhsa_group_segment_fixed_size 0
  .amdhsa_kernarg_size 120
  .amdhsa_user_sgpr_count 2
  .amdhsa_user_sgpr_kernarg_segment_ptr 1
  .amdhsa_system_sgpr_workgroup_id_x 1
.end_amdhsa_kernel
"""
        out += f""".section .rodata,"a"
.p2align 6
.amdhsa_kernel {NAME}_kernel
  .amdhsa_next_free_vgpr 256
  .amdhsa_next_free_sgpr 102
  .amdhsa_accum_offset 256
  .amdhsa_group_segment_fixed_size 0
  .amdhsa_kernarg_size 120
  .amdhsa_user_sgpr_count 2
  .amdhsa_user_sgpr_kernarg_segment_ptr 1
  .amdhsa_system_sgpr_workgroup_id_x 1
.end_amdhsa_kernel
"""
        return out

if __name__ == "__main__":
    path = sys.argv[1]
    opt = json.loads(sys.argv[2]) if len(sys.argv) > 2 else {}
    open(path, "w").write(Gen(opt).build())
```

```python
import sys, json

NAME = "parallel_sum__ssm_conv_s5__dense_activation_silu__prompt"

class G:
    def __init__(self):
        self.L = []
        self.nlab = 0
    def __call__(self, s):
        for ln in s.strip("\n").split("\n"):
            ln = ln.strip()
            if ln: self.L.append("    " + ln if not ln.endswith(":") else ln)
    def c(self, s): self.L.append("    ; " + s)
    def lab(self, p="L"):
        self.nlab += 1
        return f"{p}_{self.nlab}"
    def text(self): return "\n".join(self.L) + "\n"

def v(a, n=1): return f"v{a}" if n == 1 else f"v[{a}:{a+n-1}]"
def s(a, n=1): return f"s{a}" if n == 1 else f"s[{a}:{a+n-1}]"

NKS = 152
WS_INTER = 0
WS_AGG   = 0xA00000
WS_FLAGF = 0xA40000
WS_FLAGS = 0xA44000
WS_XS    = 0xA50000
WS_CSG   = 0xA58000
WS_EPOCH = 0xA60000
WS_STAMP = 0xB00000
WS_BYTES = 0xC00000
SLOT = 24576
W1B  = 2 * SLOT
MISC = 6 * SLOT
L_RS, L_NM, L_CSS, L_CNT = MISC, MISC + 512, MISC + 1024, MISC + 1536
L_LBP = MISC + 2048
L_CSF = MISC + 4096
L_TR  = MISC + 8192
L_SEG = L_TR + 3 * 2048
LDS_BYTES = MISC + 16384
C_S1, C_S2, C_W0, C_CSF, C_W1D, C_SD, C_SR, C_FM, C_B1 = 0, 4, 8, 24, 28, 32, 36, 40, 48

S_WAVE, S_WI, S_MT, S_G, S_RT, S_NT, S_C0, S_TAG = 3, 4, 5, 6, 7, 8, 9, 10
S_T0, S_T1, S_T2, S_T3, S_T4 = 11, 12, 13, 14, 15
P_X, P_LRE, P_LIM, P_BRE, P_BIM, P_CRE, P_CIM, P_LDT = 16, 18, 20, 22, 24, 26, 28, 30
P_DSK, P_BX, P_W1, P_W2, P_OUT, P_DBG, P_WS = 32, 34, 36, 38, 40, 42, 44
R_X, R_A, R_B, R_W2, R_WS, R_OUT = 48, 52, 56, 60, 64, 68
S_ONES, S_XO, S_BO, S_WO, S_SPIN = 72, 73, 74, 75, 76
S_U0, S_U1, S_U2, S_U3 = 77, 78, 79, 80
S_V0, S_V1, S_ROT = 46, 47, 81
S_EX = 82
S_MK = 84
S_ST = 86

def srd(g, r, p, nbytes):
    g(f"""s_mov_b32 {s(r)}, {s(p)}
          s_mov_b32 {s(r+1)}, {s(p+1)}
          s_mov_b32 {s(r+2)}, {hex(nbytes)}
          s_mov_b32 {s(r+3)}, 0x20000""")

class Gen:
    def __init__(self, opt):
        self.o = opt
        self.g = G()
        self.nst = 0

    def stamp(self, i, force=False):
        if not self.o.get("stamps"): return
        if getattr(self, "mute", False) and not force: return
        g = self.g
        clk = "s_memrealtime" if self.o.get("rt") else "s_memtime"
        g(f"""{clk} s[100:101]
              s_waitcnt lgkmcnt(0)
              s_mov_b32 {s(S_ST+i)}, s100""")

    def stamps_out(self, vt, role):
        if not self.o.get("stamps"): return
        g = self.g
        pr = self.o.get("probe")
        if pr and pr[0] == role:
            l = g.lab("PRB")
            clk = "s_memrealtime" if self.o.get("rt") else "s_memtime"
            base = S_ST
            if pr[1:] in ("k", "e"):
                g(f"""s_load_dword {s(S_U0)}, {s(P_DBG,2)}, 0 glc
                      s_load_dword {s(S_U1)}, {s(P_DBG,2)}, 128 glc
                      s_waitcnt lgkmcnt(0)
                      s_not_b32 {s(S_U1)}, {s(S_U1)}""")
                src = S_U0 if pr[1:] == "k" else S_ST + 11
                base = S_U1
            elif pr[1:] == "z":
                src = S_ST; base = S_ST + 12
            else:
                src = S_MK if pr[1:] == "p" else S_ST + int(pr[1:])
            g(f"""s_sub_u32 {s(S_T0)}, {s(src)}, {s(base)}
                  s_lshl_b32 {s(S_T0)}, {s(S_T0)}, 4
                  {clk} s[100:101]
                  s_waitcnt lgkmcnt(0)
                  s_mov_b32 {s(S_T1)}, s100""")
            g(f"{l}:")
            g(f"""{clk} s[100:101]
                  s_waitcnt lgkmcnt(0)
                  s_sub_u32 {s(S_T2)}, s100, {s(S_T1)}
                  s_cmp_lt_u32 {s(S_T2)}, {s(S_T0)}
                  s_cbranch_scc1 {l}""")
        g(f"s_waitcnt vmcnt(0)")
        g(f"""s_memrealtime s[100:101]
              s_waitcnt lgkmcnt(0)
              s_mov_b32 {s(S_ST+13)}, s100""")
        g(f"""s_lshl_b32 {s(S_T0)}, s2, 3
              s_add_u32 {s(S_T0)}, {s(S_T0)}, {s(S_WAVE)}
              s_lshl_b32 {s(S_T0)}, {s(S_T0)}, 6
              s_add_u32 {s(S_T0)}, {s(S_T0)}, {hex(WS_STAMP)}
              v_mov_b32 {v(vt)}, 0""")
        for i in range(14):
            g(f"""v_mov_b32 {v(vt+1)}, {s(S_ST+i)}
                  buffer_store_dword {v(vt+1)}, {v(vt)}, {s(R_WS,4)}, {s(S_T0)} offen offset:{4*i}
                  s_nop 1""")

    def spin_cnt(self, cnt, vaddr_cnt, vt, reads="", tgt=4):
        g = self.g
        l = g.lab("SPIN"); d = g.lab("SPD")
        g(f"s_mov_b32 {s(S_SPIN)}, 0x100000")
        g(f"{l}:")
        g(f"ds_read_b32 {v(vt)}, {v(vaddr_cnt)} offset:{cnt}")
        if reads: g(reads)
        g(f"""s_waitcnt lgkmcnt(0)
              v_readfirstlane_b32 {s(S_U3)}, {v(vt)}
              s_sub_u32 {s(S_SPIN)}, {s(S_SPIN)}, 1
              s_cbranch_scc1 {d}
              s_cmp_eq_u32 {s(S_U3)}, {tgt}
              s_cbranch_scc1 {d}
              s_sleep 1
              s_branch {l}""")
        g(f"{d}:")

    def signal_cnt(self, cnt, vaddr_cnt, vone):
        g = self.g
        g(f"""s_mov_b64 exec, 1
              ds_add_u32 {v(vaddr_cnt)}, {v(vone)} offset:{cnt}
              s_mov_b64 exec, -1""")

    def collect(self, fn):
        g = self.g
        save = g.L; g.L = []
        fn()
        out = g.L; g.L = save
        items = []; cur = None
        for ln in out:
            if ln.strip() == "; {": cur = []
            elif ln.strip() == "; }": items.append(cur); cur = None
            elif cur is not None: cur.append(ln)
            else: items.append([ln])
        return items
    def take(self, fill, n):
        while n > 0 and fill:
            it = fill.pop(0); self.g.L += it; n -= len(it)

    def cmul(self, dr, di, ar, ai, br, bi):
        self.g(f"""v_mul_f32 {v(dr)}, {v(ar)}, {v(br)}
                   v_mul_f32 {v(di)}, {v(ar)}, {v(bi)}
                   v_fma_f32 {v(dr)}, -{v(ai)}, {v(bi)}, {v(dr)}
                   v_fmac_f32 {v(di)}, {v(ai)}, {v(br)}""")

    def cfma(self, dr, di, ar, ai, br, bi, cr, ci):
        self.g(f"""v_fma_f32 {v(dr)}, {v(ar)}, {v(br)}, {v(cr)}
                   v_fma_f32 {v(di)}, {v(ar)}, {v(bi)}, {v(ci)}
                   v_fma_f32 {v(dr)}, -{v(ai)}, {v(bi)}, {v(dr)}
                   v_fmac_f32 {v(di)}, {v(ai)}, {v(br)}""")

    def poll_issue(self, base):
        self.g(f"""s_lshl_b32 s26, {s(S_RT)}, 2
              s_add_u32 s26, s26, {s(S_WI)}
              s_lshl_b32 s26, s26, 7
              s_add_u32 s26, s26, {hex(base)}
              s_mov_b32 s24, {s(S_TAG)}
              s_mov_b32 s25, {s(S_TAG)}
              s_load_dwordx8 s[16:23], {s(P_WS,2)}, s26 glc""")

    def poll_finish(self):
        g = self.g
        l = g.lab("POLL"); d = g.lab("PLD")
        g(f"s_mov_b32 {s(S_SPIN)}, 0x40000")
        g(f"{l}:")
        g(f"""s_waitcnt lgkmcnt(0)
              s_xor_b64 s[16:17], s[16:17], s[24:25]
              s_xor_b64 s[18:19], s[18:19], s[24:25]
              s_xor_b64 s[20:21], s[20:21], s[24:25]
              s_xor_b64 s[22:23], s[22:23], s[24:25]
              s_or_b64 s[16:17], s[16:17], s[18:19]
              s_or_b64 s[20:21], s[20:21], s[22:23]
              s_or_b64 s[16:17], s[16:17], s[20:21]
              s_cbranch_scc0 {d}
              s_sub_u32 {s(S_SPIN)}, {s(S_SPIN)}, 1
              s_cbranch_scc1 {d}
              s_load_dwordx8 s[16:23], {s(P_WS,2)}, s26 glc
              s_branch {l}""")
        g(f"{d}:")

    def set_flag(self, base, vz, vt, vm=0):
        g = self.g
        g(f"""s_lshl_b32 {s(S_U0)}, {s(S_MT)}, 1
              s_lshr_b32 {s(S_U1)}, {s(S_WI)}, 1
              s_add_u32 {s(S_U0)}, {s(S_U0)}, {s(S_U1)}
              s_lshl_b32 {s(S_U0)}, {s(S_U0)}, 2
              s_lshr_b32 {s(S_U1)}, {s(S_G)}, 2
              s_add_u32 {s(S_U0)}, {s(S_U0)}, {s(S_U1)}
              s_lshl_b32 {s(S_U0)}, {s(S_U0)}, 7
              s_and_b32 {s(S_U1)}, {s(S_WI)}, 1
              s_lshl_b32 {s(S_U1)}, {s(S_U1)}, 4
              s_add_u32 {s(S_U0)}, {s(S_U0)}, {s(S_U1)}
              s_and_b32 {s(S_U1)}, {s(S_G)}, 3
              s_lshl_b32 {s(S_U1)}, {s(S_U1)}, 2
              s_add_u32 {s(S_U0)}, {s(S_U0)}, {s(S_U1)}
              s_add_u32 {s(S_U0)}, {s(S_U0)}, {hex(base)}
              v_mov_b32 {v(vt)}, {s(S_TAG)}
              s_waitcnt vmcnt({vm})
              s_mov_b64 exec, 1
              buffer_store_dword {v(vt)}, {v(vz)}, {s(R_WS,4)}, {s(S_U0)} offen sc1
              s_mov_b64 exec, -1""")

    def prologue(self):
        g = self.g
        if self.o.get("stamps"): g("s_memrealtime s[98:99]")
        g(f"""s_cmp_ge_u32 s2, 256
              s_cbranch_scc1 L_END
              s_load_dwordx16 s[16:31], s[0:1], 0
              s_load_dwordx8 s[32:39], s[0:1], 64
              s_load_dwordx4 s[40:43], s[0:1], 96
              s_load_dwordx2 s[44:45], s[0:1], 112""")
        if self.o.get("stamps"):
            g(f"""s_waitcnt lgkmcnt(0)""")
            if self.o.get("probe", "")[1:] in ("k", "e"):
                g(f"""v_mov_b32 v2, 0
                      v_mov_b32 v3, s98
                      v_not_b32 v4, v3
                      s_mov_b64 exec, 1
                      global_atomic_umax v2, v3, {s(P_DBG,2)} sc1
                      global_atomic_umax v2, v4, {s(P_DBG,2)} offset:128 sc1
                      s_mov_b64 exec, -1""")
            for i in range(12): g(f"s_mov_b32 {s(S_ST+i)}, 0")
            self.stamp(0)
        g(f"""v_lshrrev_b32 v1, 6, v0
              v_and_b32 v0, 63, v0
              s_and_b32 {s(S_T0)}, s2, 7
              v_readfirstlane_b32 {s(S_WAVE)}, v1
              s_lshr_b32 {s(S_T1)}, s2, 3
              s_and_b32 {s(S_T2)}, {s(S_T1)}, 3
              s_lshr_b32 {s(S_NT)}, {s(S_T1)}, 2
              s_lshr_b32 {s(S_T3)}, {s(S_T0)}, 1
              s_lshl_b32 {s(S_MT)}, {s(S_T3)}, 2
              s_add_u32 {s(S_MT)}, {s(S_MT)}, {s(S_T2)}
              s_and_b32 {s(S_T4)}, {s(S_T0)}, 1
              s_lshl_b32 {s(S_G)}, {s(S_T4)}, 3
              s_add_u32 {s(S_G)}, {s(S_G)}, {s(S_NT)}
              s_lshl_b32 {s(S_RT)}, {s(S_T0)}, 2
              s_add_u32 {s(S_RT)}, {s(S_RT)}, {s(S_T2)}
              s_and_b32 {s(S_WI)}, {s(S_WAVE)}, 3""")
        if self.o.get("rot2", 0):
            g(f"""s_add_u32 {s(S_ROT)}, {s(S_T2)}, {s(S_NT)}
                  s_and_b32 {s(S_ROT)}, {s(S_ROT)}, 3""")
        else: g(f"s_mov_b32 {s(S_ROT)}, 0")
        rot = self.o.get("rot", 0)
        if rot == 0:
            g(f"""s_lshl_b32 {s(S_C0)}, {s(S_T4)}, 1
                  s_add_u32 {s(S_C0)}, {s(S_C0)}, {s(S_T3)}
                  s_lshl_b32 {s(S_C0)}, {s(S_C0)}, 1""")
        elif rot == 8:
            g(f"""s_lshl_b32 {s(S_C0)}, {s(S_MT)}, 1
                  s_add_u32 {s(S_C0)}, {s(S_C0)}, {s(S_G)}""")
        elif rot == 4:
            g(f"""s_add_u32 {s(S_C0)}, {s(S_MT)}, {s(S_G)}
                  s_lshl_b32 {s(S_C0)}, {s(S_C0)}, 1""")
        elif rot == 2:
            g(f"""s_add_u32 {s(S_C0)}, {s(S_MT)}, {s(S_G)}
                  s_lshl_b32 {s(S_C0)}, {s(S_C0)}, 1
                  s_add_u32 {s(S_C0)}, {s(S_C0)}, {s(S_T4)}
                  s_add_u32 {s(S_C0)}, {s(S_C0)}, {s(S_T3)}
                  s_lshl_b32 {s(S_C0)}, {s(S_C0)}, 1""")
        pre = self.o.get("pretest")
        if pre:
            pol = self.o.get("prepol", "")
            g(f"""v_lshlrev_b32 v2, 4, v0
                  s_lshl_b32 {s(S_U0)}, {s(S_WAVE)}, 8
                  s_add_u32 {s(S_U0)}, {s(S_U0)}, s2
                  s_lshl_b32 {s(S_U0)}, {s(S_U0)}, 10""")
            for i, (nm, P, nb, sh) in enumerate([("x", P_X, 2<<20, 0), ("b", P_BRE, 1<<19, 0), ("b", P_BIM, 1<<19, 2), ("1", P_W1, 1376*1024, 2),
                                  ("c", P_CRE, 1<<19, 4), ("c", P_CIM, 1<<19, 6), ("2", P_W2, 1376*1024, 0)]):
                if nm not in pre: continue
                srd(g, R_X, P, nb)
                g(f"""s_sub_u32 {s(S_U1)}, {s(S_U0)}, {sh << 18}
                      s_and_b32 {s(S_U1)}, {s(S_U1)}, {(2<<20)-1}
                      buffer_load_dwordx4 {v(4+4*i,4)}, v2, {s(R_X,4)}, {s(S_U1)} offen{pol}""")
            g("s_waitcnt vmcnt(0)")
            self.stamp(11)
            g(f"s_mov_b32 {s(S_MK)}, {s(S_ST+11)}")
        g(f"""s_cmp_ge_u32 {s(S_WAVE)}, 4
              s_cbranch_scc0 L_SWAVE""")

    def epoch(self):
        self.g(f"""s_mov_b32 {s(S_TAG)}, {hex(WS_EPOCH)}
                   s_load_dword {s(S_TAG)}, {s(P_WS,2)}, {s(S_TAG)}""")
    def epoch_fin(self):
        self.g(f"""s_mul_i32 {s(S_TAG)}, {s(S_TAG)}, 0x9E3779B1
                   s_add_u32 {s(S_TAG)}, {s(S_TAG)}, 0x7F4A7C15""")

    def frag_pat(self, P, t0, t1, xor_wi):
        g = self.g
        g(f"""v_and_b32 {v(t0)}, 31, v0
              v_lshrrev_b32 {v(t1)}, 1, v0
              v_and_b32 {v(t1)}, 7, {v(t1)}
              v_lshrrev_b32 {v(P)}, 5, v0
              v_xor_b32 {v(t1)}, {v(t1)}, {v(P)}
              v_lshlrev_b32 {v(t1)}, 4, {v(t1)}
              v_lshl_or_b32 {v(P)}, {v(t0)}, 7, {v(t1)}""")
        if xor_wi:
            g(f"""s_lshl_b32 {s(S_V0)}, {s(S_WI)}, 5
                  v_xor_b32 {v(P)}, {s(S_V0)}, {v(P)}""")
        for k in (1, 2, 3):
            g(f"v_xor_b32 {v(P+k)}, {32*k}, {v(P)}")

    def lane8_pat(self, d, t0, t1):
        self.g(f"""v_lshrrev_b32 {v(t0)}, 3, v0
                   v_and_b32 {v(d)}, 7, v0
                   v_lshrrev_b32 {v(t1)}, 4, v0
                   v_xor_b32 {v(d)}, {v(d)}, {v(t1)}
                   v_lshlrev_b32 {v(d)}, 4, {v(d)}""")

    def split3(self, src, d0, d1, t0, t1):
        self.g(f"""v_and_b32 {v(t0)}, 0xffff0000, {v(src)}
                  v_sub_f32 {v(t1)}, {v(src)}, {v(t0)}
                  v_and_b32 {v(d0)}, 0xffff0000, {v(t1)}
                  v_sub_f32 {v(t1)}, {v(t1)}, {v(d0)}
                  v_lshrrev_b32 {v(t0)}, 16, {v(t0)}
                  v_or_b32 {v(d0)}, {v(d0)}, {v(t0)}
                  v_lshrrev_b32 {v(d1)}, 16, {v(t1)}""")

    def tau(self, d, t):
        self.g(f"""v_and_b32 {v(d)}, 4, v0
                   v_lshlrev_b32 {v(d)}, 2, {v(d)}
                   v_lshrrev_b32 {v(t)}, 1, v0
                   v_and_b32 {v(t)}, 12, {v(t)}
                   v_or_b32 {v(d)}, {v(d)}, {v(t)}
                   v_and_b32 {v(t)}, 3, v0
                   v_or_b32 {v(d)}, {v(d)}, {v(t)}""")

    def w2_voff(self, VD, T):
        self.g(f"""v_lshrrev_b32 {v(T)}, 3, v0
              v_and_b32 {v(T+1)}, 7, v0
              v_bfe_u32 {v(T+2)}, v0, 4, 1
              v_lshlrev_b32 {v(T+2)}, 2, {v(T+2)}
              v_xor_b32 {v(T+1)}, {v(T+1)}, {v(T+2)}
              v_lshlrev_b32 {v(T+1)}, 4, {v(T+1)}
              v_lshl_or_b32 {v(VD)}, {v(T)}, 10, {v(T+1)}
              v_add_u32 {v(VD+1)}, 7168, {v(VD)}
              v_add_u32 {v(VD+2)}, {2*7168}, {v(VD)}
              v_add_u32 {v(VD+3)}, {3*7168}, {v(VD)}""")

    def w2_coop_setup(self, s_lds, s_glb):
        self.g(f"""s_mul_i32 {s(s_lds)}, {s(S_WI)}, 6144
              s_mul_i32 {s(s_glb)}, {s(S_WI)}, {48*1024}
              s_lshl_b32 {s(S_V0)}, {s(S_NT)}, 7
              s_add_u32 {s(s_glb)}, {s(s_glb)}, {s(S_V0)}""")

    def w2_coop(self, VD, s_lds, s_glb, q):
        out = []
        for e in range(6):
            pre = ""
            if e % 3 == 0:
                pre = f"""s_add_u32 m0, {s(s_lds)}, {W1B + q*SLOT + e*1024}
                          s_add_u32 {s(S_U1)}, {s(s_glb)}, {q*352*1024 + e*8192}
                       """
            out.append(pre + f"buffer_load_dwordx4 {v(VD+e%3)}, {s(R_W2,4)}, {s(S_U1)} offen offset:{1024*(e%3)} lds")
        return out

    def w2_own_setup(self, sreg_lds, sreg_glb):
        self.g(f"""s_mul_i32 {s(sreg_glb)}, {s(S_WI)}, {352*1024}
              s_lshl_b32 {s(S_U0)}, {s(S_NT)}, 7
              s_add_u32 {s(sreg_glb)}, {s(sreg_glb)}, {s(S_U0)}
              s_mul_i32 {s(sreg_lds)}, {s(S_WI)}, {SLOT}
              s_add_u32 {s(sreg_lds)}, {s(sreg_lds)}, {W1B}""")

    def w2_issue(self, VD, sreg_lds, sreg_glb, ks0, n, lslot0):
        g = self.g
        for i in range(0, n, 2):
            g(f"""s_add_u32 m0, {s(sreg_lds)}, {(lslot0 + i)*2048}
                  s_add_u32 {s(S_U1)}, {s(sreg_glb)}, {(ks0+i)*16384}""")
            for e in range(4):
                g(f"buffer_load_dwordx4 {v(VD+e)}, {s(R_W2,4)}, {s(S_U1)} offen offset:{1024*e} lds")

    def recheck(self, loads, tagregs, vm=0):
        g = self.g
        l = g.lab("RC"); d = g.lab("RCD")
        g(f"s_mov_b32 {s(S_SPIN)}, 0x40000\ns_waitcnt vmcnt({vm})")
        g(f"{l}:")
        g(f"v_cmp_ne_u32 vcc, {s(S_TAG)}, {v(tagregs[0])}")
        for r in tagregs[1:]:
            g(f"v_cmp_ne_u32 s[100:101], {s(S_TAG)}, {v(r)}\ns_or_b64 vcc, vcc, s[100:101]")
        g(f"""s_cmp_eq_u64 vcc, 0
              s_cbranch_scc1 {d}
              s_sub_u32 {s(S_SPIN)}, {s(S_SPIN)}, 1
              s_cbranch_scc1 {d}
              s_sleep 2""")
        g(loads)
        g(f"s_waitcnt vmcnt(0)\ns_branch {l}")
        g(f"{d}:")

    def w1_setup(self, VW, T, s_lds, s_glb, s_f0):
        g = self.g
        g(f"s_mov_b32 {s(S_V0)}, 683")
        for e in range(3):
            g(f"""v_add_u32 {v(T)}, {64*e}, v0
                  v_mul_u32_u24 {v(T+1)}, {s(S_V0)}, {v(T)}
                  v_lshrrev_b32 {v(T+1)}, 13, {v(T+1)}
                  v_mul_u32_u24 {v(T+2)}, 12, {v(T+1)}
                  v_sub_u32 {v(T+2)}, {v(T)}, {v(T+2)}
                  v_mul_u32_u24 {v(T+1)}, 2752, {v(T+1)}
                  v_lshl_add_u32 {v(VW+e)}, {v(T+2)}, 4, {v(T+1)}""")
            if e: g(f"v_subrev_u32 {v(VW+e)}, {1024*e}, {v(VW+e)}")
        g(f"""s_lshr_b32 {s(S_V0)}, {s(S_G)}, 2
              s_mul_i32 {s(s_f0)}, {s(S_V0)}, 11
              s_and_b32 {s(S_V0)}, {s(S_G)}, 3
              s_mul_i32 {s(S_V0)}, {s(S_V0)}, 3
              s_add_u32 {s(s_f0)}, {s(s_f0)}, {s(S_V0)}
              s_lshl_b32 {s(s_glb)}, {s(s_f0)}, 6
              s_mul_i32 {s(S_V0)}, {s(S_WI)}, {16*2752}
              s_add_u32 {s(s_glb)}, {s(s_glb)}, {s(S_V0)}
              s_mul_i32 {s(s_lds)}, {s(S_WI)}, 3072""")

    def w1_pre(self, j, s_lds, s_glb):
        return f"""s_add_u32 {s(S_U0)}, {s(S_C0)}, {j}
                  s_and_b32 {s(S_U0)}, {s(S_U0)}, 7
                  s_mul_i32 {s(S_U0)}, {s(S_U0)}, {64*2752}
                  s_add_u32 m0, {s(s_lds)}, {W1B + j*12288}
                  s_add_u32 {s(S_U1)}, {s(S_U0)}, {s(s_glb)}"""

    def fwave(self):
        g = self.g; o = self.o
        X = 128
        ACC = 80
        WF = 44
        VX, VB, VW = 2, 6, 8
        P = 12
        WA = 16
        VCNT, VONE, VZ = 20, 21, 22
        XS = 24
        RS, NRS = 26, 27
        NM = 28
        CS = 32
        T = 2
        TA = 32

        g.c("---------------- F wave: stage A loader ----------------")
        self.lane8_pat(TA, TA+1, TA+2)
        g(f"""v_lshrrev_b32 {v(TA+2)}, 2, {v(TA+1)}
              v_lshlrev_b32 {v(TA+2)}, 4, {v(TA+2)}
              v_and_b32 {v(TA+3)}, 3, {v(TA+1)}
              v_add_u32 {v(TA+2)}, {v(TA+2)}, {v(TA+3)}
              v_lshl_or_b32 {v(VX)}, {v(TA+2)}, 10, {v(TA)}
              v_add_u32 {v(VX+1)}, 3072, {v(VX)}
              v_xor_b32 {v(VX+1)}, 64, {v(VX+1)}
              v_add_u32 {v(VX+2)}, 6144, {v(VX)}
              v_add_u32 {v(VX+3)}, 6144, {v(VX+1)}
              v_lshl_or_b32 {v(VB)}, {v(TA+1)}, 10, {v(TA)}
              v_add_u32 {v(VB+1)}, 7168, {v(VB)}
              v_xor_b32 {v(VB+1)}, 64, {v(VB+1)}
              s_lshl_b32 {s(S_XO)}, {s(S_MT)}, 17
              s_lshl_b32 {s(S_T0)}, {s(S_WI)}, 15
              s_add_u32 {s(S_XO)}, {s(S_XO)}, {s(S_T0)}
              s_lshl_b32 {s(S_BO)}, {s(S_G)}, 15
              s_and_b32 {s(S_T0)}, {s(S_WI)}, 1
              s_lshl_b32 {s(S_T0)}, {s(S_T0)}, 14
              s_add_u32 {s(S_BO)}, {s(S_BO)}, {s(S_T0)}
              s_lshl_b32 {s(S_T3)}, {s(S_WI)}, 12
              s_lshl_b32 {s(S_T4)}, {s(S_WI)}, 11
              s_add_u32 {s(S_T4)}, {s(S_T4)}, 16384
              s_mov_b32 {s(R_X+2)}, {hex(2048*512*2)}
              s_mov_b32 {s(R_X+3)}, 0x20000
              s_mov_b32 {s(R_A+2)}, {hex(512*512*2)}
              s_mov_b32 {s(R_A+3)}, 0x20000
              s_cmp_ge_u32 {s(S_WI)}, 2
              s_waitcnt lgkmcnt(0)
              s_mov_b32 {s(R_X)}, {s(P_X)}
              s_mov_b32 {s(R_X+1)}, {s(P_X+1)}
              s_cselect_b32 {s(R_A)}, {s(P_BIM)}, {s(P_BRE)}
              s_cselect_b32 {s(R_A+1)}, {s(P_BIM+1)}, {s(P_BRE+1)}""")

        def x_pre(c):
            g(f"""s_add_u32 {s(S_U0)}, {s(S_C0)}, {c}
                  s_and_b32 {s(S_U0)}, {s(S_U0)}, 7
                  s_lshl_b32 {s(S_U0)}, {s(S_U0)}, 7
                  s_add_u32 m0, {s(S_T3)}, {(c % 6) * SLOT}
                  s_add_u32 {s(S_U1)}, {s(S_U0)}, {s(S_XO)}""")
        def x_go(c, nf):
            for e in range(4):
                g(f"buffer_load_dwordx4 {v(VX+e)}, {s(R_X,4)}, {s(S_U1)} offen offset:{1024*e} lds")
                self.take(fill, nf)
            g(f"""s_add_u32 m0, {s(S_T4)}, {(c % 6) * SLOT}
                  s_add_u32 {s(S_U1)}, {s(S_U0)}, {s(S_BO)}""")
            for e in range(2):
                g(f"buffer_load_dwordx4 {v(VB+e)}, {s(R_A,4)}, {s(S_U1)} offen offset:{1024*e} lds")
                self.take(fill, nf)
        def w_pre(j): return self.w1_pre(j, S_T2, S_WO)
        def w_one(e):
            return f"buffer_load_dwordx4 {v(VW+e)}, {s(R_B,4)}, {s(S_U1)} offen offset:{1024*e} lds"

        def setup():
            g.c("{"); self.epoch(); g.c("}")
            self.frag_pat(P, TA, TA+1, True)
            for k in range(4): g(f"v_add_u32 {v(P+k)}, {s(S_T3)}, {v(P+k)}")
            srd(g, R_B, P_W1, 512 * 1376 * 2)
            self.w1_setup(VW, TA, S_T2, S_WO, S_T1)
            srd(g, R_W2, P_W2, 1376 * 512 * 2)
            srd(g, R_WS, P_WS, WS_BYTES)
            srd(g, R_OUT, P_OUT, 2048*512*4)
            g(f"""v_lshrrev_b32 {v(TA)}, 5, v0
              v_bfe_u32 {v(TA+1)}, v0, 2, 2
              v_lshl_add_u32 {v(TA)}, {v(TA)}, 3, {v(TA+1)}
              v_mul_u32_u24 {v(TA)}, 192, {v(TA)}
              v_bfe_u32 {v(TA+1)}, v0, 4, 1
              v_lshl_add_u32 {v(TA)}, {v(TA+1)}, 5, {v(TA)}
              v_and_b32 {v(TA+1)}, 3, v0
              v_lshl_add_u32 {v(TA)}, {v(TA+1)}, 3, {v(TA)}
              v_mov_b32 {v(VCNT)}, {L_CNT}
              v_mov_b32 {v(VONE)}, 1
              v_mov_b32 {v(VZ)}, 0
              v_bfe_u32 {v(TA+1)}, v0, 2, 2
              v_lshrrev_b32 {v(TA+2)}, 4, v0
              v_cmp_eq_u32 vcc, {v(TA+1)}, {v(TA+2)}
              v_mov_b32 {v(TA+1)}, 0x3f803f80
              s_nop 0
              v_cndmask_b32 {v(NM)}, 0, {v(TA+1)}, vcc
              v_cndmask_b32 {v(NM+1)}, 0, {v(TA+1)}, vcc
              v_cndmask_b32 {v(NM+2)}, 0, {v(TA+1)}, vcc
              v_cndmask_b32 {v(NM+3)}, 0, {v(TA+1)}, vcc""")
            for k in range(4):
                g(f"""s_xor_b32 {s(S_V0)}, {s(S_WI)}, {k}
                  s_mul_i32 {s(S_V0)}, {s(S_V0)}, 3072
                  s_add_u32 {s(S_V0)}, {s(S_V0)}, {W1B}
                  v_add_u32 {v(WA+k)}, {s(S_V0)}, {v(TA)}""")
            self.tau(RS, TA)
            g(f"""s_lshr_b32 {s(S_V0)}, {s(S_XO)}, 7
              s_add_u32 {s(S_V0)}, {s(S_V0)}, {hex(WS_XS)}
              v_lshl_add_u32 {v(RS)}, {v(RS)}, 3, {s(S_V0)}""")
        fill = self.collect(setup)
        xs_load = f"buffer_load_dwordx2 {v(XS,2)}, {v(RS)}, {s(R_WS,4)}, 0 offen sc1"
        x_pre(0); x_go(0, 0)
        x_pre(1); x_go(1, 5)
        self.stamp(1)
        x_pre(2); x_go(2, 5)
        for c in range(8):
            g.c(f"chunk {c}")
            n = c + 3
            if n < 8: x_pre(n)
            else: g(w_pre(2 * (n - 8)))
            g(f"s_waitcnt vmcnt(12) lgkmcnt({0 if c == 0 else 4})")
            if o.get("adetail") == 1:
                self.mute = True; self.stamp(2 + c, True)
            g("s_barrier")
            if c == 0: self.epoch_fin()
            off = (c % 3) * SLOT
            def xread():
                if c in (3, 6):
                    op = "v_add_u32" if c == 3 else "v_subrev_u32"
                    for k in range(4): g(f"{op} {v(P+k)}, {3*SLOT}, {v(P+k)}")
                for k in range(4):
                    g(f"ds_read_b128 {v(X+16*c+4*k,4)}, {v(P+k)} offset:{off}")
            if n < 8:
                x_go(n, 5)
                if n == 7: self.take(fill, 1000)
                xread()
            else:
                for e in range(3): g(w_one(e))
                if c == 7:
                    xread()
                    self.signal_cnt(C_S1, VCNT, VONE)
                g(w_pre(2 * (n - 8) + 1))
                for e in range(3): g(w_one(e))
                if c < 7: xread()
        self.stamp(2)
        g.c("---------------- F stage: w1 GEMM ----------------")
        g(f"s_setprio {o.get('fprio', 1)}\ns_waitcnt vmcnt(12)")
        self.signal_cnt(C_W0, VCNT, VONE)
        self.spin_cnt(C_W0, VCNT, T)
        self.stamp(3)
        steps = [(j, k) for j in range(8) for k in range(4)]
        def rd(idx, t):
            j, k = steps[idx]
            if idx == 16 and t == 0:
                for kk in range(4): g(f"v_add_u32 {v(WA+kk)}, {4*12288}, {v(WA+kk)}")
            dst = WF + 12 * (idx % 3) + 4 * t
            off = (j % 4) * 12288 + t * 64
            g(f"""ds_read_b64_tr_b16 {v(dst,2)}, {v(WA+k)} offset:{off}
                  ds_read_b64_tr_b16 {v(dst+2,2)}, {v(WA+k)} offset:{off+768}""")
        for i in range(2):
            for t in range(3): rd(i, t)
        dma = {}
        q = []
        for j in range(6, 8):
            q += [w_pre(j) + "\n" + w_one(0), w_one(1), w_one(2)]
        q.append(xs_load)
        VD = 12
        q += self.w2_coop(VD, S_T3, S_T4, 0) + self.w2_coop(VD, S_T3, S_T4, 1)
        r0 = o.get("f_r0", 18)
        slots = [0, 1, 2, 4, 5, 6, 12] + list(range(r0, r0 + 6)) + list(range(max(23, r0 + 6), max(23, r0 + 6) + 6))
        assert slots[-1] < 30
        f3fill = self.collect(lambda: (self.w2_voff(VD, T+2), self.w2_coop_setup(S_T3, S_T4)))
        for sl, ins in zip(slots, q): dma[sl] = ins
        issued = 18
        extra = 0
        for idx, (j, k) in enumerate(steps):
            b = WF + 12 * (idx % 3)
            nxt = 6 if idx + 1 < 32 else 0
            g(f"s_waitcnt lgkmcnt({nxt + extra})")
            extra = 0
            xr = X + 16*j + 4*k
            ph = idx % 8; pr = idx // 8
            for t in range(3):
                cc = "0" if idx == 0 else v(ACC+16*t, 16)
                g(f"v_mfma_f32_32x32x16_bf16 {v(ACC+16*t,16)}, {v(b+4*t,4)}, {v(xr,4)}, {cc}")
                if t == 0 and ph == 6 and pr < 3:
                    lo = g.lab("WOK")
                    g(f"""v_readfirstlane_b32 {s(S_U3)}, {v(T)}
                          s_cmp_eq_u32 {s(S_U3)}, 4
                          s_cbranch_scc1 {lo}""")
                    self.spin_cnt(C_W0 + 4*(pr+1), VCNT, T)
                    g(f"{lo}:")
                if idx + 2 < 32: rd(idx + 2, t)
                if t == 1 and idx in dma:
                    g(dma[idx]); issued += 1
                if 7 <= idx < 14 and t != 1: self.take(f3fill, 2)
            if ph == 3 and pr < 3:
                g(f"s_waitcnt vmcnt({issued - 6*(pr+2)})")
                self.signal_cnt(C_W0 + 4*(pr+1), VCNT, VONE)
                extra = 1
            if ph == 4 and pr < 3:
                g(f"ds_read_b32 {v(T)}, {v(VCNT)} offset:{C_W0 + 4*(pr+1)}")
                extra = 1
            if o.get("fdetail") and idx % 4 == 3:
                self.mute = True
                self.stamp(4 + idx // 4, True)
            if k == 0 and not o.get("x_nocs"):
                for t in range(3):
                    cc = "0" if idx == 0 else v(CS+4*t, 4)
                    g(f"v_mfma_f32_16x16x32_bf16 {v(CS+4*t,4)}, {v(NM,4)}, {v(b+4*t,4)}, {cc}")
            if idx == 29:
                g(f"""s_lshl_b32 {s(S_U0)}, {s(S_WI)}, 2
                      s_add_u32 {s(S_U0)}, {s(S_U0)}, {L_CSF}
                      v_lshl_add_u32 {v(T)}, v0, 4, {s(S_U0)}
                      v_lshlrev_b32 {v(T+1)}, 4, v0
                      v_add_u32 {v(T+1)}, {L_CSF}, {v(T+1)}""")
                for t in range(3): g(f"ds_write_b32 {v(T)}, {v(CS+4*t)} offset:{1024*t}")
                self.signal_cnt(C_CSF, VCNT, VONE)
                self.signal_cnt(C_W1D, VCNT, VONE)
                extra = 5
            if idx == 30:
                extra = 0
                self.recheck(xs_load, [XS+1], 12)
                g(f"""v_lshlrev_b32 {v(T+2)}, 16, {v(XS)}
                      v_and_b32 {v(RS)}, 0xffff0000, {v(XS)}
                      v_rcp_f32 {v(RS)}, {v(RS)}
                      v_cvt_pk_bf16_f32 {v(NM)}, -{v(T+2)}, -{v(T+2)}
                      v_mul_f32 {v(NRS)}, 0xbfb8aa3b, {v(RS)}
                      v_mov_b32 {v(NM+1)}, {v(NM)}
                      v_mov_b32 {v(NM+2)}, 0
                      v_mov_b32 {v(NM+3)}, 0""")
        self.stamp(4)
        CB = WF + 24
        rds = "\n".join(f"ds_read_b128 {v(CB+4*t,4)}, {v(T+1)} offset:{1024*t}" for t in range(3))
        self.spin_cnt(C_CSF, VCNT, T, rds)
        for t in range(3):
            b = CB + 4*t
            g(f"""v_add_f32 {v(b)}, {v(b)}, {v(b+1)}
                  v_add_f32 {v(b+2)}, {v(b+2)}, {v(b+3)}
                  v_add_f32 {v(b+2)}, {v(b)}, {v(b+2)}""")
            self.split3(b+2, b, b+1, T, T+2)
            g(f"""v_mov_b32 {v(b+2)}, 0
                  v_mov_b32 {v(b+3)}, 0
                  s_nop 1
                  v_mfma_f32_32x32x16_bf16 {v(ACC+16*t,16)}, {v(b,4)}, {v(NM,4)}, {v(ACC+16*t,16)}""")
        self.stamp(5)
        g.c("SiLU + store")
        g(f"s_setprio {o.get('fprio_silu', 3)}")
        PB = 11
        g(f"""s_lshl_b32 {s(S_U0)}, {s(S_MT)}, 2
              s_add_u32 {s(S_U0)}, {s(S_U0)}, {s(S_WI)}
              s_mul_i32 {s(S_U0)}, {s(S_U0)}, {NKS}
              s_lshl_b32 {s(S_U1)}, {s(S_T1)}, 1
              s_add_u32 {s(S_U0)}, {s(S_U0)}, {s(S_U1)}
              s_add_u32 {s(S_U0)}, {s(S_U0)}, 64
              s_lshl_b32 {s(S_U2)}, {s(S_U0)}, 10
              v_lshlrev_b32 {v(PB)}, 4, v0""")
        lsk = g.lab("NOT2")
        for t in range(3):
            a = ACC + 16*t
            if t == 2:
                g(f"""s_and_b32 {s(S_U0)}, {s(S_G)}, 3
                      s_cmp_eq_u32 {s(S_U0)}, 3
                      s_cbranch_scc1 {lsk}
                      s_add_u32 {s(S_U2)}, {s(S_U2)}, 4096""")
            for hf in range(2):
                e = WF if hf == 0 else WF + 8
                z = a + 8*hf
                for i in range(0, 8, 2): g(f"v_pk_mul_f32 {v(e+i,2)}, {v(z+i,2)}, {v(RS,2)} op_sel:[0,1] op_sel_hi:[1,1]")
                for i in range(8):
                    g(f"v_exp_f32 {v(e+i)}, {v(e+i)}")
                    if i & 1: g(f"v_pk_mul_f32 {v(z+i-1,2)}, {v(z+i-1,2)}, {v(RS,2)} op_sel_hi:[1,0]")
                for i in range(0, 8, 2): g(f"v_pk_add_f32 {v(e+i,2)}, {v(e+i,2)}, 1.0 op_sel_hi:[1,0]")
                for i in range(8): g(f"v_rcp_f32 {v(e+i)}, {v(e+i)}")
                for i in range(0, 8, 2): g(f"v_pk_mul_f32 {v(z+i,2)}, {v(z+i,2)}, {v(e+i,2)}")
                d = CS + 4*hf
                for i in range(4): g(f"v_cvt_pk_bf16_f32 {v(d+i)}, {v(a+8*hf+2*i)}, {v(a+8*hf+2*i+1)}")
                if 2*t + hf == 2:
                    g("s_waitcnt vmcnt(2)")
                    self.signal_cnt(C_B1, VCNT, VONE)
                g(f"buffer_store_dwordx4 {v(d,4)}, {v(PB)}, {s(R_WS,4)}, {s(S_U2)} offen offset:{((2*t+hf)&3)*1024} sc1")
        g(f"{lsk}:")
        self.stamp(6)

        g.c("---------------- F phase 2 ----------------")
        A2 = 176
        BR = 96
        AB = 48
        BTm = 240
        WB = 6
        VA = 8
        T2 = 40
        T = 44
        NR = 10
        self.w2_own_setup(S_T2, S_WO)
        g(f"""v_lshrrev_b32 {v(T2)}, 5, v0
              v_bfe_u32 {v(T2+1)}, v0, 2, 2
              v_lshl_add_u32 {v(T2)}, {v(T2)}, 2, {v(T2+1)}
              v_lshlrev_b32 {v(T2)}, 7, {v(T2)}
              v_bfe_u32 {v(T2+1)}, v0, 3, 1
              v_lshl_add_u32 {v(T2)}, {v(T2+1)}, 6, {v(T2)}
              v_bfe_u32 {v(T2+1)}, v0, 4, 1
              v_lshl_add_u32 {v(T2)}, {v(T2+1)}, 5, {v(T2)}
              v_and_b32 {v(T2+1)}, 3, v0
              v_lshl_add_u32 {v(T2)}, {v(T2+1)}, 3, {v(T2)}
              v_add_u32 {v(WB)}, {s(S_T2)}, {v(T2)}
              v_xor_b32 {v(WB+1)}, 64, {v(WB)}
              s_and_b32 {s(S_U0)}, {s(S_WI)}, 2
              s_lshl_b32 {s(S_U0)}, {s(S_U0)}, 1
              v_add_u32 {v(T2+2)}, {s(S_U0)}, {v(VCNT)}""")
        def bread(dst, lks):
            for ct in range(2):
                for u in range(2):
                    g(f"ds_read_b64_tr_b16 {v(dst+4*ct+2*u,2)}, {v(WB+ct)} offset:{lks*2048+u*1024}")
        g(f"""s_mul_i32 {s(S_XO)}, {s(S_RT)}, {2*NKS}
              s_mul_i32 {s(S_U0)}, {s(S_WI)}, 22
              s_add_u32 {s(S_XO)}, {s(S_XO)}, {s(S_U0)}
              s_add_u32 {s(S_XO)}, {s(S_XO)}, 64
              s_lshl_b32 {s(S_XO)}, {s(S_XO)}, 10
              s_mul_i32 {s(S_U0)}, {s(S_WI)}, 12288
              v_add_u32 {v(T)}, {s(S_U0)}, {v(PB)}
              v_add_u32 {v(T+1)}, {s(S_T2)}, {v(PB)}""")
        self.out_setup(VA, 2, PB)
        self.set_flag(WS_FLAGF, VZ, T2+3, 0)
        g(f"s_setprio {o.get('fprio2', 0)}")
        self.spin_cnt(C_B1, T2+2, T2)
        self.stamp(7)
        for ks in range(NR):
            bread(BR + 8*ks, ks)
            if ks % 2 == 1: g("s_waitcnt lgkmcnt(4)")
        g("s_waitcnt lgkmcnt(0)")
        fb = o.get("f_b2a", 6)
        self.w2_issue(VD, S_T2, S_WO, 12, fb, 0)
        self.poll_issue(WS_FLAGF)
        self.w2_issue(VD, S_T2, S_WO, 12 + fb, 10 - fb, fb)
        self.stamp(8)
        self.poll_finish()
        self.stamp(9)
        BT = [240, 248, 32]
        N2, D = 44, 12
        def aload(i):
            rb, ks = divmod(i, 22)
            if ks % 4 == 0: g(f"s_add_u32 {s(S_U0)}, {s(S_XO)}, {(rb*NKS + ks)*1024}")
            g(f"buffer_load_dwordx4 {v(AB+4*(i%D),4)}, {v(PB)}, {s(R_WS,4)}, {s(S_U0)} offen offset:{(ks%4)*1024} sc1")
        for i in range(D): aload(i)
        for i in range(N2):
            rb, ks = divmod(i, 22)
            inl = lambda j: j < N2 and j % 22 >= NR
            w = f"s_waitcnt vmcnt({min(N2, i+D) - i - 1})"
            if inl(i): w += f" lgkmcnt({4 if inl(i+1) else 0})"
            g(w)
            bs = BT[i % 3] if inl(i) else BR + 8*ks
            for ct in range(2):
                d = A2 + 16*(2*rb+ct)
                g(f"v_mfma_f32_32x32x16_bf16 {v(d,16)}, {v(AB+4*(i%D),4)}, {v(bs+4*ct,4)}, {'0' if ks == 0 else v(d,16)}")
                if ct == 0 and inl(i+2): bread(BT[(i+2) % 3], ((i+2) % 22) % 12)
                if ct == 0 and 24 <= i < 28:
                    for u in range(2):
                        x = 2*(i-24) + u
                        g(f"ds_write_b128 {v(T)}, {v(A2+4*x,4)} offset:{4096 + x*1024}")
            if i + D < N2: aload(i + D)
            if i == 23: self.spin_cnt(C_SR, VCNT, T+2)
            if i == 27:
                self.signal_cnt(C_FM, VCNT, VONE)
                g(f"ds_read_b128 {v(40,4)}, v4 offset:{2*12288}")
        self.stamp(10)
        g("s_nop 7\ns_nop 3")
        for x in range(8):
            g(f"ds_write_b128 {v(T+1)}, {v(A2+32+4*x,4)} offset:{x*1024}")
        g("s_waitcnt lgkmcnt(0)\ns_barrier")
        self.final_piece(1, 40, BR, VA, 2)
        le = g.lab("NOEP")
        g(f"""s_lshl_b32 {s(S_U0)}, {s(S_RT)}, 5
              s_lshl_b32 {s(S_U1)}, {s(S_NT)}, 2
              s_add_u32 {s(S_U0)}, {s(S_U0)}, {s(S_U1)}
              s_add_u32 {s(S_U0)}, {s(S_U0)}, {s(S_WI)}
              s_cmp_lg_u32 {s(S_U0)}, {31*32}
              s_cbranch_scc1 {le}
              v_mov_b32 {v(T)}, {s(S_TAG)}
              s_mov_b32 {s(S_U0)}, {hex(WS_EPOCH)}
              s_mov_b64 exec, 1
              buffer_store_dword {v(T)}, {v(VZ)}, {s(R_WS,4)}, {s(S_U0)} offen
              s_mov_b64 exec, -1""")
        g(f"{le}:")
        self.stamp(11)
        self.stamps_out(T, 'F')
        g("s_endpgm")

    def out_setup(self, VO, VL, VL16):
        self.g(f"""v_and_b32 {v(VO)}, 31, v0
              v_lshlrev_b32 {v(VO)}, 2, {v(VO)}
              v_and_b32 {v(VL)}, 32, v0
              v_lshl_add_u32 {v(VO)}, {v(VL)}, 10, {v(VO)}
              s_lshl_b32 {s(S_U0)}, {s(S_WI)}, 10
              v_add_u32 {v(VL+2)}, {s(S_U0)}, {v(VL16)}
              v_add_u32 {v(VL)}, {W1B}, {v(VL+2)}
              v_add_u32 {v(VL+1)}, {W1B + 3*SLOT}, {v(VL+2)}
              s_lshl_b32 {s(S_T0)}, {s(S_RT)}, 17
              s_lshl_b32 {s(S_U0)}, {s(S_WI)}, 13
              s_add_u32 {s(S_T0)}, {s(S_T0)}, {s(S_U0)}
              s_lshl_b32 {s(S_U0)}, {s(S_NT)}, 8
              s_add_u32 {s(S_T0)}, {s(S_T0)}, {s(S_U0)}""")

    def sum_store(self, ACC, TMP, VO, rb, ct, first_wait):
        g = self.g
        g(f"""s_add_u32 {s(S_U0)}, {s(S_T0)}, {rb*65536 + ct*128}
              s_add_u32 {s(S_U1)}, {s(S_U0)}, 4096
              s_waitcnt lgkmcnt({first_wait + 2})""")
        for j in range(4): g(f"v_add_f32 {v(ACC+j)}, {v(ACC+j)}, {v(TMP+j)}")
        for j in range(4): g(f"v_add_f32 {v(ACC+j)}, {v(ACC+j)}, {v(TMP+4+j)}")
        g(f"s_waitcnt lgkmcnt({first_wait})")
        for j in range(4): g(f"v_add_f32 {v(TMP+8+j)}, {v(TMP+8+j)}, {v(TMP+12+j)}")
        for j in range(4):
            g(f"""v_add_f32 {v(ACC+j)}, {v(ACC+j)}, {v(TMP+8+j)}
                  buffer_store_dword {v(ACC+j)}, {v(VO)}, {s(R_OUT,4)}, {s(S_U0 if j < 2 else S_U1)} offen offset:{(j&1)*2048}{self.o.get('out_pol',' sc1')}""")

    def final_piece(self, ct, ACC, TMP, VO, VL):
        g = self.g
        for q in range(4):
            g(f"ds_read_b128 {v(TMP+4*q,4)}, {v(VL + (q == 3))} offset:{(q % 3)*SLOT + ct*4096}")
        self.sum_store(ACC, TMP, VO, 1, ct, 0)

    def gather3(self, base, stride, dst, T):
        g = self.g
        for d in range(1, 4):
            g(f"""s_xor_b32 {s(S_U0)}, {s(S_WI)}, {d}
                  s_mul_i32 {s(S_U0)}, {s(S_U0)}, {stride}
                  s_add_u32 {s(S_U0)}, {s(S_U0)}, {base + (d-1)*4096}
                  v_lshl_add_u32 {v(T)}, v0, 4, {s(S_U0)}""")
            for q in range(4):
                g(f"ds_read_b128 {v(dst+16*(d-1)+4*q,4)}, {v(T)} offset:{q*1024}")

    def a_setup(self, VA, ks_base, per_wave, T):
        g = self.g
        g(f"""s_lshr_b32 {s(S_U0)}, {s(S_WI)}, 1
              s_mul_i32 {s(S_U1)}, {s(S_U0)}, {NKS*1024}
              s_sub_u32 {s(S_U2)}, {NKS*1024}, {s(S_U1)}
              v_lshl_add_u32 {v(VA)}, v0, 4, {s(S_U1)}
              v_lshl_add_u32 {v(VA+1)}, v0, 4, {s(S_U2)}
              s_mul_i32 {s(S_XO)}, {s(S_RT)}, {2*NKS}
              s_mul_i32 {s(S_U0)}, {s(S_WI)}, {per_wave}
              s_add_u32 {s(S_XO)}, {s(S_XO)}, {s(S_U0)}
              s_add_u32 {s(S_XO)}, {s(S_XO)}, {ks_base}
              s_lshl_b32 {s(S_XO)}, {s(S_XO)}, 10""")

    def p2_loop(self, n, VA, AB, A2, bsrc, pre, mid, soff, init0=False):
        g = self.g
        D = 6
        def aload(ks):
            if ks % 2 == 0: soff(ks)
            for rb in range(2):
                g(f"buffer_load_dwordx4 {v(AB+8*(ks%D)+4*rb,4)}, {v(VA+rb)}, {s(R_WS,4)}, {s(S_U0)} offen offset:{(ks%2)*1024} sc1")
        for ks in range(D): aload(ks)
        for ks in range(n):
            pre(ks)
            g(f"s_waitcnt vmcnt({2*(min(n, ks+D) - ks - 1)})")
            for rb in range(2):
                for ct in range(2):
                    d = A2 + 16*(2*rb+ct)
                    cc = "0" if ks == 0 and not (init0 and rb == 0 and ct == 0) else v(d, 16)
                    g(f"v_mfma_f32_32x32x16_bf16 {v(d,16)}, {v(AB+8*(ks%D)+4*rb,4)}, {v(bsrc(ks)+4*ct,4)}, {cc}")
                    if rb == 0 and ct == 0: mid(ks)
            if ks + D < n: aload(ks + D)
        g("s_nop 7\ns_nop 7")

    def swave(self):
        g = self.g; o = self.o
        BR = 128
        WR, WI_ = BR + 80, BR + 112
        UR, UI = 96, 112
        FR = 48
        XA, BA = 2, 6
        LA, LB = 10, 11
        L16, L128, W0, KA, GS = 12, 14, 16, 18, 20
        VCNT, VONE, VZ = 22, 23, 24
        SEGV, NLB = 25, 26
        VXS, VCS = 1, 27
        T = 28
        XS, CG = BR, BR + 2
        OP = BR + 4
        RSV = BR + 16
        VD, TRW, TRR, LB1, LB2, VW, VL16 = 36, 40, 41, 42, 43, 44, 47
        R_W1 = R_OUT
        self.mute = False
        g("L_SWAVE:")
        g.c("---------------- S wave ----------------")
        g(f"""v_lshlrev_b32 {v(T+4)}, 4, v0
              s_lshl_b32 {s(S_T0)}, {s(S_MT)}, 7
              s_lshl_b32 {s(S_T1)}, {s(S_G)}, 3
              s_add_u32 {s(S_T0)}, {s(S_T0)}, {s(S_T1)}
              s_lshl_b32 {s(S_T1)}, {s(S_WI)}, 1
              s_add_u32 {s(S_T0)}, {s(S_T0)}, {s(S_T1)}
              s_lshl_b32 {s(S_U0)}, {s(S_T0)}, 10
              s_lshl_b32 {s(S_T1)}, {s(S_MT)}, 2
              s_add_u32 {s(S_T1)}, {s(S_T1)}, {s(S_WI)}
              s_and_b32 {s(S_U1)}, {s(S_T1)}, 31
              s_lshl_b32 {s(S_U2)}, {s(S_G)}, 5
              s_add_u32 {s(S_U1)}, {s(S_U1)}, {s(S_U2)}
              s_lshl_b32 {s(S_U1)}, {s(S_U1)}, 10
              s_mov_b32 {s(R_X+2)}, {hex(2048*512*2)}
              s_mov_b32 {s(R_X+3)}, 0x20000
              s_mov_b32 {s(R_A+2)}, {hex(512*512*2)}
              s_mov_b32 {s(R_A+3)}, 0x20000
              v_and_b32 {v(T)}, 31, v0
              v_lshlrev_b32 {v(T)}, 1, {v(T)}
              s_lshl_b32 {s(S_U2)}, {s(S_G)}, 6
              v_add_u32 {v(T)}, {s(S_U2)}, {v(T)}
              s_cmp_ge_u32 {s(S_MT)}, 8
              s_waitcnt lgkmcnt(0)
              s_mov_b32 {s(R_X)}, {s(P_X)}
              s_mov_b32 {s(R_X+1)}, {s(P_X+1)}
              s_cselect_b32 {s(R_A)}, {s(P_BIM)}, {s(P_BRE)}
              s_cselect_b32 {s(R_A+1)}, {s(P_BIM+1)}, {s(P_BRE+1)}
              buffer_load_dwordx4 {v(FR,4)}, {v(T+4)}, {s(R_X,4)}, {s(S_U0)} offen
              buffer_load_dwordx4 {v(FR+4,4)}, {v(T+4)}, {s(R_X,4)}, {s(S_U0)} offen offset:1024
              buffer_load_dwordx4 {v(FR+8,4)}, {v(T+4)}, {s(R_A,4)}, {s(S_U1)} offen
              global_load_ushort {v(T+1)}, {v(T)}, {s(P_LRE,2)}
              global_load_ushort {v(T+2)}, {v(T)}, {s(P_LIM,2)}
              global_load_ushort {v(T+3)}, {v(T)}, {s(P_LDT,2)}""")
        self.epoch()
        if o.get("codepf", 1):
            lp = g.lab("NOPF")
            g(f"""s_cmp_lg_u32 {s(S_WI)}, 0
                  s_cbranch_scc1 {lp}
                  s_getpc_b64 {s(R_B,2)}""")
            g("L_PC:")
            g(f"""s_sub_u32 {s(R_B)}, {s(R_B)}, L_PC-{NAME}_kernel
                  s_subb_u32 {s(R_B+1)}, {s(R_B+1)}, 0
                  s_mov_b32 {s(R_B+2)}, L_CODE_END-{NAME}_kernel
                  s_mov_b32 {s(R_B+3)}, 0x20000
                  s_lshr_b32 {s(S_U0)}, s2, 3
                  s_lshl_b32 {s(S_U0)}, {s(S_U0)}, 10
                  buffer_load_dwordx4 {v(FR+12,4)}, {v(T+4)}, {s(R_B,4)}, {s(S_U0)} offen""")
            g(f"{lp}:")
        npf_ = 0
        pf = o.get("pf", "c2")
        if pf:
            g(f"""s_lshl_b32 {s(S_U0)}, s2, 2
                  s_add_u32 {s(S_U0)}, {s(S_U0)}, {s(S_WI)}
                  s_lshl_b32 {s(S_U0)}, {s(S_U0)}, 10
                  s_mov_b32 {s(R_W2+2)}, {hex(1376*1024)}
                  s_mov_b32 {s(R_W2+3)}, 0x20000""")
            if "1" in pf:
                g(f"""s_mov_b32 {s(R_W2)}, {s(P_W1)}
                      s_mov_b32 {s(R_W2+1)}, {s(P_W1+1)}
                      s_lshl_b32 {s(S_U1)}, {s(S_WI)}, 8
                      s_add_u32 {s(S_U1)}, {s(S_U1)}, s2
                      s_lshl_b32 {s(S_U1)}, {s(S_U1)}, 10
                      s_add_u32 {s(S_U1)}, {s(S_U1)}, {1 << 20}
                      buffer_load_dwordx4 {v(BR+48,4)}, {v(T+4)}, {s(R_W2,4)}, {s(S_U0)} offen
                      buffer_load_dwordx4 {v(BR+52,4)}, {v(T+4)}, {s(R_W2,4)}, {s(S_U1)} offen""")
                npf_ += 2
            if "c" in pf:
                g(f"""s_bitcmp1_b32 {s(S_WI)}, 0
                      s_cselect_b32 {s(R_B)}, {s(P_CIM)}, {s(P_CRE)}
                      s_cselect_b32 {s(R_B+1)}, {s(P_CIM+1)}, {s(P_CRE+1)}
                      s_mov_b32 {s(R_B+2)}, {hex(512*1024)}
                      s_mov_b32 {s(R_B+3)}, 0x20000
                      s_lshr_b32 {s(S_U1)}, {s(S_U0)}, 11
                      s_lshl_b32 {s(S_U1)}, {s(S_U1)}, 10
                      buffer_load_dwordx4 {v(BR+56,4)}, {v(T+4)}, {s(R_B,4)}, {s(S_U1)} offen""")
                npf_ += 1
            if "2" in pf:
                g(f"""s_mov_b32 {s(R_W2)}, {s(P_W2)}
                      s_mov_b32 {s(R_W2+1)}, {s(P_W2+1)}
                      s_xor_b32 {s(S_U1)}, {s(S_WI)}, 3
                      s_lshl_b32 {s(S_U1)}, {s(S_U1)}, 8
                      s_add_u32 {s(S_U1)}, {s(S_U1)}, s2
                      s_lshl_b32 {s(S_U1)}, {s(S_U1)}, 10
                      s_add_u32 {s(S_U1)}, {s(S_U1)}, {1 << 20}
                      buffer_load_dwordx4 {v(BR+60,4)}, {v(T+4)}, {s(R_W2,4)}, {s(S_U0)} offen
                      buffer_load_dwordx4 {v(BR+64,4)}, {v(T+4)}, {s(R_W2,4)}, {s(S_U1)} offen""")
                npf_ += 2
        g(f"""v_mov_b32 {v(VCNT)}, {L_CNT}
              v_mov_b32 {v(VONE)}, 1
              v_mov_b32 {v(VZ)}, 0
              v_lshlrev_b32 {v(T+5)}, 2, v0
              v_add_u32 {v(T+5)}, {L_CNT}, {v(T+5)}
              ds_write_b32 {v(T+5)}, {v(VZ)}
              s_mov_b32 {s(S_ONES)}, 0x3f803f80""")
        srd(g, R_WS, P_WS, WS_BYTES); srd(g, R_W2, P_W2, 1376 * 512 * 2)
        self.frag_pat(BA, T+6, T+7, False)
        g(f"s_lshl_b32 {s(S_T3)}, {s(S_WI)}, 12")
        for k in range(4):
            g(f"v_add_u32 {v(XA+k)}, {s(S_T3)}, {v(BA+k)}\nv_add_u32 {v(BA+k)}, 16384, {v(BA+k)}")
        for r in (2, 3, 6, 7, 10, 11): g(f"v_mov_b32 {v(OP+r)}, 0")
        self.tau(VXS, T+6)
        A5 = BR + 32
        SO = BR + 38
        g(f"""s_lshl_b32 {s(S_U0)}, {s(S_MT)}, 10
              s_lshl_b32 {s(S_U1)}, {s(S_WI)}, 8
              s_add_u32 {s(S_U0)}, {s(S_U0)}, {s(S_U1)}
              s_add_u32 {s(S_U0)}, {s(S_U0)}, {hex(WS_XS)}
              v_lshl_add_u32 {v(VXS)}, {v(VXS)}, 3, {s(S_U0)}
              s_lshl_b32 {s(S_T4)}, {s(S_G)}, 9
              s_add_u32 {s(S_T4)}, {s(S_T4)}, {hex(WS_CSG)}
              v_lshl_add_u32 {v(VCS)}, v0, 3, {s(S_T4)}
              v_lshrrev_b32 {v(SEGV)}, 5, v0
              v_lshlrev_b32 {v(SO)}, 3, {v(SEGV)}
              s_lshl_b32 {s(S_U0)}, {s(S_WI)}, 1
              v_add_u32 {v(SEGV)}, {s(S_U0)}, {v(SEGV)}""")
        for k in range(5): g(f"v_mov_b32 {v(A5+k)}, 0")
        g(f"""s_lshl_b32 {s(S_V1)}, {s(S_T0)}, 3
              s_add_u32 {s(S_V1)}, {s(S_V1)}, {hex(WS_XS)}
              s_lshl_b32 {s(S_XO)}, {s(S_T1)}, 3
              s_add_u32 {s(S_XO)}, {s(S_XO)}, {s(S_T4)}""")
        TB = BR + 40
        def addrs():
            self.lane8_pat(TB, TB+1, TB+2)
            g(f"""v_lshl_or_b32 {v(VD)}, {v(TB+1)}, 10, {v(TB)}
              v_add_u32 {v(VD+1)}, 7168, {v(VD)}
              v_xor_b32 {v(VD+1)}, 64, {v(VD+1)}
              v_add_u32 {v(VD+2)}, {2*7168}, {v(VD)}
              v_add_u32 {v(VD+3)}, {2*7168}, {v(VD+1)}
              s_mul_i32 {s(S_T2)}, {s(S_WI)}, 12288
              s_lshl_b32 {s(S_WO)}, {s(S_NT)}, 16
              s_lshl_b32 {s(S_U1)}, {s(S_WI)}, 8
              s_add_u32 {s(S_WO)}, {s(S_WO)}, {s(S_U1)}
              s_and_b32 {s(S_U1)}, {s(S_ROT)}, 2
              s_lshl_b32 {s(S_U1)}, {s(S_U1)}, 6
              s_add_u32 {s(S_WO)}, {s(S_WO)}, {s(S_U1)}
              s_and_b32 {s(S_U1)}, {s(S_WI)}, 1
              s_lshl_b32 {s(S_U1)}, {s(S_U1)}, 15
              s_xor_b32 {s(S_BO)}, {s(S_U1)}, 0x8000
              s_add_u32 {s(S_BO)}, {s(S_BO)}, {s(S_WO)}
              s_add_u32 {s(S_WO)}, {s(S_WO)}, {s(S_U1)}
              v_and_b32 {v(TB)}, 31, v0
              v_lshlrev_b32 {v(TB+1)}, 1, {v(SEGV)}
              v_sub_u32 {v(TB+1)}, {s(S_MT)}, {v(TB+1)}
              v_cmp_le_i32 {s(S_EX,2)}, 1, {v(TB+1)}
              v_cmp_le_i32 {s(S_MK,2)}, 2, {v(TB+1)}
              v_lshlrev_b32 {v(TB+1)}, 9, {v(TB+1)}
              v_lshl_add_u32 {v(TB+1)}, {v(TB)}, 4, {v(TB+1)}
              v_subrev_u32 {v(LB1)}, 512, {v(TB+1)}
              v_subrev_u32 {v(LB2)}, 1024, {v(TB+1)}
              v_mov_b32 {v(TB+2)}, 0x40000000
              v_cndmask_b32 {v(LB1)}, {v(TB+2)}, {v(LB1)}, {s(S_EX,2)}
              v_cndmask_b32 {v(LB2)}, {v(TB+2)}, {v(LB2)}, {s(S_MK,2)}
              s_lshl_b32 {s(S_U0)}, {s(S_WI)}, 11
              s_add_u32 {s(S_U0)}, {s(S_U0)}, {L_TR}
              v_lshl_add_u32 {v(TRW)}, {v(TB)}, 6, {s(S_U0)}
              v_and_b32 {v(TRR)}, 32, v0
              v_add_u32 {v(TRW)}, {v(TRW)}, {v(TRR)}
              v_lshlrev_b32 {v(TRR)}, 4, {v(TRR)}
              v_bfe_u32 {v(TB+3)}, v0, 2, 2
              v_lshl_add_u32 {v(TRR)}, {v(TB+3)}, 6, {v(TRR)}
              v_and_b32 {v(TB+3)}, 1, v0
              v_lshl_add_u32 {v(TRR)}, {v(TB+3)}, 5, {v(TRR)}
              v_and_b32 {v(TB+3)}, 16, v0
              v_add_u32 {v(TRR)}, {v(TRR)}, {v(TB+3)}
              v_and_b32 {v(TB+3)}, 2, v0
              v_lshl_add_u32 {v(TRR)}, {v(TB+3)}, 2, {v(TRR)}
              v_add_u32 {v(TRR)}, {s(S_U0)}, {v(TRR)}
              v_lshlrev_b32 {v(VL16)}, 4, v0
              s_lshl_b32 {s(S_U0)}, {s(S_MT)}, 2
              s_add_u32 {s(S_U0)}, {s(S_U0)}, {s(S_WI)}
              s_mul_i32 {s(S_U0)}, {s(S_U0)}, {NKS}
              s_lshl_b32 {s(S_U1)}, {s(S_G)}, 2
              s_add_u32 {s(S_U0)}, {s(S_U0)}, {s(S_U1)}
              s_lshl_b32 {s(S_T0)}, {s(S_U0)}, 10""")
        addrs()
        g(f"s_waitcnt vmcnt({npf_}) lgkmcnt(0)")
        self.epoch_fin()
        for k in range(4):
            g(f"""v_dot2c_f32_bf16 {v(A5)}, {s(S_ONES)}, {v(FR+k)}
                  v_dot2c_f32_bf16 {v(A5+1)}, {s(S_ONES)}, {v(FR+4+k)}
                  v_dot2c_f32_bf16 {v(A5+2)}, {v(FR+k)}, {v(FR+k)}
                  v_dot2c_f32_bf16 {v(A5+3)}, {v(FR+4+k)}, {v(FR+4+k)}
                  v_dot2c_f32_bf16 {v(A5+4)}, {s(S_ONES)}, {v(FR+8+k)}""")
        SX, SQ, CC = A5, A5+2, A5+4
        def stats():
            g(f"""s_nop 2
              v_mov_b32 {v(A5+5)}, {v(CC)}
              v_permlane32_swap_b32 {v(A5)}, {v(A5+1)}
              v_permlane32_swap_b32 {v(A5+2)}, {v(A5+3)}
              v_permlane32_swap_b32 {v(CC)}, {v(A5+5)}
              v_add_f32 {v(SX)}, {v(A5)}, {v(A5+1)}
              v_add_f32 {v(SQ)}, {v(A5+2)}, {v(A5+3)}
              v_add_f32 {v(CC)}, {v(CC)}, {v(A5+5)}
              v_mov_b32 {v(SX+1)}, {v(SX)}
              v_mov_b32 {v(SQ+1)}, {v(SQ)}
              v_mov_b32 {v(CC+1)}, {v(CC)}
              v_permlane16_swap_b32 {v(SX)}, {v(SX+1)}
              s_nop 0
              v_permlane16_swap_b32 {v(SQ)}, {v(SQ+1)}
              v_permlane16_swap_b32 {v(CC)}, {v(CC+1)}
              v_add_f32 {v(SX)}, {v(SX)}, {v(SX+1)}
              v_add_f32 {v(SQ)}, {v(SQ)}, {v(SQ+1)}
              v_add_f32 {v(CC)}, {v(CC)}, {v(CC+1)}""")
            for m in ("quad_perm:[1,0,3,2]", "quad_perm:[2,3,0,1]", "row_half_mirror", "row_mirror"):
                for r in (SX, SQ, CC):
                    g(f"v_add_f32_dpp {v(r)}, {v(r)}, {v(r)} {m} row_mask:0xf bank_mask:0xf")
            g(f"""v_mul_f32 {v(SX)}, 0x3b000000, {v(SX)}
              v_mul_f32 {v(SQ)}, 0x3b000000, {v(SQ)}
              v_fma_f32 {v(SQ)}, -{v(SX)}, {v(SX)}, {v(SQ)}
              v_max_f32 {v(SQ)}, 0, {v(SQ)}
              v_cvt_pk_bf16_f32 {v(SQ)}, {v(SQ)}, {v(SQ)}
              v_and_b32 {v(SQ)}, 0xffff0000, {v(SQ)}
              v_add_f32 {v(SQ)}, 0x3727c5ac, {v(SQ)}
              v_cvt_pk_bf16_f32 {v(SQ)}, {v(SQ)}, {v(SQ)}
              v_and_b32 {v(SQ)}, 0xffff0000, {v(SQ)}
              v_sqrt_f32 {v(SQ)}, {v(SQ)}
              v_mov_b32 {v(SX+1)}, {s(S_TAG)}
              v_mov_b32 {v(CC+1)}, {s(S_TAG)}
              v_cvt_pk_bf16_f32 {v(SX)}, {v(SX)}, {v(SQ)}
              ; {{
              s_mov_b32 exec_lo, 1
              s_mov_b32 exec_hi, 1
              buffer_store_dwordx2 {v(SX,2)}, {v(SO)}, {s(R_WS,4)}, {s(S_V1)} offen sc1
              s_mov_b32 exec_hi, 0
              buffer_store_dwordx2 {v(CC,2)}, {v(VZ)}, {s(R_WS,4)}, {s(S_XO)} offen sc1
              s_mov_b64 exec, -1
              ; }}""")
            g(f"""; {{
              s_bitcmp1_b32 {s(S_ROT)}, 0
              s_cselect_b32 {s(R_A)}, {s(P_CIM)}, {s(P_CRE)}
              s_cselect_b32 {s(R_A+1)}, {s(P_CIM+1)}, {s(P_CRE+1)}
              s_cselect_b32 {s(R_B)}, {s(P_CRE)}, {s(P_CIM)}
              s_cselect_b32 {s(R_B+1)}, {s(P_CRE+1)}, {s(P_CIM+1)}
              ; }}
              s_mov_b32 {s(R_B+2)}, {hex(512*512*2)}
              s_mov_b32 {s(R_B+3)}, 0x20000""")

        lr, li, dt = T+1, T+2, T+3
        def consts():
            g(f"""v_lshlrev_b32 {v(lr)}, 16, {v(lr)}
              v_lshlrev_b32 {v(li)}, 16, {v(li)}
              v_lshlrev_b32 {v(dt)}, 16, {v(dt)}
              v_mul_f32 {v(dt)}, 0x3fb8aa3b, {v(dt)}
              v_exp_f32 {v(dt)}, {v(dt)}
              s_nop 0
              v_cvt_pk_bf16_f32 {v(dt)}, {v(dt)}, {v(dt)}
              v_and_b32 {v(dt)}, 0xffff0000, {v(dt)}
              v_mul_f32 {v(T+4)}, {v(dt)}, {v(lr)}
              v_mul_f32 {v(T+5)}, {v(dt)}, {v(li)}
              v_mul_f32 {v(T+4)}, 0x3fb8aa3b, {v(T+4)}
              v_mul_f32 {v(T+5)}, 0.15915494, {v(T+5)}
              v_rndne_f32 {v(T+6)}, {v(T+5)}
              v_sub_f32 {v(T+5)}, {v(T+5)}, {v(T+6)}
              v_exp_f32 {v(T+4)}, {v(T+4)}
              v_cos_f32 {v(T+6)}, {v(T+5)}
              v_sin_f32 {v(T+7)}, {v(T+5)}
              v_mul_f32 {v(TB)}, {v(lr)}, {v(lr)}
              v_mul_f32 {v(LA)}, {v(T+4)}, {v(T+6)}
              v_mul_f32 {v(LB)}, {v(T+4)}, {v(T+7)}
              v_fmac_f32 {v(TB)}, {v(li)}, {v(li)}
              v_rcp_f32 {v(TB)}, {v(TB)}
              v_add_f32 {v(T+4)}, -1.0, {v(LA)}
              v_mul_f32 {v(KA)}, {v(T+4)}, {v(lr)}
              v_mul_f32 {v(KA+1)}, {v(LB)}, {v(lr)}
              v_fmac_f32 {v(KA)}, {v(LB)}, {v(li)}
              v_fma_f32 {v(KA+1)}, -{v(T+4)}, {v(li)}, {v(KA+1)}
              v_add_f32 {v(TB)}, {v(TB)}, {v(TB)}
              v_mul_f32 {v(KA)}, {v(KA)}, {v(TB)}
              v_mul_f32 {v(KA+1)}, {v(KA+1)}, {v(TB)}
              v_sub_f32 {v(NLB)}, 0, {v(LB)}""")
            a, b, c2 = T, T+2, T+4
            sq = lambda d, x: self.cmul(d, d+1, x, x+1, x, x+1)
            sq(a, LA); sq(b, a); sq(a, b); sq(L16, a)
            sq(a, L16); sq(b, a); sq(L128, b)
            g(f"""v_cmp_lt_u32 vcc, 31, v0
              s_nop 1
              v_cndmask_b32 {v(GS)}, 1.0, {v(L16)}, vcc
              v_cndmask_b32 {v(GS+1)}, 0, {v(L16+1)}, vcc
              s_bitcmp1_b32 {s(S_WI)}, 0
              s_cselect_b64 vcc, -1, 0
              v_cndmask_b32 {v(a)}, 1.0, {v(a)}, vcc
              v_cndmask_b32 {v(a+1)}, 0, {v(a+1)}, vcc
              s_bitcmp1_b32 {s(S_WI)}, 1
              s_cselect_b64 vcc, -1, 0
              v_cndmask_b32 {v(b)}, 1.0, {v(b)}, vcc
              v_cndmask_b32 {v(b+1)}, 0, {v(b+1)}, vcc""")
            self.cmul(c2, c2+1, GS, GS+1, a, a+1)
            self.cmul(GS, GS+1, c2, c2+1, b, b+1)
            sq(a, GS); sq(b, a); sq(a, b); sq(W0, a)
        def table():
            pr_, pi_ = KA, KA+1
            for j in range(16):
                g(f"""v_mul_f32 {v(WR+j)}, {v(LA)}, {v(pr_)}
                      v_mul_f32 {v(WI_+j)}, {v(LA)}, {v(pi_)}
                      v_fmac_f32 {v(WR+j)}, {v(NLB)}, {v(pi_)}
                      v_fmac_f32 {v(WI_+j)}, {v(LB)}, {v(pr_)}""")
                pr_, pi_ = WR+j, WI_+j
        fill = self.collect(lambda: (stats(), consts(), table()))
        take = lambda n: self.take(fill, n)
        self.stamp(1)

        NF = o.get("nfill", 7)
        g.c("stage A")
        if o.get("sprio", 1): g("s_setprio 2")
        def rd(k, off):
            f = FR + 12*k
            if o.get("x_nord"): return
            g(f"""ds_read_b128 {v(f,4)}, {v(XA+k)} offset:{off}
                  ds_read_b128 {v(f+4,4)}, {v(BA+k)} offset:{off}
                  ds_read_b128 {v(f+8,4)}, {v(BA+k)} offset:{off+4096}""")
        def m1(k, im):
            f = FR + 12*k; d = UI if im else UR
            if o.get("x_nomfma"): return
            cc = v(d,16) if started[im] else "0"
            started[im] = True
            g(f"v_mfma_f32_32x32x16_bf16 {v(d,16)}, {v(f,4)}, {v(f+4+4*im,4)}, {cc}")
        started = [False, False]
        gl = f"""buffer_load_dwordx2 {v(XS,2)}, {v(VXS)}, {s(R_WS,4)}, 0 offen sc1
                 buffer_load_dwordx2 {v(CG,2)}, {v(VCS)}, {s(R_WS,4)}, 0 offen sc1"""
        for c in range(8):
            off = (c % 3) * SLOT
            if c in (3, 6):
                op = "v_add_u32" if c == 3 else "v_subrev_u32"
                for k in range(8): g(f"{op} {v(XA+k)}, {3*SLOT}, {v(XA+k)}")
            g("s_barrier")
            rd(0, off); rd(1, off)
            if c == o.get("gl_at", 6): g(gl)
            if c:
                g("s_waitcnt lgkmcnt(6)")
                m1(2, 0); take(NF); m1(2, 1); rd(2, off); m1(3, 0); take(NF); m1(3, 1); rd(3, off)
            else:
                rd(2, off); rd(3, off)
            if c < 7:
                g("s_waitcnt lgkmcnt(9)")
                m1(0, 0); take(NF); m1(0, 1); take(NF)
                g("s_waitcnt lgkmcnt(6)")
                m1(1, 0); take(NF); m1(1, 1); take(NF)
        take(1000)
        g("s_waitcnt lgkmcnt(9)")
        m1(0, 0)
        self.recheck(gl, [XS+1, CG+1])
        m1(0, 1)
        g(f"""v_and_b32 {v(T+1)}, 0xffff0000, {v(XS)}
              v_rcp_f32 {v(T+1)}, {v(T+1)}
              v_lshrrev_b32 {v(T+2)}, 1, {v(VXS)}
              v_and_b32 {v(T+2)}, 0x1fc, {v(T+2)}
              v_add_u32 {v(T+2)}, {L_RS}, {v(T+2)}
              s_waitcnt lgkmcnt(6)""")
        m1(1, 0)
        g(f"""ds_write_b32 {v(T+2)}, {v(T+1)}
              v_lshlrev_b32 {v(T+3)}, 6, {v(SEGV)}
              v_add_u32 {v(T+3)}, {L_RS}, {v(T+3)}
              v_lshlrev_b32 {v(T+4)}, 16, {v(XS)}""")
        m1(1, 1)
        for k in range(4): g(f"ds_read_b128 {v(RSV+4*k,4)}, {v(T+3)} offset:{16*k}")
        g(f"""v_cvt_pk_bf16_f32 {v(OP)}, -{v(T+4)}, -{v(T+4)}
              s_waitcnt lgkmcnt(8)""")
        m1(2, 0)
        self.split3(CG, T+6, T+7, T+4, T+5)
        m1(2, 1)
        g(f"""v_cmp_gt_u32 vcc, 32, v0
              v_mov_b32 {v(OP+1)}, {v(OP)}
              v_and_b32 {v(T)}, 31, v0
              v_cndmask_b32 {v(OP+4)}, 0, {v(T+6)}, vcc
              v_cndmask_b32 {v(OP+5)}, 0, {v(T+7)}, vcc
              s_waitcnt lgkmcnt(5)""")
        m1(3, 0)
        g(f"""v_cndmask_b32 {v(OP+8)}, {v(T+6)}, {v(VZ)}, vcc
              v_cndmask_b32 {v(OP+9)}, {v(T+7)}, {v(VZ)}, vcc
              v_lshlrev_b32 {v(T+4)}, 3, {v(T)}
              v_add_u32 {v(T+4)}, {L_SEG}, {v(T+4)}
              v_lshl_add_u32 {v(T+5)}, {v(SEGV)}, 8, {v(T+4)}
              v_mfma_f32_32x32x16_bf16 {v(UR,16)}, {v(OP,4)}, {v(OP+4,4)}, {v(UR,16)}""")
        m1(3, 1)
        g(f"v_mfma_f32_32x32x16_bf16 {v(UI,16)}, {v(OP,4)}, {v(OP+8,4)}, {v(UI,16)}")
        self.stamp(2)
        if o.get("x_park"):
            g("s_sleep 100")
        g(f"""v_lshlrev_b32 {v(T+6)}, 4, {v(T)}
              s_lshl_b32 {s(S_T4)}, {s(S_G)}, 13
              s_add_u32 {s(S_T4)}, {s(S_T4)}, {hex(WS_AGG)}
              s_lshl_b32 {s(S_U0)}, {s(S_MT)}, 9
              s_add_u32 {s(S_U0)}, {s(S_U0)}, {s(S_T4)}
              s_waitcnt lgkmcnt(0)
              s_nop 3""")
        for r in range(16): g(f"v_mul_f32 {v(UR+r)}, {v(UR+r)}, {v(RSV+r)}")
        for r in range(16): g(f"v_mul_f32 {v(UI+r)}, {v(UI+r)}, {v(RSV+r)}")
        for r in range(1, 16):
            g(f"""v_fmac_f32 {v(UR+r)}, {v(LA)}, {v(UR+r-1)}
                  v_fmac_f32 {v(UI+r)}, {v(LA)}, {v(UI+r-1)}
                  v_fmac_f32 {v(UR+r)}, {v(NLB)}, {v(UI+r-1)}
                  v_fmac_f32 {v(UI+r)}, {v(LB)}, {v(UR+r-1)}""")
        g(f"ds_write2_b32 {v(T+5)}, {v(UR+15)}, {v(UI+15)} offset0:0 offset1:1")
        self.signal_cnt(C_S1, VCNT, VONE)
        E = FR
        g(f"""v_sub_f32 {v(T+7)}, 0, {v(L16+1)}
              v_mov_b32 {v(E+16)}, {s(S_TAG)}
              v_mov_b32 {v(E+17)}, {s(S_TAG)}""")
        self.stamp(3)
        rds = "\n".join(f"ds_read_b64 {v(E+2*k,2)}, {v(T+4)} offset:{256*k}" for k in range(8))
        self.spin_cnt(C_S1, VCNT, T+1, rds, tgt=8)
        for k in range(1, 8):
            g(f"""v_fmac_f32 {v(E+2*k)}, {v(L16)}, {v(E+2*k-2)}
                  v_fmac_f32 {v(E+2*k+1)}, {v(L16)}, {v(E+2*k-1)}
                  v_fmac_f32 {v(E+2*k)}, {v(T+7)}, {v(E+2*k-1)}
                  v_fmac_f32 {v(E+2*k+1)}, {v(L16+1)}, {v(E+2*k-2)}""")
        lnp = g.lab("NOPUB")
        g(f"""s_cmp_lg_u32 {s(S_WI)}, 0
              s_cbranch_scc1 {lnp}
              s_mov_b32 exec_hi, 0
              buffer_store_dwordx4 {v(E+14,4)}, {v(T+6)}, {s(R_WS,4)}, {s(S_U0)} offen sc1
              s_mov_b64 exec, -1""")
        g(f"{lnp}:")
        if o.get("sprio", 1): g("s_setprio 0")
        self.stamp(4)
        PC = BA
        hps = [(part, kh, ct) for kh in range(2) for part in range(2) for ct in range(2)]
        def c_issue(i):
            part, kh, ct = hps[i]
            g(f"""s_add_u32 m0, {s(S_T2)}, {(i%3)*4096}
                  s_xor_b32 {s(S_U1)}, {s(S_BO if ct else S_WO)}, {128*kh}""")
            for e in range(4):
                g(f"buffer_load_dwordx4 {v(VD+e)}, {s(R_B if part else R_A,4)}, {s(S_U1)} offen offset:{1024*e} lds")
        def c_read(i):
            part, kh, ct = hps[i]
            for k in range(4):
                gi = 2*kh + (k >> 1); cb = k & 1
                ks = 4*gi + 2*part + cb
                g(f"ds_read_b128 {v(BR+8*ks+4*ct,4)}, {v(PC+k)} offset:{(i%3)*4096}")
        PP, NG, TT = FR + 32, FR + 34, FR + 36
        def idle_a():
            g(f"""s_sub_u32 {s(S_U0)}, {s(S_T2)}, 16384
                  v_mov_b32 {v(PP)}, 0
                  v_mov_b32 {v(PP+1)}, 0
                  v_sub_f32 {v(NG)}, 0, {v(KA+1)}
                  v_add_u32 {v(T+5)}, {L_LBP - L_SEG}, {v(T+5)}
                  v_add_u32 {v(T+4)}, {L_LBP - L_SEG}, {v(T+4)}""")
            for k in range(4): g(f"v_add_u32 {v(PC+k)}, {s(S_U0)}, {v(PC+k)}")
        def kap(r):
            t = TT + (r & 1)
            if 1 <= r < 8: g(f"v_cmp_eq_u32 vcc, {r}, {v(SEGV)}")
            g(f"""v_mul_f32 {v(t)}, {v(KA+1)}, {v(UR+r)}
                  v_mul_f32 {v(UR+r)}, {v(KA)}, {v(UR+r)}
                  v_fmac_f32 {v(UR+r)}, {v(NG)}, {v(UI+r)}
                  v_fma_f32 {v(UI+r)}, {v(KA)}, {v(UI+r)}, {v(t)}""")
            if 1 <= r < 8:
                g(f"""v_cndmask_b32 {v(PP)}, {v(PP)}, {v(E+2*r-2)}, vcc
                      v_cndmask_b32 {v(PP+1)}, {v(PP+1)}, {v(E+2*r-1)}, vcc""")
        idle_a()
        c_issue(0)
        for r in range(0, 5): kap(r)
        c_issue(1)
        for r in range(5, 10): kap(r)
        c_issue(2)
        for r in range(10, 16): kap(r)
        LBn = FR + 20
        lbl = f"""buffer_load_dwordx4 {v(LBn,4)}, {v(LB1)}, {s(R_WS,4)}, {s(S_T4)} offen sc1
                  buffer_load_dwordx4 {v(LBn+4,4)}, {v(LB2)}, {s(R_WS,4)}, {s(S_T4)} offen sc1"""
        nrec = o.get("c_rec", 3)
        self.stamp(5)
        g(lbl)
        for i in range(nrec):
            g(f"s_waitcnt vmcnt(10)")
            c_read(i)
            g("s_waitcnt lgkmcnt(0)")
            c_issue(i + 3)
        l = g.lab("LB"); d = g.lab("LBD")
        g(f"""s_mov_b32 {s(S_SPIN)}, 0x40000
              s_waitcnt vmcnt({4*nrec})""")
        g(f"{l}:")
        g(f"""v_cmp_ne_u32 vcc, {s(S_TAG)}, {v(LBn+2)}
              v_cmp_ne_u32 s[100:101], {s(S_TAG)}, {v(LBn+6)}
              s_and_b64 vcc, vcc, {s(S_EX,2)}
              s_and_b64 s[100:101], s[100:101], {s(S_MK,2)}
              s_or_b64 vcc, vcc, s[100:101]
              s_cbranch_scc0 {d}
              s_sub_u32 {s(S_SPIN)}, {s(S_SPIN)}, 1
              s_cbranch_scc1 {d}
              s_sleep {o.get('lb_sleep', 2)}""")
        g(lbl)
        g(f"s_waitcnt vmcnt(0)\ns_branch {l}")
        g(f"{d}:")
        if o.get("sprio", 1): g("s_setprio 2")
        self.stamp(6)
        self.cfma(LBn, LBn+1, L128, L128+1, LBn+4, LBn+5, LBn, LBn+1)
        self.cmul(LBn+2, LBn+3, W0, W0+1, LBn, LBn+1)
        g(f"ds_write_b64 {v(T+5)}, {v(LBn+2,2)}")
        self.signal_cnt(C_S2, VCNT, VONE)
        self.spin_cnt(C_S2, VCNT, T+1, rds)
        if o.get("pdetail"): self.mute = True; self.stamp(7, True)
        for w in (4, 2, 1):
            for k in range(w):
                g(f"v_add_f32 {v(E+2*k)}, {v(E+2*k)}, {v(E+2*k+2*w)}\nv_add_f32 {v(E+2*k+1)}, {v(E+2*k+1)}, {v(E+2*k+2*w+1)}")
        self.cfma(PP, PP+1, GS, GS+1, E, E+1, PP, PP+1)
        g(f"v_sub_f32 {v(NG)}, 0, {v(PP+1)}")
        H = FR; O = FR + 16
        for part in range(2):
            U = UI if part else UR
            c1, c2_ = (PP+1, PP) if part else (PP, NG)
            for r in range(16): g(f"v_fmac_f32 {v(U+r)}, {v(WR+r)}, {v(c1)}")
            if part:
                g("s_waitcnt lgkmcnt(0)")
                if o.get("pdetail"): self.stamp(8, True)
                for cb in range(2):
                    g(f"buffer_store_dwordx4 {v(O+4*cb,4)}, {v(VL16)}, {s(R_WS,4)}, {s(S_T0)} offen offset:{cb*1024} sc1")
                if o.get("pdetail"): self.stamp(9, True)
            for r in range(16): g(f"v_fmac_f32 {v(U+r)}, {v(WI_+r)}, {v(c2_)}")
            ng = "-" if part else ""
            for i in range(8): g(f"v_cvt_pk_bf16_f32 {v(H+8*part+i)}, {ng}{v(U+2*i)}, {ng}{v(U+2*i+1)}")
            g(f"""ds_write_b128 {v(TRW)}, {v(H+8*part,4)}
                  ds_write_b128 {v(TRW)}, {v(H+8*part+4,4)} offset:16""")
            for cb in range(2):
                for u in range(2):
                    g(f"ds_read_b64_tr_b16 {v(O+8*part+4*cb+2*u,2)}, {v(TRR)} offset:{cb*1024+u*256}")
        VD2 = 2
        self.w2_voff(VD2, T); self.w2_coop_setup(S_T3, S_T1)
        g("s_waitcnt lgkmcnt(0)")
        if o.get("pdetail"): self.stamp(10, True)
        for cb in range(2):
            g(f"buffer_store_dwordx4 {v(O+8+4*cb,4)}, {v(VL16)}, {s(R_WS,4)}, {s(S_T0)} offen offset:{(2+cb)*1024} sc1")
        if o.get("sprio", 1): g("s_setprio 0")
        self.stamp(7)
        nl = 0
        G2, DS = 12, 17
        g(f"""s_lshr_b32 {s(S_U0)}, {s(S_WI)}, 1
              s_lshl_b32 {s(S_U1)}, {s(S_RT)}, 1
              s_add_u32 {s(S_U0)}, {s(S_U0)}, {s(S_U1)}
              s_lshl_b32 {s(S_U1)}, {s(S_NT)}, 7
              s_and_b32 {s(S_U2)}, {s(S_WI)}, 1
              s_lshl_b32 {s(S_U2)}, {s(S_U2)}, 6
              s_add_u32 {s(S_U1)}, {s(S_U1)}, {s(S_U2)}
              s_lshl_b32 {s(S_U2)}, {s(S_U0)}, 15
              s_add_u32 {s(S_U2)}, {s(S_U2)}, {s(S_U1)}
              s_lshl_b32 {s(S_U0)}, {s(S_U0)}, 8
              s_add_u32 {s(S_U0)}, {s(S_U0)}, {hex(WS_XS)}
              v_and_b32 {v(T)}, 31, v0
              v_lshl_add_u32 v16, {v(T)}, 3, {s(S_U0)}
              v_lshl_add_u32 {v(T)}, {v(T)}, 1, {s(S_U1)}
              v_lshrrev_b32 {v(T+1)}, 2, v0
              v_and_b32 {v(T+2)}, 3, v0
              v_lshlrev_b32 {v(T+2)}, 4, {v(T+2)}
              v_lshl_or_b32 {v(T+1)}, {v(T+1)}, 10, {v(T+2)}
              v_add_u32 {v(T+2)}, {15*1024}, {v(T+1)}
              s_lshl_b32 {s(S_V1)}, {s(S_WI)}, 11
              s_add_u32 {s(S_V1)}, {s(S_V1)}, {L_TR}
              s_mov_b32 m0, {s(S_V1)}
              global_load_ushort {v(DS)}, {v(T)}, {s(P_DSK,2)}
              buffer_load_dwordx4 {v(T+1)}, {s(R_X,4)}, {s(S_U2)} offen lds
              buffer_load_dwordx4 {v(T+2)}, {s(R_X,4)}, {s(S_U2)} offen offset:1024 lds""")
        xs2 = f"buffer_load_dwordx2 {v(G2,2)}, v16, {s(R_WS,4)}, 0 offen sc1"
        g(xs2)
        nl = 4
        g("s_waitcnt vmcnt(8)")
        nxt = list(range(nrec + 3, min(8, nrec + 6)))
        for i in range(nrec, nrec + 3): c_read(i)
        g("s_waitcnt lgkmcnt(0)")
        npf = o.get("s_pre_flag", 2)
        for i in nxt[:npf]: c_issue(i)
        if o.get("qdetail"): self.mute = True; self.stamp(8, True)
        self.set_flag(WS_FLAGS, VZ, T, nl + 4*len(nxt[:npf]))
        if o.get("pdetail"): self.stamp(11, True)
        if o.get("qdetail"): self.stamp(9, True)
        for i in nxt[npf:]: c_issue(i)
        assert nrec + 6 >= 8
        self.spin_cnt(C_W1D, VCNT, T)
        for ins in self.w2_coop(VD2, S_T3, S_T1, 2) + self.w2_coop(VD2, S_T3, S_T1, 3): g(ins)
        g(f"s_waitcnt vmcnt(12)")
        for i in nxt: c_read(i)
        g.c("---------------- S phase 2 ----------------")
        A2 = 64; AB = 16; VA = 10
        VC2, VO2 = 14, 15
        g.c("residual x + bf16(xn * D) of the own tile")
        self.recheck(xs2, [G2+1], 12)
        XP, MM, RR = A2 + 16, A2 + 32, A2 + 48
        g(f"""v_lshlrev_b32 {v(T+4)}, 16, {v(G2)}
              v_and_b32 {v(T+5)}, 0xffff0000, {v(G2)}
              v_rcp_f32 {v(T+5)}, {v(T+5)}
              v_and_b32 {v(T+2)}, 31, v0
              s_lshl_b32 {s(S_U0)}, {s(S_WI)}, 7
              s_add_u32 {s(S_U0)}, {s(S_U0)}, {L_RS}
              v_lshl_add_u32 {v(T+2)}, {v(T+2)}, 2, {s(S_U0)}
              ds_write2st64_b32 {v(T+2)}, {v(T+4)}, {v(T+5)} offset0:0 offset1:2
              v_lshlrev_b32 {v(T+3)}, 6, {v(SEGV)}
              v_add_u32 {v(T+3)}, {L_RS}, {v(T+3)}
              v_and_b32 {v(T+6)}, 32, v0
              v_lshlrev_b32 {v(T+6)}, 5, {v(T+6)}
              v_bfe_u32 {v(T+7)}, v0, 2, 2
              v_lshl_add_u32 {v(T+6)}, {v(T+7)}, 6, {v(T+6)}
              v_and_b32 {v(T+7)}, 16, v0
              v_lshl_add_u32 {v(T+6)}, {v(T+7)}, 1, {v(T+6)}
              v_and_b32 {v(T+7)}, 3, v0
              v_lshl_add_u32 {v(T+6)}, {v(T+7)}, 3, {v(T+6)}
              v_add_u32 {v(T+6)}, {s(S_V1)}, {v(T+6)}
              s_waitcnt lgkmcnt(1)""")
        for u in range(4): g(f"ds_read_b64_tr_b16 {v(XP+2*u,2)}, {v(T+6)} offset:{256*u}")
        for k in range(4): g(f"ds_read_b128 {v(MM+4*k,4)}, {v(T+3)} offset:{16*k}")
        for k in range(4): g(f"ds_read_b128 {v(RR+4*k,4)}, {v(T+3)} offset:{512+16*k}")
        self.a_setup(VA, 0, 16, 12)
        g(f"""v_mov_b32 {v(VC2)}, {L_CNT}
              v_mov_b32 {v(VO2)}, 1
              v_lshlrev_b32 {v(DS)}, 16, {v(DS)}
              s_mov_b32 {s(S_V0)}, 0xffff0000
              s_waitcnt lgkmcnt(0)""")
        self.poll_issue(WS_FLAGS)
        for i in range(8):
            x = A2 + 2*i; m = MM + 2*i; r = RR + 2*i
            g(f"""v_lshlrev_b32 {v(x)}, 16, {v(XP+i)}
                  v_and_b32 {v(x+1)}, {s(S_V0)}, {v(XP+i)}
                  v_sub_f32 {v(m)}, {v(x)}, {v(m)}
                  v_sub_f32 {v(m+1)}, {v(x+1)}, {v(m+1)}
                  v_cvt_pk_bf16_f32 {v(m+1)}, {v(m)}, {v(m+1)}
                  v_lshlrev_b32 {v(m)}, 16, {v(m+1)}
                  v_and_b32 {v(m+1)}, {s(S_V0)}, {v(m+1)}
                  v_mul_f32 {v(m)}, {v(m)}, {v(r)}
                  v_mul_f32 {v(m+1)}, {v(m+1)}, {v(r+1)}
                  v_cvt_pk_bf16_f32 {v(m+1)}, {v(m)}, {v(m+1)}
                  v_lshlrev_b32 {v(m)}, 16, {v(m+1)}
                  v_and_b32 {v(m+1)}, {s(S_V0)}, {v(m+1)}
                  v_mul_f32 {v(m)}, {v(m)}, {v(DS)}
                  v_mul_f32 {v(m+1)}, {v(m+1)}, {v(DS)}
                  v_cvt_pk_bf16_f32 {v(m+1)}, {v(m)}, {v(m+1)}
                  v_lshlrev_b32 {v(m)}, 16, {v(m+1)}
                  v_and_b32 {v(m+1)}, {s(S_V0)}, {v(m+1)}
                  v_add_f32 {v(x)}, {v(x)}, {v(m)}
                  v_add_f32 {v(x+1)}, {v(x+1)}, {v(m+1)}""")
        if o.get("s_sig_early", 0):
            g("s_waitcnt vmcnt(0)")
            self.signal_cnt(C_B1 + 4, VC2, VO2)
        self.stamp(8)
        self.poll_finish()
        self.stamp(9)
        g(f"s_setprio {o.get('sprio2', 2)}")
        def soff(ks):
            g(f"""s_xor_b32 {s(S_U0)}, {s(S_V1)}, {ks*1024}
                  s_add_u32 {s(S_U0)}, {s(S_U0)}, {s(S_XO)}""")
        g(f"""s_and_b32 {s(S_V1)}, {s(S_ROT)}, 2
              s_lshl_b32 {s(S_V1)}, {s(S_V1)}, 12
              s_and_b32 {s(S_U0)}, {s(S_ROT)}, 1
              s_lshl_b32 {s(S_U0)}, {s(S_U0)}, 11
              s_or_b32 {s(S_V1)}, {s(S_V1)}, {s(S_U0)}""")
        def pre(ks):
            if ks == 0 and not o.get("s_sig_early", 0):
                g("s_waitcnt vmcnt(12)")
                self.signal_cnt(C_B1 + 4, VC2, VO2)
        self.p2_loop(16, VA, AB, A2, lambda ks: BR + 8*ks, pre, lambda ks: None, soff, True)
        self.stamp(10)
        g.c("S: dump partials, pre-reduce")
        T = 2
        g(f"v_lshl_add_u32 {v(T+3)}, v0, 4, {s(S_T2)}")
        for sl in range(1, 4):
            for q in range(4):
                g(f"ds_write_b128 {v(T+3)}, {v(A2+16*sl+4*q,4)} offset:{(sl-1)*4096+q*1024}")
        self.signal_cnt(C_SD, VC2, VO2)
        self.spin_cnt(C_SD, VC2, T)
        self.gather3(0, 12288, AB, T)
        g(f"""s_xor_b32 {s(S_U0)}, {s(S_WI)}, 1
              s_mul_i32 {s(S_U0)}, {s(S_U0)}, 12288
              v_lshl_add_u32 {v(T+3)}, v0, 4, {s(S_U0)}""")
        for dd in range(3):
            g(f"s_waitcnt lgkmcnt({8-4*dd})")
            for r in range(16): g(f"v_add_f32 {v(A2+r)}, {v(A2+r)}, {v(AB+16*dd+r)}")
        for q in range(4):
            g(f"ds_write_b128 {v(T+3)}, {v(A2+4*q,4)} offset:{q*1024}")
        self.signal_cnt(C_SR, VC2, VO2)
        g("s_setprio 0")
        srd(g, R_OUT, P_OUT, 2048*512*4)
        g(f"v_lshlrev_b32 v9, 4, v0")
        self.out_setup(8, 4, 9)
        self.spin_cnt(C_FM, VC2, T)
        for k, tile in enumerate((0, 1, 2)):
            g(f"ds_read_b128 {v(A2+4*k,4)}, v6 offset:{(tile^1)*12288}")
        for ct in range(2):
            for q in range(4):
                g(f"ds_read_b128 {v(AB+16*ct+4*q,4)}, v6 offset:{q*12288 + 4096 + ct*4096}")
        self.sum_store(A2, AB, 8, 0, 0, 4)
        self.sum_store(A2+4, AB+16, 8, 0, 1, 0)
        g("s_barrier")
        self.final_piece(0, A2+8, AB, 8, 4)
        self.stamp(11)
        self.stamps_out(T, 'S')
        g("L_END:")
        g("s_endpgm")
        g("L_CODE_END:")

    def build(self):
        hdr = open("cdna_kernels/" + NAME + ".s.ref").read().split("\n")
        head = [l for l in hdr if l.startswith(";") and "@launch" not in l]
        self.prologue(); self.fwave(); self.swave()
        lst = self.o.get("list")
        if lst:
            out = "\n".join(head) + "\n"
            for ch in lst:
                if ch == "m": out += f"; @launch kernel={NAME}_kernel grid=(256,1,1) block=(512,1,1) lds={LDS_BYTES}\n"
                else: out += f"; @launch kernel=null_kernel grid=(1,1,1) block=(64,1,1) lds=0\n"
        else:
            out = "\n".join(head) + f"\n; @launch grid=(256,1,1) block=(512,1,1) lds={LDS_BYTES}\n"
        out += f""".amdgcn_target "amdgcn-amd-amdhsa--gfx950"
.text
.globl {NAME}_kernel
.p2align 8
.type {NAME}_kernel,@function
{NAME}_kernel:
"""
        out += self.g.text()
        if lst:
            out += """.p2align 8
.globl null_kernel
.type null_kernel,@function
null_kernel:
    s_endpgm
.section .rodata,"a"
.p2align 6
.amdhsa_kernel null_kernel
  .amdhsa_next_free_vgpr 8
  .amdhsa_next_free_sgpr 16
  .amdhsa_accum_offset 8
  .amdhsa_group_segment_fixed_size 0
  .amdhsa_kernarg_size 120
  .amdhsa_user_sgpr_count 2
  .amdhsa_user_sgpr_kernarg_segment_ptr 1
  .amdhsa_system_sgpr_workgroup_id_x 1
.end_amdhsa_kernel
"""
        out += f""".section .rodata,"a"
.p2align 6
.amdhsa_kernel {NAME}_kernel
  .amdhsa_next_free_vgpr 256
  .amdhsa_next_free_sgpr 102
  .amdhsa_accum_offset 256
  .amdhsa_group_segment_fixed_size 0
  .amdhsa_kernarg_size 120
  .amdhsa_user_sgpr_count 2
  .amdhsa_user_sgpr_kernarg_segment_ptr 1
  .amdhsa_system_sgpr_workgroup_id_x 1
.end_amdhsa_kernel
"""
        return out

if __name__ == "__main__":
    path = sys.argv[1]
    opt = json.loads(sys.argv[2]) if len(sys.argv) > 2 else {}
    open(path, "w").write(Gen(opt).build())
```

```python
import sys, json

NAME = "parallel_sum__ssm_conv_s5__dense_activation_silu__prompt"

class G:
    def __init__(self):
        self.L = []
        self.nlab = 0
    def __call__(self, s):
        for ln in s.strip("\n").split("\n"):
            ln = ln.strip()
            if ln: self.L.append("    " + ln if not ln.endswith(":") else ln)
    def c(self, s): self.L.append("    ; " + s)
    def lab(self, p="L"):
        self.nlab += 1
        return f"{p}_{self.nlab}"
    def text(self): return "\n".join(self.L) + "\n"

def v(a, n=1): return f"v{a}" if n == 1 else f"v[{a}:{a+n-1}]"
def s(a, n=1): return f"s{a}" if n == 1 else f"s[{a}:{a+n-1}]"

NKS = 152
WS_INTER = 0
WS_AGG   = 0xA00000
WS_FLAGF = 0xA40000
WS_FLAGS = 0xA44000
WS_XS    = 0xA50000
WS_CSG   = 0xA58000
WS_EPOCH = 0xA60000
WS_STAMP = 0xB00000
WS_BYTES = 0xC00000
SLOT = 24576
W1B  = 2 * SLOT
MISC = 6 * SLOT
L_RS, L_NM, L_CSS, L_CNT = MISC, MISC + 512, MISC + 1024, MISC + 1536
L_LBP = MISC + 2048
L_CSF = MISC + 4096
L_TR  = MISC + 8192
L_SEG = L_TR + 3 * 2048
LDS_BYTES = MISC + 16384
C_S1, C_S2, C_WA, C_WB, C_PD, C_CSF, C_SD, C_SR, C_FM, C_B1 = 0, 4, 8, 12, 16, 56, 32, 36, 40, 48
L_DUM = MISC + 7168

S_WAVE, S_WI, S_MT, S_G, S_RT, S_NT, S_C0, S_TAG = 3, 4, 5, 6, 7, 8, 9, 10
S_T0, S_T1, S_T2, S_T3, S_T4 = 11, 12, 13, 14, 15
P_X, P_LRE, P_LIM, P_BRE, P_BIM, P_CRE, P_CIM, P_LDT = 16, 18, 20, 22, 24, 26, 28, 30
P_DSK, P_BX, P_W1, P_W2, P_OUT, P_DBG, P_WS = 32, 34, 36, 38, 40, 42, 44
R_X, R_A, R_B, R_W2, R_WS, R_OUT = 48, 52, 56, 60, 64, 68
S_ONES, S_XO, S_BO, S_WO, S_SPIN = 72, 73, 74, 75, 76
S_U0, S_U1, S_U2, S_U3 = 77, 78, 79, 80
S_V0, S_V1, S_ROT = 46, 47, 81
S_EX = 82
S_MK = 84
S_ST = 86

def srd(g, r, p, nbytes):
    g(f"""s_mov_b32 {s(r)}, {s(p)}
          s_mov_b32 {s(r+1)}, {s(p+1)}
          s_mov_b32 {s(r+2)}, {hex(nbytes)}
          s_mov_b32 {s(r+3)}, 0x20000""")

class Gen:
    def __init__(self, opt):
        self.o = opt
        self.g = G()
        self.nst = 0

    def stamp(self, i, force=False):
        if not self.o.get("stamps"): return
        if getattr(self, "mute", False) and not force: return
        g = self.g
        clk = "s_memrealtime" if self.o.get("rt") else "s_memtime"
        g(f"""{clk} s[100:101]
              s_waitcnt lgkmcnt(0)
              s_mov_b32 {s(S_ST+i)}, s100""")

    def stamps_out(self, vt, role):
        if not self.o.get("stamps"): return
        g = self.g
        pr = self.o.get("probe")
        if pr and pr[0] == role:
            l = g.lab("PRB")
            clk = "s_memrealtime" if self.o.get("rt") else "s_memtime"
            base = S_ST
            if pr[1:] in ("k", "e"):
                g(f"""s_load_dword {s(S_U0)}, {s(P_DBG,2)}, 0 glc
                      s_load_dword {s(S_U1)}, {s(P_DBG,2)}, 128 glc
                      s_waitcnt lgkmcnt(0)
                      s_not_b32 {s(S_U1)}, {s(S_U1)}""")
                src = S_U0 if pr[1:] == "k" else S_ST + 11
                base = S_U1
            elif pr[1:] == "z":
                src = S_ST; base = S_ST + 12
            else:
                src = S_MK if pr[1:] == "p" else S_ST + int(pr[1:])
            g(f"""s_sub_u32 {s(S_T0)}, {s(src)}, {s(base)}
                  s_lshl_b32 {s(S_T0)}, {s(S_T0)}, 4
                  {clk} s[100:101]
                  s_waitcnt lgkmcnt(0)
                  s_mov_b32 {s(S_T1)}, s100""")
            g(f"{l}:")
            g(f"""{clk} s[100:101]
                  s_waitcnt lgkmcnt(0)
                  s_sub_u32 {s(S_T2)}, s100, {s(S_T1)}
                  s_cmp_lt_u32 {s(S_T2)}, {s(S_T0)}
                  s_cbranch_scc1 {l}""")
        g(f"s_waitcnt vmcnt(0)")
        g(f"""s_memrealtime s[100:101]
              s_waitcnt lgkmcnt(0)
              s_mov_b32 {s(S_ST+13)}, s100""")
        g(f"""s_lshl_b32 {s(S_T0)}, s2, 3
              s_add_u32 {s(S_T0)}, {s(S_T0)}, {s(S_WAVE)}
              s_lshl_b32 {s(S_T0)}, {s(S_T0)}, 6
              s_add_u32 {s(S_T0)}, {s(S_T0)}, {hex(WS_STAMP)}
              v_mov_b32 {v(vt)}, 0""")
        for i in range(14):
            g(f"""v_mov_b32 {v(vt+1)}, {s(S_ST+i)}
                  buffer_store_dword {v(vt+1)}, {v(vt)}, {s(R_WS,4)}, {s(S_T0)} offen offset:{4*i}
                  s_nop 1""")

    def spin_cnt(self, cnt, vaddr_cnt, vt, reads="", tgt=4):
        g = self.g
        l = g.lab("SPIN"); d = g.lab("SPD"); r = g.lab("SPR")
        if reads:
            g(f"ds_read_b32 {v(vt)}, {v(vaddr_cnt)} offset:{cnt}")
            g(reads)
            g(f"""s_waitcnt lgkmcnt(0)
                  v_readfirstlane_b32 {s(S_U3)}, {v(vt)}
                  s_cmp_eq_u32 {s(S_U3)}, {tgt}
                  s_cbranch_scc1 {d}""")
        g(f"s_mov_b32 {s(S_SPIN)}, 0x100000")
        g(f"{l}:")
        g(f"""ds_read_b32 {v(vt)}, {v(vaddr_cnt)} offset:{cnt}
              s_waitcnt lgkmcnt(0)
              v_readfirstlane_b32 {s(S_U3)}, {v(vt)}
              s_sub_u32 {s(S_SPIN)}, {s(S_SPIN)}, 1
              s_cbranch_scc1 {r}
              s_cmp_eq_u32 {s(S_U3)}, {tgt}
              s_cbranch_scc1 {r}""")
        if self.o.get("spin_sleep", 1): g(f"s_sleep {self.o.get('spin_sleep', 1)}")
        g(f"s_branch {l}")
        g(f"{r}:")
        if reads:
            g(reads)
            g("s_waitcnt lgkmcnt(0)")
        g(f"{d}:")

    def cnt_regs(self, vcnt, vone):
        self.g(f"""v_lshlrev_b32 {v(vcnt)}, 2, v0
                   v_add_u32 {v(vcnt)}, {L_DUM}, {v(vcnt)}
                   v_mov_b32 {v(vone)}, {L_CNT}
                   v_cmp_eq_u32 vcc, 0, v0
                   s_nop 1
                   v_cndmask_b32 {v(vcnt)}, {v(vcnt)}, {v(vone)}, vcc
                   v_mov_b32 {v(vone)}, 1""")

    def signal_cnt(self, cnt, vaddr_cnt, vone):
        self.g(f"ds_add_u32 {v(vaddr_cnt)}, {v(vone)} offset:{cnt}")

    def collect(self, fn):
        g = self.g
        save = g.L; g.L = []
        fn()
        out = g.L; g.L = save
        items = []; cur = None
        for ln in out:
            if ln.strip() == "; {": cur = []
            elif ln.strip() == "; }": items.append(cur); cur = None
            elif cur is not None: cur.append(ln)
            else: items.append([ln])
        return items
    def take(self, fill, n):
        while n > 0 and fill:
            it = fill.pop(0); self.g.L += it; n -= len(it)

    def cmul(self, dr, di, ar, ai, br, bi):
        self.g(f"""v_mul_f32 {v(dr)}, {v(ar)}, {v(br)}
                   v_mul_f32 {v(di)}, {v(ar)}, {v(bi)}
                   v_fma_f32 {v(dr)}, -{v(ai)}, {v(bi)}, {v(dr)}
                   v_fmac_f32 {v(di)}, {v(ai)}, {v(br)}""")

    def cfma(self, dr, di, ar, ai, br, bi, cr, ci):
        self.g(f"""v_fma_f32 {v(dr)}, {v(ar)}, {v(br)}, {v(cr)}
                   v_fma_f32 {v(di)}, {v(ar)}, {v(bi)}, {v(ci)}
                   v_fma_f32 {v(dr)}, -{v(ai)}, {v(bi)}, {v(dr)}
                   v_fmac_f32 {v(di)}, {v(ai)}, {v(br)}""")

    def poll_issue(self, base):
        self.g(f"""s_lshl_b32 s26, {s(S_RT)}, 2
              s_add_u32 s26, s26, {s(S_WI)}
              s_lshl_b32 s26, s26, 7
              s_add_u32 s26, s26, {hex(base)}
              s_mov_b32 s24, {s(S_TAG)}
              s_mov_b32 s25, {s(S_TAG)}
              s_load_dwordx8 s[16:23], {s(P_WS,2)}, s26 glc""")

    def poll_finish(self):
        g = self.g
        l = g.lab("POLL"); d = g.lab("PLD")
        g(f"s_mov_b32 {s(S_SPIN)}, 0x40000")
        g(f"{l}:")
        g(f"""s_waitcnt lgkmcnt(0)
              s_xor_b64 s[16:17], s[16:17], s[24:25]
              s_xor_b64 s[18:19], s[18:19], s[24:25]
              s_xor_b64 s[20:21], s[20:21], s[24:25]
              s_xor_b64 s[22:23], s[22:23], s[24:25]
              s_or_b64 s[16:17], s[16:17], s[18:19]
              s_or_b64 s[20:21], s[20:21], s[22:23]
              s_or_b64 s[16:17], s[16:17], s[20:21]
              s_cbranch_scc0 {d}
              s_sub_u32 {s(S_SPIN)}, {s(S_SPIN)}, 1
              s_cbranch_scc1 {d}
              s_load_dwordx8 s[16:23], {s(P_WS,2)}, s26 glc
              s_branch {l}""")
        g(f"{d}:")

    def set_flag(self, base, vz, vt, vm=0):
        g = self.g
        g(f"""s_lshl_b32 {s(S_U0)}, {s(S_MT)}, 1
              s_lshr_b32 {s(S_U1)}, {s(S_WI)}, 1
              s_add_u32 {s(S_U0)}, {s(S_U0)}, {s(S_U1)}
              s_lshl_b32 {s(S_U0)}, {s(S_U0)}, 2
              s_lshr_b32 {s(S_U1)}, {s(S_G)}, 2
              s_add_u32 {s(S_U0)}, {s(S_U0)}, {s(S_U1)}
              s_lshl_b32 {s(S_U0)}, {s(S_U0)}, 7
              s_and_b32 {s(S_U1)}, {s(S_WI)}, 1
              s_lshl_b32 {s(S_U1)}, {s(S_U1)}, 4
              s_add_u32 {s(S_U0)}, {s(S_U0)}, {s(S_U1)}
              s_and_b32 {s(S_U1)}, {s(S_G)}, 3
              s_lshl_b32 {s(S_U1)}, {s(S_U1)}, 2
              s_add_u32 {s(S_U0)}, {s(S_U0)}, {s(S_U1)}
              s_add_u32 {s(S_U0)}, {s(S_U0)}, {hex(base)}
              v_mov_b32 {v(vt)}, {s(S_TAG)}
              s_waitcnt vmcnt({vm})
              s_mov_b64 exec, 1
              buffer_store_dword {v(vt)}, {v(vz)}, {s(R_WS,4)}, {s(S_U0)} offen sc1
              s_mov_b64 exec, -1""")

    def prologue(self):
        g = self.g
        if self.o.get("stamps"): g("s_memrealtime s[98:99]")
        g(f"""s_cmp_ge_u32 s2, 256
              s_cbranch_scc1 L_END
              s_load_dwordx16 s[16:31], s[0:1], 0
              s_load_dwordx8 s[32:39], s[0:1], 64
              s_load_dwordx4 s[40:43], s[0:1], 96
              s_load_dwordx2 s[44:45], s[0:1], 112""")
        if self.o.get("stamps"):
            g(f"""s_waitcnt lgkmcnt(0)""")
            if self.o.get("probe", "")[1:] in ("k", "e"):
                g(f"""v_mov_b32 v2, 0
                      v_mov_b32 v3, s98
                      v_not_b32 v4, v3
                      s_mov_b64 exec, 1
                      global_atomic_umax v2, v3, {s(P_DBG,2)} sc1
                      global_atomic_umax v2, v4, {s(P_DBG,2)} offset:128 sc1
                      s_mov_b64 exec, -1""")
            for i in range(12): g(f"s_mov_b32 {s(S_ST+i)}, 0")
            self.stamp(0)
        g(f"""v_lshrrev_b32 v1, 6, v0
              v_and_b32 v0, 63, v0
              s_and_b32 {s(S_T0)}, s2, 7
              v_readfirstlane_b32 {s(S_WAVE)}, v1
              s_lshr_b32 {s(S_T1)}, s2, 3
              s_and_b32 {s(S_T2)}, {s(S_T1)}, 3
              s_lshr_b32 {s(S_NT)}, {s(S_T1)}, 2
              s_lshr_b32 {s(S_T3)}, {s(S_T0)}, 1
              s_lshl_b32 {s(S_MT)}, {s(S_T3)}, 2
              s_add_u32 {s(S_MT)}, {s(S_MT)}, {s(S_T2)}
              s_and_b32 {s(S_T4)}, {s(S_T0)}, 1
              s_lshl_b32 {s(S_G)}, {s(S_T4)}, 3
              s_add_u32 {s(S_G)}, {s(S_G)}, {s(S_NT)}
              s_lshl_b32 {s(S_RT)}, {s(S_T0)}, 2
              s_add_u32 {s(S_RT)}, {s(S_RT)}, {s(S_T2)}
              s_and_b32 {s(S_WI)}, {s(S_WAVE)}, 3""")
        if self.o.get("rot2", 0):
            g(f"""s_add_u32 {s(S_ROT)}, {s(S_T2)}, {s(S_NT)}
                  s_and_b32 {s(S_ROT)}, {s(S_ROT)}, 3""")
        else: g(f"s_mov_b32 {s(S_ROT)}, 0")
        rot = self.o.get("rot", 0)
        if rot == 0:
            g(f"""s_lshl_b32 {s(S_C0)}, {s(S_T4)}, 1
                  s_add_u32 {s(S_C0)}, {s(S_C0)}, {s(S_T3)}
                  s_lshl_b32 {s(S_C0)}, {s(S_C0)}, 1""")
        elif rot == 8:
            g(f"""s_lshl_b32 {s(S_C0)}, {s(S_MT)}, 1
                  s_add_u32 {s(S_C0)}, {s(S_C0)}, {s(S_G)}""")
        elif rot == 4:
            g(f"""s_add_u32 {s(S_C0)}, {s(S_MT)}, {s(S_G)}
                  s_lshl_b32 {s(S_C0)}, {s(S_C0)}, 1""")
        elif rot == 2:
            g(f"""s_add_u32 {s(S_C0)}, {s(S_MT)}, {s(S_G)}
                  s_lshl_b32 {s(S_C0)}, {s(S_C0)}, 1
                  s_add_u32 {s(S_C0)}, {s(S_C0)}, {s(S_T4)}
                  s_add_u32 {s(S_C0)}, {s(S_C0)}, {s(S_T3)}
                  s_lshl_b32 {s(S_C0)}, {s(S_C0)}, 1""")
        pre = self.o.get("pretest")
        if pre:
            pol = self.o.get("prepol", "")
            g(f"""v_lshlrev_b32 v2, 4, v0
                  s_lshl_b32 {s(S_U0)}, {s(S_WAVE)}, 8
                  s_add_u32 {s(S_U0)}, {s(S_U0)}, s2
                  s_lshl_b32 {s(S_U0)}, {s(S_U0)}, 10""")
            for i, (nm, P, nb, sh) in enumerate([("x", P_X, 2<<20, 0), ("b", P_BRE, 1<<19, 0), ("b", P_BIM, 1<<19, 2), ("1", P_W1, 1376*1024, 2),
                                  ("c", P_CRE, 1<<19, 4), ("c", P_CIM, 1<<19, 6), ("2", P_W2, 1376*1024, 0)]):
                if nm not in pre: continue
                srd(g, R_X, P, nb)
                g(f"""s_sub_u32 {s(S_U1)}, {s(S_U0)}, {sh << 18}
                      s_and_b32 {s(S_U1)}, {s(S_U1)}, {(2<<20)-1}
                      buffer_load_dwordx4 {v(4+4*i,4)}, v2, {s(R_X,4)}, {s(S_U1)} offen{pol}""")
            g("s_waitcnt vmcnt(0)")
            self.stamp(11)
            g(f"s_mov_b32 {s(S_MK)}, {s(S_ST+11)}")
        g(f"""s_cmp_ge_u32 {s(S_WAVE)}, 4
              s_cbranch_scc0 L_SWAVE""")

    def epoch(self):
        self.g(f"""s_mov_b32 {s(S_TAG)}, {hex(WS_EPOCH)}
                   s_load_dword {s(S_TAG)}, {s(P_WS,2)}, {s(S_TAG)}""")
    def epoch_fin(self):
        self.g(f"""s_mul_i32 {s(S_TAG)}, {s(S_TAG)}, 0x9E3779B1
                   s_add_u32 {s(S_TAG)}, {s(S_TAG)}, 0x7F4A7C15""")

    def frag_pat(self, P, t0, t1, xor_wi):
        g = self.g
        g(f"""v_and_b32 {v(t0)}, 31, v0
              v_lshrrev_b32 {v(t1)}, 1, v0
              v_and_b32 {v(t1)}, 7, {v(t1)}
              v_lshrrev_b32 {v(P)}, 5, v0
              v_xor_b32 {v(t1)}, {v(t1)}, {v(P)}
              v_lshlrev_b32 {v(t1)}, 4, {v(t1)}
              v_lshl_or_b32 {v(P)}, {v(t0)}, 7, {v(t1)}""")
        if xor_wi:
            g(f"""s_lshl_b32 {s(S_V0)}, {s(S_WI)}, 5
                  v_xor_b32 {v(P)}, {s(S_V0)}, {v(P)}""")
        for k in (1, 2, 3):
            g(f"v_xor_b32 {v(P+k)}, {32*k}, {v(P)}")

    def lane8_pat(self, d, t0, t1):
        self.g(f"""v_lshrrev_b32 {v(t0)}, 3, v0
                   v_and_b32 {v(d)}, 7, v0
                   v_lshrrev_b32 {v(t1)}, 4, v0
                   v_xor_b32 {v(d)}, {v(d)}, {v(t1)}
                   v_lshlrev_b32 {v(d)}, 4, {v(d)}""")

    def split3(self, src, d0, d1, t0, t1):
        self.g(f"""v_and_b32 {v(t0)}, 0xffff0000, {v(src)}
                  v_sub_f32 {v(t1)}, {v(src)}, {v(t0)}
                  v_and_b32 {v(d0)}, 0xffff0000, {v(t1)}
                  v_sub_f32 {v(t1)}, {v(t1)}, {v(d0)}
                  v_lshrrev_b32 {v(t0)}, 16, {v(t0)}
                  v_or_b32 {v(d0)}, {v(d0)}, {v(t0)}
                  v_lshrrev_b32 {v(d1)}, 16, {v(t1)}""")

    def tau(self, d, t):
        self.g(f"""v_and_b32 {v(d)}, 4, v0
                   v_lshlrev_b32 {v(d)}, 2, {v(d)}
                   v_lshrrev_b32 {v(t)}, 1, v0
                   v_and_b32 {v(t)}, 12, {v(t)}
                   v_or_b32 {v(d)}, {v(d)}, {v(t)}
                   v_and_b32 {v(t)}, 3, v0
                   v_or_b32 {v(d)}, {v(d)}, {v(t)}""")

    def w2_voff(self, VD, T):
        self.g(f"""v_lshrrev_b32 {v(T)}, 3, v0
              v_and_b32 {v(T+1)}, 7, v0
              v_bfe_u32 {v(T+2)}, v0, 4, 1
              v_lshlrev_b32 {v(T+2)}, 2, {v(T+2)}
              v_xor_b32 {v(T+1)}, {v(T+1)}, {v(T+2)}
              v_lshlrev_b32 {v(T+1)}, 4, {v(T+1)}
              v_lshl_or_b32 {v(VD)}, {v(T)}, 10, {v(T+1)}
              v_add_u32 {v(VD+1)}, 7168, {v(VD)}
              v_add_u32 {v(VD+2)}, {2*7168}, {v(VD)}
              v_add_u32 {v(VD+3)}, {3*7168}, {v(VD)}""")

    def w2_coop_setup(self, s_lds, s_glb):
        self.g(f"""s_mul_i32 {s(s_lds)}, {s(S_WI)}, 6144
              s_mul_i32 {s(s_glb)}, {s(S_WI)}, {48*1024}
              s_lshl_b32 {s(S_V0)}, {s(S_NT)}, 7
              s_add_u32 {s(s_glb)}, {s(s_glb)}, {s(S_V0)}""")

    def w2_coop(self, VD, s_lds, s_glb, q):
        out = []
        for e in range(6):
            pre = ""
            if e % 3 == 0:
                pre = f"""s_add_u32 m0, {s(s_lds)}, {W1B + q*SLOT + e*1024}
                          s_add_u32 {s(S_U1)}, {s(s_glb)}, {q*352*1024 + e*8192}
                       """
            out.append(pre + f"buffer_load_dwordx4 {v(VD+e%3)}, {s(R_W2,4)}, {s(S_U1)} offen offset:{1024*(e%3)} lds")
        return out

    def w2_own_setup(self, sreg_lds, sreg_glb):
        self.g(f"""s_mul_i32 {s(sreg_glb)}, {s(S_WI)}, {352*1024}
              s_lshl_b32 {s(S_U0)}, {s(S_NT)}, 7
              s_add_u32 {s(sreg_glb)}, {s(sreg_glb)}, {s(S_U0)}
              s_mul_i32 {s(sreg_lds)}, {s(S_WI)}, {SLOT}
              s_add_u32 {s(sreg_lds)}, {s(sreg_lds)}, {W1B}""")

    def w2_issue(self, VD, sreg_lds, sreg_glb, ks0, n, lslot0):
        g = self.g
        for i in range(0, n, 2):
            g(f"""s_add_u32 m0, {s(sreg_lds)}, {(lslot0 + i)*2048}
                  s_add_u32 {s(S_U1)}, {s(sreg_glb)}, {(ks0+i)*16384}""")
            for e in range(4):
                g(f"buffer_load_dwordx4 {v(VD+e)}, {s(R_W2,4)}, {s(S_U1)} offen offset:{1024*e} lds")

    def recheck(self, loads, tagregs, vm=0):
        g = self.g
        l = g.lab("RC"); d = g.lab("RCD")
        g(f"s_mov_b32 {s(S_SPIN)}, 0x40000\ns_waitcnt vmcnt({vm})")
        g(f"{l}:")
        g(f"v_cmp_ne_u32 vcc, {s(S_TAG)}, {v(tagregs[0])}")
        for r in tagregs[1:]:
            g(f"v_cmp_ne_u32 s[100:101], {s(S_TAG)}, {v(r)}\ns_or_b64 vcc, vcc, s[100:101]")
        g(f"""s_cmp_eq_u64 vcc, 0
              s_cbranch_scc1 {d}
              s_sub_u32 {s(S_SPIN)}, {s(S_SPIN)}, 1
              s_cbranch_scc1 {d}
              s_sleep 2""")
        g(loads)
        g(f"s_waitcnt vmcnt(0)\ns_branch {l}")
        g(f"{d}:")

    def w1_setup(self, VW, T, s_lds, s_glb, s_f0):
        g = self.g
        g(f"s_mov_b32 {s(S_V0)}, 683")
        for e in range(3):
            g(f"""v_add_u32 {v(T)}, {64*e}, v0
                  v_mul_u32_u24 {v(T+1)}, {s(S_V0)}, {v(T)}
                  v_lshrrev_b32 {v(T+1)}, 13, {v(T+1)}
                  v_mul_u32_u24 {v(T+2)}, 12, {v(T+1)}
                  v_sub_u32 {v(T+2)}, {v(T)}, {v(T+2)}
                  v_mul_u32_u24 {v(T+1)}, 2752, {v(T+1)}
                  v_lshl_add_u32 {v(VW+e)}, {v(T+2)}, 4, {v(T+1)}""")
            if e: g(f"v_subrev_u32 {v(VW+e)}, {1024*e}, {v(VW+e)}")
        g(f"""s_lshr_b32 {s(S_V0)}, {s(S_G)}, 2
              s_mul_i32 {s(s_f0)}, {s(S_V0)}, 11
              s_and_b32 {s(S_V0)}, {s(S_G)}, 3
              s_mul_i32 {s(S_V0)}, {s(S_V0)}, 3
              s_add_u32 {s(s_f0)}, {s(s_f0)}, {s(S_V0)}
              s_lshl_b32 {s(s_glb)}, {s(s_f0)}, 6
              s_mul_i32 {s(S_V0)}, {s(S_WI)}, {16*2752}
              s_add_u32 {s(s_glb)}, {s(s_glb)}, {s(S_V0)}
              s_mul_i32 {s(s_lds)}, {s(S_WI)}, 3072""")

    def w1_pre(self, j, s_lds, s_glb):
        return f"""s_add_u32 {s(S_U0)}, {s(S_C0)}, {j}
                  s_and_b32 {s(S_U0)}, {s(S_U0)}, 7
                  s_mul_i32 {s(S_U0)}, {s(S_U0)}, {64*2752}
                  s_add_u32 m0, {s(s_lds)}, {W1B + j*12288}
                  s_add_u32 {s(S_U1)}, {s(S_U0)}, {s(s_glb)}"""

    def fwave(self):
        g = self.g; o = self.o
        X = 128
        ACC = 80
        WF = 44
        VX, VB, VW = 2, 6, 8
        P = 12
        WA = 16
        VCNT, VONE, VZ = 20, 21, 22
        XS = 24
        RS, NRS = 26, 27
        NM = 28
        CS = 32
        T = 2
        TA = 32

        g.c("---------------- F wave: stage A loader ----------------")
        self.lane8_pat(TA, TA+1, TA+2)
        g(f"""v_lshrrev_b32 {v(TA+2)}, 2, {v(TA+1)}
              v_lshlrev_b32 {v(TA+2)}, 4, {v(TA+2)}
              v_and_b32 {v(TA+3)}, 3, {v(TA+1)}
              v_add_u32 {v(TA+2)}, {v(TA+2)}, {v(TA+3)}
              v_lshl_or_b32 {v(VX)}, {v(TA+2)}, 10, {v(TA)}
              v_add_u32 {v(VX+1)}, 3072, {v(VX)}
              v_xor_b32 {v(VX+1)}, 64, {v(VX+1)}
              v_add_u32 {v(VX+2)}, 6144, {v(VX)}
              v_add_u32 {v(VX+3)}, 6144, {v(VX+1)}
              v_lshl_or_b32 {v(VB)}, {v(TA+1)}, 10, {v(TA)}
              v_add_u32 {v(VB+1)}, 7168, {v(VB)}
              v_xor_b32 {v(VB+1)}, 64, {v(VB+1)}
              s_lshl_b32 {s(S_XO)}, {s(S_MT)}, 17
              s_lshl_b32 {s(S_T0)}, {s(S_WI)}, 15
              s_add_u32 {s(S_XO)}, {s(S_XO)}, {s(S_T0)}
              s_lshl_b32 {s(S_BO)}, {s(S_G)}, 15
              s_and_b32 {s(S_T0)}, {s(S_WI)}, 1
              s_lshl_b32 {s(S_T0)}, {s(S_T0)}, 14
              s_add_u32 {s(S_BO)}, {s(S_BO)}, {s(S_T0)}
              s_lshl_b32 {s(S_T3)}, {s(S_WI)}, 12
              s_lshl_b32 {s(S_T4)}, {s(S_WI)}, 11
              s_add_u32 {s(S_T4)}, {s(S_T4)}, 16384
              s_mov_b32 {s(R_X+2)}, {hex(2048*512*2)}
              s_mov_b32 {s(R_X+3)}, 0x20000
              s_mov_b32 {s(R_A+2)}, {hex(512*512*2)}
              s_mov_b32 {s(R_A+3)}, 0x20000
              s_cmp_ge_u32 {s(S_WI)}, 2
              s_waitcnt lgkmcnt(0)
              s_mov_b32 {s(R_X)}, {s(P_X)}
              s_mov_b32 {s(R_X+1)}, {s(P_X+1)}
              s_cselect_b32 {s(R_A)}, {s(P_BIM)}, {s(P_BRE)}
              s_cselect_b32 {s(R_A+1)}, {s(P_BIM+1)}, {s(P_BRE+1)}""")

        def x_pre(c):
            g(f"""s_add_u32 {s(S_U0)}, {s(S_C0)}, {c}
                  s_and_b32 {s(S_U0)}, {s(S_U0)}, 7
                  s_lshl_b32 {s(S_U0)}, {s(S_U0)}, 7
                  s_add_u32 m0, {s(S_T3)}, {(c % 6) * SLOT}
                  s_add_u32 {s(S_U1)}, {s(S_U0)}, {s(S_XO)}""")
        def x_go(c, nf):
            for e in range(4):
                g(f"buffer_load_dwordx4 {v(VX+e)}, {s(R_X,4)}, {s(S_U1)} offen offset:{1024*e} lds")
                self.take(fill, nf)
            g(f"""s_add_u32 m0, {s(S_T4)}, {(c % 6) * SLOT}
                  s_add_u32 {s(S_U1)}, {s(S_U0)}, {s(S_BO)}""")
            for e in range(2):
                g(f"buffer_load_dwordx4 {v(VB+e)}, {s(R_A,4)}, {s(S_U1)} offen offset:{1024*e} lds")
                self.take(fill, nf)
        def w_pre(j): return self.w1_pre(j, S_T2, S_WO)
        def w_one(e):
            return f"buffer_load_dwordx4 {v(VW+e)}, {s(R_B,4)}, {s(S_U1)} offen offset:{1024*e} lds"

        def setup():
            g.c("{"); self.epoch(); g.c("}")
            self.frag_pat(P, TA, TA+1, True)
            for k in range(4): g(f"v_add_u32 {v(P+k)}, {s(S_T3)}, {v(P+k)}")
            srd(g, R_B, P_W1, 512 * 1376 * 2)
            self.w1_setup(VW, TA, S_T2, S_WO, S_T1)
            srd(g, R_W2, P_W2, 1376 * 512 * 2)
            srd(g, R_WS, P_WS, WS_BYTES)
            srd(g, R_OUT, P_OUT, 2048*512*4)
            g(f"""v_lshrrev_b32 {v(TA)}, 5, v0
              v_bfe_u32 {v(TA+1)}, v0, 2, 2
              v_lshl_add_u32 {v(TA)}, {v(TA)}, 3, {v(TA+1)}
              v_mul_u32_u24 {v(TA)}, 192, {v(TA)}
              v_bfe_u32 {v(TA+1)}, v0, 4, 1
              v_lshl_add_u32 {v(TA)}, {v(TA+1)}, 5, {v(TA)}
              v_and_b32 {v(TA+1)}, 3, v0
              v_lshl_add_u32 {v(TA)}, {v(TA+1)}, 3, {v(TA)}
              v_mov_b32 {v(VZ)}, 0
              v_bfe_u32 {v(TA+1)}, v0, 2, 2
              v_lshrrev_b32 {v(TA+2)}, 4, v0
              v_cmp_eq_u32 vcc, {v(TA+1)}, {v(TA+2)}
              v_mov_b32 {v(TA+1)}, 0x3f803f80
              s_nop 0
              v_cndmask_b32 {v(NM)}, 0, {v(TA+1)}, vcc
              v_cndmask_b32 {v(NM+1)}, 0, {v(TA+1)}, vcc
              v_cndmask_b32 {v(NM+2)}, 0, {v(TA+1)}, vcc
              v_cndmask_b32 {v(NM+3)}, 0, {v(TA+1)}, vcc""")
            for k in range(4):
                g(f"""s_xor_b32 {s(S_V0)}, {s(S_WI)}, {k}
                  s_mul_i32 {s(S_V0)}, {s(S_V0)}, 3072
                  s_add_u32 {s(S_V0)}, {s(S_V0)}, {W1B}
                  v_add_u32 {v(WA+k)}, {s(S_V0)}, {v(TA)}""")
            self.cnt_regs(VCNT, VONE)
            g(f"""v_and_b32 {v(RS)}, 31, v0
              s_lshl_b32 {s(S_V0)}, {s(S_WI)}, 7
              s_add_u32 {s(S_V0)}, {s(S_V0)}, {L_NM}
              v_lshl_add_u32 {v(RS)}, {v(RS)}, 2, {s(S_V0)}
              v_lshlrev_b32 v11, 4, v0
              v_add_u32 {v(XS+1)}, {L_CSF}, v11
              s_lshl_b32 {s(S_V0)}, {s(S_WI)}, 2
              v_add_u32 v1, {s(S_V0)}, {v(XS+1)}""")
        fill = self.collect(setup)
        x_pre(0); x_go(0, 0)
        g.c("@@SSTART")
        x_pre(1); x_go(1, 5)
        self.stamp(1)
        x_pre(2); x_go(2, 5)
        for c in range(8):
            g.c(f"chunk {c}")
            n = c + 3
            if n < 8: x_pre(n)
            else: g(w_pre(2 * (n - 8)))
            g(f"s_waitcnt vmcnt(12) lgkmcnt({0 if c == 0 else 4})")
            if o.get("adetail") == 1:
                self.mute = True; self.stamp(2 + c, True)
            g("s_barrier")
            if c == 0: self.epoch_fin()
            off = (c % 3) * SLOT
            def xread():
                if c in (3, 6):
                    op = "v_add_u32" if c == 3 else "v_subrev_u32"
                    for k in range(4): g(f"{op} {v(P+k)}, {3*SLOT}, {v(P+k)}")
                for k in range(4):
                    g(f"ds_read_b128 {v(X+16*c+4*k,4)}, {v(P+k)} offset:{off}")
            if n < 8:
                x_go(n, 5)
                if n == 7: self.take(fill, 1000)
                xread()
            else:
                for e in range(3): g(w_one(e))
                if c == 7:
                    xread()
                    self.signal_cnt(C_S1, VCNT, VONE)
                g(w_pre(2 * (n - 8) + 1))
                for e in range(3): g(w_one(e))
                if c < 7: xread()
        self.stamp(2)
        g.c("---------------- F stage: w1 GEMM ----------------")
        g(f"s_setprio {o.get('fprio', 1)}")
        for j in (6, 7):
            g(w_pre(j))
            for e in range(3): g(w_one(e))
        g("s_waitcnt vmcnt(12)")
        self.signal_cnt(C_WA, VCNT, VONE)
        self.spin_cnt(C_WA, VCNT, T)
        self.stamp(3)
        steps = [(j, k) for j in range(4) for k in range(4)] + [(j, 0) for j in range(4, 8)] + [(j, k) for j in range(4, 8) for k in range(1, 4)]
        def rd(idx, t):
            j, k = steps[idx]
            if idx == 16 and t == 0:
                for kk in range(4): g(f"v_add_u32 {v(WA+kk)}, {4*12288}, {v(WA+kk)}")
            dst = WF + 12 * (idx % 3) + 4 * t
            off = (j % 4) * 12288 + t * 64
            g(f"""ds_read_b64_tr_b16 {v(dst,2)}, {v(WA+k)} offset:{off}
                  ds_read_b64_tr_b16 {v(dst+2,2)}, {v(WA+k)} offset:{off+768}""")
        for i in range(2):
            for t in range(3): rd(i, t)
        VD = 12
        def prep():
            for t in range(3):
                b = CS + 4*t
                g(f"""v_add_f32 {v(b)}, {v(b)}, {v(b+1)}
                      v_add_f32 {v(b+2)}, {v(b+2)}, {v(b+3)}
                      v_add_f32 {v(b+2)}, {v(b)}, {v(b+2)}""")
                self.split3(b+2, b, b+1, T+2, T+3)
                g(f"v_mov_b32 {v(b+2)}, 0\nv_mov_b32 {v(b+3)}, 0")
        def prep0():
            g(f"""v_lshlrev_b32 {v(T+2)}, 16, {v(XS)}
                  v_and_b32 {v(RS)}, 0xffff0000, {v(XS)}
                  v_rcp_f32 {v(RS)}, {v(RS)}
                  v_cvt_pk_bf16_f32 {v(NM)}, -{v(T+2)}, -{v(T+2)}
                  v_mul_f32 {v(NRS)}, 0xbfb8aa3b, {v(RS)}
                  v_mov_b32 {v(NM+1)}, {v(NM)}
                  v_mov_b32 {v(NM+2)}, 0
                  v_mov_b32 {v(NM+3)}, 0""")
        def silu_setup():
            g(f"""s_lshl_b32 {s(S_U0)}, {s(S_MT)}, 2
              s_add_u32 {s(S_U0)}, {s(S_U0)}, {s(S_WI)}
              s_mul_i32 {s(S_U0)}, {s(S_U0)}, {NKS}
              s_lshl_b32 {s(S_U1)}, {s(S_T1)}, 1
              s_add_u32 {s(S_U0)}, {s(S_U0)}, {s(S_U1)}
              s_add_u32 {s(S_U0)}, {s(S_U0)}, 64
              s_lshl_b32 {s(S_U2)}, {s(S_U0)}, 10""")
        f1 = self.collect(lambda: (self.w2_voff(VD, T+2), silu_setup()))
        f2 = self.collect(prep0); f3 = self.collect(prep)
        xsr = f"ds_read_b32 {v(XS)}, {v(RS)}"
        csr = "\n".join(f"ds_read_b128 {v(CS+4*t,4)}, {v(XS+1)} offset:{1024*t}" for t in range(3))
        def check(cnt, tgt, reads):
            lo = g.lab("WOK")
            g(f"""v_readfirstlane_b32 {s(S_U3)}, {v(T)}
                  s_cmp_eq_u32 {s(S_U3)}, {tgt}
                  s_cbranch_scc1 {lo}""")
            self.spin_cnt(cnt, VCNT, T, reads, tgt)
            g(f"{lo}:")
        extra = 0
        for idx, (j, k) in enumerate(steps):
            b = WF + 12 * (idx % 3)
            nxt = 6 if idx + 1 < 32 else 0
            g(f"s_waitcnt lgkmcnt({nxt + extra})")
            extra = 0
            xr = X + 16*j + 4*k
            for t in range(3):
                cc = "0" if idx == 0 else v(ACC+16*t, 16)
                g(f"v_mfma_f32_32x32x16_bf16 {v(ACC+16*t,16)}, {v(b+4*t,4)}, {v(xr,4)}, {cc}")
                if t == 0 and idx == 14: check(C_WB, 4, "")
                if t == 0 and idx == 22: check(C_S1, 8, xsr)
                if t == 0 and idx == 26: check(C_CSF, 4, csr)
                if idx + 2 < 32: rd(idx + 2, t)
                if 1 <= idx < 8: self.take(f1, 2)
                if 22 <= idx < 25: self.take(f2, 2)
                if 26 <= idx < 30: self.take(f3, 3)
                if idx == 30:
                    g(f"v_mfma_f32_32x32x16_bf16 {v(ACC+16*t,16)}, {v(CS+4*t,4)}, {v(NM,4)}, {v(ACC+16*t,16)}")
            if k == 0:
                for t in range(3):
                    cc = "0" if idx == 0 else v(CS+4*t, 4)
                    g(f"v_mfma_f32_16x16x32_bf16 {v(CS+4*t,4)}, {v(NM,4)}, {v(b+4*t,4)}, {cc}")
            if idx in (5, 13, 23, 29):
                self.signal_cnt(C_PD + 4*(5, 13, 23, 29).index(idx), VCNT, VONE); extra += 1
            if idx == 9:
                g("s_waitcnt vmcnt(0)")
                self.signal_cnt(C_WB, VCNT, VONE); extra += 1
            if idx == 12:
                g(f"ds_read_b32 {v(T)}, {v(VCNT)} offset:{C_WB}"); extra += 1
            if idx == 20:
                g(f"ds_read_b32 {v(T)}, {v(VCNT)} offset:{C_S1}\n" + xsr); extra += 2
            if idx == 21:
                for t in range(3): g(f"ds_write_b32 v1, {v(CS+4*t)} offset:{1024*t}")
                self.signal_cnt(C_CSF, VCNT, VONE); extra += 4
            if idx == 24:
                g(f"ds_read_b32 {v(T)}, {v(VCNT)} offset:{C_CSF}\n" + csr); extra += 4
            if o.get("fdetail") and idx % 4 == 3:
                self.mute = True
                self.stamp(4 + idx // 4, True)
        assert not f1 and not f2 and not f3
        self.stamp(4)
        g("s_nop 7\ns_nop 1")
        self.stamp(5)
        g.c("SiLU + store")
        g(f"s_setprio {o.get('fprio_silu', 3)}")
        PB = 11
        lsk = g.lab("NOT2")
        for t in range(3):
            a = ACC + 16*t
            if t == 2:
                g(f"""s_and_b32 {s(S_U0)}, {s(S_G)}, 3
                      s_cmp_eq_u32 {s(S_U0)}, 3
                      s_cbranch_scc1 {lsk}
                      s_add_u32 {s(S_U2)}, {s(S_U2)}, 4096""")
            for hf in range(2):
                e = WF if hf == 0 else WF + 8
                z = a + 8*hf
                for i in range(0, 8, 2): g(f"v_pk_mul_f32 {v(e+i,2)}, {v(z+i,2)}, {v(RS,2)} op_sel:[0,1] op_sel_hi:[1,1]")
                for i in range(8):
                    g(f"v_exp_f32 {v(e+i)}, {v(e+i)}")
                    if i & 1: g(f"v_pk_mul_f32 {v(z+i-1,2)}, {v(z+i-1,2)}, {v(RS,2)} op_sel_hi:[1,0]")
                for i in range(0, 8, 2): g(f"v_pk_add_f32 {v(e+i,2)}, {v(e+i,2)}, 1.0 op_sel_hi:[1,0]")
                for i in range(8): g(f"v_rcp_f32 {v(e+i)}, {v(e+i)}")
                for i in range(0, 8, 2): g(f"v_pk_mul_f32 {v(z+i,2)}, {v(z+i,2)}, {v(e+i,2)}")
                d = CS + 4*hf
                for i in range(4): g(f"v_cvt_pk_bf16_f32 {v(d+i)}, {v(a+8*hf+2*i)}, {v(a+8*hf+2*i+1)}")
                g(f"buffer_store_dwordx4 {v(d,4)}, {v(PB)}, {s(R_WS,4)}, {s(S_U2)} offen offset:{((2*t+hf)&3)*1024} sc1")
        g(f"{lsk}:")
        self.stamp(6)

        g.c("---------------- F phase 2 ----------------")
        A2 = 176
        BR = 96
        AB = 48
        BTm = 240
        WB = 6
        VA = 8
        T2 = 40
        T = 44
        NR = 10
        self.w2_own_setup(S_T2, S_WO)
        g(f"""v_lshrrev_b32 {v(T2)}, 5, v0
              v_bfe_u32 {v(T2+1)}, v0, 2, 2
              v_lshl_add_u32 {v(T2)}, {v(T2)}, 2, {v(T2+1)}
              v_lshlrev_b32 {v(T2)}, 7, {v(T2)}
              v_bfe_u32 {v(T2+1)}, v0, 3, 1
              v_lshl_add_u32 {v(T2)}, {v(T2+1)}, 6, {v(T2)}
              v_bfe_u32 {v(T2+1)}, v0, 4, 1
              v_lshl_add_u32 {v(T2)}, {v(T2+1)}, 5, {v(T2)}
              v_and_b32 {v(T2+1)}, 3, v0
              v_lshl_add_u32 {v(T2)}, {v(T2+1)}, 3, {v(T2)}
              v_add_u32 {v(WB)}, {s(S_T2)}, {v(T2)}
              v_xor_b32 {v(WB+1)}, 64, {v(WB)}
              s_and_b32 {s(S_U0)}, {s(S_WI)}, 2
              s_lshl_b32 {s(S_U0)}, {s(S_U0)}, 1
              v_add_u32 {v(T2+2)}, {s(S_U0)}, {v(VCNT)}""")
        def bread(dst, lks):
            for ct in range(2):
                for u in range(2):
                    g(f"ds_read_b64_tr_b16 {v(dst+4*ct+2*u,2)}, {v(WB+ct)} offset:{lks*2048+u*1024}")
        g(f"""s_mul_i32 {s(S_XO)}, {s(S_RT)}, {2*NKS}
              s_mul_i32 {s(S_U0)}, {s(S_WI)}, 22
              s_add_u32 {s(S_XO)}, {s(S_XO)}, {s(S_U0)}
              s_add_u32 {s(S_XO)}, {s(S_XO)}, 64
              s_lshl_b32 {s(S_XO)}, {s(S_XO)}, 10
              s_mul_i32 {s(S_U0)}, {s(S_WI)}, 12288
              v_add_u32 {v(T)}, {s(S_U0)}, {v(PB)}
              v_add_u32 {v(T+1)}, {s(S_T2)}, {v(PB)}""")
        self.out_setup(VA, 2, PB)
        self.set_flag(WS_FLAGF, VZ, T2+3, 0)
        g(f"s_setprio {o.get('fprio2', 0)}")
        self.spin_cnt(C_B1, T2+2, T2)
        self.stamp(7)
        for ks in range(NR):
            bread(BR + 8*ks, ks)
            if ks % 2 == 1: g("s_waitcnt lgkmcnt(4)")
        g("s_waitcnt lgkmcnt(0)")
        fb = o.get("f_b2a", 6)
        self.w2_issue(VD, S_T2, S_WO, 12, fb, 0)
        self.poll_issue(WS_FLAGF)
        self.w2_issue(VD, S_T2, S_WO, 12 + fb, 10 - fb, fb)
        self.stamp(8)
        self.poll_finish()
        self.stamp(9)
        BT = [240, 248, 32]
        N2, D = 44, 12
        def aload(i):
            rb, ks = divmod(i, 22)
            if ks % 4 == 0: g(f"s_add_u32 {s(S_U0)}, {s(S_XO)}, {(rb*NKS + ks)*1024}")
            g(f"buffer_load_dwordx4 {v(AB+4*(i%D),4)}, {v(PB)}, {s(R_WS,4)}, {s(S_U0)} offen offset:{(ks%4)*1024} sc1")
        for i in range(D): aload(i)
        for i in range(N2):
            rb, ks = divmod(i, 22)
            inl = lambda j: j < N2 and j % 22 >= NR
            w = f"s_waitcnt vmcnt({min(N2, i+D) - i - 1})"
            if inl(i): w += f" lgkmcnt({4 if inl(i+1) else 0})"
            g(w)
            bs = BT[i % 3] if inl(i) else BR + 8*ks
            for ct in range(2):
                d = A2 + 16*(2*rb+ct)
                g(f"v_mfma_f32_32x32x16_bf16 {v(d,16)}, {v(AB+4*(i%D),4)}, {v(bs+4*ct,4)}, {'0' if ks == 0 else v(d,16)}")
                if ct == 0 and inl(i+2): bread(BT[(i+2) % 3], ((i+2) % 22) % 12)
                if ct == 0 and 24 <= i < 28:
                    for u in range(2):
                        x = 2*(i-24) + u
                        g(f"ds_write_b128 {v(T)}, {v(A2+4*x,4)} offset:{4096 + x*1024}")
            if i + D < N2: aload(i + D)
            if o.get("p2detail") and i in (0, 7, 15, 22, 24, 29, 36):
                self.stamp(1 + (0, 7, 15, 22, 24, 29, 36).index(i), True)
            if i == 23: self.spin_cnt(C_SR, VCNT, T+2)
            if i == 27:
                self.signal_cnt(C_FM, VCNT, VONE)
                g(f"ds_read_b128 {v(40,4)}, v4 offset:{2*12288}")
        self.stamp(10)
        g("s_nop 7\ns_nop 3")
        for x in range(8):
            g(f"ds_write_b128 {v(T+1)}, {v(A2+32+4*x,4)} offset:{x*1024}")
        g("s_waitcnt lgkmcnt(0)\ns_barrier")
        self.final_piece(1, 40, BR, VA, 2)
        le = g.lab("NOEP")
        g(f"""s_lshl_b32 {s(S_U0)}, {s(S_RT)}, 5
              s_lshl_b32 {s(S_U1)}, {s(S_NT)}, 2
              s_add_u32 {s(S_U0)}, {s(S_U0)}, {s(S_U1)}
              s_add_u32 {s(S_U0)}, {s(S_U0)}, {s(S_WI)}
              s_cmp_lg_u32 {s(S_U0)}, {31*32}
              s_cbranch_scc1 {le}
              v_mov_b32 {v(T)}, {s(S_TAG)}
              s_mov_b32 {s(S_U0)}, {hex(WS_EPOCH)}
              s_mov_b64 exec, 1
              buffer_store_dword {v(T)}, {v(VZ)}, {s(R_WS,4)}, {s(S_U0)} offen
              s_mov_b64 exec, -1""")
        g(f"{le}:")
        self.stamp(11)
        self.stamps_out(T, 'F')
        g("s_endpgm")

    def out_setup(self, VO, VL, VL16):
        self.g(f"""v_and_b32 {v(VO)}, 31, v0
              v_lshlrev_b32 {v(VO)}, 2, {v(VO)}
              v_and_b32 {v(VL)}, 32, v0
              v_lshl_add_u32 {v(VO)}, {v(VL)}, 10, {v(VO)}
              s_lshl_b32 {s(S_U0)}, {s(S_WI)}, 10
              v_add_u32 {v(VL+2)}, {s(S_U0)}, {v(VL16)}
              v_add_u32 {v(VL)}, {W1B}, {v(VL+2)}
              v_add_u32 {v(VL+1)}, {W1B + 3*SLOT}, {v(VL+2)}
              s_lshl_b32 {s(S_T0)}, {s(S_RT)}, 17
              s_lshl_b32 {s(S_U0)}, {s(S_WI)}, 13
              s_add_u32 {s(S_T0)}, {s(S_T0)}, {s(S_U0)}
              s_lshl_b32 {s(S_U0)}, {s(S_NT)}, 8
              s_add_u32 {s(S_T0)}, {s(S_T0)}, {s(S_U0)}""")

    def sum_store(self, ACC, TMP, VO, rb, ct, first_wait):
        g = self.g
        g(f"""s_add_u32 {s(S_U0)}, {s(S_T0)}, {rb*65536 + ct*128}
              s_add_u32 {s(S_U1)}, {s(S_U0)}, 4096
              s_waitcnt lgkmcnt({first_wait + 2})""")
        for j in range(4): g(f"v_add_f32 {v(ACC+j)}, {v(ACC+j)}, {v(TMP+j)}")
        for j in range(4): g(f"v_add_f32 {v(ACC+j)}, {v(ACC+j)}, {v(TMP+4+j)}")
        g(f"s_waitcnt lgkmcnt({first_wait})")
        for j in range(4): g(f"v_add_f32 {v(TMP+8+j)}, {v(TMP+8+j)}, {v(TMP+12+j)}")
        for j in range(4):
            g(f"""v_add_f32 {v(ACC+j)}, {v(ACC+j)}, {v(TMP+8+j)}
                  buffer_store_dword {v(ACC+j)}, {v(VO)}, {s(R_OUT,4)}, {s(S_U0 if j < 2 else S_U1)} offen offset:{(j&1)*2048}{self.o.get('out_pol',' sc1')}""")

    def final_piece(self, ct, ACC, TMP, VO, VL):
        g = self.g
        for q in range(4):
            g(f"ds_read_b128 {v(TMP+4*q,4)}, {v(VL + (q == 3))} offset:{(q % 3)*SLOT + ct*4096}")
        self.sum_store(ACC, TMP, VO, 1, ct, 0)

    def gather3(self, base, stride, dst, T):
        g = self.g
        for d in range(1, 4):
            g(f"""s_xor_b32 {s(S_U0)}, {s(S_WI)}, {d}
                  s_mul_i32 {s(S_U0)}, {s(S_U0)}, {stride}
                  s_add_u32 {s(S_U0)}, {s(S_U0)}, {base + (d-1)*4096}
                  v_lshl_add_u32 {v(T)}, v0, 4, {s(S_U0)}""")
            for q in range(4):
                g(f"ds_read_b128 {v(dst+16*(d-1)+4*q,4)}, {v(T)} offset:{q*1024}")

    def a_setup(self, VA, ks_base, per_wave, T):
        g = self.g
        g(f"""s_lshr_b32 {s(S_U0)}, {s(S_WI)}, 1
              s_mul_i32 {s(S_U1)}, {s(S_U0)}, {NKS*1024}
              s_sub_u32 {s(S_U2)}, {NKS*1024}, {s(S_U1)}
              v_lshl_add_u32 {v(VA)}, v0, 4, {s(S_U1)}
              v_lshl_add_u32 {v(VA+1)}, v0, 4, {s(S_U2)}
              s_mul_i32 {s(S_XO)}, {s(S_RT)}, {2*NKS}
              s_mul_i32 {s(S_U0)}, {s(S_WI)}, {per_wave}
              s_add_u32 {s(S_XO)}, {s(S_XO)}, {s(S_U0)}
              s_add_u32 {s(S_XO)}, {s(S_XO)}, {ks_base}
              s_lshl_b32 {s(S_XO)}, {s(S_XO)}, 10""")

    def p2_loop(self, n, VA, AB, A2, bsrc, pre, mid, soff, init0=False):
        g = self.g
        D = 6
        def aload(ks):
            if ks % 2 == 0: soff(ks)
            for rb in range(2):
                g(f"buffer_load_dwordx4 {v(AB+8*(ks%D)+4*rb,4)}, {v(VA+rb)}, {s(R_WS,4)}, {s(S_U0)} offen offset:{(ks%2)*1024} sc1")
        for ks in range(D): aload(ks)
        for ks in range(n):
            pre(ks)
            g(f"s_waitcnt vmcnt({2*(min(n, ks+D) - ks - 1)})")
            for rb in range(2):
                for ct in range(2):
                    d = A2 + 16*(2*rb+ct)
                    cc = "0" if ks == 0 and not (init0 and rb == 0 and ct == 0) else v(d, 16)
                    g(f"v_mfma_f32_32x32x16_bf16 {v(d,16)}, {v(AB+8*(ks%D)+4*rb,4)}, {v(bsrc(ks)+4*ct,4)}, {cc}")
                    if rb == 0 and ct == 0: mid(ks)
            if ks + D < n: aload(ks + D)
        g("s_nop 7\ns_nop 7")

    def swave(self):
        g = self.g; o = self.o
        BR = 128
        WR, WI_ = BR + 80, BR + 112
        UR, UI = 96, 112
        FR = 48
        XA, BA = 2, 6
        LA, LB = 10, 11
        L16, L128, W0, KA, GS = 12, 14, 16, 18, 20
        VCNT, VONE, VZ = 22, 23, 24
        SEGV, NLB = 25, 26
        VXS, VCS = 1, 27
        T = 28
        XS, CG = BR, BR + 2
        OP = BR + 4
        RSV = BR + 16
        VD, TRW, TRR, LB1, LB2, VW, VL16 = 36, 40, 41, 42, 43, 44, 47
        R_W1 = R_OUT
        self.mute = False
        g("L_SWAVE:")
        g.c("---------------- S wave ----------------")
        g(f"v_lshlrev_b32 {v(T+4)}, 4, v0")
        if o.get("codepf", 1):
            lp = g.lab("NOPF")
            g(f"""s_cmp_lg_u32 {s(S_WI)}, 0
                  s_cbranch_scc1 {lp}
                  s_getpc_b64 {s(R_B,2)}""")
            g("L_PC:")
            g(f"""s_sub_u32 {s(R_B)}, {s(R_B)}, L_PC-{NAME}_kernel
                  s_subb_u32 {s(R_B+1)}, {s(R_B+1)}, 0
                  s_mov_b32 {s(R_B+2)}, L_CODE_END-{NAME}_kernel
                  s_mov_b32 {s(R_B+3)}, 0x20000
                  s_lshr_b32 {s(S_U0)}, s2, 3
                  s_lshl_b32 {s(S_U0)}, {s(S_U0)}, 10
                  buffer_load_dwordx4 {v(FR+12,4)}, {v(T+4)}, {s(R_B,4)}, {s(S_U0)} offen""")
            g(f"{lp}:")
        g(f"""
              s_lshl_b32 {s(S_T0)}, {s(S_MT)}, 7
              s_lshl_b32 {s(S_T1)}, {s(S_G)}, 3
              s_add_u32 {s(S_T0)}, {s(S_T0)}, {s(S_T1)}
              s_lshl_b32 {s(S_T1)}, {s(S_WI)}, 1
              s_add_u32 {s(S_T0)}, {s(S_T0)}, {s(S_T1)}
              s_lshl_b32 {s(S_U0)}, {s(S_T0)}, 10
              s_lshl_b32 {s(S_T1)}, {s(S_MT)}, 2
              s_add_u32 {s(S_T1)}, {s(S_T1)}, {s(S_WI)}
              s_and_b32 {s(S_U1)}, {s(S_T1)}, 31
              s_lshl_b32 {s(S_U2)}, {s(S_G)}, 5
              s_add_u32 {s(S_U1)}, {s(S_U1)}, {s(S_U2)}
              s_lshl_b32 {s(S_U1)}, {s(S_U1)}, 10
              s_mov_b32 {s(R_X+2)}, {hex(2048*512*2)}
              s_mov_b32 {s(R_X+3)}, 0x20000
              s_mov_b32 {s(R_A+2)}, {hex(512*512*2)}
              s_mov_b32 {s(R_A+3)}, 0x20000
              v_and_b32 {v(T)}, 31, v0
              v_lshlrev_b32 {v(T)}, 1, {v(T)}
              s_lshl_b32 {s(S_U2)}, {s(S_G)}, 6
              v_add_u32 {v(T)}, {s(S_U2)}, {v(T)}
              s_cmp_ge_u32 {s(S_MT)}, 8
              s_waitcnt lgkmcnt(0)
              s_mov_b32 {s(R_X)}, {s(P_X)}
              s_mov_b32 {s(R_X+1)}, {s(P_X+1)}
              s_cselect_b32 {s(R_A)}, {s(P_BIM)}, {s(P_BRE)}
              s_cselect_b32 {s(R_A+1)}, {s(P_BIM+1)}, {s(P_BRE+1)}
              buffer_load_dwordx4 {v(FR,4)}, {v(T+4)}, {s(R_X,4)}, {s(S_U0)} offen
              buffer_load_dwordx4 {v(FR+4,4)}, {v(T+4)}, {s(R_X,4)}, {s(S_U0)} offen offset:1024
              buffer_load_dwordx4 {v(FR+8,4)}, {v(T+4)}, {s(R_A,4)}, {s(S_U1)} offen
              global_load_ushort {v(T+1)}, {v(T)}, {s(P_LRE,2)}
              global_load_ushort {v(T+2)}, {v(T)}, {s(P_LIM,2)}
              global_load_ushort {v(T+3)}, {v(T)}, {s(P_LDT,2)}""")
        self.epoch()
        pfpos = o.get("pf", {"1": -1, "c": 6, "2": 6})
        RP = R_OUT
        def pf_emit(pos, VL):
            n = 0
            for key in "1c2":
                if pfpos.get(key) != pos: continue
                g(f"""s_lshl_b32 {s(S_U0)}, s2, 2
                      s_add_u32 {s(S_U0)}, {s(S_U0)}, {s(S_WI)}
                      s_lshl_b32 {s(S_U0)}, {s(S_U0)}, 10
                      s_mov_b32 {s(RP+3)}, 0x20000""")
                if key == "c":
                    g(f"""s_bitcmp1_b32 {s(S_WI)}, 0
                      s_cselect_b32 {s(RP)}, {s(P_CIM)}, {s(P_CRE)}
                      s_cselect_b32 {s(RP+1)}, {s(P_CIM+1)}, {s(P_CRE+1)}
                      s_mov_b32 {s(RP+2)}, {hex(512*1024)}
                      s_lshr_b32 {s(S_U1)}, {s(S_U0)}, 11
                      s_lshl_b32 {s(S_U1)}, {s(S_U1)}, 10
                      buffer_load_dwordx4 {v(BR+56,4)}, {v(VL)}, {s(RP,4)}, {s(S_U1)} offen""")
                    n += 1
                else:
                    P_ = P_W1 if key == "1" else P_W2
                    d = BR + (48 if key == "1" else 60)
                    g(f"""s_mov_b32 {s(RP)}, {s(P_)}
                      s_mov_b32 {s(RP+1)}, {s(P_+1)}
                      s_mov_b32 {s(RP+2)}, {hex(1376*1024)}
                      s_xor_b32 {s(S_U1)}, {s(S_WI)}, {0 if key == "1" else 3}
                      s_lshl_b32 {s(S_U1)}, {s(S_U1)}, 8
                      s_add_u32 {s(S_U1)}, {s(S_U1)}, s2
                      s_lshl_b32 {s(S_U1)}, {s(S_U1)}, 10
                      s_add_u32 {s(S_U1)}, {s(S_U1)}, {1 << 20}
                      buffer_load_dwordx4 {v(d,4)}, {v(VL)}, {s(RP,4)}, {s(S_U0)} offen
                      buffer_load_dwordx4 {v(d+4,4)}, {v(VL)}, {s(RP,4)}, {s(S_U1)} offen""")
                    n += 2
            return n
        npf_ = pf_emit(-1, T+4)
        g.c("@@SREST")
        self.cnt_regs(VCNT, VONE)
        g(f"""v_mov_b32 {v(VZ)}, 0
              v_lshlrev_b32 {v(T+5)}, 2, v0
              v_add_u32 {v(T+5)}, {L_CNT}, {v(T+5)}
              ds_write_b32 {v(T+5)}, {v(VZ)}
              s_mov_b32 {s(S_ONES)}, 0x3f803f80""")
        srd(g, R_WS, P_WS, WS_BYTES); srd(g, R_W2, P_W2, 1376 * 512 * 2)
        self.frag_pat(BA, T+6, T+7, False)
        g(f"s_lshl_b32 {s(S_T3)}, {s(S_WI)}, 12")
        for k in range(4):
            g(f"v_add_u32 {v(XA+k)}, {s(S_T3)}, {v(BA+k)}\nv_add_u32 {v(BA+k)}, 16384, {v(BA+k)}")
        for r in (2, 3, 6, 7, 10, 11): g(f"v_mov_b32 {v(OP+r)}, 0")
        self.tau(VXS, T+6)
        A5 = BR + 32
        SO = BR + 38
        g(f"""s_lshl_b32 {s(S_U0)}, {s(S_MT)}, 10
              s_lshl_b32 {s(S_U1)}, {s(S_WI)}, 8
              s_add_u32 {s(S_U0)}, {s(S_U0)}, {s(S_U1)}
              s_add_u32 {s(S_U0)}, {s(S_U0)}, {hex(WS_XS)}
              v_lshl_add_u32 {v(VXS)}, {v(VXS)}, 3, {s(S_U0)}
              s_lshl_b32 {s(S_T4)}, {s(S_G)}, 9
              s_add_u32 {s(S_T4)}, {s(S_T4)}, {hex(WS_CSG)}
              v_lshl_add_u32 {v(VCS)}, v0, 3, {s(S_T4)}
              v_lshrrev_b32 {v(SEGV)}, 5, v0
              v_lshlrev_b32 {v(SO)}, 3, {v(SEGV)}
              s_lshl_b32 {s(S_U0)}, {s(S_WI)}, 1
              v_add_u32 {v(SEGV)}, {s(S_U0)}, {v(SEGV)}""")
        for k in range(5): g(f"v_mov_b32 {v(A5+k)}, 0")
        g(f"""s_lshl_b32 {s(S_V1)}, {s(S_T0)}, 3
              s_add_u32 {s(S_V1)}, {s(S_V1)}, {hex(WS_XS)}
              s_lshl_b32 {s(S_XO)}, {s(S_T1)}, 3
              s_add_u32 {s(S_XO)}, {s(S_XO)}, {s(S_T4)}""")
        TB = BR + 40
        def addrs():
            self.lane8_pat(TB, TB+1, TB+2)
            g(f"""v_lshl_or_b32 {v(VD)}, {v(TB+1)}, 10, {v(TB)}
              v_add_u32 {v(VD+1)}, 7168, {v(VD)}
              v_xor_b32 {v(VD+1)}, 64, {v(VD+1)}
              v_add_u32 {v(VD+2)}, {2*7168}, {v(VD)}
              v_add_u32 {v(VD+3)}, {2*7168}, {v(VD+1)}
              s_mul_i32 {s(S_T2)}, {s(S_WI)}, 12288
              s_lshl_b32 {s(S_WO)}, {s(S_NT)}, 16
              s_lshl_b32 {s(S_U1)}, {s(S_WI)}, 8
              s_add_u32 {s(S_WO)}, {s(S_WO)}, {s(S_U1)}
              s_and_b32 {s(S_U1)}, {s(S_ROT)}, 2
              s_lshl_b32 {s(S_U1)}, {s(S_U1)}, 6
              s_add_u32 {s(S_WO)}, {s(S_WO)}, {s(S_U1)}
              s_and_b32 {s(S_U1)}, {s(S_WI)}, 1
              s_lshl_b32 {s(S_U1)}, {s(S_U1)}, 15
              s_xor_b32 {s(S_BO)}, {s(S_U1)}, 0x8000
              s_add_u32 {s(S_BO)}, {s(S_BO)}, {s(S_WO)}
              s_add_u32 {s(S_WO)}, {s(S_WO)}, {s(S_U1)}
              v_and_b32 {v(TB)}, 31, v0
              v_lshlrev_b32 {v(TB+1)}, 1, {v(SEGV)}
              v_sub_u32 {v(TB+1)}, {s(S_MT)}, {v(TB+1)}
              v_cmp_le_i32 {s(S_EX,2)}, 1, {v(TB+1)}
              v_cmp_le_i32 {s(S_MK,2)}, 2, {v(TB+1)}
              v_lshlrev_b32 {v(TB+1)}, 9, {v(TB+1)}
              v_lshl_add_u32 {v(TB+1)}, {v(TB)}, 4, {v(TB+1)}
              v_subrev_u32 {v(LB1)}, 512, {v(TB+1)}
              v_subrev_u32 {v(LB2)}, 1024, {v(TB+1)}
              v_mov_b32 {v(TB+2)}, 0x40000000
              v_cndmask_b32 {v(LB1)}, {v(TB+2)}, {v(LB1)}, {s(S_EX,2)}
              v_cndmask_b32 {v(LB2)}, {v(TB+2)}, {v(LB2)}, {s(S_MK,2)}
              s_lshl_b32 {s(S_U0)}, {s(S_WI)}, 11
              s_add_u32 {s(S_U0)}, {s(S_U0)}, {L_TR}
              v_lshl_add_u32 {v(TRW)}, {v(TB)}, 6, {s(S_U0)}
              v_and_b32 {v(TRR)}, 32, v0
              v_add_u32 {v(TRW)}, {v(TRW)}, {v(TRR)}
              v_lshlrev_b32 {v(TRR)}, 4, {v(TRR)}
              v_bfe_u32 {v(TB+3)}, v0, 2, 2
              v_lshl_add_u32 {v(TRR)}, {v(TB+3)}, 6, {v(TRR)}
              v_and_b32 {v(TB+3)}, 1, v0
              v_lshl_add_u32 {v(TRR)}, {v(TB+3)}, 5, {v(TRR)}
              v_and_b32 {v(TB+3)}, 16, v0
              v_add_u32 {v(TRR)}, {v(TRR)}, {v(TB+3)}
              v_and_b32 {v(TB+3)}, 2, v0
              v_lshl_add_u32 {v(TRR)}, {v(TB+3)}, 2, {v(TRR)}
              v_add_u32 {v(TRR)}, {s(S_U0)}, {v(TRR)}
              v_and_b32 {v(TB+3)}, 6, v0
              v_lshlrev_b32 {v(TB+3)}, 3, {v(TB+3)}
              v_xor_b32 {v(TRW)}, {v(TRW)}, {v(TB+3)}
              v_xor_b32 {v(VW)}, 16, {v(TRW)}
              v_and_b32 {v(TB+3)}, 8, v0
              v_lshlrev_b32 {v(TB+3)}, 1, {v(TB+3)}
              v_xor_b32 {v(TRR)}, {v(TRR)}, {v(TB+3)}
              v_xor_b32 {v(VW+1)}, 32, {v(TRR)}
              v_lshlrev_b32 {v(VL16)}, 4, v0
              s_lshl_b32 {s(S_U0)}, {s(S_MT)}, 2
              s_add_u32 {s(S_U0)}, {s(S_U0)}, {s(S_WI)}
              s_mul_i32 {s(S_U0)}, {s(S_U0)}, {NKS}
              s_lshl_b32 {s(S_U1)}, {s(S_G)}, 2
              s_add_u32 {s(S_U0)}, {s(S_U0)}, {s(S_U1)}
              s_lshl_b32 {s(S_T0)}, {s(S_U0)}, 10""")
        addrs()
        g(f"s_waitcnt vmcnt({npf_}) lgkmcnt(0)")
        self.epoch_fin()
        for k in range(4):
            g(f"""v_dot2c_f32_bf16 {v(A5)}, {s(S_ONES)}, {v(FR+k)}
                  v_dot2c_f32_bf16 {v(A5+1)}, {s(S_ONES)}, {v(FR+4+k)}
                  v_dot2c_f32_bf16 {v(A5+2)}, {v(FR+k)}, {v(FR+k)}
                  v_dot2c_f32_bf16 {v(A5+3)}, {v(FR+4+k)}, {v(FR+4+k)}
                  v_dot2c_f32_bf16 {v(A5+4)}, {s(S_ONES)}, {v(FR+8+k)}""")
        SX, SQ, CC = A5, A5+2, A5+4
        def stats():
            g(f"""s_nop 2
              v_mov_b32 {v(A5+5)}, {v(CC)}
              v_permlane32_swap_b32 {v(A5)}, {v(A5+1)}
              v_permlane32_swap_b32 {v(A5+2)}, {v(A5+3)}
              v_permlane32_swap_b32 {v(CC)}, {v(A5+5)}
              v_add_f32 {v(SX)}, {v(A5)}, {v(A5+1)}
              v_add_f32 {v(SQ)}, {v(A5+2)}, {v(A5+3)}
              v_add_f32 {v(CC)}, {v(CC)}, {v(A5+5)}
              v_mov_b32 {v(SX+1)}, {v(SX)}
              v_mov_b32 {v(SQ+1)}, {v(SQ)}
              v_mov_b32 {v(CC+1)}, {v(CC)}
              v_permlane16_swap_b32 {v(SX)}, {v(SX+1)}
              s_nop 0
              v_permlane16_swap_b32 {v(SQ)}, {v(SQ+1)}
              v_permlane16_swap_b32 {v(CC)}, {v(CC+1)}
              v_add_f32 {v(SX)}, {v(SX)}, {v(SX+1)}
              v_add_f32 {v(SQ)}, {v(SQ)}, {v(SQ+1)}
              v_add_f32 {v(CC)}, {v(CC)}, {v(CC+1)}""")
            for m in ("quad_perm:[1,0,3,2]", "quad_perm:[2,3,0,1]", "row_half_mirror", "row_mirror"):
                for r in (SX, SQ, CC):
                    g(f"v_add_f32_dpp {v(r)}, {v(r)}, {v(r)} {m} row_mask:0xf bank_mask:0xf")
            g(f"""v_mul_f32 {v(SX)}, 0x3b000000, {v(SX)}
              v_mul_f32 {v(SQ)}, 0x3b000000, {v(SQ)}
              v_fma_f32 {v(SQ)}, -{v(SX)}, {v(SX)}, {v(SQ)}
              v_max_f32 {v(SQ)}, 0, {v(SQ)}
              v_cvt_pk_bf16_f32 {v(SQ)}, {v(SQ)}, {v(SQ)}
              v_and_b32 {v(SQ)}, 0xffff0000, {v(SQ)}
              v_add_f32 {v(SQ)}, 0x3727c5ac, {v(SQ)}
              v_cvt_pk_bf16_f32 {v(SQ)}, {v(SQ)}, {v(SQ)}
              v_and_b32 {v(SQ)}, 0xffff0000, {v(SQ)}
              v_sqrt_f32 {v(SQ)}, {v(SQ)}
              v_mov_b32 {v(SX+1)}, {s(S_TAG)}
              v_mov_b32 {v(CC+1)}, {s(S_TAG)}
              v_cvt_pk_bf16_f32 {v(SX)}, {v(SX)}, {v(SQ)}
              ; {{
              s_mov_b32 exec_lo, 1
              s_mov_b32 exec_hi, 1
              buffer_store_dwordx2 {v(SX,2)}, {v(SO)}, {s(R_WS,4)}, {s(S_V1)} offen sc1
              s_mov_b32 exec_hi, 0
              buffer_store_dwordx2 {v(CC,2)}, {v(VZ)}, {s(R_WS,4)}, {s(S_XO)} offen sc1
              s_mov_b64 exec, -1
              ; }}""")
            g(f"""; {{
              s_bitcmp1_b32 {s(S_ROT)}, 0
              s_cselect_b32 {s(R_A)}, {s(P_CIM)}, {s(P_CRE)}
              s_cselect_b32 {s(R_A+1)}, {s(P_CIM+1)}, {s(P_CRE+1)}
              s_cselect_b32 {s(R_B)}, {s(P_CRE)}, {s(P_CIM)}
              s_cselect_b32 {s(R_B+1)}, {s(P_CRE+1)}, {s(P_CIM+1)}
              ; }}
              s_mov_b32 {s(R_B+2)}, {hex(512*512*2)}
              s_mov_b32 {s(R_B+3)}, 0x20000""")

        lr, li, dt = T+1, T+2, T+3
        def consts():
            g(f"""v_lshlrev_b32 {v(lr)}, 16, {v(lr)}
              v_lshlrev_b32 {v(li)}, 16, {v(li)}
              v_lshlrev_b32 {v(dt)}, 16, {v(dt)}
              v_mul_f32 {v(dt)}, 0x3fb8aa3b, {v(dt)}
              v_exp_f32 {v(dt)}, {v(dt)}
              s_nop 0
              v_cvt_pk_bf16_f32 {v(dt)}, {v(dt)}, {v(dt)}
              v_and_b32 {v(dt)}, 0xffff0000, {v(dt)}
              v_mul_f32 {v(T+4)}, {v(dt)}, {v(lr)}
              v_mul_f32 {v(T+5)}, {v(dt)}, {v(li)}
              v_mul_f32 {v(T+4)}, 0x3fb8aa3b, {v(T+4)}
              v_mul_f32 {v(T+5)}, 0.15915494, {v(T+5)}
              v_rndne_f32 {v(T+6)}, {v(T+5)}
              v_sub_f32 {v(T+5)}, {v(T+5)}, {v(T+6)}
              v_exp_f32 {v(T+4)}, {v(T+4)}
              v_cos_f32 {v(T+6)}, {v(T+5)}
              v_sin_f32 {v(T+7)}, {v(T+5)}
              v_mul_f32 {v(TB)}, {v(lr)}, {v(lr)}
              v_mul_f32 {v(LA)}, {v(T+4)}, {v(T+6)}
              v_mul_f32 {v(LB)}, {v(T+4)}, {v(T+7)}
              v_fmac_f32 {v(TB)}, {v(li)}, {v(li)}
              v_rcp_f32 {v(TB)}, {v(TB)}
              v_add_f32 {v(T+4)}, -1.0, {v(LA)}
              v_mul_f32 {v(KA)}, {v(T+4)}, {v(lr)}
              v_mul_f32 {v(KA+1)}, {v(LB)}, {v(lr)}
              v_fmac_f32 {v(KA)}, {v(LB)}, {v(li)}
              v_fma_f32 {v(KA+1)}, -{v(T+4)}, {v(li)}, {v(KA+1)}
              v_add_f32 {v(TB)}, {v(TB)}, {v(TB)}
              v_mul_f32 {v(KA)}, {v(KA)}, {v(TB)}
              v_mul_f32 {v(KA+1)}, {v(KA+1)}, {v(TB)}
              v_sub_f32 {v(NLB)}, 0, {v(LB)}""")
            a, b, c2 = T, T+2, T+4
            sq = lambda d, x: self.cmul(d, d+1, x, x+1, x, x+1)
            sq(a, LA); sq(b, a); sq(a, b); sq(L16, a)
            sq(a, L16); sq(b, a); sq(L128, b)
            g(f"""v_cmp_lt_u32 vcc, 31, v0
              s_nop 1
              v_cndmask_b32 {v(GS)}, 1.0, {v(L16)}, vcc
              v_cndmask_b32 {v(GS+1)}, 0, {v(L16+1)}, vcc
              ; {{
              s_bitcmp1_b32 {s(S_WI)}, 0
              s_cselect_b64 vcc, -1, 0
              ; }}
              v_cndmask_b32 {v(a)}, 1.0, {v(a)}, vcc
              v_cndmask_b32 {v(a+1)}, 0, {v(a+1)}, vcc
              ; {{
              s_bitcmp1_b32 {s(S_WI)}, 1
              s_cselect_b64 vcc, -1, 0
              ; }}
              v_cndmask_b32 {v(b)}, 1.0, {v(b)}, vcc
              v_cndmask_b32 {v(b+1)}, 0, {v(b+1)}, vcc""")
            self.cmul(c2, c2+1, GS, GS+1, a, a+1)
            self.cmul(GS, GS+1, c2, c2+1, b, b+1)
            sq(a, GS); sq(b, a); sq(a, b); sq(W0, a)
        def table():
            pr_, pi_ = KA, KA+1
            for j in range(16):
                g(f"""v_mul_f32 {v(WR+j)}, {v(LA)}, {v(pr_)}
                      v_mul_f32 {v(WI_+j)}, {v(LA)}, {v(pi_)}
                      v_fmac_f32 {v(WR+j)}, {v(NLB)}, {v(pi_)}
                      v_fmac_f32 {v(WI_+j)}, {v(LB)}, {v(pr_)}""")
                pr_, pi_ = WR+j, WI_+j
        fill = self.collect(lambda: (stats(), consts(), table()))
        take = lambda n: self.take(fill, n)
        self.stamp(1)

        NF = o.get("nfill", 7)
        g.c("stage A")
        if o.get("sprio", 1): g("s_setprio 2")
        def rd(k, off):
            f = FR + 12*k
            if o.get("x_nord"): return
            g(f"""ds_read_b128 {v(f,4)}, {v(XA+k)} offset:{off}
                  ds_read_b128 {v(f+4,4)}, {v(BA+k)} offset:{off}
                  ds_read_b128 {v(f+8,4)}, {v(BA+k)} offset:{off+4096}""")
        def m1(k, im):
            f = FR + 12*k; d = UI if im else UR
            if o.get("x_nomfma"): return
            cc = v(d,16) if started[im] else "0"
            started[im] = True
            g(f"v_mfma_f32_32x32x16_bf16 {v(d,16)}, {v(f,4)}, {v(f+4+4*im,4)}, {cc}")
        started = [False, False]
        late = 0
        gl = f"""buffer_load_dwordx2 {v(XS,2)}, {v(VXS)}, {s(R_WS,4)}, 0 offen sc1
                 buffer_load_dwordx2 {v(CG,2)}, {v(VCS)}, {s(R_WS,4)}, 0 offen sc1"""
        for c in range(8):
            off = (c % 3) * SLOT
            if c in (3, 6):
                op = "v_add_u32" if c == 3 else "v_subrev_u32"
                for k in range(8): g(f"{op} {v(XA+k)}, {3*SLOT}, {v(XA+k)}")
            g("s_barrier")
            rd(0, off); rd(1, off)
            if c == o.get("gl_at", 6): g(gl); late = 0
            late += pf_emit(c, VL16)
            if c:
                g("s_waitcnt lgkmcnt(6)")
                m1(2, 0); take(NF); m1(2, 1); rd(2, off); m1(3, 0); take(NF); m1(3, 1); rd(3, off)
            else:
                rd(2, off); rd(3, off)
            if c < 7:
                g("s_waitcnt lgkmcnt(9)")
                m1(0, 0); take(NF); m1(0, 1); take(NF)
                g("s_waitcnt lgkmcnt(6)")
                m1(1, 0); take(NF); m1(1, 1); take(NF)
        take(1000)
        g("s_waitcnt lgkmcnt(9)")
        m1(0, 0)
        self.recheck(gl, [XS+1, CG+1], late)
        m1(0, 1)
        g(f"""v_and_b32 {v(T+1)}, 0xffff0000, {v(XS)}
              v_rcp_f32 {v(T+1)}, {v(T+1)}
              v_lshrrev_b32 {v(T+2)}, 1, {v(VXS)}
              v_and_b32 {v(T+2)}, 0x1fc, {v(T+2)}
              v_add_u32 {v(T+2)}, {L_RS}, {v(T+2)}
              s_waitcnt lgkmcnt(6)""")
        m1(1, 0)
        g(f"""ds_write_b32 {v(T+2)}, {v(T+1)}
              v_lshlrev_b32 {v(T+3)}, 6, {v(SEGV)}
              v_add_u32 {v(T+3)}, {L_RS}, {v(T+3)}
              v_lshlrev_b32 {v(T+4)}, 16, {v(XS)}""")
        m1(1, 1)
        for k in range(4): g(f"ds_read_b128 {v(RSV+4*k,4)}, {v(T+3)} offset:{16*k}")
        g(f"""v_cvt_pk_bf16_f32 {v(OP)}, -{v(T+4)}, -{v(T+4)}
              s_waitcnt lgkmcnt(8)""")
        m1(2, 0)
        self.split3(CG, T+6, T+7, T+4, T+5)
        m1(2, 1)
        g(f"""v_cmp_gt_u32 vcc, 32, v0
              v_mov_b32 {v(OP+1)}, {v(OP)}
              v_and_b32 {v(T)}, 31, v0
              v_cndmask_b32 {v(OP+4)}, 0, {v(T+6)}, vcc
              v_cndmask_b32 {v(OP+5)}, 0, {v(T+7)}, vcc
              s_waitcnt lgkmcnt(5)""")
        m1(3, 0)
        g(f"""v_cndmask_b32 {v(OP+8)}, {v(T+6)}, {v(VZ)}, vcc
              v_cndmask_b32 {v(OP+9)}, {v(T+7)}, {v(VZ)}, vcc
              v_lshlrev_b32 {v(T+4)}, 3, {v(T)}
              v_add_u32 {v(T+4)}, {L_SEG}, {v(T+4)}
              v_lshl_add_u32 {v(T+5)}, {v(SEGV)}, 8, {v(T+4)}
              v_mfma_f32_32x32x16_bf16 {v(UR,16)}, {v(OP,4)}, {v(OP+4,4)}, {v(UR,16)}""")
        m1(3, 1)
        g(f"v_mfma_f32_32x32x16_bf16 {v(UI,16)}, {v(OP,4)}, {v(OP+8,4)}, {v(UI,16)}")
        self.stamp(2)
        if o.get("x_park"):
            g("s_sleep 100")
        g(f"""v_lshlrev_b32 {v(T+6)}, 4, {v(T)}
              s_lshl_b32 {s(S_T4)}, {s(S_G)}, 13
              s_add_u32 {s(S_T4)}, {s(S_T4)}, {hex(WS_AGG)}
              s_lshl_b32 {s(S_U0)}, {s(S_MT)}, 9
              s_add_u32 {s(S_U0)}, {s(S_U0)}, {s(S_T4)}
              s_waitcnt lgkmcnt(0)
              s_nop 3""")
        for r in range(16): g(f"v_mul_f32 {v(UR+r)}, {v(UR+r)}, {v(RSV+r)}")
        for r in range(16): g(f"v_mul_f32 {v(UI+r)}, {v(UI+r)}, {v(RSV+r)}")
        for r in range(1, 16):
            g(f"""v_fmac_f32 {v(UR+r)}, {v(LA)}, {v(UR+r-1)}
                  v_fmac_f32 {v(UI+r)}, {v(LA)}, {v(UI+r-1)}
                  v_fmac_f32 {v(UR+r)}, {v(NLB)}, {v(UI+r-1)}
                  v_fmac_f32 {v(UI+r)}, {v(LB)}, {v(UR+r-1)}""")
        g(f"""s_lshl_b32 {s(S_U1)}, {s(S_WI)}, 7
              s_add_u32 {s(S_U1)}, {s(S_U1)}, {L_NM}
              v_lshl_add_u32 {v(T+1)}, {v(T)}, 2, {s(S_U1)}
              ds_write2_b32 {v(T+5)}, {v(UR+15)}, {v(UI+15)} offset0:0 offset1:1
              ds_write_b32 {v(T+1)}, {v(XS)}""")
        self.signal_cnt(C_S1, VCNT, VONE)
        E = FR
        g(f"""v_sub_f32 {v(T+7)}, 0, {v(L16+1)}
              v_mov_b32 {v(E+16)}, {s(S_TAG)}
              v_mov_b32 {v(E+17)}, {s(S_TAG)}""")
        self.stamp(3)
        rds = "\n".join(f"ds_read_b64 {v(E+2*k,2)}, {v(T+4)} offset:{256*k}" for k in range(8))
        self.spin_cnt(C_S1, VCNT, T+1, rds, tgt=8)
        for k in range(1, 8):
            g(f"""v_fmac_f32 {v(E+2*k)}, {v(L16)}, {v(E+2*k-2)}
                  v_fmac_f32 {v(E+2*k+1)}, {v(L16)}, {v(E+2*k-1)}
                  v_fmac_f32 {v(E+2*k)}, {v(T+7)}, {v(E+2*k-1)}
                  v_fmac_f32 {v(E+2*k+1)}, {v(L16+1)}, {v(E+2*k-2)}""")
        lnp = g.lab("NOPUB")
        g(f"""s_cmp_lg_u32 {s(S_WI)}, 0
              s_cbranch_scc1 {lnp}
              s_mov_b32 exec_hi, 0
              buffer_store_dwordx4 {v(E+14,4)}, {v(T+6)}, {s(R_WS,4)}, {s(S_U0)} offen sc1
              s_mov_b64 exec, -1""")
        g(f"{lnp}:")
        if o.get("sprio", 1): g("s_setprio 0")
        self.stamp(4)
        PC = BA
        hps = [(part, kh, ct) for kh in range(2) for part in range(2) for ct in range(2)]
        def c_issue(i):
            part, kh, ct = hps[i]
            g(f"""s_add_u32 m0, {s(S_T2)}, {(i%3)*4096}
                  s_xor_b32 {s(S_U1)}, {s(S_BO if ct else S_WO)}, {128*kh}""")
            for e in range(4):
                g(f"buffer_load_dwordx4 {v(VD+e)}, {s(R_B if part else R_A,4)}, {s(S_U1)} offen offset:{1024*e} lds")
        def c_read(i):
            part, kh, ct = hps[i]
            for k in range(4):
                gi = 2*kh + (k >> 1); cb = k & 1
                ks = 4*gi + 2*part + cb
                g(f"ds_read_b128 {v(BR+8*ks+4*ct,4)}, {v(PC+k)} offset:{(i%3)*4096}")
        PP, NG, TT = FR + 32, FR + 34, FR + 36
        def idle_a():
            g(f"""s_sub_u32 {s(S_U0)}, {s(S_T2)}, 16384
                  v_mov_b32 {v(PP)}, 0
                  v_mov_b32 {v(PP+1)}, 0
                  v_sub_f32 {v(NG)}, 0, {v(KA+1)}
                  v_add_u32 {v(T+5)}, {L_LBP - L_SEG}, {v(T+5)}
                  v_add_u32 {v(T+4)}, {L_LBP - L_SEG}, {v(T+4)}""")
            for k in range(4): g(f"v_add_u32 {v(PC+k)}, {s(S_U0)}, {v(PC+k)}")
        def kap(r):
            t = TT + (r & 1)
            if 1 <= r < 8: g(f"v_cmp_eq_u32 vcc, {r}, {v(SEGV)}")
            g(f"""v_mul_f32 {v(t)}, {v(KA+1)}, {v(UR+r)}
                  v_mul_f32 {v(UR+r)}, {v(KA)}, {v(UR+r)}
                  v_fmac_f32 {v(UR+r)}, {v(NG)}, {v(UI+r)}
                  v_fma_f32 {v(UI+r)}, {v(KA)}, {v(UI+r)}, {v(t)}""")
            if 1 <= r < 8:
                g(f"""v_cndmask_b32 {v(PP)}, {v(PP)}, {v(E+2*r-2)}, vcc
                      v_cndmask_b32 {v(PP+1)}, {v(PP+1)}, {v(E+2*r-1)}, vcc""")
        idle_a()
        VD2 = 2
        self.w2_voff(VD2, T+1); self.w2_coop_setup(S_T3, S_T1)
        c_issue(0)
        for r in range(0, 5): kap(r)
        c_issue(1)
        for r in range(5, 10): kap(r)
        c_issue(2)
        for r in range(10, 16): kap(r)
        LBn = FR + 20
        lbl = f"""buffer_load_dwordx4 {v(LBn,4)}, {v(LB1)}, {s(R_WS,4)}, {s(S_T4)} offen sc1
                  buffer_load_dwordx4 {v(LBn+4,4)}, {v(LB2)}, {s(R_WS,4)}, {s(S_T4)} offen sc1"""
        nrec = o.get("c_rec", 3)
        self.stamp(5)
        g(lbl)
        for i in range(nrec):
            g(f"s_waitcnt vmcnt(10)")
            c_read(i)
            g("s_waitcnt lgkmcnt(0)")
            c_issue(i + 3)
        assert nrec == 3
        r0lb = o.get("r0_lb", 1)
        if r0lb:
            self.spin_cnt(C_PD, VCNT, T+1)
            for ins in self.w2_coop(VD2, S_T3, S_T1, 0): g(ins)
        l = g.lab("LB"); d = g.lab("LBD")
        g(f"""s_mov_b32 {s(S_SPIN)}, 0x40000
              s_waitcnt vmcnt({4*nrec + 6*r0lb})""")
        g(f"{l}:")
        g(f"""v_cmp_ne_u32 vcc, {s(S_TAG)}, {v(LBn+2)}
              v_cmp_ne_u32 s[100:101], {s(S_TAG)}, {v(LBn+6)}
              s_and_b64 vcc, vcc, {s(S_EX,2)}
              s_and_b64 s[100:101], s[100:101], {s(S_MK,2)}
              s_or_b64 vcc, vcc, s[100:101]
              s_cbranch_scc0 {d}
              s_sub_u32 {s(S_SPIN)}, {s(S_SPIN)}, 1
              s_cbranch_scc1 {d}
              s_sleep {o.get('lb_sleep', 2)}""")
        g(lbl)
        g(f"s_waitcnt vmcnt(0)\ns_branch {l}")
        g(f"{d}:")
        if o.get("sprio", 1): g("s_setprio 2")
        self.stamp(6)
        self.cfma(LBn, LBn+1, L128, L128+1, LBn+4, LBn+5, LBn, LBn+1)
        self.cmul(LBn+2, LBn+3, W0, W0+1, LBn, LBn+1)
        g(f"ds_write_b64 {v(T+5)}, {v(LBn+2,2)}")
        self.signal_cnt(C_S2, VCNT, VONE)
        spr = o.get("post_spr", 1)
        if spr:
            g(f"s_waitcnt vmcnt({4 + 6*r0lb})")
            c_read(3); c_read(4)
            g("s_waitcnt lgkmcnt(5)")
        self.spin_cnt(C_S2, VCNT, T+1, rds)
        sp = self.collect(lambda: (c_issue(6), c_issue(7))) if spr else []
        def spr1():
            while sp:
                it = sp.pop(0); g.L += it
                if "buffer_load" in it[0]: break
        if o.get("pdetail"): self.mute = True; self.stamp(7, True)
        for w in (4, 2, 1):
            for k in range(w):
                g(f"v_add_f32 {v(E+2*k)}, {v(E+2*k)}, {v(E+2*k+2*w)}\nv_add_f32 {v(E+2*k+1)}, {v(E+2*k+1)}, {v(E+2*k+2*w+1)}")
        self.cfma(PP, PP+1, GS, GS+1, E, E+1, PP, PP+1)
        g(f"v_sub_f32 {v(NG)}, 0, {v(PP+1)}")
        H = FR; O = FR + 16
        for part in range(2):
            U = UI if part else UR
            c1, c2_ = (PP+1, PP) if part else (PP, NG)
            for r in range(16):
                if r % 8 == 0: spr1()
                g(f"v_fmac_f32 {v(U+r)}, {v(WR+r)}, {v(c1)}")
            if part:
                g("s_waitcnt lgkmcnt(0)")
                if o.get("pdetail"): self.stamp(8, True)
                for cb in range(2):
                    g(f"buffer_store_dwordx4 {v(O+4*cb,4)}, {v(VL16)}, {s(R_WS,4)}, {s(S_T0)} offen offset:{cb*1024} sc1")
                if o.get("pdetail"): self.stamp(9, True)
            for r in range(16):
                if r % 8 == 0: spr1()
                g(f"v_fmac_f32 {v(U+r)}, {v(WI_+r)}, {v(c2_)}")
            ng = "-" if part else ""
            for i in range(8): g(f"v_cvt_pk_bf16_f32 {v(H+8*part+i)}, {ng}{v(U+2*i)}, {ng}{v(U+2*i+1)}")
            g(f"""ds_write_b128 {v(TRW)}, {v(H+8*part,4)}
                  ds_write_b128 {v(VW)}, {v(H+8*part+4,4)}""")
            for cb in range(2):
                for u in range(2):
                    g(f"ds_read_b64_tr_b16 {v(O+8*part+4*cb+2*u,2)}, {v(VW+1 if u else TRR)} offset:{cb*1024+u*256}")
        g("s_waitcnt lgkmcnt(0)")
        if o.get("pdetail"): self.stamp(10, True)
        for cb in range(2):
            g(f"buffer_store_dwordx4 {v(O+8+4*cb,4)}, {v(VL16)}, {s(R_WS,4)}, {s(S_T0)} offen offset:{(2+cb)*1024} sc1")
        if o.get("sprio", 1): g("s_setprio 0")
        self.stamp(7)
        nl = 0
        G2, DS = 12, 1
        g(f"""s_lshr_b32 {s(S_U0)}, {s(S_WI)}, 1
              s_lshl_b32 {s(S_U1)}, {s(S_RT)}, 1
              s_add_u32 {s(S_U0)}, {s(S_U0)}, {s(S_U1)}
              s_lshl_b32 {s(S_U1)}, {s(S_NT)}, 7
              s_and_b32 {s(S_U2)}, {s(S_WI)}, 1
              s_lshl_b32 {s(S_U2)}, {s(S_U2)}, 6
              s_add_u32 {s(S_U1)}, {s(S_U1)}, {s(S_U2)}
              s_lshl_b32 {s(S_U2)}, {s(S_U0)}, 15
              s_add_u32 {s(S_U2)}, {s(S_U2)}, {s(S_U1)}
              s_lshl_b32 {s(S_U0)}, {s(S_U0)}, 8
              s_add_u32 {s(S_U0)}, {s(S_U0)}, {hex(WS_XS)}
              v_and_b32 {v(T)}, 31, v0
              v_lshl_add_u32 v16, {v(T)}, 3, {s(S_U0)}
              v_lshl_add_u32 {v(T)}, {v(T)}, 1, {s(S_U1)}
              v_lshrrev_b32 {v(T+1)}, 2, v0
              v_and_b32 {v(T+2)}, 3, v0
              v_lshlrev_b32 {v(T+2)}, 4, {v(T+2)}
              v_lshl_or_b32 {v(T+1)}, {v(T+1)}, 10, {v(T+2)}
              v_add_u32 {v(T+2)}, {15*1024}, {v(T+1)}
              s_lshl_b32 {s(S_V1)}, {s(S_WI)}, 11
              s_add_u32 {s(S_V1)}, {s(S_V1)}, {L_TR}
              s_mov_b32 m0, {s(S_V1)}
              global_load_ushort {v(DS)}, {v(T)}, {s(P_DSK,2)}
              buffer_load_dwordx4 {v(T+1)}, {s(R_X,4)}, {s(S_U2)} offen lds
              buffer_load_dwordx4 {v(T+2)}, {s(R_X,4)}, {s(S_U2)} offen offset:1024 lds""")
        xs2 = f"buffer_load_dwordx2 {v(G2,2)}, v16, {s(R_WS,4)}, 0 offen sc1"
        g(xs2)
        assert not sp
        nl = 4
        if not spr:
            g("s_waitcnt vmcnt(8)")
            c_read(3); c_read(4)
            g("s_waitcnt lgkmcnt(0)")
            c_issue(6); c_issue(7); nl += 8
        early = ([] if r0lb else [0]) + [1]
        pre_flag = early if o.get("r1_pre_flag", 1) else []
        for q in pre_flag:
            self.spin_cnt(C_PD + 4*q, VCNT, T)
            for ins in self.w2_coop(VD2, S_T3, S_T1, q): g(ins)
            nl += 6
        if o.get("qdetail"): self.mute = True; self.stamp(8, True)
        self.set_flag(WS_FLAGS, VZ, T, nl)
        if o.get("pdetail"): self.stamp(11, True)
        if o.get("qdetail"): self.stamp(9, True)
        for q in [x for x in early if x not in pre_flag] + [2, 3]:
            self.spin_cnt(C_PD + 4*q, VCNT, T)
            for ins in self.w2_coop(VD2, S_T3, S_T1, q): g(ins)
        self.poll_issue(WS_FLAGS)
        g(f"s_waitcnt vmcnt(12)")
        self.signal_cnt(C_B1, VCNT, VONE)
        for i in (5, 6, 7): c_read(i)
        g.c("---------------- S phase 2 ----------------")
        A2 = 64; AB = 16; VA = 10
        VC2, VO2 = 14, 15
        g.c("residual x + bf16(xn * D) of the own tile")
        self.recheck(xs2, [G2+1], 12)
        XP, MM, RR = A2 + 16, A2 + 32, A2 + 48
        g(f"""v_lshlrev_b32 {v(T+4)}, 16, {v(G2)}
              v_and_b32 {v(T+5)}, 0xffff0000, {v(G2)}
              v_rcp_f32 {v(T+5)}, {v(T+5)}
              v_and_b32 {v(T+2)}, 31, v0
              s_lshl_b32 {s(S_U0)}, {s(S_WI)}, 7
              s_add_u32 {s(S_U0)}, {s(S_U0)}, {L_RS}
              v_lshl_add_u32 {v(T+2)}, {v(T+2)}, 2, {s(S_U0)}
              ds_write2st64_b32 {v(T+2)}, {v(T+4)}, {v(T+5)} offset0:0 offset1:2
              v_lshlrev_b32 {v(T+3)}, 6, {v(SEGV)}
              v_add_u32 {v(T+3)}, {L_RS}, {v(T+3)}
              v_and_b32 {v(T+6)}, 32, v0
              v_lshlrev_b32 {v(T+6)}, 5, {v(T+6)}
              v_bfe_u32 {v(T+7)}, v0, 2, 2
              v_lshl_add_u32 {v(T+6)}, {v(T+7)}, 6, {v(T+6)}
              v_and_b32 {v(T+7)}, 16, v0
              v_lshl_add_u32 {v(T+6)}, {v(T+7)}, 1, {v(T+6)}
              v_and_b32 {v(T+7)}, 3, v0
              v_lshl_add_u32 {v(T+6)}, {v(T+7)}, 3, {v(T+6)}
              v_add_u32 {v(T+6)}, {s(S_V1)}, {v(T+6)}
              s_waitcnt lgkmcnt(3)""")
        for u in range(4): g(f"ds_read_b64_tr_b16 {v(XP+2*u,2)}, {v(T+6)} offset:{256*u}")
        for k in range(4): g(f"ds_read_b128 {v(MM+4*k,4)}, {v(T+3)} offset:{16*k}")
        for k in range(4): g(f"ds_read_b128 {v(RR+4*k,4)}, {v(T+3)} offset:{512+16*k}")
        self.a_setup(VA, 0, 16, 12)
        g(f"""v_mov_b32 {v(VC2)}, {v(VCNT)}
              v_mov_b32 {v(VO2)}, 1
              v_lshlrev_b32 {v(DS)}, 16, {v(DS)}
              s_mov_b32 {s(S_V0)}, 0xffff0000""")
        def residual():
            for i in range(8):
                x = A2 + 2*i; m = MM + 2*i; r = RR + 2*i
                g(f"""v_lshlrev_b32 {v(x)}, 16, {v(XP+i)}
                  v_and_b32 {v(x+1)}, {s(S_V0)}, {v(XP+i)}
                  v_sub_f32 {v(m)}, {v(x)}, {v(m)}
                  v_sub_f32 {v(m+1)}, {v(x+1)}, {v(m+1)}
                  v_cvt_pk_bf16_f32 {v(m+1)}, {v(m)}, {v(m+1)}
                  v_lshlrev_b32 {v(m)}, 16, {v(m+1)}
                  v_and_b32 {v(m+1)}, {s(S_V0)}, {v(m+1)}
                  v_mul_f32 {v(m)}, {v(m)}, {v(r)}
                  v_mul_f32 {v(m+1)}, {v(m+1)}, {v(r+1)}
                  v_cvt_pk_bf16_f32 {v(m+1)}, {v(m)}, {v(m+1)}
                  v_lshlrev_b32 {v(m)}, 16, {v(m+1)}
                  v_and_b32 {v(m+1)}, {s(S_V0)}, {v(m+1)}
                  v_mul_f32 {v(m)}, {v(m)}, {v(DS)}
                  v_mul_f32 {v(m+1)}, {v(m+1)}, {v(DS)}
                  v_cvt_pk_bf16_f32 {v(m+1)}, {v(m)}, {v(m+1)}
                  v_lshlrev_b32 {v(m)}, 16, {v(m+1)}
                  v_and_b32 {v(m+1)}, {s(S_V0)}, {v(m+1)}
                  v_add_f32 {v(x)}, {v(x)}, {v(m)}
                  v_add_f32 {v(x+1)}, {v(x+1)}, {v(m+1)}""")

        self.stamp(8)
        self.poll_finish()
        self.stamp(9)
        g(f"s_setprio {o.get('sprio2', 2)}")
        def soff(ks): g(f"s_add_u32 {s(S_U0)}, {s(S_XO)}, {ks*1024}")
        def pre(ks):
            if ks == 0:
                g("s_waitcnt vmcnt(12)")
                self.signal_cnt(C_B1 + 4, VC2, VO2)
                residual()
                g("s_nop 1")
        self.p2_loop(16, VA, AB, A2, lambda ks: BR + 8*ks, pre, lambda ks: None, soff, True)
        self.stamp(10)
        g.c("S: dump partials, pre-reduce")
        T = 2
        g(f"v_lshl_add_u32 {v(T+3)}, v0, 4, {s(S_T2)}")
        for sl in range(1, 4):
            for q in range(4):
                g(f"ds_write_b128 {v(T+3)}, {v(A2+16*sl+4*q,4)} offset:{(sl-1)*4096+q*1024}")
        self.signal_cnt(C_SD, VC2, VO2)
        self.spin_cnt(C_SD, VC2, T)
        self.gather3(0, 12288, AB, T)
        g(f"""s_xor_b32 {s(S_U0)}, {s(S_WI)}, 1
              s_mul_i32 {s(S_U0)}, {s(S_U0)}, 12288
              v_lshl_add_u32 {v(T+3)}, v0, 4, {s(S_U0)}""")
        for dd in range(3):
            g(f"s_waitcnt lgkmcnt({8-4*dd})")
            for r in range(16): g(f"v_add_f32 {v(A2+r)}, {v(A2+r)}, {v(AB+16*dd+r)}")
        for q in range(4):
            g(f"ds_write_b128 {v(T+3)}, {v(A2+4*q,4)} offset:{q*1024}")
        self.signal_cnt(C_SR, VC2, VO2)
        g("s_setprio 0")
        srd(g, R_OUT, P_OUT, 2048*512*4)
        g(f"v_lshlrev_b32 v9, 4, v0")
        self.out_setup(8, 4, 9)
        self.spin_cnt(C_FM, VC2, T)
        for k, tile in enumerate((0, 1, 2)):
            g(f"ds_read_b128 {v(A2+4*k,4)}, v6 offset:{(tile^1)*12288}")
        for ct in range(2):
            for q in range(4):
                g(f"ds_read_b128 {v(AB+16*ct+4*q,4)}, v6 offset:{q*12288 + 4096 + ct*4096}")
        self.sum_store(A2, AB, 8, 0, 0, 4)
        self.sum_store(A2+4, AB+16, 8, 0, 1, 0)
        g("s_barrier")
        self.final_piece(0, A2+8, AB, 8, 4)
        self.stamp(11)
        self.stamps_out(T, 'S')
        g("L_END:")
        g("s_endpgm")
        g("L_CODE_END:")

    def build(self):
        hdr = open("cdna_kernels/" + NAME + ".s.ref").read().split("\n")
        head = [l for l in hdr if l.startswith(";") and "@launch" not in l]
        self.prologue(); self.fwave(); self.swave()
        if self.o.get("near_start", 1):
            L = self.g.L
            i0 = L.index("L_SWAVE:"); i1 = L.index("    ; @@SREST"); j = L.index("    ; @@SSTART")
            blk = L[i0:i1]
            self.g.L = L[:j] + ["    s_branch L_FCONT"] + blk + ["    s_branch L_SREST", "L_FCONT:"] + L[j+1:i0] + ["L_SREST:"] + L[i1+1:]
        lst = self.o.get("list")
        if lst:
            out = "\n".join(head) + "\n"
            for ch in lst:
                if ch == "m": out += f"; @launch kernel={NAME}_kernel grid=(256,1,1) block=(512,1,1) lds={LDS_BYTES}\n"
                elif ch == "n": out += f"; @launch kernel=null_kernel grid=(1,1,1) block=(64,1,1) lds=0\n"
                elif ch == "a": out += f"; @launch kernel=null_kernel grid=(256,1,1) block=(512,1,1) lds={LDS_BYTES}\n"
                elif ch == "b": out += f"; @launch kernel=null_kernel grid=(256,1,1) block=(256,1,1) lds={LDS_BYTES}\n"
                elif ch == "c": out += f"; @launch kernel=null_kernel grid=(256,1,1) block=(64,1,1) lds=0\n"
        else:
            out = "\n".join(head) + f"\n; @launch grid=(256,1,1) block=(512,1,1) lds={LDS_BYTES}\n"
        out += f""".amdgcn_target "amdgcn-amd-amdhsa--gfx950"
.text
.globl {NAME}_kernel
.p2align 8
.type {NAME}_kernel,@function
{NAME}_kernel:
"""
        out += self.g.text()
        if lst:
            out += """.p2align 8
.globl null_kernel
.type null_kernel,@function
null_kernel:
    s_endpgm
.section .rodata,"a"
.p2align 6
.amdhsa_kernel null_kernel
  .amdhsa_next_free_vgpr 256
  .amdhsa_next_free_sgpr 102
  .amdhsa_accum_offset 256
  .amdhsa_group_segment_fixed_size 0
  .amdhsa_kernarg_size 120
  .amdhsa_user_sgpr_count 2
  .amdhsa_user_sgpr_kernarg_segment_ptr 1
  .amdhsa_system_sgpr_workgroup_id_x 1
.end_amdhsa_kernel
"""
        out += f""".section .rodata,"a"
.p2align 6
.amdhsa_kernel {NAME}_kernel
  .amdhsa_next_free_vgpr 256
  .amdhsa_next_free_sgpr 102
  .amdhsa_accum_offset 256
  .amdhsa_group_segment_fixed_size 0
  .amdhsa_kernarg_size 120
  .amdhsa_user_sgpr_count 2
  .amdhsa_user_sgpr_kernarg_segment_ptr 1
  .amdhsa_system_sgpr_workgroup_id_x 1
.end_amdhsa_kernel
"""
        return out

if __name__ == "__main__":
    path = sys.argv[1]
    opt = json.loads(sys.argv[2]) if len(sys.argv) > 2 else {}
    open(path, "w").write(Gen(opt).build())
```

```python
import sys, json

NAME = "parallel_sum__ssm_conv_s5__dense_activation_silu__prompt"

class G:
    def __init__(self):
        self.L = []
        self.nlab = 0
    def __call__(self, s):
        for ln in s.strip("\n").split("\n"):
            ln = ln.strip()
            if ln: self.L.append("    " + ln if not ln.endswith(":") else ln)
    def c(self, s): self.L.append("    ; " + s)
    def lab(self, p="L"):
        self.nlab += 1
        return f"{p}_{self.nlab}"
    def text(self): return "\n".join(self.L) + "\n"

def v(a, n=1): return f"v{a}" if n == 1 else f"v[{a}:{a+n-1}]"
def s(a, n=1): return f"s{a}" if n == 1 else f"s[{a}:{a+n-1}]"

NKS = 152
WS_INTER = 0
WS_AGG   = 0xA00000
WS_FLAGF = 0xA40000
WS_FLAGS = 0xA44000
WS_XS    = 0xA50000
WS_CSG   = 0xA58000
WS_EPOCH = 0xA60000
WS_STAMP = 0xB00000
WS_BYTES = 0xC00000
SLOT = 24576
W1B  = 2 * SLOT
MISC = 6 * SLOT
L_RS, L_NM, L_CSS, L_CNT = MISC, MISC + 512, MISC + 1024, MISC + 1536
L_LBP = MISC + 2048
L_CSF = MISC + 4096
L_TR  = MISC + 8192
L_SEG = L_TR + 3 * 2048
LDS_BYTES = MISC + 16384
C_S1, C_S2, C_WA, C_WB, C_PD, C_CSF, C_SD, C_SR, C_FM, C_B1 = 0, 4, 8, 12, 16, 56, 32, 36, 40, 48
L_DUM = MISC + 7168

S_WAVE, S_WI, S_MT, S_G, S_RT, S_NT, S_C0, S_TAG = 3, 4, 5, 6, 7, 8, 9, 10
S_T0, S_T1, S_T2, S_T3, S_T4 = 11, 12, 13, 14, 15
P_X, P_LRE, P_LIM, P_BRE, P_BIM, P_CRE, P_CIM, P_LDT = 16, 18, 20, 22, 24, 26, 28, 30
P_DSK, P_BX, P_W1, P_W2, P_OUT, P_DBG, P_WS = 32, 34, 36, 38, 40, 42, 44
R_X, R_A, R_B, R_W2, R_WS, R_OUT = 48, 52, 56, 60, 64, 68
S_ONES, S_XO, S_BO, S_WO, S_SPIN = 72, 73, 74, 75, 76
S_U0, S_U1, S_U2, S_U3 = 77, 78, 79, 80
S_V0, S_V1, S_ROT = 46, 47, 81
S_EX = 82
S_MK = 84
S_ST = 86

def srd(g, r, p, nbytes):
    g(f"""s_mov_b32 {s(r)}, {s(p)}
          s_mov_b32 {s(r+1)}, {s(p+1)}
          s_mov_b32 {s(r+2)}, {hex(nbytes)}
          s_mov_b32 {s(r+3)}, 0x20000""")

class Gen:
    def __init__(self, opt):
        self.o = opt
        self.g = G()
        self.nst = 0

    def stamp(self, i, force=False):
        if not self.o.get("stamps"): return
        if getattr(self, "mute", False) and not force: return
        g = self.g
        clk = "s_memrealtime" if self.o.get("rt") else "s_memtime"
        g(f"""{clk} s[100:101]
              s_waitcnt lgkmcnt(0)
              s_mov_b32 {s(S_ST+i)}, s100""")

    def stamps_out(self, vt, role):
        if not self.o.get("stamps"): return
        g = self.g
        pr = self.o.get("probe")
        if pr and pr[0] == role:
            l = g.lab("PRB")
            clk = "s_memrealtime" if self.o.get("rt") else "s_memtime"
            base = S_ST
            if pr[1:] in ("k", "e"):
                g(f"""s_load_dword {s(S_U0)}, {s(P_DBG,2)}, 0 glc
                      s_load_dword {s(S_U1)}, {s(P_DBG,2)}, 128 glc
                      s_waitcnt lgkmcnt(0)
                      s_not_b32 {s(S_U1)}, {s(S_U1)}""")
                src = S_U0 if pr[1:] == "k" else S_ST + 11
                base = S_U1
            elif pr[1:] == "z":
                src = S_ST; base = S_ST + 12
            else:
                src = S_MK if pr[1:] == "p" else S_ST + int(pr[1:])
            g(f"""s_sub_u32 {s(S_T0)}, {s(src)}, {s(base)}
                  s_lshl_b32 {s(S_T0)}, {s(S_T0)}, 4
                  {clk} s[100:101]
                  s_waitcnt lgkmcnt(0)
                  s_mov_b32 {s(S_T1)}, s100""")
            g(f"{l}:")
            g(f"""{clk} s[100:101]
                  s_waitcnt lgkmcnt(0)
                  s_sub_u32 {s(S_T2)}, s100, {s(S_T1)}
                  s_cmp_lt_u32 {s(S_T2)}, {s(S_T0)}
                  s_cbranch_scc1 {l}""")
        g(f"s_waitcnt vmcnt(0)")
        g(f"""s_memrealtime s[100:101]
              s_waitcnt lgkmcnt(0)
              s_mov_b32 {s(S_ST+13)}, s100""")
        g(f"""s_lshl_b32 {s(S_T0)}, s2, 3
              s_add_u32 {s(S_T0)}, {s(S_T0)}, {s(S_WAVE)}
              s_lshl_b32 {s(S_T0)}, {s(S_T0)}, 6
              s_add_u32 {s(S_T0)}, {s(S_T0)}, {hex(WS_STAMP)}
              v_mov_b32 {v(vt)}, 0""")
        for i in range(14):
            g(f"""v_mov_b32 {v(vt+1)}, {s(S_ST+i)}
                  buffer_store_dword {v(vt+1)}, {v(vt)}, {s(R_WS,4)}, {s(S_T0)} offen offset:{4*i}
                  s_nop 1""")

    def spin_cnt(self, cnt, vaddr_cnt, vt, reads="", tgt=4):
        g = self.g
        l = g.lab("SPIN"); d = g.lab("SPD"); r = g.lab("SPR")
        if reads:
            g(f"ds_read_b32 {v(vt)}, {v(vaddr_cnt)} offset:{cnt}")
            g(reads)
            g(f"""s_waitcnt lgkmcnt(0)
                  v_readfirstlane_b32 {s(S_U3)}, {v(vt)}
                  s_cmp_eq_u32 {s(S_U3)}, {tgt}
                  s_cbranch_scc1 {d}""")
        g(f"s_mov_b32 {s(S_SPIN)}, 0x100000")
        g(f"{l}:")
        g(f"""ds_read_b32 {v(vt)}, {v(vaddr_cnt)} offset:{cnt}
              s_waitcnt lgkmcnt(0)
              v_readfirstlane_b32 {s(S_U3)}, {v(vt)}
              s_sub_u32 {s(S_SPIN)}, {s(S_SPIN)}, 1
              s_cbranch_scc1 {r}
              s_cmp_eq_u32 {s(S_U3)}, {tgt}
              s_cbranch_scc1 {r}""")
        if self.o.get("spin_sleep", 1): g(f"s_sleep {self.o.get('spin_sleep', 1)}")
        g(f"s_branch {l}")
        g(f"{r}:")
        if reads:
            g(reads)
            g("s_waitcnt lgkmcnt(0)")
        g(f"{d}:")

    def cnt_regs(self, vcnt, vone):
        self.g(f"""v_lshlrev_b32 {v(vcnt)}, 2, v0
                   v_add_u32 {v(vcnt)}, {L_DUM}, {v(vcnt)}
                   v_mov_b32 {v(vone)}, {L_CNT}
                   v_cmp_eq_u32 vcc, 0, v0
                   s_nop 1
                   v_cndmask_b32 {v(vcnt)}, {v(vcnt)}, {v(vone)}, vcc
                   v_mov_b32 {v(vone)}, 1""")

    def signal_cnt(self, cnt, vaddr_cnt, vone):
        self.g(f"ds_add_u32 {v(vaddr_cnt)}, {v(vone)} offset:{cnt}")

    def collect(self, fn):
        g = self.g
        save = g.L; g.L = []
        fn()
        out = g.L; g.L = save
        items = []; cur = None
        for ln in out:
            if ln.strip() == "; {": cur = []
            elif ln.strip() == "; }": items.append(cur); cur = None
            elif cur is not None: cur.append(ln)
            else: items.append([ln])
        return items
    def take(self, fill, n):
        while n > 0 and fill:
            it = fill.pop(0); self.g.L += it; n -= len(it)

    def cmul(self, dr, di, ar, ai, br, bi):
        self.g(f"""v_mul_f32 {v(dr)}, {v(ar)}, {v(br)}
                   v_mul_f32 {v(di)}, {v(ar)}, {v(bi)}
                   v_fma_f32 {v(dr)}, -{v(ai)}, {v(bi)}, {v(dr)}
                   v_fmac_f32 {v(di)}, {v(ai)}, {v(br)}""")

    def cfma(self, dr, di, ar, ai, br, bi, cr, ci):
        self.g(f"""v_fma_f32 {v(dr)}, {v(ar)}, {v(br)}, {v(cr)}
                   v_fma_f32 {v(di)}, {v(ar)}, {v(bi)}, {v(ci)}
                   v_fma_f32 {v(dr)}, -{v(ai)}, {v(bi)}, {v(dr)}
                   v_fmac_f32 {v(di)}, {v(ai)}, {v(br)}""")

    def poll_issue(self, base):
        self.g(f"""s_lshl_b32 s26, {s(S_RT)}, 2
              s_add_u32 s26, s26, {s(S_WI)}
              s_lshl_b32 s26, s26, 7
              s_add_u32 s26, s26, {hex(base)}
              s_mov_b32 s24, {s(S_TAG)}
              s_mov_b32 s25, {s(S_TAG)}
              s_load_dwordx8 s[16:23], {s(P_WS,2)}, s26 glc""")

    def poll_finish(self):
        g = self.g
        l = g.lab("POLL"); d = g.lab("PLD")
        g(f"s_mov_b32 {s(S_SPIN)}, 0x40000")
        g(f"{l}:")
        g(f"""s_waitcnt lgkmcnt(0)
              s_xor_b64 s[16:17], s[16:17], s[24:25]
              s_xor_b64 s[18:19], s[18:19], s[24:25]
              s_xor_b64 s[20:21], s[20:21], s[24:25]
              s_xor_b64 s[22:23], s[22:23], s[24:25]
              s_or_b64 s[16:17], s[16:17], s[18:19]
              s_or_b64 s[20:21], s[20:21], s[22:23]
              s_or_b64 s[16:17], s[16:17], s[20:21]
              s_cbranch_scc0 {d}
              s_sub_u32 {s(S_SPIN)}, {s(S_SPIN)}, 1
              s_cbranch_scc1 {d}
              s_load_dwordx8 s[16:23], {s(P_WS,2)}, s26 glc
              s_branch {l}""")
        g(f"{d}:")

    def set_flag(self, base, vz, vt, vm=0):
        g = self.g
        g(f"""s_lshl_b32 {s(S_U0)}, {s(S_MT)}, 1
              s_lshr_b32 {s(S_U1)}, {s(S_WI)}, 1
              s_add_u32 {s(S_U0)}, {s(S_U0)}, {s(S_U1)}
              s_lshl_b32 {s(S_U0)}, {s(S_U0)}, 2
              s_lshr_b32 {s(S_U1)}, {s(S_G)}, 2
              s_add_u32 {s(S_U0)}, {s(S_U0)}, {s(S_U1)}
              s_lshl_b32 {s(S_U0)}, {s(S_U0)}, 7
              s_and_b32 {s(S_U1)}, {s(S_WI)}, 1
              s_lshl_b32 {s(S_U1)}, {s(S_U1)}, 4
              s_add_u32 {s(S_U0)}, {s(S_U0)}, {s(S_U1)}
              s_and_b32 {s(S_U1)}, {s(S_G)}, 3
              s_lshl_b32 {s(S_U1)}, {s(S_U1)}, 2
              s_add_u32 {s(S_U0)}, {s(S_U0)}, {s(S_U1)}
              s_add_u32 {s(S_U0)}, {s(S_U0)}, {hex(base)}
              v_mov_b32 {v(vt)}, {s(S_TAG)}
              s_waitcnt vmcnt({vm})
              s_mov_b64 exec, 1
              buffer_store_dword {v(vt)}, {v(vz)}, {s(R_WS,4)}, {s(S_U0)} offen sc1
              s_mov_b64 exec, -1""")

    def prologue(self):
        g = self.g
        if self.o.get("stamps"): g("s_memrealtime s[98:99]")
        g(f"""s_cmp_ge_u32 s2, 256
              s_cbranch_scc1 L_END
              s_load_dwordx16 s[16:31], s[0:1], 0
              s_load_dwordx8 s[32:39], s[0:1], 64
              s_load_dwordx4 s[40:43], s[0:1], 96
              s_load_dwordx2 s[44:45], s[0:1], 112""")
        if self.o.get("stamps"):
            g(f"""s_waitcnt lgkmcnt(0)""")
            if self.o.get("probe", "")[1:] in ("k", "e"):
                g(f"""v_mov_b32 v2, 0
                      v_mov_b32 v3, s98
                      v_not_b32 v4, v3
                      s_mov_b64 exec, 1
                      global_atomic_umax v2, v3, {s(P_DBG,2)} sc1
                      global_atomic_umax v2, v4, {s(P_DBG,2)} offset:128 sc1
                      s_mov_b64 exec, -1""")
            for i in range(12): g(f"s_mov_b32 {s(S_ST+i)}, 0")
            self.stamp(0)
        g(f"""v_lshrrev_b32 v1, 6, v0
              v_and_b32 v0, 63, v0
              s_and_b32 {s(S_T0)}, s2, 7
              v_readfirstlane_b32 {s(S_WAVE)}, v1
              s_lshr_b32 {s(S_T1)}, s2, 3
              s_and_b32 {s(S_T2)}, {s(S_T1)}, 3
              s_lshr_b32 {s(S_NT)}, {s(S_T1)}, 2
              s_lshr_b32 {s(S_T3)}, {s(S_T0)}, 1
              s_lshl_b32 {s(S_MT)}, {s(S_T3)}, 2
              s_add_u32 {s(S_MT)}, {s(S_MT)}, {s(S_T2)}
              s_and_b32 {s(S_T4)}, {s(S_T0)}, 1
              s_lshl_b32 {s(S_G)}, {s(S_T4)}, 3
              s_add_u32 {s(S_G)}, {s(S_G)}, {s(S_NT)}
              s_lshl_b32 {s(S_RT)}, {s(S_T0)}, 2
              s_add_u32 {s(S_RT)}, {s(S_RT)}, {s(S_T2)}
              s_and_b32 {s(S_WI)}, {s(S_WAVE)}, 3""")
        if self.o.get("map1") == "8x4":
            g(f"""s_lshl_b32 {s(S_MT)}, {s(S_T4)}, 3
                  s_and_b32 {s(S_U0)}, {s(S_T1)}, 7
                  s_add_u32 {s(S_MT)}, {s(S_MT)}, {s(S_U0)}
                  s_lshl_b32 {s(S_G)}, {s(S_T3)}, 2
                  s_lshr_b32 {s(S_U0)}, {s(S_T1)}, 3
                  s_add_u32 {s(S_G)}, {s(S_G)}, {s(S_U0)}""")
        if self.o.get("map2") == "Y":
            g(f"""s_lshl_b32 {s(S_RT)}, {s(S_T3)}, 3
                  s_and_b32 {s(S_U0)}, {s(S_T1)}, 7
                  s_add_u32 {s(S_RT)}, {s(S_RT)}, {s(S_U0)}
                  s_lshl_b32 {s(S_NT)}, {s(S_T4)}, 2
                  s_lshr_b32 {s(S_U0)}, {s(S_T1)}, 3
                  s_add_u32 {s(S_NT)}, {s(S_NT)}, {s(S_U0)}""")
        if self.o.get("rot2", 0):
            g(f"""s_add_u32 {s(S_ROT)}, {s(S_T2)}, {s(S_NT)}
                  s_and_b32 {s(S_ROT)}, {s(S_ROT)}, 3""")
        else: g(f"s_mov_b32 {s(S_ROT)}, 0")
        rot = self.o.get("rot", 0)
        if rot == 0:
            g(f"""s_lshl_b32 {s(S_C0)}, {s(S_T4)}, 1
                  s_add_u32 {s(S_C0)}, {s(S_C0)}, {s(S_T3)}
                  s_lshl_b32 {s(S_C0)}, {s(S_C0)}, 1""")
        elif rot == 8:
            g(f"""s_lshl_b32 {s(S_C0)}, {s(S_MT)}, 1
                  s_add_u32 {s(S_C0)}, {s(S_C0)}, {s(S_G)}""")
        elif rot == 4:
            g(f"""s_add_u32 {s(S_C0)}, {s(S_MT)}, {s(S_G)}
                  s_lshl_b32 {s(S_C0)}, {s(S_C0)}, 1""")
        elif rot == 2:
            g(f"""s_add_u32 {s(S_C0)}, {s(S_MT)}, {s(S_G)}
                  s_lshl_b32 {s(S_C0)}, {s(S_C0)}, 1
                  s_add_u32 {s(S_C0)}, {s(S_C0)}, {s(S_T4)}
                  s_add_u32 {s(S_C0)}, {s(S_C0)}, {s(S_T3)}
                  s_lshl_b32 {s(S_C0)}, {s(S_C0)}, 1""")
        pre = self.o.get("pretest")
        if pre:
            pol = self.o.get("prepol", "")
            g(f"""v_lshlrev_b32 v2, 4, v0
                  s_lshl_b32 {s(S_U0)}, {s(S_WAVE)}, 8
                  s_add_u32 {s(S_U0)}, {s(S_U0)}, s2
                  s_lshl_b32 {s(S_U0)}, {s(S_U0)}, 10""")
            for i, (nm, P, nb, sh) in enumerate([("x", P_X, 2<<20, 0), ("b", P_BRE, 1<<19, 0), ("b", P_BIM, 1<<19, 2), ("1", P_W1, 1376*1024, 2),
                                  ("c", P_CRE, 1<<19, 4), ("c", P_CIM, 1<<19, 6), ("2", P_W2, 1376*1024, 0)]):
                if nm not in pre: continue
                srd(g, R_X, P, nb)
                g(f"""s_sub_u32 {s(S_U1)}, {s(S_U0)}, {sh << 18}
                      s_and_b32 {s(S_U1)}, {s(S_U1)}, {(2<<20)-1}
                      buffer_load_dwordx4 {v(4+4*i,4)}, v2, {s(R_X,4)}, {s(S_U1)} offen{pol}""")
            g("s_waitcnt vmcnt(0)")
            self.stamp(11)
            g(f"s_mov_b32 {s(S_MK)}, {s(S_ST+11)}")
        g(f"""s_cmp_ge_u32 {s(S_WAVE)}, 4
              s_cbranch_scc0 L_SWAVE""")

    def epoch(self):
        self.g(f"""s_mov_b32 {s(S_TAG)}, {hex(WS_EPOCH)}
                   s_load_dword {s(S_TAG)}, {s(P_WS,2)}, {s(S_TAG)}""")
    def epoch_fin(self):
        self.g(f"""s_mul_i32 {s(S_TAG)}, {s(S_TAG)}, 0x9E3779B1
                   s_add_u32 {s(S_TAG)}, {s(S_TAG)}, 0x7F4A7C15""")

    def frag_pat(self, P, t0, t1, xor_wi):
        g = self.g
        g(f"""v_and_b32 {v(t0)}, 31, v0
              v_lshrrev_b32 {v(t1)}, 1, v0
              v_and_b32 {v(t1)}, 7, {v(t1)}
              v_lshrrev_b32 {v(P)}, 5, v0
              v_xor_b32 {v(t1)}, {v(t1)}, {v(P)}
              v_lshlrev_b32 {v(t1)}, 4, {v(t1)}
              v_lshl_or_b32 {v(P)}, {v(t0)}, 7, {v(t1)}""")
        if xor_wi:
            g(f"""s_lshl_b32 {s(S_V0)}, {s(S_WI)}, 5
                  v_xor_b32 {v(P)}, {s(S_V0)}, {v(P)}""")
        for k in (1, 2, 3):
            g(f"v_xor_b32 {v(P+k)}, {32*k}, {v(P)}")

    def lane8_pat(self, d, t0, t1):
        self.g(f"""v_lshrrev_b32 {v(t0)}, 3, v0
                   v_and_b32 {v(d)}, 7, v0
                   v_lshrrev_b32 {v(t1)}, 4, v0
                   v_xor_b32 {v(d)}, {v(d)}, {v(t1)}
                   v_lshlrev_b32 {v(d)}, 4, {v(d)}""")

    def split3(self, src, d0, d1, t0, t1):
        self.g(f"""v_and_b32 {v(t0)}, 0xffff0000, {v(src)}
                  v_sub_f32 {v(t1)}, {v(src)}, {v(t0)}
                  v_and_b32 {v(d0)}, 0xffff0000, {v(t1)}
                  v_sub_f32 {v(t1)}, {v(t1)}, {v(d0)}
                  v_lshrrev_b32 {v(t0)}, 16, {v(t0)}
                  v_or_b32 {v(d0)}, {v(d0)}, {v(t0)}
                  v_lshrrev_b32 {v(d1)}, 16, {v(t1)}""")

    def tau(self, d, t):
        self.g(f"""v_and_b32 {v(d)}, 4, v0
                   v_lshlrev_b32 {v(d)}, 2, {v(d)}
                   v_lshrrev_b32 {v(t)}, 1, v0
                   v_and_b32 {v(t)}, 12, {v(t)}
                   v_or_b32 {v(d)}, {v(d)}, {v(t)}
                   v_and_b32 {v(t)}, 3, v0
                   v_or_b32 {v(d)}, {v(d)}, {v(t)}""")

    def w2_voff(self, VD, T):
        self.g(f"""v_lshrrev_b32 {v(T)}, 3, v0
              v_and_b32 {v(T+1)}, 7, v0
              v_bfe_u32 {v(T+2)}, v0, 4, 1
              v_lshlrev_b32 {v(T+2)}, 2, {v(T+2)}
              v_xor_b32 {v(T+1)}, {v(T+1)}, {v(T+2)}
              v_lshlrev_b32 {v(T+1)}, 4, {v(T+1)}
              v_lshl_or_b32 {v(VD)}, {v(T)}, 10, {v(T+1)}
              v_add_u32 {v(VD+1)}, 7168, {v(VD)}
              v_add_u32 {v(VD+2)}, {2*7168}, {v(VD)}
              v_add_u32 {v(VD+3)}, {3*7168}, {v(VD)}""")

    def w2_coop_setup(self, s_lds, s_glb):
        self.g(f"""s_mul_i32 {s(s_lds)}, {s(S_WI)}, 6144
              s_mul_i32 {s(s_glb)}, {s(S_WI)}, {48*1024}
              s_lshl_b32 {s(S_V0)}, {s(S_NT)}, 7
              s_add_u32 {s(s_glb)}, {s(s_glb)}, {s(S_V0)}""")

    def w2_coop(self, VD, s_lds, s_glb, q):
        out = []
        for e in range(6):
            pre = ""
            if e % 3 == 0:
                pre = f"""s_add_u32 m0, {s(s_lds)}, {W1B + q*SLOT + e*1024}
                          s_add_u32 {s(S_U1)}, {s(s_glb)}, {q*352*1024 + e*8192}
                       """
            out.append(pre + f"buffer_load_dwordx4 {v(VD+e%3)}, {s(R_W2,4)}, {s(S_U1)} offen offset:{1024*(e%3)} lds")
        return out

    def w2_own_setup(self, sreg_lds, sreg_glb):
        self.g(f"""s_mul_i32 {s(sreg_glb)}, {s(S_WI)}, {352*1024}
              s_lshl_b32 {s(S_U0)}, {s(S_NT)}, 7
              s_add_u32 {s(sreg_glb)}, {s(sreg_glb)}, {s(S_U0)}
              s_mul_i32 {s(sreg_lds)}, {s(S_WI)}, {SLOT}
              s_add_u32 {s(sreg_lds)}, {s(sreg_lds)}, {W1B}""")

    def w2_issue(self, VD, sreg_lds, sreg_glb, ks0, n, lslot0):
        g = self.g
        for i in range(0, n, 2):
            g(f"""s_add_u32 m0, {s(sreg_lds)}, {(lslot0 + i)*2048}
                  s_add_u32 {s(S_U1)}, {s(sreg_glb)}, {(ks0+i)*16384}""")
            for e in range(4):
                g(f"buffer_load_dwordx4 {v(VD+e)}, {s(R_W2,4)}, {s(S_U1)} offen offset:{1024*e} lds")

    def recheck(self, loads, tagregs, vm=0):
        g = self.g
        l = g.lab("RC"); d = g.lab("RCD")
        g(f"s_mov_b32 {s(S_SPIN)}, 0x40000\ns_waitcnt vmcnt({vm})")
        g(f"{l}:")
        g(f"v_cmp_ne_u32 vcc, {s(S_TAG)}, {v(tagregs[0])}")
        for r in tagregs[1:]:
            g(f"v_cmp_ne_u32 s[100:101], {s(S_TAG)}, {v(r)}\ns_or_b64 vcc, vcc, s[100:101]")
        g(f"""s_cmp_eq_u64 vcc, 0
              s_cbranch_scc1 {d}
              s_sub_u32 {s(S_SPIN)}, {s(S_SPIN)}, 1
              s_cbranch_scc1 {d}
              s_sleep 2""")
        g(loads)
        g(f"s_waitcnt vmcnt(0)\ns_branch {l}")
        g(f"{d}:")

    def w1_setup(self, VW, T, s_lds, s_glb, s_f0):
        g = self.g
        g(f"s_mov_b32 {s(S_V0)}, 683")
        for e in range(3):
            g(f"""v_add_u32 {v(T)}, {64*e}, v0
                  v_mul_u32_u24 {v(T+1)}, {s(S_V0)}, {v(T)}
                  v_lshrrev_b32 {v(T+1)}, 13, {v(T+1)}
                  v_mul_u32_u24 {v(T+2)}, 12, {v(T+1)}
                  v_sub_u32 {v(T+2)}, {v(T)}, {v(T+2)}
                  v_mul_u32_u24 {v(T+1)}, 2752, {v(T+1)}
                  v_lshl_add_u32 {v(VW+e)}, {v(T+2)}, 4, {v(T+1)}""")
            if e: g(f"v_subrev_u32 {v(VW+e)}, {1024*e}, {v(VW+e)}")
        g(f"""s_lshr_b32 {s(S_V0)}, {s(S_G)}, 2
              s_mul_i32 {s(s_f0)}, {s(S_V0)}, 11
              s_and_b32 {s(S_V0)}, {s(S_G)}, 3
              s_mul_i32 {s(S_V0)}, {s(S_V0)}, 3
              s_add_u32 {s(s_f0)}, {s(s_f0)}, {s(S_V0)}
              s_lshl_b32 {s(s_glb)}, {s(s_f0)}, 6
              s_mul_i32 {s(S_V0)}, {s(S_WI)}, {16*2752}
              s_add_u32 {s(s_glb)}, {s(s_glb)}, {s(S_V0)}
              s_mul_i32 {s(s_lds)}, {s(S_WI)}, 3072""")

    def w1_pre(self, j, s_lds, s_glb):
        return f"""s_add_u32 {s(S_U0)}, {s(S_C0)}, {j}
                  s_and_b32 {s(S_U0)}, {s(S_U0)}, 7
                  s_mul_i32 {s(S_U0)}, {s(S_U0)}, {64*2752}
                  s_add_u32 m0, {s(s_lds)}, {W1B + j*12288}
                  s_add_u32 {s(S_U1)}, {s(S_U0)}, {s(s_glb)}"""

    def fwave(self):
        g = self.g; o = self.o
        X = 128
        ACC = 80
        WF = 44
        VX, VB, VW = 2, 6, 8
        P = 12
        WA = 16
        VCNT, VONE, VZ = 20, 21, 22
        XS = 24
        RS, NRS = 26, 27
        NM = 28
        CS = 32
        T = 2
        TA = 32

        g.c("---------------- F wave: stage A loader ----------------")
        self.lane8_pat(TA, TA+1, TA+2)
        g(f"""v_lshrrev_b32 {v(TA+2)}, 2, {v(TA+1)}
              v_lshlrev_b32 {v(TA+2)}, 4, {v(TA+2)}
              v_and_b32 {v(TA+3)}, 3, {v(TA+1)}
              v_add_u32 {v(TA+2)}, {v(TA+2)}, {v(TA+3)}
              v_lshl_or_b32 {v(VX)}, {v(TA+2)}, 10, {v(TA)}
              v_add_u32 {v(VX+1)}, 3072, {v(VX)}
              v_xor_b32 {v(VX+1)}, 64, {v(VX+1)}
              v_add_u32 {v(VX+2)}, 6144, {v(VX)}
              v_add_u32 {v(VX+3)}, 6144, {v(VX+1)}
              v_lshl_or_b32 {v(VB)}, {v(TA+1)}, 10, {v(TA)}
              v_add_u32 {v(VB+1)}, 7168, {v(VB)}
              v_xor_b32 {v(VB+1)}, 64, {v(VB+1)}
              s_lshl_b32 {s(S_XO)}, {s(S_MT)}, 17
              s_lshl_b32 {s(S_T0)}, {s(S_WI)}, 15
              s_add_u32 {s(S_XO)}, {s(S_XO)}, {s(S_T0)}
              s_lshl_b32 {s(S_BO)}, {s(S_G)}, 15
              s_and_b32 {s(S_T0)}, {s(S_WI)}, 1
              s_lshl_b32 {s(S_T0)}, {s(S_T0)}, 14
              s_add_u32 {s(S_BO)}, {s(S_BO)}, {s(S_T0)}
              s_lshl_b32 {s(S_T3)}, {s(S_WI)}, 12
              s_lshl_b32 {s(S_T4)}, {s(S_WI)}, 11
              s_add_u32 {s(S_T4)}, {s(S_T4)}, 16384
              s_mov_b32 {s(R_X+2)}, {hex(2048*512*2)}
              s_mov_b32 {s(R_X+3)}, 0x20000
              s_mov_b32 {s(R_A+2)}, {hex(512*512*2)}
              s_mov_b32 {s(R_A+3)}, 0x20000
              s_cmp_ge_u32 {s(S_WI)}, 2
              s_waitcnt lgkmcnt(0)
              s_mov_b32 {s(R_X)}, {s(P_X)}
              s_mov_b32 {s(R_X+1)}, {s(P_X+1)}
              s_cselect_b32 {s(R_A)}, {s(P_BIM)}, {s(P_BRE)}
              s_cselect_b32 {s(R_A+1)}, {s(P_BIM+1)}, {s(P_BRE+1)}""")

        def x_pre(c):
            g(f"""s_add_u32 {s(S_U0)}, {s(S_C0)}, {c}
                  s_and_b32 {s(S_U0)}, {s(S_U0)}, 7
                  s_lshl_b32 {s(S_U0)}, {s(S_U0)}, 7
                  s_add_u32 m0, {s(S_T3)}, {(c % 6) * SLOT}
                  s_add_u32 {s(S_U1)}, {s(S_U0)}, {s(S_XO)}""")
        def x_go(c, nf):
            for e in range(4):
                g(f"buffer_load_dwordx4 {v(VX+e)}, {s(R_X,4)}, {s(S_U1)} offen offset:{1024*e} lds")
                self.take(fill, nf)
            g(f"""s_add_u32 m0, {s(S_T4)}, {(c % 6) * SLOT}
                  s_add_u32 {s(S_U1)}, {s(S_U0)}, {s(S_BO)}""")
            for e in range(2):
                g(f"buffer_load_dwordx4 {v(VB+e)}, {s(R_A,4)}, {s(S_U1)} offen offset:{1024*e} lds")
                self.take(fill, nf)
        def w_pre(j): return self.w1_pre(j, S_T2, S_WO)
        def w_one(e):
            return f"buffer_load_dwordx4 {v(VW+e)}, {s(R_B,4)}, {s(S_U1)} offen offset:{1024*e} lds"

        def setup():
            g.c("{"); self.epoch(); g.c("}")
            self.frag_pat(P, TA, TA+1, True)
            for k in range(4): g(f"v_add_u32 {v(P+k)}, {s(S_T3)}, {v(P+k)}")
            srd(g, R_B, P_W1, 512 * 1376 * 2)
            self.w1_setup(VW, TA, S_T2, S_WO, S_T1)
            srd(g, R_W2, P_W2, 1376 * 512 * 2)
            srd(g, R_WS, P_WS, WS_BYTES)
            srd(g, R_OUT, P_OUT, 2048*512*4)
            g(f"""v_lshrrev_b32 {v(TA)}, 5, v0
              v_bfe_u32 {v(TA+1)}, v0, 2, 2
              v_lshl_add_u32 {v(TA)}, {v(TA)}, 3, {v(TA+1)}
              v_mul_u32_u24 {v(TA)}, 192, {v(TA)}
              v_bfe_u32 {v(TA+1)}, v0, 4, 1
              v_lshl_add_u32 {v(TA)}, {v(TA+1)}, 5, {v(TA)}
              v_and_b32 {v(TA+1)}, 3, v0
              v_lshl_add_u32 {v(TA)}, {v(TA+1)}, 3, {v(TA)}
              v_mov_b32 {v(VZ)}, 0
              v_bfe_u32 {v(TA+1)}, v0, 2, 2
              v_lshrrev_b32 {v(TA+2)}, 4, v0
              v_cmp_eq_u32 vcc, {v(TA+1)}, {v(TA+2)}
              v_mov_b32 {v(TA+1)}, 0x3f803f80
              s_nop 0
              v_cndmask_b32 {v(NM)}, 0, {v(TA+1)}, vcc
              v_cndmask_b32 {v(NM+1)}, 0, {v(TA+1)}, vcc
              v_cndmask_b32 {v(NM+2)}, 0, {v(TA+1)}, vcc
              v_cndmask_b32 {v(NM+3)}, 0, {v(TA+1)}, vcc""")
            for k in range(4):
                g(f"""s_xor_b32 {s(S_V0)}, {s(S_WI)}, {k}
                  s_mul_i32 {s(S_V0)}, {s(S_V0)}, 3072
                  s_add_u32 {s(S_V0)}, {s(S_V0)}, {W1B}
                  v_add_u32 {v(WA+k)}, {s(S_V0)}, {v(TA)}""")
            self.cnt_regs(VCNT, VONE)
            g(f"""v_and_b32 {v(RS)}, 31, v0
              s_lshl_b32 {s(S_V0)}, {s(S_WI)}, 7
              s_add_u32 {s(S_V0)}, {s(S_V0)}, {L_NM}
              v_lshl_add_u32 {v(RS)}, {v(RS)}, 2, {s(S_V0)}
              v_lshlrev_b32 v11, 4, v0
              v_add_u32 {v(XS+1)}, {L_CSF}, v11
              s_lshl_b32 {s(S_V0)}, {s(S_WI)}, 2
              v_add_u32 v1, {s(S_V0)}, {v(XS+1)}""")
        fill = self.collect(setup)
        x_pre(0); x_go(0, 0)
        g.c("@@SSTART")
        if o.get("fprioA", 0): g(f"s_setprio {o.get('fprioA', 0)}")
        NFF = o.get("nff", 5)
        x_pre(1); x_go(1, NFF)
        self.stamp(1)
        x_pre(2); x_go(2, NFF)
        for c in range(8):
            g.c(f"chunk {c}")
            n = c + 3
            if n < 8: x_pre(n)
            else: g(w_pre(2 * (n - 8)))
            g(f"s_waitcnt vmcnt(12) lgkmcnt({0 if c == 0 else 4})")
            if o.get("adetail") == 1:
                self.mute = True; self.stamp(2 + c, True)
            g("s_barrier")
            if o.get("adetail") == 2:
                self.mute = True; self.stamp(2 + c, True)
            if c == 0: self.epoch_fin()
            off = (c % 3) * SLOT
            def xread():
                if c in (3, 6):
                    op = "v_add_u32" if c == 3 else "v_subrev_u32"
                    for k in range(4): g(f"{op} {v(P+k)}, {3*SLOT}, {v(P+k)}")
                for k in range(4):
                    g(f"ds_read_b128 {v(X+16*c+4*k,4)}, {v(P+k)} offset:{off}")
            if n < 8:
                x_go(n, NFF)
                if n == 7: self.take(fill, 1000)
                xread()
            else:
                for e in range(3): g(w_one(e))
                if c == 7:
                    xread()
                    self.signal_cnt(C_S1, VCNT, VONE)
                g(w_pre(2 * (n - 8) + 1))
                for e in range(3): g(w_one(e))
                if c < 7: xread()
        self.stamp(2)
        g.c("---------------- F stage: w1 GEMM ----------------")
        g(f"s_setprio {o.get('fprio', 1)}")
        for j in (6, 7):
            g(w_pre(j))
            for e in range(3): g(w_one(e))
        g("s_waitcnt vmcnt(12)")
        self.signal_cnt(C_WA, VCNT, VONE)
        self.spin_cnt(C_WA, VCNT, T)
        self.stamp(3)
        steps = [(j, k) for j in range(4) for k in range(4)] + [(j, 0) for j in range(4, 8)] + [(j, k) for j in range(4, 8) for k in range(1, 4)]
        def rd(idx, t):
            j, k = steps[idx]
            if idx == 16 and t == 0:
                for kk in range(4): g(f"v_add_u32 {v(WA+kk)}, {4*12288}, {v(WA+kk)}")
            dst = WF + 12 * (idx % 3) + 4 * t
            off = (j % 4) * 12288 + t * 64
            g(f"""ds_read_b64_tr_b16 {v(dst,2)}, {v(WA+k)} offset:{off}
                  ds_read_b64_tr_b16 {v(dst+2,2)}, {v(WA+k)} offset:{off+768}""")
        for i in range(2):
            for t in range(3): rd(i, t)
        VD = 12
        def prep():
            for t in range(3):
                b = CS + 4*t
                g(f"""v_add_f32 {v(b)}, {v(b)}, {v(b+1)}
                      v_add_f32 {v(b+2)}, {v(b+2)}, {v(b+3)}
                      v_add_f32 {v(b+2)}, {v(b)}, {v(b+2)}""")
                self.split3(b+2, b, b+1, T+2, T+3)
                g(f"v_mov_b32 {v(b+2)}, 0\nv_mov_b32 {v(b+3)}, 0")
        def prep0():
            g(f"""v_lshlrev_b32 {v(T+2)}, 16, {v(XS)}
                  v_and_b32 {v(RS)}, 0xffff0000, {v(XS)}
                  v_rcp_f32 {v(RS)}, {v(RS)}
                  v_cvt_pk_bf16_f32 {v(NM)}, -{v(T+2)}, -{v(T+2)}
                  v_mul_f32 {v(NRS)}, 0xbfb8aa3b, {v(RS)}
                  v_mov_b32 {v(NM+1)}, {v(NM)}
                  v_mov_b32 {v(NM+2)}, 0
                  v_mov_b32 {v(NM+3)}, 0""")
        def silu_setup():
            g(f"""s_lshl_b32 {s(S_U0)}, {s(S_MT)}, 2
              s_add_u32 {s(S_U0)}, {s(S_U0)}, {s(S_WI)}
              s_mul_i32 {s(S_U0)}, {s(S_U0)}, {NKS}
              s_lshl_b32 {s(S_U1)}, {s(S_T1)}, 1
              s_add_u32 {s(S_U0)}, {s(S_U0)}, {s(S_U1)}
              s_add_u32 {s(S_U0)}, {s(S_U0)}, 64
              s_lshl_b32 {s(S_U2)}, {s(S_U0)}, 10""")
        f1 = self.collect(lambda: (self.w2_voff(VD, T+2), silu_setup()))
        f2 = self.collect(prep0); f3 = self.collect(prep)
        xsr = f"ds_read_b32 {v(XS)}, {v(RS)}"
        csr = "\n".join(f"ds_read_b128 {v(CS+4*t,4)}, {v(XS+1)} offset:{1024*t}" for t in range(3))
        def check(cnt, tgt, reads):
            lo = g.lab("WOK")
            g(f"""v_readfirstlane_b32 {s(S_U3)}, {v(T)}
                  s_cmp_eq_u32 {s(S_U3)}, {tgt}
                  s_cbranch_scc1 {lo}""")
            self.spin_cnt(cnt, VCNT, T, reads, tgt)
            g(f"{lo}:")
        extra = 0
        for idx, (j, k) in enumerate(steps):
            b = WF + 12 * (idx % 3)
            nxt = 6 if idx + 1 < 32 else 0
            g(f"s_waitcnt lgkmcnt({nxt + extra})")
            extra = 0
            xr = X + 16*j + 4*k
            for t in range(3):
                cc = "0" if idx == 0 else v(ACC+16*t, 16)
                g(f"v_mfma_f32_32x32x16_bf16 {v(ACC+16*t,16)}, {v(b+4*t,4)}, {v(xr,4)}, {cc}")
                if t == 0 and idx == 14: check(C_WB, 4, "")
                if t == 0 and idx == 22: check(C_S1, 8, xsr)
                if t == 0 and idx == 26: check(C_CSF, 4, csr)
                if idx + 2 < 32: rd(idx + 2, t)
                if 1 <= idx < 8: self.take(f1, 2)
                if 22 <= idx < 25: self.take(f2, 2)
                if 26 <= idx < 30: self.take(f3, 3)
                if idx == 30:
                    g(f"v_mfma_f32_32x32x16_bf16 {v(ACC+16*t,16)}, {v(CS+4*t,4)}, {v(NM,4)}, {v(ACC+16*t,16)}")
            if k == 0:
                for t in range(3):
                    cc = "0" if idx == 0 else v(CS+4*t, 4)
                    g(f"v_mfma_f32_16x16x32_bf16 {v(CS+4*t,4)}, {v(NM,4)}, {v(b+4*t,4)}, {cc}")
            if idx in (5, 13, 23, 29):
                self.signal_cnt(C_PD + 4*(5, 13, 23, 29).index(idx), VCNT, VONE); extra += 1
            if idx == 9:
                g("s_waitcnt vmcnt(0)")
                self.signal_cnt(C_WB, VCNT, VONE); extra += 1
            if idx == 12:
                g(f"ds_read_b32 {v(T)}, {v(VCNT)} offset:{C_WB}"); extra += 1
            if idx == 20:
                g(f"ds_read_b32 {v(T)}, {v(VCNT)} offset:{C_S1}\n" + xsr); extra += 2
            if idx == 21:
                for t in range(3): g(f"ds_write_b32 v1, {v(CS+4*t)} offset:{1024*t}")
                self.signal_cnt(C_CSF, VCNT, VONE); extra += 4
            if idx == 24:
                g(f"ds_read_b32 {v(T)}, {v(VCNT)} offset:{C_CSF}\n" + csr); extra += 4
            if o.get("fdetail") and idx % 4 == 3:
                self.mute = True
                self.stamp(4 + idx // 4, True)
        assert not f1 and not f2 and not f3
        self.stamp(4)
        g("s_nop 7\ns_nop 1")
        self.stamp(5)
        g.c("SiLU + store")
        g(f"s_setprio {o.get('fprio_silu', 3)}")
        PB = 11
        lsk = g.lab("NOT2")
        for t in range(3):
            a = ACC + 16*t
            if t == 2:
                g(f"""s_and_b32 {s(S_U0)}, {s(S_G)}, 3
                      s_cmp_eq_u32 {s(S_U0)}, 3
                      s_cbranch_scc1 {lsk}
                      s_add_u32 {s(S_U2)}, {s(S_U2)}, 4096""")
            for hf in range(2):
                e = WF if hf == 0 else WF + 8
                z = a + 8*hf
                for i in range(0, 8, 2): g(f"v_pk_mul_f32 {v(e+i,2)}, {v(z+i,2)}, {v(RS,2)} op_sel:[0,1] op_sel_hi:[1,1]")
                for i in range(8):
                    g(f"v_exp_f32 {v(e+i)}, {v(e+i)}")
                    if i & 1: g(f"v_pk_mul_f32 {v(z+i-1,2)}, {v(z+i-1,2)}, {v(RS,2)} op_sel_hi:[1,0]")
                for i in range(0, 8, 2): g(f"v_pk_add_f32 {v(e+i,2)}, {v(e+i,2)}, 1.0 op_sel_hi:[1,0]")
                for i in range(8): g(f"v_rcp_f32 {v(e+i)}, {v(e+i)}")
                for i in range(0, 8, 2): g(f"v_pk_mul_f32 {v(z+i,2)}, {v(z+i,2)}, {v(e+i,2)}")
                d = CS + 4*hf
                for i in range(4): g(f"v_cvt_pk_bf16_f32 {v(d+i)}, {v(a+8*hf+2*i)}, {v(a+8*hf+2*i+1)}")
                g(f"buffer_store_dwordx4 {v(d,4)}, {v(PB)}, {s(R_WS,4)}, {s(S_U2)} offen offset:{((2*t+hf)&3)*1024} sc1")
        g(f"{lsk}:")
        self.stamp(6)

        g.c("---------------- F phase 2 ----------------")
        A2 = 176
        BR = 96
        AB = 48
        BTm = 240
        WB = 6
        VA = 8
        T2 = 40
        T = 44
        NR = 10
        self.w2_own_setup(S_T2, S_WO)
        g(f"""v_lshrrev_b32 {v(T2)}, 5, v0
              v_bfe_u32 {v(T2+1)}, v0, 2, 2
              v_lshl_add_u32 {v(T2)}, {v(T2)}, 2, {v(T2+1)}
              v_lshlrev_b32 {v(T2)}, 7, {v(T2)}
              v_bfe_u32 {v(T2+1)}, v0, 3, 1
              v_lshl_add_u32 {v(T2)}, {v(T2+1)}, 6, {v(T2)}
              v_bfe_u32 {v(T2+1)}, v0, 4, 1
              v_lshl_add_u32 {v(T2)}, {v(T2+1)}, 5, {v(T2)}
              v_and_b32 {v(T2+1)}, 3, v0
              v_lshl_add_u32 {v(T2)}, {v(T2+1)}, 3, {v(T2)}
              v_add_u32 {v(WB)}, {s(S_T2)}, {v(T2)}
              v_xor_b32 {v(WB+1)}, 64, {v(WB)}
              s_and_b32 {s(S_U0)}, {s(S_WI)}, 2
              s_lshl_b32 {s(S_U0)}, {s(S_U0)}, 1
              v_add_u32 {v(T2+2)}, {s(S_U0)}, {v(VCNT)}""")
        def bread(dst, lks):
            for ct in range(2):
                for u in range(2):
                    g(f"ds_read_b64_tr_b16 {v(dst+4*ct+2*u,2)}, {v(WB+ct)} offset:{lks*2048+u*1024}")
        g(f"""s_mul_i32 {s(S_XO)}, {s(S_RT)}, {2*NKS}
              s_mul_i32 {s(S_U0)}, {s(S_WI)}, 22
              s_add_u32 {s(S_XO)}, {s(S_XO)}, {s(S_U0)}
              s_add_u32 {s(S_XO)}, {s(S_XO)}, 64
              s_lshl_b32 {s(S_XO)}, {s(S_XO)}, 10
              s_mul_i32 {s(S_U0)}, {s(S_WI)}, 12288
              v_add_u32 {v(T)}, {s(S_U0)}, {v(PB)}
              v_add_u32 {v(T+1)}, {s(S_T2)}, {v(PB)}""")
        self.out_setup(VA, 2, PB)
        self.set_flag(WS_FLAGF, VZ, T2+3, 0)
        g(f"s_setprio {o.get('fprio2', 0)}")
        self.spin_cnt(C_B1, T2+2, T2)
        self.stamp(7)
        for ks in range(NR):
            bread(BR + 8*ks, ks)
            if ks % 2 == 1: g("s_waitcnt lgkmcnt(4)")
        g("s_waitcnt lgkmcnt(0)")
        fb = o.get("f_b2a", 6)
        self.w2_issue(VD, S_T2, S_WO, 12, fb, 0)
        self.poll_issue(WS_FLAGF)
        self.w2_issue(VD, S_T2, S_WO, 12 + fb, 10 - fb, fb)
        self.stamp(8)
        self.poll_finish()
        self.stamp(9)
        BT = [240, 248, 32]
        ABL = [AB + 4*i for i in range(12)] + [16, 24, 28]
        N2, D = 44, o.get("f_depth", 12)
        def aload(i):
            rb, ks = divmod(i, 22)
            if ks % 4 == 0: g(f"s_add_u32 {s(S_U0)}, {s(S_XO)}, {(rb*NKS + ks)*1024}")
            g(f"buffer_load_dwordx4 {v(ABL[i%D],4)}, {v(PB)}, {s(R_WS,4)}, {s(S_U0)} offen offset:{(ks%4)*1024} sc1")
        for i in range(D): aload(i)
        for i in range(N2):
            rb, ks = divmod(i, 22)
            inl = lambda j: j < N2 and j % 22 >= NR
            w = f"s_waitcnt vmcnt({min(N2, i+D) - i - 1})"
            if inl(i): w += f" lgkmcnt({4 if inl(i+1) else 0})"
            g(w)
            bs = BT[i % 3] if inl(i) else BR + 8*ks
            for ct in range(2):
                d = A2 + 16*(2*rb+ct)
                g(f"v_mfma_f32_32x32x16_bf16 {v(d,16)}, {v(ABL[i%D],4)}, {v(bs+4*ct,4)}, {'0' if ks == 0 else v(d,16)}")
                if ct == 0 and inl(i+2): bread(BT[(i+2) % 3], ((i+2) % 22) % 12)
                if ct == 0 and 24 <= i < 28:
                    for u in range(2):
                        x = 2*(i-24) + u
                        g(f"ds_write_b128 {v(T)}, {v(A2+4*x,4)} offset:{4096 + x*1024}")
            if i + D < N2: aload(i + D)
            if o.get("p2detail") and i in (0, 7, 15, 22, 24, 29, 36):
                self.stamp(1 + (0, 7, 15, 22, 24, 29, 36).index(i), True)
            if i == 23: self.spin_cnt(C_SR, VCNT, T+2)
            if i == 27:
                self.signal_cnt(C_FM, VCNT, VONE)
                g(f"ds_read_b128 {v(40,4)}, v4 offset:{2*12288}")
        self.stamp(10)
        g("s_nop 7\ns_nop 3")
        for x in range(8):
            g(f"ds_write_b128 {v(T+1)}, {v(A2+32+4*x,4)} offset:{x*1024}")
        g("s_waitcnt lgkmcnt(0)\ns_barrier")
        self.final_piece(1, 40, BR, VA, 2)
        le = g.lab("NOEP")
        g(f"""s_lshl_b32 {s(S_U0)}, {s(S_RT)}, 5
              s_lshl_b32 {s(S_U1)}, {s(S_NT)}, 2
              s_add_u32 {s(S_U0)}, {s(S_U0)}, {s(S_U1)}
              s_add_u32 {s(S_U0)}, {s(S_U0)}, {s(S_WI)}
              s_cmp_lg_u32 {s(S_U0)}, {31*32}
              s_cbranch_scc1 {le}
              v_mov_b32 {v(T)}, {s(S_TAG)}
              s_mov_b32 {s(S_U0)}, {hex(WS_EPOCH)}
              s_mov_b64 exec, 1
              buffer_store_dword {v(T)}, {v(VZ)}, {s(R_WS,4)}, {s(S_U0)} offen
              s_mov_b64 exec, -1""")
        g(f"{le}:")
        self.stamp(11)
        self.stamps_out(T, 'F')
        g("s_endpgm")

    def out_setup(self, VO, VL, VL16):
        self.g(f"""v_and_b32 {v(VO)}, 31, v0
              v_lshlrev_b32 {v(VO)}, 2, {v(VO)}
              v_and_b32 {v(VL)}, 32, v0
              v_lshl_add_u32 {v(VO)}, {v(VL)}, 10, {v(VO)}
              s_lshl_b32 {s(S_U0)}, {s(S_WI)}, 10
              v_add_u32 {v(VL+2)}, {s(S_U0)}, {v(VL16)}
              v_add_u32 {v(VL)}, {W1B}, {v(VL+2)}
              v_add_u32 {v(VL+1)}, {W1B + 3*SLOT}, {v(VL+2)}
              s_lshl_b32 {s(S_T0)}, {s(S_RT)}, 17
              s_lshl_b32 {s(S_U0)}, {s(S_WI)}, 13
              s_add_u32 {s(S_T0)}, {s(S_T0)}, {s(S_U0)}
              s_lshl_b32 {s(S_U0)}, {s(S_NT)}, 8
              s_add_u32 {s(S_T0)}, {s(S_T0)}, {s(S_U0)}""")

    def sum_store(self, ACC, TMP, VO, rb, ct, first_wait):
        g = self.g
        g(f"""s_add_u32 {s(S_U0)}, {s(S_T0)}, {rb*65536 + ct*128}
              s_add_u32 {s(S_U1)}, {s(S_U0)}, 4096
              s_waitcnt lgkmcnt({first_wait + 2})""")
        for j in range(4): g(f"v_add_f32 {v(ACC+j)}, {v(ACC+j)}, {v(TMP+j)}")
        for j in range(4): g(f"v_add_f32 {v(ACC+j)}, {v(ACC+j)}, {v(TMP+4+j)}")
        g(f"s_waitcnt lgkmcnt({first_wait})")
        for j in range(4): g(f"v_add_f32 {v(TMP+8+j)}, {v(TMP+8+j)}, {v(TMP+12+j)}")
        for j in range(4):
            g(f"""v_add_f32 {v(ACC+j)}, {v(ACC+j)}, {v(TMP+8+j)}
                  buffer_store_dword {v(ACC+j)}, {v(VO)}, {s(R_OUT,4)}, {s(S_U0 if j < 2 else S_U1)} offen offset:{(j&1)*2048}{self.o.get('out_pol',' sc1')}""")

    def final_piece(self, ct, ACC, TMP, VO, VL):
        g = self.g
        for q in range(4):
            g(f"ds_read_b128 {v(TMP+4*q,4)}, {v(VL + (q == 3))} offset:{(q % 3)*SLOT + ct*4096}")
        self.sum_store(ACC, TMP, VO, 1, ct, 0)

    def gather3(self, base, stride, dst, T):
        g = self.g
        for d in range(1, 4):
            g(f"""s_xor_b32 {s(S_U0)}, {s(S_WI)}, {d}
                  s_mul_i32 {s(S_U0)}, {s(S_U0)}, {stride}
                  s_add_u32 {s(S_U0)}, {s(S_U0)}, {base + (d-1)*4096}
                  v_lshl_add_u32 {v(T)}, v0, 4, {s(S_U0)}""")
            for q in range(4):
                g(f"ds_read_b128 {v(dst+16*(d-1)+4*q,4)}, {v(T)} offset:{q*1024}")

    def a_setup(self, VA, ks_base, per_wave, T):
        g = self.g
        g(f"""s_lshr_b32 {s(S_U0)}, {s(S_WI)}, 1
              s_mul_i32 {s(S_U1)}, {s(S_U0)}, {NKS*1024}
              s_sub_u32 {s(S_U2)}, {NKS*1024}, {s(S_U1)}
              v_lshl_add_u32 {v(VA)}, v0, 4, {s(S_U1)}
              v_lshl_add_u32 {v(VA+1)}, v0, 4, {s(S_U2)}
              s_mul_i32 {s(S_XO)}, {s(S_RT)}, {2*NKS}
              s_mul_i32 {s(S_U0)}, {s(S_WI)}, {per_wave}
              s_add_u32 {s(S_XO)}, {s(S_XO)}, {s(S_U0)}
              s_add_u32 {s(S_XO)}, {s(S_XO)}, {ks_base}
              s_lshl_b32 {s(S_XO)}, {s(S_XO)}, 10""")

    def p2_loop(self, n, VA, AB, A2, bsrc, pre, mid, soff, init0=False):
        g = self.g
        D = 6
        def aload(ks):
            if ks % 2 == 0: soff(ks)
            for rb in range(2):
                g(f"buffer_load_dwordx4 {v(AB+8*(ks%D)+4*rb,4)}, {v(VA+rb)}, {s(R_WS,4)}, {s(S_U0)} offen offset:{(ks%2)*1024} sc1")
        for ks in range(D): aload(ks)
        for ks in range(n):
            pre(ks)
            g(f"s_waitcnt vmcnt({2*(min(n, ks+D) - ks - 1)})")
            for rb in range(2):
                for ct in range(2):
                    d = A2 + 16*(2*rb+ct)
                    cc = "0" if ks == 0 and not (init0 and rb == 0 and ct == 0) else v(d, 16)
                    g(f"v_mfma_f32_32x32x16_bf16 {v(d,16)}, {v(AB+8*(ks%D)+4*rb,4)}, {v(bsrc(ks)+4*ct,4)}, {cc}")
                    if rb == 0 and ct == 0: mid(ks)
            if ks + D < n: aload(ks + D)
        g("s_nop 7\ns_nop 7")

    def swave(self):
        g = self.g; o = self.o
        BR = 128
        WR, WI_ = BR + 80, BR + 112
        UR, UI = 96, 112
        FR = 48
        XA, BA = 2, 6
        LA, LB = 10, 11
        L16, L128, W0, KA, GS = 12, 14, 16, 18, 20
        VCNT, VONE, VZ = 22, 23, 24
        SEGV, NLB = 25, 26
        VXS, VCS = 1, 27
        T = 28
        XS, CG = BR, BR + 2
        OP = BR + 4
        RSV = BR + 16
        VD, TRW, TRR, LB1, LB2, VW, VL16 = 36, 40, 41, 42, 43, 44, 47
        R_W1 = R_OUT
        self.mute = False
        g("L_SWAVE:")
        g.c("---------------- S wave ----------------")
        g(f"v_lshlrev_b32 {v(T+4)}, 4, v0")
        if o.get("codepf", 1):
            lp = g.lab("NOPF")
            g(f"""s_cmp_lg_u32 {s(S_WI)}, 0
                  s_cbranch_scc1 {lp}
                  s_getpc_b64 {s(R_B,2)}""")
            g("L_PC:")
            g(f"""s_sub_u32 {s(R_B)}, {s(R_B)}, L_PC-{NAME}_kernel
                  s_subb_u32 {s(R_B+1)}, {s(R_B+1)}, 0
                  s_mov_b32 {s(R_B+2)}, L_CODE_END-{NAME}_kernel
                  s_mov_b32 {s(R_B+3)}, 0x20000
                  s_lshr_b32 {s(S_U0)}, s2, 3
                  s_lshl_b32 {s(S_U0)}, {s(S_U0)}, 10
                  buffer_load_dwordx4 {v(FR+12,4)}, {v(T+4)}, {s(R_B,4)}, {s(S_U0)} offen""")
            g(f"{lp}:")
        g(f"""
              s_lshl_b32 {s(S_T0)}, {s(S_MT)}, 7
              s_lshl_b32 {s(S_T1)}, {s(S_G)}, 3
              s_add_u32 {s(S_T0)}, {s(S_T0)}, {s(S_T1)}
              s_lshl_b32 {s(S_T1)}, {s(S_WI)}, 1
              s_add_u32 {s(S_T0)}, {s(S_T0)}, {s(S_T1)}
              s_lshl_b32 {s(S_U0)}, {s(S_T0)}, 10
              s_lshl_b32 {s(S_T1)}, {s(S_MT)}, 2
              s_add_u32 {s(S_T1)}, {s(S_T1)}, {s(S_WI)}
              s_and_b32 {s(S_U1)}, {s(S_T1)}, 31
              s_lshl_b32 {s(S_U2)}, {s(S_G)}, 5
              s_add_u32 {s(S_U1)}, {s(S_U1)}, {s(S_U2)}
              s_lshl_b32 {s(S_U1)}, {s(S_U1)}, 10
              s_mov_b32 {s(R_X+2)}, {hex(2048*512*2)}
              s_mov_b32 {s(R_X+3)}, 0x20000
              s_mov_b32 {s(R_A+2)}, {hex(512*512*2)}
              s_mov_b32 {s(R_A+3)}, 0x20000
              v_and_b32 {v(T)}, 31, v0
              v_lshlrev_b32 {v(T)}, 1, {v(T)}
              s_lshl_b32 {s(S_U2)}, {s(S_G)}, 6
              v_add_u32 {v(T)}, {s(S_U2)}, {v(T)}
              s_cmp_ge_u32 {s(S_MT)}, 8
              s_waitcnt lgkmcnt(0)
              s_mov_b32 {s(R_X)}, {s(P_X)}
              s_mov_b32 {s(R_X+1)}, {s(P_X+1)}
              s_cselect_b32 {s(R_A)}, {s(P_BIM)}, {s(P_BRE)}
              s_cselect_b32 {s(R_A+1)}, {s(P_BIM+1)}, {s(P_BRE+1)}
              buffer_load_dwordx4 {v(FR,4)}, {v(T+4)}, {s(R_X,4)}, {s(S_U0)} offen
              buffer_load_dwordx4 {v(FR+4,4)}, {v(T+4)}, {s(R_X,4)}, {s(S_U0)} offen offset:1024
              buffer_load_dwordx4 {v(FR+8,4)}, {v(T+4)}, {s(R_A,4)}, {s(S_U1)} offen
              global_load_ushort {v(T+1)}, {v(T)}, {s(P_LRE,2)}
              global_load_ushort {v(T+2)}, {v(T)}, {s(P_LIM,2)}
              global_load_ushort {v(T+3)}, {v(T)}, {s(P_LDT,2)}""")
        self.epoch()
        pfpos = o.get("pf", {"1": -1, "c": 6, "2": 6})
        RP = R_OUT
        def pf_emit(pos, VL):
            n = 0
            for key in "1c2":
                if pfpos.get(key) != pos: continue
                g(f"""s_lshl_b32 {s(S_U0)}, s2, 2
                      s_add_u32 {s(S_U0)}, {s(S_U0)}, {s(S_WI)}
                      s_lshl_b32 {s(S_U0)}, {s(S_U0)}, 10
                      s_mov_b32 {s(RP+3)}, 0x20000""")
                if key == "c":
                    g(f"""s_bitcmp1_b32 {s(S_WI)}, 0
                      s_cselect_b32 {s(RP)}, {s(P_CIM)}, {s(P_CRE)}
                      s_cselect_b32 {s(RP+1)}, {s(P_CIM+1)}, {s(P_CRE+1)}
                      s_mov_b32 {s(RP+2)}, {hex(512*1024)}
                      s_lshr_b32 {s(S_U1)}, {s(S_U0)}, 11
                      s_lshl_b32 {s(S_U1)}, {s(S_U1)}, 10
                      buffer_load_dwordx4 {v(BR+56,4)}, {v(VL)}, {s(RP,4)}, {s(S_U1)} offen""")
                    n += 1
                else:
                    P_ = P_W1 if key == "1" else P_W2
                    d = BR + (48 if key == "1" else 60)
                    g(f"""s_mov_b32 {s(RP)}, {s(P_)}
                      s_mov_b32 {s(RP+1)}, {s(P_+1)}
                      s_mov_b32 {s(RP+2)}, {hex(1376*1024)}
                      s_xor_b32 {s(S_U1)}, {s(S_WI)}, {0 if key == "1" else 3}
                      s_lshl_b32 {s(S_U1)}, {s(S_U1)}, 8
                      s_add_u32 {s(S_U1)}, {s(S_U1)}, s2
                      s_lshl_b32 {s(S_U1)}, {s(S_U1)}, 10
                      s_add_u32 {s(S_U1)}, {s(S_U1)}, {1 << 20}
                      buffer_load_dwordx4 {v(d,4)}, {v(VL)}, {s(RP,4)}, {s(S_U0)} offen
                      buffer_load_dwordx4 {v(d+4,4)}, {v(VL)}, {s(RP,4)}, {s(S_U1)} offen""")
                    n += 2
            return n
        npf_ = pf_emit(-1, T+4)
        g.c("@@SREST")
        self.cnt_regs(VCNT, VONE)
        g(f"""v_mov_b32 {v(VZ)}, 0
              v_lshlrev_b32 {v(T+5)}, 2, v0
              v_add_u32 {v(T+5)}, {L_CNT}, {v(T+5)}
              ds_write_b32 {v(T+5)}, {v(VZ)}
              s_mov_b32 {s(S_ONES)}, 0x3f803f80""")
        srd(g, R_WS, P_WS, WS_BYTES); srd(g, R_W2, P_W2, 1376 * 512 * 2)
        self.frag_pat(BA, T+6, T+7, False)
        g(f"s_lshl_b32 {s(S_T3)}, {s(S_WI)}, 12")
        for k in range(4):
            g(f"v_add_u32 {v(XA+k)}, {s(S_T3)}, {v(BA+k)}\nv_add_u32 {v(BA+k)}, 16384, {v(BA+k)}")
        for r in (2, 3, 6, 7, 10, 11): g(f"v_mov_b32 {v(OP+r)}, 0")
        self.tau(VXS, T+6)
        A5 = BR + 32
        SO = BR + 38
        g(f"""s_lshl_b32 {s(S_U0)}, {s(S_MT)}, 10
              s_lshl_b32 {s(S_U1)}, {s(S_WI)}, 8
              s_add_u32 {s(S_U0)}, {s(S_U0)}, {s(S_U1)}
              s_add_u32 {s(S_U0)}, {s(S_U0)}, {hex(WS_XS)}
              v_lshl_add_u32 {v(VXS)}, {v(VXS)}, 3, {s(S_U0)}
              s_lshl_b32 {s(S_T4)}, {s(S_G)}, 9
              s_add_u32 {s(S_T4)}, {s(S_T4)}, {hex(WS_CSG)}
              v_lshl_add_u32 {v(VCS)}, v0, 3, {s(S_T4)}
              v_lshrrev_b32 {v(SEGV)}, 5, v0
              v_lshlrev_b32 {v(SO)}, 3, {v(SEGV)}
              s_lshl_b32 {s(S_U0)}, {s(S_WI)}, 1
              v_add_u32 {v(SEGV)}, {s(S_U0)}, {v(SEGV)}""")
        for k in range(5): g(f"v_mov_b32 {v(A5+k)}, 0")
        g(f"""s_lshl_b32 {s(S_V1)}, {s(S_T0)}, 3
              s_add_u32 {s(S_V1)}, {s(S_V1)}, {hex(WS_XS)}
              s_lshl_b32 {s(S_XO)}, {s(S_T1)}, 3
              s_add_u32 {s(S_XO)}, {s(S_XO)}, {s(S_T4)}""")
        TB = BR + 40
        def addrs():
            self.lane8_pat(TB, TB+1, TB+2)
            g(f"""v_lshl_or_b32 {v(VD)}, {v(TB+1)}, 10, {v(TB)}
              v_add_u32 {v(VD+1)}, 7168, {v(VD)}
              v_xor_b32 {v(VD+1)}, 64, {v(VD+1)}
              v_add_u32 {v(VD+2)}, {2*7168}, {v(VD)}
              v_add_u32 {v(VD+3)}, {2*7168}, {v(VD+1)}
              s_mul_i32 {s(S_T2)}, {s(S_WI)}, 12288
              s_lshl_b32 {s(S_WO)}, {s(S_NT)}, 16
              s_lshl_b32 {s(S_U1)}, {s(S_WI)}, 8
              s_add_u32 {s(S_WO)}, {s(S_WO)}, {s(S_U1)}
              s_and_b32 {s(S_U1)}, {s(S_ROT)}, 2
              s_lshl_b32 {s(S_U1)}, {s(S_U1)}, 6
              s_add_u32 {s(S_WO)}, {s(S_WO)}, {s(S_U1)}
              s_and_b32 {s(S_U1)}, {s(S_WI)}, 1
              s_lshl_b32 {s(S_U1)}, {s(S_U1)}, 15
              s_xor_b32 {s(S_BO)}, {s(S_U1)}, 0x8000
              s_add_u32 {s(S_BO)}, {s(S_BO)}, {s(S_WO)}
              s_add_u32 {s(S_WO)}, {s(S_WO)}, {s(S_U1)}
              v_and_b32 {v(TB)}, 31, v0
              v_lshlrev_b32 {v(TB+1)}, 1, {v(SEGV)}
              v_sub_u32 {v(TB+1)}, {s(S_MT)}, {v(TB+1)}
              v_cmp_le_i32 {s(S_EX,2)}, 1, {v(TB+1)}
              v_cmp_le_i32 {s(S_MK,2)}, 2, {v(TB+1)}
              v_lshlrev_b32 {v(TB+1)}, 9, {v(TB+1)}
              v_lshl_add_u32 {v(TB+1)}, {v(TB)}, 4, {v(TB+1)}
              v_subrev_u32 {v(LB1)}, 512, {v(TB+1)}
              v_subrev_u32 {v(LB2)}, 1024, {v(TB+1)}
              v_mov_b32 {v(TB+2)}, 0x40000000
              v_cndmask_b32 {v(LB1)}, {v(TB+2)}, {v(LB1)}, {s(S_EX,2)}
              v_cndmask_b32 {v(LB2)}, {v(TB+2)}, {v(LB2)}, {s(S_MK,2)}
              s_lshl_b32 {s(S_U0)}, {s(S_WI)}, 11
              s_add_u32 {s(S_U0)}, {s(S_U0)}, {L_TR}
              v_lshl_add_u32 {v(TRW)}, {v(TB)}, 6, {s(S_U0)}
              v_and_b32 {v(TRR)}, 32, v0
              v_add_u32 {v(TRW)}, {v(TRW)}, {v(TRR)}
              v_lshlrev_b32 {v(TRR)}, 4, {v(TRR)}
              v_bfe_u32 {v(TB+3)}, v0, 2, 2
              v_lshl_add_u32 {v(TRR)}, {v(TB+3)}, 6, {v(TRR)}
              v_and_b32 {v(TB+3)}, 1, v0
              v_lshl_add_u32 {v(TRR)}, {v(TB+3)}, 5, {v(TRR)}
              v_and_b32 {v(TB+3)}, 16, v0
              v_add_u32 {v(TRR)}, {v(TRR)}, {v(TB+3)}
              v_and_b32 {v(TB+3)}, 2, v0
              v_lshl_add_u32 {v(TRR)}, {v(TB+3)}, 2, {v(TRR)}
              v_add_u32 {v(TRR)}, {s(S_U0)}, {v(TRR)}
              v_and_b32 {v(TB+3)}, 6, v0
              v_lshlrev_b32 {v(TB+3)}, 3, {v(TB+3)}
              v_xor_b32 {v(TRW)}, {v(TRW)}, {v(TB+3)}
              v_xor_b32 {v(VW)}, 16, {v(TRW)}
              v_and_b32 {v(TB+3)}, 8, v0
              v_lshlrev_b32 {v(TB+3)}, 1, {v(TB+3)}
              v_xor_b32 {v(TRR)}, {v(TRR)}, {v(TB+3)}
              v_xor_b32 {v(VW+1)}, 32, {v(TRR)}
              v_lshlrev_b32 {v(VL16)}, 4, v0
              s_lshl_b32 {s(S_U0)}, {s(S_MT)}, 2
              s_add_u32 {s(S_U0)}, {s(S_U0)}, {s(S_WI)}
              s_mul_i32 {s(S_U0)}, {s(S_U0)}, {NKS}
              s_lshl_b32 {s(S_U1)}, {s(S_G)}, 2
              s_add_u32 {s(S_U0)}, {s(S_U0)}, {s(S_U1)}
              s_lshl_b32 {s(S_T0)}, {s(S_U0)}, 10""")
        addrs()
        g(f"s_waitcnt vmcnt({npf_}) lgkmcnt(0)")
        self.epoch_fin()
        for k in range(4):
            g(f"""v_dot2c_f32_bf16 {v(A5)}, {s(S_ONES)}, {v(FR+k)}
                  v_dot2c_f32_bf16 {v(A5+1)}, {s(S_ONES)}, {v(FR+4+k)}
                  v_dot2c_f32_bf16 {v(A5+2)}, {v(FR+k)}, {v(FR+k)}
                  v_dot2c_f32_bf16 {v(A5+3)}, {v(FR+4+k)}, {v(FR+4+k)}
                  v_dot2c_f32_bf16 {v(A5+4)}, {s(S_ONES)}, {v(FR+8+k)}""")
        SX, SQ, CC = A5, A5+2, A5+4
        def stats():
            g(f"""s_nop 2
              v_mov_b32 {v(A5+5)}, {v(CC)}
              v_permlane32_swap_b32 {v(A5)}, {v(A5+1)}
              v_permlane32_swap_b32 {v(A5+2)}, {v(A5+3)}
              v_permlane32_swap_b32 {v(CC)}, {v(A5+5)}
              v_add_f32 {v(SX)}, {v(A5)}, {v(A5+1)}
              v_add_f32 {v(SQ)}, {v(A5+2)}, {v(A5+3)}
              v_add_f32 {v(CC)}, {v(CC)}, {v(A5+5)}
              v_mov_b32 {v(SX+1)}, {v(SX)}
              v_mov_b32 {v(SQ+1)}, {v(SQ)}
              v_mov_b32 {v(CC+1)}, {v(CC)}
              v_permlane16_swap_b32 {v(SX)}, {v(SX+1)}
              s_nop 0
              v_permlane16_swap_b32 {v(SQ)}, {v(SQ+1)}
              v_permlane16_swap_b32 {v(CC)}, {v(CC+1)}
              v_add_f32 {v(SX)}, {v(SX)}, {v(SX+1)}
              v_add_f32 {v(SQ)}, {v(SQ)}, {v(SQ+1)}
              v_add_f32 {v(CC)}, {v(CC)}, {v(CC+1)}""")
            for m in ("quad_perm:[1,0,3,2]", "quad_perm:[2,3,0,1]", "row_half_mirror", "row_mirror"):
                for r in (SX, SQ, CC):
                    g(f"v_add_f32_dpp {v(r)}, {v(r)}, {v(r)} {m} row_mask:0xf bank_mask:0xf")
            g(f"""v_mul_f32 {v(SX)}, 0x3b000000, {v(SX)}
              v_mul_f32 {v(SQ)}, 0x3b000000, {v(SQ)}
              v_fma_f32 {v(SQ)}, -{v(SX)}, {v(SX)}, {v(SQ)}
              v_max_f32 {v(SQ)}, 0, {v(SQ)}
              v_cvt_pk_bf16_f32 {v(SQ)}, {v(SQ)}, {v(SQ)}
              v_and_b32 {v(SQ)}, 0xffff0000, {v(SQ)}
              v_add_f32 {v(SQ)}, 0x3727c5ac, {v(SQ)}
              v_cvt_pk_bf16_f32 {v(SQ)}, {v(SQ)}, {v(SQ)}
              v_and_b32 {v(SQ)}, 0xffff0000, {v(SQ)}
              v_sqrt_f32 {v(SQ)}, {v(SQ)}
              v_mov_b32 {v(SX+1)}, {s(S_TAG)}
              v_mov_b32 {v(CC+1)}, {s(S_TAG)}
              v_cvt_pk_bf16_f32 {v(SX)}, {v(SX)}, {v(SQ)}
              ; {{
              s_mov_b32 exec_lo, 1
              s_mov_b32 exec_hi, 1
              buffer_store_dwordx2 {v(SX,2)}, {v(SO)}, {s(R_WS,4)}, {s(S_V1)} offen sc1
              s_mov_b32 exec_hi, 0
              buffer_store_dwordx2 {v(CC,2)}, {v(VZ)}, {s(R_WS,4)}, {s(S_XO)} offen sc1
              s_mov_b64 exec, -1
              ; }}""")
            g(f"""; {{
              s_bitcmp1_b32 {s(S_ROT)}, 0
              s_cselect_b32 {s(R_A)}, {s(P_CIM)}, {s(P_CRE)}
              s_cselect_b32 {s(R_A+1)}, {s(P_CIM+1)}, {s(P_CRE+1)}
              s_cselect_b32 {s(R_B)}, {s(P_CRE)}, {s(P_CIM)}
              s_cselect_b32 {s(R_B+1)}, {s(P_CRE+1)}, {s(P_CIM+1)}
              ; }}
              s_mov_b32 {s(R_B+2)}, {hex(512*512*2)}
              s_mov_b32 {s(R_B+3)}, 0x20000""")

        lr, li, dt = T+1, T+2, T+3
        def consts():
            g(f"""v_lshlrev_b32 {v(lr)}, 16, {v(lr)}
              v_lshlrev_b32 {v(li)}, 16, {v(li)}
              v_lshlrev_b32 {v(dt)}, 16, {v(dt)}
              v_mul_f32 {v(dt)}, 0x3fb8aa3b, {v(dt)}
              v_exp_f32 {v(dt)}, {v(dt)}
              s_nop 0
              v_cvt_pk_bf16_f32 {v(dt)}, {v(dt)}, {v(dt)}
              v_and_b32 {v(dt)}, 0xffff0000, {v(dt)}
              v_mul_f32 {v(T+4)}, {v(dt)}, {v(lr)}
              v_mul_f32 {v(T+5)}, {v(dt)}, {v(li)}
              v_mul_f32 {v(T+4)}, 0x3fb8aa3b, {v(T+4)}
              v_mul_f32 {v(T+5)}, 0.15915494, {v(T+5)}
              v_rndne_f32 {v(T+6)}, {v(T+5)}
              v_sub_f32 {v(T+5)}, {v(T+5)}, {v(T+6)}
              v_exp_f32 {v(T+4)}, {v(T+4)}
              v_cos_f32 {v(T+6)}, {v(T+5)}
              v_sin_f32 {v(T+7)}, {v(T+5)}
              v_mul_f32 {v(TB)}, {v(lr)}, {v(lr)}
              v_mul_f32 {v(LA)}, {v(T+4)}, {v(T+6)}
              v_mul_f32 {v(LB)}, {v(T+4)}, {v(T+7)}
              v_fmac_f32 {v(TB)}, {v(li)}, {v(li)}
              v_rcp_f32 {v(TB)}, {v(TB)}
              v_add_f32 {v(T+4)}, -1.0, {v(LA)}
              v_mul_f32 {v(KA)}, {v(T+4)}, {v(lr)}
              v_mul_f32 {v(KA+1)}, {v(LB)}, {v(lr)}
              v_fmac_f32 {v(KA)}, {v(LB)}, {v(li)}
              v_fma_f32 {v(KA+1)}, -{v(T+4)}, {v(li)}, {v(KA+1)}
              v_add_f32 {v(TB)}, {v(TB)}, {v(TB)}
              v_mul_f32 {v(KA)}, {v(KA)}, {v(TB)}
              v_mul_f32 {v(KA+1)}, {v(KA+1)}, {v(TB)}
              v_sub_f32 {v(NLB)}, 0, {v(LB)}""")
            a, b, c2 = T, T+2, T+4
            sq = lambda d, x: self.cmul(d, d+1, x, x+1, x, x+1)
            sq(a, LA); sq(b, a); sq(a, b); sq(L16, a)
            sq(a, L16); sq(b, a); sq(L128, b)
            g(f"""v_cmp_lt_u32 vcc, 31, v0
              s_nop 1
              v_cndmask_b32 {v(GS)}, 1.0, {v(L16)}, vcc
              v_cndmask_b32 {v(GS+1)}, 0, {v(L16+1)}, vcc
              ; {{
              s_bitcmp1_b32 {s(S_WI)}, 0
              s_cselect_b64 vcc, -1, 0
              ; }}
              v_cndmask_b32 {v(a)}, 1.0, {v(a)}, vcc
              v_cndmask_b32 {v(a+1)}, 0, {v(a+1)}, vcc
              ; {{
              s_bitcmp1_b32 {s(S_WI)}, 1
              s_cselect_b64 vcc, -1, 0
              ; }}
              v_cndmask_b32 {v(b)}, 1.0, {v(b)}, vcc
              v_cndmask_b32 {v(b+1)}, 0, {v(b+1)}, vcc""")
            self.cmul(c2, c2+1, GS, GS+1, a, a+1)
            self.cmul(GS, GS+1, c2, c2+1, b, b+1)
            sq(a, GS); sq(b, a); sq(a, b); sq(W0, a)
        def table():
            pr_, pi_ = KA, KA+1
            for j in range(16):
                g(f"""v_mul_f32 {v(WR+j)}, {v(LA)}, {v(pr_)}
                      v_mul_f32 {v(WI_+j)}, {v(LA)}, {v(pi_)}
                      v_fmac_f32 {v(WR+j)}, {v(NLB)}, {v(pi_)}
                      v_fmac_f32 {v(WI_+j)}, {v(LB)}, {v(pr_)}""")
                pr_, pi_ = WR+j, WI_+j
        fill = self.collect(lambda: (stats(), consts(), table()))
        take = lambda n: self.take(fill, n)
        self.stamp(1)

        NF = o.get("nfill", 7)
        g.c("stage A")
        if o.get("sprio", 1): g("s_setprio 2")
        def rd(k, off):
            f = FR + 12*k
            if o.get("x_nord"): return
            g(f"""ds_read_b128 {v(f,4)}, {v(XA+k)} offset:{off}
                  ds_read_b128 {v(f+4,4)}, {v(BA+k)} offset:{off}
                  ds_read_b128 {v(f+8,4)}, {v(BA+k)} offset:{off+4096}""")
        def m1(k, im):
            f = FR + 12*k; d = UI if im else UR
            if o.get("x_nomfma"): return
            cc = v(d,16) if started[im] else "0"
            started[im] = True
            g(f"v_mfma_f32_32x32x16_bf16 {v(d,16)}, {v(f,4)}, {v(f+4+4*im,4)}, {cc}")
        started = [False, False]
        late = 0
        gl = f"""buffer_load_dwordx2 {v(XS,2)}, {v(VXS)}, {s(R_WS,4)}, 0 offen sc1
                 buffer_load_dwordx2 {v(CG,2)}, {v(VCS)}, {s(R_WS,4)}, 0 offen sc1"""
        for c in range(8):
            off = (c % 3) * SLOT
            if c in (3, 6):
                op = "v_add_u32" if c == 3 else "v_subrev_u32"
                for k in range(8): g(f"{op} {v(XA+k)}, {3*SLOT}, {v(XA+k)}")
            g("s_barrier")
            rd(0, off); rd(1, off)
            if c == o.get("gl_at", 6): g(gl); late = 0
            late += pf_emit(c, VL16)
            if c:
                g("s_waitcnt lgkmcnt(6)")
                m1(2, 0); take(NF); m1(2, 1); rd(2, off); m1(3, 0); take(NF); m1(3, 1); rd(3, off)
            else:
                rd(2, off); rd(3, off)
            if c < 7:
                g("s_waitcnt lgkmcnt(9)")
                m1(0, 0); take(NF); m1(0, 1); take(NF)
                g("s_waitcnt lgkmcnt(6)")
                m1(1, 0); take(NF); m1(1, 1); take(NF)
        take(1000)
        g("s_waitcnt lgkmcnt(9)")
        m1(0, 0)
        self.recheck(gl, [XS+1, CG+1], late)
        m1(0, 1)
        g(f"""v_and_b32 {v(T+1)}, 0xffff0000, {v(XS)}
              v_rcp_f32 {v(T+1)}, {v(T+1)}
              v_lshrrev_b32 {v(T+2)}, 1, {v(VXS)}
              v_and_b32 {v(T+2)}, 0x1fc, {v(T+2)}
              v_add_u32 {v(T+2)}, {L_RS}, {v(T+2)}
              s_waitcnt lgkmcnt(6)""")
        m1(1, 0)
        g(f"""ds_write_b32 {v(T+2)}, {v(T+1)}
              v_lshlrev_b32 {v(T+3)}, 6, {v(SEGV)}
              v_add_u32 {v(T+3)}, {L_RS}, {v(T+3)}
              v_lshlrev_b32 {v(T+4)}, 16, {v(XS)}""")
        m1(1, 1)
        for k in range(4): g(f"ds_read_b128 {v(RSV+4*k,4)}, {v(T+3)} offset:{16*k}")
        g(f"""v_cvt_pk_bf16_f32 {v(OP)}, -{v(T+4)}, -{v(T+4)}
              s_waitcnt lgkmcnt(8)""")
        m1(2, 0)
        self.split3(CG, T+6, T+7, T+4, T+5)
        m1(2, 1)
        g(f"""v_cmp_gt_u32 vcc, 32, v0
              v_mov_b32 {v(OP+1)}, {v(OP)}
              v_and_b32 {v(T)}, 31, v0
              v_cndmask_b32 {v(OP+4)}, 0, {v(T+6)}, vcc
              v_cndmask_b32 {v(OP+5)}, 0, {v(T+7)}, vcc
              s_waitcnt lgkmcnt(5)""")
        m1(3, 0)
        g(f"""v_cndmask_b32 {v(OP+8)}, {v(T+6)}, {v(VZ)}, vcc
              v_cndmask_b32 {v(OP+9)}, {v(T+7)}, {v(VZ)}, vcc
              v_lshlrev_b32 {v(T+4)}, 3, {v(T)}
              v_add_u32 {v(T+4)}, {L_SEG}, {v(T+4)}
              v_lshl_add_u32 {v(T+5)}, {v(SEGV)}, 8, {v(T+4)}
              v_mfma_f32_32x32x16_bf16 {v(UR,16)}, {v(OP,4)}, {v(OP+4,4)}, {v(UR,16)}""")
        m1(3, 1)
        g(f"v_mfma_f32_32x32x16_bf16 {v(UI,16)}, {v(OP,4)}, {v(OP+8,4)}, {v(UI,16)}")
        self.stamp(2)
        if o.get("x_park"):
            g("s_sleep 100")
        g(f"""v_lshlrev_b32 {v(T+6)}, 4, {v(T)}
              s_lshl_b32 {s(S_T4)}, {s(S_G)}, 13
              s_add_u32 {s(S_T4)}, {s(S_T4)}, {hex(WS_AGG)}
              s_lshl_b32 {s(S_U0)}, {s(S_MT)}, 9
              s_add_u32 {s(S_U0)}, {s(S_U0)}, {s(S_T4)}
              s_waitcnt lgkmcnt(0)
              s_nop 3""")
        for r in range(16): g(f"v_mul_f32 {v(UR+r)}, {v(UR+r)}, {v(RSV+r)}")
        for r in range(16): g(f"v_mul_f32 {v(UI+r)}, {v(UI+r)}, {v(RSV+r)}")
        for r in range(1, 16):
            g(f"""v_fmac_f32 {v(UR+r)}, {v(LA)}, {v(UR+r-1)}
                  v_fmac_f32 {v(UI+r)}, {v(LA)}, {v(UI+r-1)}
                  v_fmac_f32 {v(UR+r)}, {v(NLB)}, {v(UI+r-1)}
                  v_fmac_f32 {v(UI+r)}, {v(LB)}, {v(UR+r-1)}""")
        g(f"""s_lshl_b32 {s(S_U1)}, {s(S_WI)}, 7
              s_add_u32 {s(S_U1)}, {s(S_U1)}, {L_NM}
              v_lshl_add_u32 {v(T+1)}, {v(T)}, 2, {s(S_U1)}
              ds_write2_b32 {v(T+5)}, {v(UR+15)}, {v(UI+15)} offset0:0 offset1:1
              ds_write_b32 {v(T+1)}, {v(XS)}""")
        self.signal_cnt(C_S1, VCNT, VONE)
        E = FR
        g(f"""v_sub_f32 {v(T+7)}, 0, {v(L16+1)}
              v_mov_b32 {v(E+16)}, {s(S_TAG)}
              v_mov_b32 {v(E+17)}, {s(S_TAG)}""")
        self.stamp(3)
        rds = "\n".join(f"ds_read_b64 {v(E+2*k,2)}, {v(T+4)} offset:{256*k}" for k in range(8))
        self.spin_cnt(C_S1, VCNT, T+1, rds, tgt=8)
        for k in range(1, 8):
            g(f"""v_fmac_f32 {v(E+2*k)}, {v(L16)}, {v(E+2*k-2)}
                  v_fmac_f32 {v(E+2*k+1)}, {v(L16)}, {v(E+2*k-1)}
                  v_fmac_f32 {v(E+2*k)}, {v(T+7)}, {v(E+2*k-1)}
                  v_fmac_f32 {v(E+2*k+1)}, {v(L16+1)}, {v(E+2*k-2)}""")
        lnp = g.lab("NOPUB")
        g(f"""s_cmp_lg_u32 {s(S_WI)}, 0
              s_cbranch_scc1 {lnp}
              s_mov_b32 exec_hi, 0
              buffer_store_dwordx4 {v(E+14,4)}, {v(T+6)}, {s(R_WS,4)}, {s(S_U0)} offen sc1
              s_mov_b64 exec, -1""")
        g(f"{lnp}:")
        if o.get("sprio", 1): g("s_setprio 0")
        self.stamp(4)
        PC = BA
        hps = [(part, kh, ct) for kh in range(2) for part in range(2) for ct in range(2)]
        def c_issue(i):
            part, kh, ct = hps[i]
            g(f"""s_add_u32 m0, {s(S_T2)}, {(i%3)*4096}
                  s_xor_b32 {s(S_U1)}, {s(S_BO if ct else S_WO)}, {128*kh}""")
            for e in range(4):
                g(f"buffer_load_dwordx4 {v(VD+e)}, {s(R_B if part else R_A,4)}, {s(S_U1)} offen offset:{1024*e} lds")
        def c_read(i):
            part, kh, ct = hps[i]
            for k in range(4):
                gi = 2*kh + (k >> 1); cb = k & 1
                ks = 4*gi + 2*part + cb
                g(f"ds_read_b128 {v(BR+8*ks+4*ct,4)}, {v(PC+k)} offset:{(i%3)*4096}")
        PP, NG, TT = FR + 32, FR + 34, FR + 36
        def idle_a():
            g(f"""s_sub_u32 {s(S_U0)}, {s(S_T2)}, 16384
                  v_mov_b32 {v(PP)}, 0
                  v_mov_b32 {v(PP+1)}, 0
                  v_sub_f32 {v(NG)}, 0, {v(KA+1)}
                  v_add_u32 {v(T+5)}, {L_LBP - L_SEG}, {v(T+5)}
                  v_add_u32 {v(T+4)}, {L_LBP - L_SEG}, {v(T+4)}""")
            for k in range(4): g(f"v_add_u32 {v(PC+k)}, {s(S_U0)}, {v(PC+k)}")
        def kap(r):
            t = TT + (r & 1)
            if 1 <= r < 8: g(f"v_cmp_eq_u32 vcc, {r}, {v(SEGV)}")
            g(f"""v_mul_f32 {v(t)}, {v(KA+1)}, {v(UR+r)}
                  v_mul_f32 {v(UR+r)}, {v(KA)}, {v(UR+r)}
                  v_fmac_f32 {v(UR+r)}, {v(NG)}, {v(UI+r)}
                  v_fma_f32 {v(UI+r)}, {v(KA)}, {v(UI+r)}, {v(t)}""")
            if 1 <= r < 8:
                g(f"""v_cndmask_b32 {v(PP)}, {v(PP)}, {v(E+2*r-2)}, vcc
                      v_cndmask_b32 {v(PP+1)}, {v(PP+1)}, {v(E+2*r-1)}, vcc""")
        idle_a()
        VD2 = 2
        self.w2_voff(VD2, T+1); self.w2_coop_setup(S_T3, S_T1)
        c_issue(0)
        for r in range(0, 5): kap(r)
        c_issue(1)
        for r in range(5, 10): kap(r)
        c_issue(2)
        for r in range(10, 16): kap(r)
        LBn = FR + 20
        lbl = f"""buffer_load_dwordx4 {v(LBn,4)}, {v(LB1)}, {s(R_WS,4)}, {s(S_T4)} offen sc1
                  buffer_load_dwordx4 {v(LBn+4,4)}, {v(LB2)}, {s(R_WS,4)}, {s(S_T4)} offen sc1"""
        nrec = o.get("c_rec", 3)
        self.stamp(5)
        g(lbl)
        for i in range(nrec):
            g(f"s_waitcnt vmcnt(10)")
            c_read(i)
            g("s_waitcnt lgkmcnt(0)")
            c_issue(i + 3)
        assert nrec == 3
        r0lb = o.get("r0_lb", 1)
        if r0lb:
            self.spin_cnt(C_PD, VCNT, T+1)
            for ins in self.w2_coop(VD2, S_T3, S_T1, 0): g(ins)
        l = g.lab("LB"); d = g.lab("LBD")
        g(f"""s_mov_b32 {s(S_SPIN)}, 0x40000
              s_waitcnt vmcnt({4*nrec + 6*r0lb})""")
        g(f"{l}:")
        g(f"""v_cmp_ne_u32 vcc, {s(S_TAG)}, {v(LBn+2)}
              v_cmp_ne_u32 s[100:101], {s(S_TAG)}, {v(LBn+6)}
              s_and_b64 vcc, vcc, {s(S_EX,2)}
              s_and_b64 s[100:101], s[100:101], {s(S_MK,2)}
              s_or_b64 vcc, vcc, s[100:101]
              s_cbranch_scc0 {d}
              s_sub_u32 {s(S_SPIN)}, {s(S_SPIN)}, 1
              s_cbranch_scc1 {d}
              s_sleep {o.get('lb_sleep', 2)}""")
        g(lbl)
        g(f"s_waitcnt vmcnt(0)\ns_branch {l}")
        g(f"{d}:")
        if o.get("sprio", 1): g("s_setprio 2")
        self.stamp(6)
        self.cfma(LBn, LBn+1, L128, L128+1, LBn+4, LBn+5, LBn, LBn+1)
        self.cmul(LBn+2, LBn+3, W0, W0+1, LBn, LBn+1)
        g(f"ds_write_b64 {v(T+5)}, {v(LBn+2,2)}")
        self.signal_cnt(C_S2, VCNT, VONE)
        spr = o.get("post_spr", 1)
        if spr:
            g(f"s_waitcnt vmcnt({4 + 6*r0lb})")
            c_read(3); c_read(4)
            g("s_waitcnt lgkmcnt(5)")
        self.spin_cnt(C_S2, VCNT, T+1, rds)
        sp = self.collect(lambda: (c_issue(6), c_issue(7))) if spr else []
        def spr1():
            while sp:
                it = sp.pop(0); g.L += it
                if "buffer_load" in it[0]: break
        if o.get("pdetail"): self.mute = True; self.stamp(7, True)
        for w in (4, 2, 1):
            for k in range(w):
                g(f"v_add_f32 {v(E+2*k)}, {v(E+2*k)}, {v(E+2*k+2*w)}\nv_add_f32 {v(E+2*k+1)}, {v(E+2*k+1)}, {v(E+2*k+2*w+1)}")
        self.cfma(PP, PP+1, GS, GS+1, E, E+1, PP, PP+1)
        g(f"v_sub_f32 {v(NG)}, 0, {v(PP+1)}")
        H = FR; O = FR + 16
        for part in range(2):
            U = UI if part else UR
            c1, c2_ = (PP+1, PP) if part else (PP, NG)
            for r in range(16):
                if r % 8 == 0: spr1()
                g(f"v_fmac_f32 {v(U+r)}, {v(WR+r)}, {v(c1)}")
            if part:
                g("s_waitcnt lgkmcnt(0)")
                if o.get("pdetail"): self.stamp(8, True)
                for cb in range(2):
                    g(f"buffer_store_dwordx4 {v(O+4*cb,4)}, {v(VL16)}, {s(R_WS,4)}, {s(S_T0)} offen offset:{cb*1024} sc1")
                if o.get("pdetail"): self.stamp(9, True)
            for r in range(16):
                if r % 8 == 0: spr1()
                g(f"v_fmac_f32 {v(U+r)}, {v(WI_+r)}, {v(c2_)}")
            ng = "-" if part else ""
            for i in range(8): g(f"v_cvt_pk_bf16_f32 {v(H+8*part+i)}, {ng}{v(U+2*i)}, {ng}{v(U+2*i+1)}")
            g(f"""ds_write_b128 {v(TRW)}, {v(H+8*part,4)}
                  ds_write_b128 {v(VW)}, {v(H+8*part+4,4)}""")
            for cb in range(2):
                for u in range(2):
                    g(f"ds_read_b64_tr_b16 {v(O+8*part+4*cb+2*u,2)}, {v(VW+1 if u else TRR)} offset:{cb*1024+u*256}")
        g("s_waitcnt lgkmcnt(0)")
        if o.get("pdetail"): self.stamp(10, True)
        for cb in range(2):
            g(f"buffer_store_dwordx4 {v(O+8+4*cb,4)}, {v(VL16)}, {s(R_WS,4)}, {s(S_T0)} offen offset:{(2+cb)*1024} sc1")
        if o.get("sprio", 1): g("s_setprio 0")
        self.stamp(7)
        nl = 0
        G2, DS = 12, 1
        g(f"""s_lshr_b32 {s(S_U0)}, {s(S_WI)}, 1
              s_lshl_b32 {s(S_U1)}, {s(S_RT)}, 1
              s_add_u32 {s(S_U0)}, {s(S_U0)}, {s(S_U1)}
              s_lshl_b32 {s(S_U1)}, {s(S_NT)}, 7
              s_and_b32 {s(S_U2)}, {s(S_WI)}, 1
              s_lshl_b32 {s(S_U2)}, {s(S_U2)}, 6
              s_add_u32 {s(S_U1)}, {s(S_U1)}, {s(S_U2)}
              s_lshl_b32 {s(S_U2)}, {s(S_U0)}, 15
              s_add_u32 {s(S_U2)}, {s(S_U2)}, {s(S_U1)}
              s_lshl_b32 {s(S_U0)}, {s(S_U0)}, 8
              s_add_u32 {s(S_U0)}, {s(S_U0)}, {hex(WS_XS)}
              v_and_b32 {v(T)}, 31, v0
              v_lshl_add_u32 v16, {v(T)}, 3, {s(S_U0)}
              v_lshl_add_u32 {v(T)}, {v(T)}, 1, {s(S_U1)}
              v_lshrrev_b32 {v(T+1)}, 2, v0
              v_and_b32 {v(T+2)}, 3, v0
              v_lshlrev_b32 {v(T+2)}, 4, {v(T+2)}
              v_lshl_or_b32 {v(T+1)}, {v(T+1)}, 10, {v(T+2)}
              v_add_u32 {v(T+2)}, {15*1024}, {v(T+1)}
              s_lshl_b32 {s(S_V1)}, {s(S_WI)}, 11
              s_add_u32 {s(S_V1)}, {s(S_V1)}, {L_TR}
              s_mov_b32 m0, {s(S_V1)}
              global_load_ushort {v(DS)}, {v(T)}, {s(P_DSK,2)}
              buffer_load_dwordx4 {v(T+1)}, {s(R_X,4)}, {s(S_U2)} offen lds
              buffer_load_dwordx4 {v(T+2)}, {s(R_X,4)}, {s(S_U2)} offen offset:1024 lds""")
        xs2 = f"buffer_load_dwordx2 {v(G2,2)}, v16, {s(R_WS,4)}, 0 offen sc1"
        g(xs2)
        assert not sp
        nl = 4
        if not spr:
            g("s_waitcnt vmcnt(8)")
            c_read(3); c_read(4)
            g("s_waitcnt lgkmcnt(0)")
            c_issue(6); c_issue(7); nl += 8
        early = ([] if r0lb else [0]) + [1]
        pre_flag = early if o.get("r1_pre_flag", 1) else []
        for q in pre_flag:
            self.spin_cnt(C_PD + 4*q, VCNT, T)
            for ins in self.w2_coop(VD2, S_T3, S_T1, q): g(ins)
            nl += 6
        if o.get("qdetail"): self.mute = True; self.stamp(8, True)
        self.set_flag(WS_FLAGS, VZ, T, nl)
        if o.get("pdetail"): self.stamp(11, True)
        if o.get("qdetail"): self.stamp(9, True)
        for q in [x for x in early if x not in pre_flag] + [2, 3]:
            self.spin_cnt(C_PD + 4*q, VCNT, T)
            for ins in self.w2_coop(VD2, S_T3, S_T1, q): g(ins)
        self.poll_issue(WS_FLAGS)
        g(f"s_waitcnt vmcnt(12)")
        self.signal_cnt(C_B1, VCNT, VONE)
        for i in (5, 6, 7): c_read(i)
        g.c("---------------- S phase 2 ----------------")
        A2 = 64; AB = 16; VA = 10
        VC2, VO2 = 14, 15
        g.c("residual x + bf16(xn * D) of the own tile")
        self.recheck(xs2, [G2+1], 12)
        XP, MM, RR = A2 + 16, A2 + 32, A2 + 48
        g(f"""v_lshlrev_b32 {v(T+4)}, 16, {v(G2)}
              v_and_b32 {v(T+5)}, 0xffff0000, {v(G2)}
              v_rcp_f32 {v(T+5)}, {v(T+5)}
              v_and_b32 {v(T+2)}, 31, v0
              s_lshl_b32 {s(S_U0)}, {s(S_WI)}, 7
              s_add_u32 {s(S_U0)}, {s(S_U0)}, {L_RS}
              v_lshl_add_u32 {v(T+2)}, {v(T+2)}, 2, {s(S_U0)}
              ds_write2st64_b32 {v(T+2)}, {v(T+4)}, {v(T+5)} offset0:0 offset1:2
              v_lshlrev_b32 {v(T+3)}, 6, {v(SEGV)}
              v_add_u32 {v(T+3)}, {L_RS}, {v(T+3)}
              v_and_b32 {v(T+6)}, 32, v0
              v_lshlrev_b32 {v(T+6)}, 5, {v(T+6)}
              v_bfe_u32 {v(T+7)}, v0, 2, 2
              v_lshl_add_u32 {v(T+6)}, {v(T+7)}, 6, {v(T+6)}
              v_and_b32 {v(T+7)}, 16, v0
              v_lshl_add_u32 {v(T+6)}, {v(T+7)}, 1, {v(T+6)}
              v_and_b32 {v(T+7)}, 3, v0
              v_lshl_add_u32 {v(T+6)}, {v(T+7)}, 3, {v(T+6)}
              v_add_u32 {v(T+6)}, {s(S_V1)}, {v(T+6)}
              s_waitcnt lgkmcnt(3)""")
        for u in range(4): g(f"ds_read_b64_tr_b16 {v(XP+2*u,2)}, {v(T+6)} offset:{256*u}")
        for k in range(4): g(f"ds_read_b128 {v(MM+4*k,4)}, {v(T+3)} offset:{16*k}")
        for k in range(4): g(f"ds_read_b128 {v(RR+4*k,4)}, {v(T+3)} offset:{512+16*k}")
        self.a_setup(VA, 0, 16, 12)
        g(f"""v_mov_b32 {v(VC2)}, {v(VCNT)}
              v_mov_b32 {v(VO2)}, 1
              v_lshlrev_b32 {v(DS)}, 16, {v(DS)}
              s_mov_b32 {s(S_V0)}, 0xffff0000""")
        def residual():
            for i in range(8):
                x = A2 + 2*i; m = MM + 2*i; r = RR + 2*i
                g(f"""v_lshlrev_b32 {v(x)}, 16, {v(XP+i)}
                  v_and_b32 {v(x+1)}, {s(S_V0)}, {v(XP+i)}
                  v_sub_f32 {v(m)}, {v(x)}, {v(m)}
                  v_sub_f32 {v(m+1)}, {v(x+1)}, {v(m+1)}
                  v_cvt_pk_bf16_f32 {v(m+1)}, {v(m)}, {v(m+1)}
                  v_lshlrev_b32 {v(m)}, 16, {v(m+1)}
                  v_and_b32 {v(m+1)}, {s(S_V0)}, {v(m+1)}
                  v_mul_f32 {v(m)}, {v(m)}, {v(r)}
                  v_mul_f32 {v(m+1)}, {v(m+1)}, {v(r+1)}
                  v_cvt_pk_bf16_f32 {v(m+1)}, {v(m)}, {v(m+1)}
                  v_lshlrev_b32 {v(m)}, 16, {v(m+1)}
                  v_and_b32 {v(m+1)}, {s(S_V0)}, {v(m+1)}
                  v_mul_f32 {v(m)}, {v(m)}, {v(DS)}
                  v_mul_f32 {v(m+1)}, {v(m+1)}, {v(DS)}
                  v_cvt_pk_bf16_f32 {v(m+1)}, {v(m)}, {v(m+1)}
                  v_lshlrev_b32 {v(m)}, 16, {v(m+1)}
                  v_and_b32 {v(m+1)}, {s(S_V0)}, {v(m+1)}
                  v_add_f32 {v(x)}, {v(x)}, {v(m)}
                  v_add_f32 {v(x+1)}, {v(x+1)}, {v(m+1)}""")

        self.stamp(8)
        self.poll_finish()
        self.stamp(9)
        g(f"s_setprio {o.get('sprio2', 2)}")
        def soff(ks): g(f"s_add_u32 {s(S_U0)}, {s(S_XO)}, {ks*1024}")
        def pre(ks):
            if ks == 0:
                g("s_waitcnt vmcnt(12)")
                self.signal_cnt(C_B1 + 4, VC2, VO2)
                residual()
                g("s_nop 1")
        self.p2_loop(16, VA, AB, A2, lambda ks: BR + 8*ks, pre, lambda ks: None, soff, True)
        self.stamp(10)
        g.c("S: dump partials, pre-reduce")
        T = 2
        g(f"v_lshl_add_u32 {v(T+3)}, v0, 4, {s(S_T2)}")
        for sl in range(1, 4):
            for q in range(4):
                g(f"ds_write_b128 {v(T+3)}, {v(A2+16*sl+4*q,4)} offset:{(sl-1)*4096+q*1024}")
        self.signal_cnt(C_SD, VC2, VO2)
        self.spin_cnt(C_SD, VC2, T)
        self.gather3(0, 12288, AB, T)
        g(f"""s_xor_b32 {s(S_U0)}, {s(S_WI)}, 1
              s_mul_i32 {s(S_U0)}, {s(S_U0)}, 12288
              v_lshl_add_u32 {v(T+3)}, v0, 4, {s(S_U0)}""")
        for dd in range(3):
            g(f"s_waitcnt lgkmcnt({8-4*dd})")
            for r in range(16): g(f"v_add_f32 {v(A2+r)}, {v(A2+r)}, {v(AB+16*dd+r)}")
        for q in range(4):
            g(f"ds_write_b128 {v(T+3)}, {v(A2+4*q,4)} offset:{q*1024}")
        self.signal_cnt(C_SR, VC2, VO2)
        g("s_setprio 0")
        srd(g, R_OUT, P_OUT, 2048*512*4)
        g(f"v_lshlrev_b32 v9, 4, v0")
        self.out_setup(8, 4, 9)
        self.spin_cnt(C_FM, VC2, T)
        for k, tile in enumerate((0, 1, 2)):
            g(f"ds_read_b128 {v(A2+4*k,4)}, v6 offset:{(tile^1)*12288}")
        for ct in range(2):
            for q in range(4):
                g(f"ds_read_b128 {v(AB+16*ct+4*q,4)}, v6 offset:{q*12288 + 4096 + ct*4096}")
        self.sum_store(A2, AB, 8, 0, 0, 4)
        self.sum_store(A2+4, AB+16, 8, 0, 1, 0)
        g("s_barrier")
        self.final_piece(0, A2+8, AB, 8, 4)
        self.stamp(11)
        self.stamps_out(T, 'S')
        g("L_END:")
        g("s_endpgm")
        g("L_CODE_END:")

    def build(self):
        hdr = open("cdna_kernels/" + NAME + ".s.ref").read().split("\n")
        head = [l for l in hdr if l.startswith(";") and "@launch" not in l]
        self.prologue(); self.fwave(); self.swave()
        if self.o.get("near_start", 1):
            L = self.g.L
            i0 = L.index("L_SWAVE:"); i1 = L.index("    ; @@SREST"); j = L.index("    ; @@SSTART")
            blk = L[i0:i1]
            self.g.L = L[:j] + ["    s_branch L_FCONT"] + blk + ["    s_branch L_SREST", "L_FCONT:"] + L[j+1:i0] + ["L_SREST:"] + L[i1+1:]
        lst = self.o.get("list")
        if lst:
            out = "\n".join(head) + "\n"
            for ch in lst:
                if ch == "m": out += f"; @launch kernel={NAME}_kernel grid=(256,1,1) block=(512,1,1) lds={LDS_BYTES}\n"
                elif ch == "n": out += f"; @launch kernel=null_kernel grid=(1,1,1) block=(64,1,1) lds=0\n"
                elif ch == "a": out += f"; @launch kernel=null_kernel grid=(256,1,1) block=(512,1,1) lds={LDS_BYTES}\n"
                elif ch == "b": out += f"; @launch kernel=null_kernel grid=(256,1,1) block=(256,1,1) lds={LDS_BYTES}\n"
                elif ch == "c": out += f"; @launch kernel=null_kernel grid=(256,1,1) block=(64,1,1) lds=0\n"
        else:
            out = "\n".join(head) + f"\n; @launch grid=(256,1,1) block=(512,1,1) lds={LDS_BYTES}\n"
        out += f""".amdgcn_target "amdgcn-amd-amdhsa--gfx950"
.text
.globl {NAME}_kernel
.p2align 8
.type {NAME}_kernel,@function
{NAME}_kernel:
"""
        out += self.g.text()
        if lst:
            out += """.p2align 8
.globl null_kernel
.type null_kernel,@function
null_kernel:
    s_endpgm
.section .rodata,"a"
.p2align 6
.amdhsa_kernel null_kernel
  .amdhsa_next_free_vgpr 256
  .amdhsa_next_free_sgpr 102
  .amdhsa_accum_offset 256
  .amdhsa_group_segment_fixed_size 0
  .amdhsa_kernarg_size 120
  .amdhsa_user_sgpr_count 2
  .amdhsa_user_sgpr_kernarg_segment_ptr 1
  .amdhsa_system_sgpr_workgroup_id_x 1
.end_amdhsa_kernel
"""
        out += f""".section .rodata,"a"
.p2align 6
.amdhsa_kernel {NAME}_kernel
  .amdhsa_next_free_vgpr 256
  .amdhsa_next_free_sgpr 102
  .amdhsa_accum_offset 256
  .amdhsa_group_segment_fixed_size 0
  .amdhsa_kernarg_size 120
  .amdhsa_user_sgpr_count 2
  .amdhsa_user_sgpr_kernarg_segment_ptr 1
  .amdhsa_system_sgpr_workgroup_id_x 1
.end_amdhsa_kernel
"""
        return out

if __name__ == "__main__":
    path = sys.argv[1]
    opt = json.loads(sys.argv[2]) if len(sys.argv) > 2 else {}
    open(path, "w").write(Gen(opt).build())
```

```python
import sys, json

NAME = "parallel_sum__ssm_conv_s5__dense_activation_silu__prompt"

class G:
    def __init__(self):
        self.L = []
        self.nlab = 0
    def __call__(self, s):
        for ln in s.strip("\n").split("\n"):
            ln = ln.strip()
            if ln: self.L.append("    " + ln if not ln.endswith(":") else ln)
    def c(self, s): self.L.append("    ; " + s)
    def lab(self, p="L"):
        self.nlab += 1
        return f"{p}_{self.nlab}"
    def text(self): return "\n".join(self.L) + "\n"

def v(a, n=1): return f"v{a}" if n == 1 else f"v[{a}:{a+n-1}]"
def s(a, n=1): return f"s{a}" if n == 1 else f"s[{a}:{a+n-1}]"

NKS = 152
WS_INTER = 0
WS_AGG   = 0xA00000
WS_FLAGF = 0xA40000
WS_FLAGS = 0xA44000
WS_XS    = 0xA50000
WS_CSG   = 0xA58000
WS_EPOCH = 0xA60000
WS_STAMP = 0xB00000
WS_BYTES = 0xC00000
SLOT = 24576
W1B  = 2 * SLOT
MISC = 6 * SLOT
L_RS, L_NM, L_CSS, L_CNT = MISC, MISC + 512, MISC + 1024, MISC + 1536
L_LBP = MISC + 2048
L_CSF = MISC + 4096
L_TR  = MISC + 8192
L_SEG = L_TR + 3 * 2048
LDS_BYTES = MISC + 16384
C_S1, C_S2, C_WA, C_WB, C_PD, C_CSF, C_SD, C_SR, C_FM, C_B1 = 0, 4, 8, 12, 16, 56, 32, 36, 40, 48
L_DUM = MISC + 7168

S_WAVE, S_WI, S_MT, S_G, S_RT, S_NT, S_C0, S_TAG = 3, 4, 5, 6, 7, 8, 9, 10
S_T0, S_T1, S_T2, S_T3, S_T4 = 11, 12, 13, 14, 15
P_X, P_LRE, P_LIM, P_BRE, P_BIM, P_CRE, P_CIM, P_LDT = 16, 18, 20, 22, 24, 26, 28, 30
P_DSK, P_BX, P_W1, P_W2, P_OUT, P_DBG, P_WS = 32, 34, 36, 38, 40, 42, 44
R_X, R_A, R_B, R_W2, R_WS, R_OUT = 48, 52, 56, 60, 64, 68
S_ONES, S_XO, S_BO, S_WO, S_SPIN = 72, 73, 74, 75, 76
S_U0, S_U1, S_U2, S_U3 = 77, 78, 79, 80
S_V0, S_V1, S_ROT = 46, 47, 81
S_EX = 82
S_MK = 84
S_ST = 86

def srd(g, r, p, nbytes):
    g(f"""s_mov_b32 {s(r)}, {s(p)}
          s_mov_b32 {s(r+1)}, {s(p+1)}
          s_mov_b32 {s(r+2)}, {hex(nbytes)}
          s_mov_b32 {s(r+3)}, 0x20000""")

class Gen:
    def __init__(self, opt):
        self.o = opt
        self.g = G()
        self.nst = 0

    def stamp(self, i, force=False):
        if not self.o.get("stamps"): return
        if getattr(self, "mute", False) and not force: return
        if self.o.get("lite"):
            if i != 11: return
            self.g("s_waitcnt vmcnt(0)")
        g = self.g
        clk = "s_memrealtime" if self.o.get("rt") else "s_memtime"
        g(f"""{clk} s[100:101]
              s_waitcnt lgkmcnt(0)
              s_mov_b32 {s(S_ST+i)}, s100""")

    def stamps_out(self, vt, role):
        if not self.o.get("stamps"): return
        g = self.g
        pr = self.o.get("probe")
        if pr and pr[0] == role:
            l = g.lab("PRB")
            clk = "s_memrealtime" if self.o.get("rt") else "s_memtime"
            base = S_ST + 12 if self.o.get("lite") else S_ST
            if pr[1:] in ("k", "e"):
                g(f"""s_load_dword {s(S_U0)}, {s(P_DBG,2)}, 0 glc
                      s_load_dword {s(S_U1)}, {s(P_DBG,2)}, 128 glc
                      s_waitcnt lgkmcnt(0)
                      s_not_b32 {s(S_U1)}, {s(S_U1)}""")
                src = S_U0 if pr[1:] == "k" else S_ST + 11
                base = S_U1
            elif pr[1:] == "z":
                src = S_ST; base = S_ST + 12
            else:
                src = S_MK if pr[1:] == "p" else S_ST + int(pr[1:])
            g(f"""s_sub_u32 {s(S_T0)}, {s(src)}, {s(base)}
                  s_lshl_b32 {s(S_T0)}, {s(S_T0)}, 4
                  {clk} s[100:101]
                  s_waitcnt lgkmcnt(0)
                  s_mov_b32 {s(S_T1)}, s100""")
            g(f"{l}:")
            g(f"""{clk} s[100:101]
                  s_waitcnt lgkmcnt(0)
                  s_sub_u32 {s(S_T2)}, s100, {s(S_T1)}
                  s_cmp_lt_u32 {s(S_T2)}, {s(S_T0)}
                  s_cbranch_scc1 {l}""")
        if self.o.get("lite"): return
        g(f"s_waitcnt vmcnt(0)")
        g(f"""s_memrealtime s[100:101]
              s_waitcnt lgkmcnt(0)
              s_mov_b32 {s(S_ST+13)}, s100""")
        g(f"""s_lshl_b32 {s(S_T0)}, s2, 3
              s_add_u32 {s(S_T0)}, {s(S_T0)}, {s(S_WAVE)}
              s_lshl_b32 {s(S_T0)}, {s(S_T0)}, 6
              s_add_u32 {s(S_T0)}, {s(S_T0)}, {hex(WS_STAMP)}
              v_mov_b32 {v(vt)}, 0""")
        for i in range(14):
            g(f"""v_mov_b32 {v(vt+1)}, {s(S_ST+i)}
                  buffer_store_dword {v(vt+1)}, {v(vt)}, {s(R_WS,4)}, {s(S_T0)} offen offset:{4*i}
                  s_nop 1""")

    def spin_cnt(self, cnt, vaddr_cnt, vt, reads="", tgt=4):
        g = self.g
        l = g.lab("SPIN"); d = g.lab("SPD"); r = g.lab("SPR")
        if reads:
            g(f"ds_read_b32 {v(vt)}, {v(vaddr_cnt)} offset:{cnt}")
            g(reads)
            g(f"""s_waitcnt lgkmcnt(0)
                  v_readfirstlane_b32 {s(S_U3)}, {v(vt)}
                  s_cmp_eq_u32 {s(S_U3)}, {tgt}
                  s_cbranch_scc1 {d}""")
        g(f"s_mov_b32 {s(S_SPIN)}, 0x100000")
        g(f"{l}:")
        g(f"""ds_read_b32 {v(vt)}, {v(vaddr_cnt)} offset:{cnt}
              s_waitcnt lgkmcnt(0)
              v_readfirstlane_b32 {s(S_U3)}, {v(vt)}
              s_sub_u32 {s(S_SPIN)}, {s(S_SPIN)}, 1
              s_cbranch_scc1 {r}
              s_cmp_eq_u32 {s(S_U3)}, {tgt}
              s_cbranch_scc1 {r}""")
        if self.o.get("spin_sleep", 1): g(f"s_sleep {self.o.get('spin_sleep', 1)}")
        g(f"s_branch {l}")
        g(f"{r}:")
        if reads:
            g(reads)
            g("s_waitcnt lgkmcnt(0)")
        g(f"{d}:")

    def cnt_regs(self, vcnt, vone):
        self.g(f"""v_lshlrev_b32 {v(vcnt)}, 2, v0
                   v_add_u32 {v(vcnt)}, {L_DUM}, {v(vcnt)}
                   v_mov_b32 {v(vone)}, {L_CNT}
                   v_cmp_eq_u32 vcc, 0, v0
                   s_nop 1
                   v_cndmask_b32 {v(vcnt)}, {v(vcnt)}, {v(vone)}, vcc
                   v_mov_b32 {v(vone)}, 1""")

    def signal_cnt(self, cnt, vaddr_cnt, vone):
        self.g(f"ds_add_u32 {v(vaddr_cnt)}, {v(vone)} offset:{cnt}")

    def collect(self, fn):
        g = self.g
        save = g.L; g.L = []
        fn()
        out = g.L; g.L = save
        items = []; cur = None
        for ln in out:
            if ln.strip() == "; {": cur = []
            elif ln.strip() == "; }": items.append(cur); cur = None
            elif cur is not None: cur.append(ln)
            else: items.append([ln])
        return items
    def take(self, fill, n):
        while n > 0 and fill:
            it = fill.pop(0); self.g.L += it; n -= len(it)

    def cmul(self, dr, di, ar, ai, br, bi):
        self.g(f"""v_mul_f32 {v(dr)}, {v(ar)}, {v(br)}
                   v_mul_f32 {v(di)}, {v(ar)}, {v(bi)}
                   v_fma_f32 {v(dr)}, -{v(ai)}, {v(bi)}, {v(dr)}
                   v_fmac_f32 {v(di)}, {v(ai)}, {v(br)}""")

    def cfma(self, dr, di, ar, ai, br, bi, cr, ci):
        self.g(f"""v_fma_f32 {v(dr)}, {v(ar)}, {v(br)}, {v(cr)}
                   v_fma_f32 {v(di)}, {v(ar)}, {v(bi)}, {v(ci)}
                   v_fma_f32 {v(dr)}, -{v(ai)}, {v(bi)}, {v(dr)}
                   v_fmac_f32 {v(di)}, {v(ai)}, {v(br)}""")

    def poll_issue(self, base):
        self.g(f"""s_lshl_b32 s26, {s(S_RT)}, 2
              s_add_u32 s26, s26, {s(S_WI)}
              s_lshl_b32 s26, s26, 7
              s_add_u32 s26, s26, {hex(base)}
              s_mov_b32 s24, {s(S_TAG)}
              s_mov_b32 s25, {s(S_TAG)}
              s_load_dwordx8 s[16:23], {s(P_WS,2)}, s26 glc""")

    def poll_finish(self):
        g = self.g
        l = g.lab("POLL"); d = g.lab("PLD")
        g(f"s_mov_b32 {s(S_SPIN)}, 0x40000")
        g(f"{l}:")
        g(f"""s_waitcnt lgkmcnt(0)
              s_xor_b64 s[16:17], s[16:17], s[24:25]
              s_xor_b64 s[18:19], s[18:19], s[24:25]
              s_xor_b64 s[20:21], s[20:21], s[24:25]
              s_xor_b64 s[22:23], s[22:23], s[24:25]
              s_or_b64 s[16:17], s[16:17], s[18:19]
              s_or_b64 s[20:21], s[20:21], s[22:23]
              s_or_b64 s[16:17], s[16:17], s[20:21]
              s_cbranch_scc0 {d}
              s_sub_u32 {s(S_SPIN)}, {s(S_SPIN)}, 1
              s_cbranch_scc1 {d}
              s_load_dwordx8 s[16:23], {s(P_WS,2)}, s26 glc
              s_branch {l}""")
        g(f"{d}:")

    def set_flag(self, base, vz, vt, vm=0):
        g = self.g
        g(f"""s_lshl_b32 {s(S_U0)}, {s(S_MT)}, 1
              s_lshr_b32 {s(S_U1)}, {s(S_WI)}, 1
              s_add_u32 {s(S_U0)}, {s(S_U0)}, {s(S_U1)}
              s_lshl_b32 {s(S_U0)}, {s(S_U0)}, 2
              s_lshr_b32 {s(S_U1)}, {s(S_G)}, 2
              s_add_u32 {s(S_U0)}, {s(S_U0)}, {s(S_U1)}
              s_lshl_b32 {s(S_U0)}, {s(S_U0)}, 7
              s_and_b32 {s(S_U1)}, {s(S_WI)}, 1
              s_lshl_b32 {s(S_U1)}, {s(S_U1)}, 4
              s_add_u32 {s(S_U0)}, {s(S_U0)}, {s(S_U1)}
              s_and_b32 {s(S_U1)}, {s(S_G)}, 3
              s_lshl_b32 {s(S_U1)}, {s(S_U1)}, 2
              s_add_u32 {s(S_U0)}, {s(S_U0)}, {s(S_U1)}
              s_add_u32 {s(S_U0)}, {s(S_U0)}, {hex(base)}
              v_mov_b32 {v(vt)}, {s(S_TAG)}
              s_waitcnt vmcnt({vm})
              s_mov_b64 exec, 1
              buffer_store_dword {v(vt)}, {v(vz)}, {s(R_WS,4)}, {s(S_U0)} offen sc1
              s_mov_b64 exec, -1""")

    def prologue(self):
        g = self.g
        if self.o.get("stamps"): g("s_memrealtime s[98:99]")
        g(f"""s_cmp_ge_u32 s2, 256
              s_cbranch_scc1 L_END
              s_load_dwordx16 s[16:31], s[0:1], 0
              s_load_dwordx8 s[32:39], s[0:1], 64
              s_load_dwordx4 s[40:43], s[0:1], 96
              s_load_dwordx2 s[44:45], s[0:1], 112""")
        if self.o.get("stamps"):
            if not self.o.get("lite"): g(f"""s_waitcnt lgkmcnt(0)""")
            if self.o.get("probe", "")[1:] in ("k", "e"):
                g(f"""v_mov_b32 v2, 0
                      v_mov_b32 v3, s98
                      v_not_b32 v4, v3
                      s_mov_b64 exec, 1
                      global_atomic_umax v2, v3, {s(P_DBG,2)} sc1
                      global_atomic_umax v2, v4, {s(P_DBG,2)} offset:128 sc1
                      s_mov_b64 exec, -1""")
            for i in range(0 if self.o.get("lite") else 12): g(f"s_mov_b32 {s(S_ST+i)}, 0")
            self.stamp(0)
        g(f"""v_lshrrev_b32 v1, 6, v0
              v_and_b32 v0, 63, v0
              s_and_b32 {s(S_T0)}, s2, 7
              v_readfirstlane_b32 {s(S_WAVE)}, v1
              s_lshr_b32 {s(S_T1)}, s2, 3
              s_and_b32 {s(S_T2)}, {s(S_T1)}, 3
              s_lshr_b32 {s(S_NT)}, {s(S_T1)}, 2
              s_lshr_b32 {s(S_T3)}, {s(S_T0)}, 1
              s_lshl_b32 {s(S_MT)}, {s(S_T3)}, 2
              s_add_u32 {s(S_MT)}, {s(S_MT)}, {s(S_T2)}
              s_and_b32 {s(S_T4)}, {s(S_T0)}, 1
              s_lshl_b32 {s(S_G)}, {s(S_T4)}, 3
              s_add_u32 {s(S_G)}, {s(S_G)}, {s(S_NT)}
              s_lshl_b32 {s(S_RT)}, {s(S_T0)}, 2
              s_add_u32 {s(S_RT)}, {s(S_RT)}, {s(S_T2)}
              s_and_b32 {s(S_WI)}, {s(S_WAVE)}, 3""")
        if self.o.get("map1") == "8x4":
            g(f"""s_lshl_b32 {s(S_MT)}, {s(S_T4)}, 3
                  s_and_b32 {s(S_U0)}, {s(S_T1)}, 7
                  s_add_u32 {s(S_MT)}, {s(S_MT)}, {s(S_U0)}
                  s_lshl_b32 {s(S_G)}, {s(S_T3)}, 2
                  s_lshr_b32 {s(S_U0)}, {s(S_T1)}, 3
                  s_add_u32 {s(S_G)}, {s(S_G)}, {s(S_U0)}""")
        if self.o.get("map2") == "Y":
            g(f"""s_lshl_b32 {s(S_RT)}, {s(S_T3)}, 3
                  s_and_b32 {s(S_U0)}, {s(S_T1)}, 7
                  s_add_u32 {s(S_RT)}, {s(S_RT)}, {s(S_U0)}
                  s_lshl_b32 {s(S_NT)}, {s(S_T4)}, 2
                  s_lshr_b32 {s(S_U0)}, {s(S_T1)}, 3
                  s_add_u32 {s(S_NT)}, {s(S_NT)}, {s(S_U0)}""")
        if self.o.get("rot2", 0):
            g(f"""s_add_u32 {s(S_ROT)}, {s(S_T2)}, {s(S_NT)}
                  s_and_b32 {s(S_ROT)}, {s(S_ROT)}, 3""")
        else: g(f"s_mov_b32 {s(S_ROT)}, 0")
        rot = self.o.get("rot", 0)
        if rot == 0:
            g(f"""s_lshl_b32 {s(S_C0)}, {s(S_T4)}, 1
                  s_add_u32 {s(S_C0)}, {s(S_C0)}, {s(S_T3)}
                  s_lshl_b32 {s(S_C0)}, {s(S_C0)}, 1""")
        elif rot == 8:
            g(f"""s_lshl_b32 {s(S_C0)}, {s(S_MT)}, 1
                  s_add_u32 {s(S_C0)}, {s(S_C0)}, {s(S_G)}""")
        elif rot == 4:
            g(f"""s_add_u32 {s(S_C0)}, {s(S_MT)}, {s(S_G)}
                  s_lshl_b32 {s(S_C0)}, {s(S_C0)}, 1""")
        elif rot == 2:
            g(f"""s_add_u32 {s(S_C0)}, {s(S_MT)}, {s(S_G)}
                  s_lshl_b32 {s(S_C0)}, {s(S_C0)}, 1
                  s_add_u32 {s(S_C0)}, {s(S_C0)}, {s(S_T4)}
                  s_add_u32 {s(S_C0)}, {s(S_C0)}, {s(S_T3)}
                  s_lshl_b32 {s(S_C0)}, {s(S_C0)}, 1""")
        pre = self.o.get("pretest")
        if pre:
            pol = self.o.get("prepol", "")
            g(f"""v_lshlrev_b32 v2, 4, v0
                  s_lshl_b32 {s(S_U0)}, {s(S_WAVE)}, 8
                  s_add_u32 {s(S_U0)}, {s(S_U0)}, s2
                  s_lshl_b32 {s(S_U0)}, {s(S_U0)}, 10""")
            for i, (nm, P, nb, sh) in enumerate([("x", P_X, 2<<20, 0), ("b", P_BRE, 1<<19, 0), ("b", P_BIM, 1<<19, 2), ("1", P_W1, 1376*1024, 2),
                                  ("c", P_CRE, 1<<19, 4), ("c", P_CIM, 1<<19, 6), ("2", P_W2, 1376*1024, 0)]):
                if nm not in pre: continue
                srd(g, R_X, P, nb)
                g(f"""s_sub_u32 {s(S_U1)}, {s(S_U0)}, {sh << 18}
                      s_and_b32 {s(S_U1)}, {s(S_U1)}, {(2<<20)-1}
                      buffer_load_dwordx4 {v(4+4*i,4)}, v2, {s(R_X,4)}, {s(S_U1)} offen{pol}""")
            g("s_waitcnt vmcnt(0)")
            self.stamp(11)
            g(f"s_mov_b32 {s(S_MK)}, {s(S_ST+11)}")
        g(f"""s_cmp_ge_u32 {s(S_WAVE)}, 4
              s_cbranch_scc0 L_SWAVE""")

    def epoch(self):
        self.g(f"""s_mov_b32 {s(S_TAG)}, {hex(WS_EPOCH)}
                   s_load_dword {s(S_TAG)}, {s(P_WS,2)}, {s(S_TAG)}""")
    def epoch_fin(self):
        self.g(f"""s_mul_i32 {s(S_TAG)}, {s(S_TAG)}, 0x9E3779B1
                   s_add_u32 {s(S_TAG)}, {s(S_TAG)}, 0x7F4A7C15""")

    def frag_pat(self, P, t0, t1, xor_wi):
        g = self.g
        g(f"""v_and_b32 {v(t0)}, 31, v0
              v_lshrrev_b32 {v(t1)}, 1, v0
              v_and_b32 {v(t1)}, 7, {v(t1)}
              v_lshrrev_b32 {v(P)}, 5, v0
              v_xor_b32 {v(t1)}, {v(t1)}, {v(P)}
              v_lshlrev_b32 {v(t1)}, 4, {v(t1)}
              v_lshl_or_b32 {v(P)}, {v(t0)}, 7, {v(t1)}""")
        if xor_wi:
            g(f"""s_lshl_b32 {s(S_V0)}, {s(S_WI)}, 5
                  v_xor_b32 {v(P)}, {s(S_V0)}, {v(P)}""")
        for k in (1, 2, 3):
            g(f"v_xor_b32 {v(P+k)}, {32*k}, {v(P)}")

    def lane8_pat(self, d, t0, t1):
        self.g(f"""v_lshrrev_b32 {v(t0)}, 3, v0
                   v_and_b32 {v(d)}, 7, v0
                   v_lshrrev_b32 {v(t1)}, 4, v0
                   v_xor_b32 {v(d)}, {v(d)}, {v(t1)}
                   v_lshlrev_b32 {v(d)}, 4, {v(d)}""")

    def split3(self, src, d0, d1, t0, t1):
        self.g(f"""v_and_b32 {v(t0)}, 0xffff0000, {v(src)}
                  v_sub_f32 {v(t1)}, {v(src)}, {v(t0)}
                  v_and_b32 {v(d0)}, 0xffff0000, {v(t1)}
                  v_sub_f32 {v(t1)}, {v(t1)}, {v(d0)}
                  v_lshrrev_b32 {v(t0)}, 16, {v(t0)}
                  v_or_b32 {v(d0)}, {v(d0)}, {v(t0)}
                  v_lshrrev_b32 {v(d1)}, 16, {v(t1)}""")

    def tau(self, d, t):
        self.g(f"""v_and_b32 {v(d)}, 4, v0
                   v_lshlrev_b32 {v(d)}, 2, {v(d)}
                   v_lshrrev_b32 {v(t)}, 1, v0
                   v_and_b32 {v(t)}, 12, {v(t)}
                   v_or_b32 {v(d)}, {v(d)}, {v(t)}
                   v_and_b32 {v(t)}, 3, v0
                   v_or_b32 {v(d)}, {v(d)}, {v(t)}""")

    def w2_voff(self, VD, T):
        self.g(f"""v_lshrrev_b32 {v(T)}, 3, v0
              v_and_b32 {v(T+1)}, 7, v0
              v_bfe_u32 {v(T+2)}, v0, 4, 1
              v_lshlrev_b32 {v(T+2)}, 2, {v(T+2)}
              v_xor_b32 {v(T+1)}, {v(T+1)}, {v(T+2)}
              v_lshlrev_b32 {v(T+1)}, 4, {v(T+1)}
              v_lshl_or_b32 {v(VD)}, {v(T)}, 10, {v(T+1)}
              v_add_u32 {v(VD+1)}, 7168, {v(VD)}
              v_add_u32 {v(VD+2)}, {2*7168}, {v(VD)}
              v_add_u32 {v(VD+3)}, {3*7168}, {v(VD)}""")

    def w2_coop_setup(self, s_lds, s_glb):
        self.g(f"""s_mul_i32 {s(s_lds)}, {s(S_WI)}, 6144
              s_mul_i32 {s(s_glb)}, {s(S_WI)}, {48*1024}
              s_lshl_b32 {s(S_V0)}, {s(S_NT)}, 7
              s_add_u32 {s(s_glb)}, {s(s_glb)}, {s(S_V0)}""")

    def w2_coop(self, VD, s_lds, s_glb, q):
        out = []
        for e in range(6):
            pre = ""
            if e % 3 == 0:
                pre = f"""s_add_u32 m0, {s(s_lds)}, {W1B + q*SLOT + e*1024}
                          s_add_u32 {s(S_U1)}, {s(s_glb)}, {q*352*1024 + e*8192}
                       """
            out.append(pre + f"buffer_load_dwordx4 {v(VD+e%3)}, {s(R_W2,4)}, {s(S_U1)} offen offset:{1024*(e%3)} lds")
        return out

    def w2_own_setup(self, sreg_lds, sreg_glb):
        self.g(f"""s_mul_i32 {s(sreg_glb)}, {s(S_WI)}, {352*1024}
              s_lshl_b32 {s(S_U0)}, {s(S_NT)}, 7
              s_add_u32 {s(sreg_glb)}, {s(sreg_glb)}, {s(S_U0)}
              s_mul_i32 {s(sreg_lds)}, {s(S_WI)}, {SLOT}
              s_add_u32 {s(sreg_lds)}, {s(sreg_lds)}, {W1B}""")

    def w2_issue(self, VD, sreg_lds, sreg_glb, ks0, n, lslot0):
        g = self.g
        for i in range(0, n, 2):
            g(f"""s_add_u32 m0, {s(sreg_lds)}, {(lslot0 + i)*2048}
                  s_add_u32 {s(S_U1)}, {s(sreg_glb)}, {(ks0+i)*16384}""")
            for e in range(4):
                g(f"buffer_load_dwordx4 {v(VD+e)}, {s(R_W2,4)}, {s(S_U1)} offen offset:{1024*e} lds")

    def recheck(self, loads, tagregs, vm=0):
        g = self.g
        l = g.lab("RC"); d = g.lab("RCD")
        g(f"s_mov_b32 {s(S_SPIN)}, 0x40000\ns_waitcnt vmcnt({vm})")
        g(f"{l}:")
        g(f"v_cmp_ne_u32 vcc, {s(S_TAG)}, {v(tagregs[0])}")
        for r in tagregs[1:]:
            g(f"v_cmp_ne_u32 s[100:101], {s(S_TAG)}, {v(r)}\ns_or_b64 vcc, vcc, s[100:101]")
        g(f"""s_cmp_eq_u64 vcc, 0
              s_cbranch_scc1 {d}
              s_sub_u32 {s(S_SPIN)}, {s(S_SPIN)}, 1
              s_cbranch_scc1 {d}
              s_sleep 2""")
        g(loads)
        g(f"s_waitcnt vmcnt(0)\ns_branch {l}")
        g(f"{d}:")

    def w1_setup(self, VW, T, s_lds, s_glb, s_f0):
        g = self.g
        g(f"s_mov_b32 {s(S_V0)}, 683")
        for e in range(3):
            g(f"""v_add_u32 {v(T)}, {64*e}, v0
                  v_mul_u32_u24 {v(T+1)}, {s(S_V0)}, {v(T)}
                  v_lshrrev_b32 {v(T+1)}, 13, {v(T+1)}
                  v_mul_u32_u24 {v(T+2)}, 12, {v(T+1)}
                  v_sub_u32 {v(T+2)}, {v(T)}, {v(T+2)}
                  v_mul_u32_u24 {v(T+1)}, 2752, {v(T+1)}
                  v_lshl_add_u32 {v(VW+e)}, {v(T+2)}, 4, {v(T+1)}""")
            if e: g(f"v_subrev_u32 {v(VW+e)}, {1024*e}, {v(VW+e)}")
        g(f"""s_lshr_b32 {s(S_V0)}, {s(S_G)}, 2
              s_mul_i32 {s(s_f0)}, {s(S_V0)}, 11
              s_and_b32 {s(S_V0)}, {s(S_G)}, 3
              s_mul_i32 {s(S_V0)}, {s(S_V0)}, 3
              s_add_u32 {s(s_f0)}, {s(s_f0)}, {s(S_V0)}
              s_lshl_b32 {s(s_glb)}, {s(s_f0)}, 6
              s_mul_i32 {s(S_V0)}, {s(S_WI)}, {16*2752}
              s_add_u32 {s(s_glb)}, {s(s_glb)}, {s(S_V0)}
              s_mul_i32 {s(s_lds)}, {s(S_WI)}, 3072""")

    def w1_pre(self, j, s_lds, s_glb):
        return f"""s_add_u32 {s(S_U0)}, {s(S_C0)}, {j}
                  s_and_b32 {s(S_U0)}, {s(S_U0)}, 7
                  s_mul_i32 {s(S_U0)}, {s(S_U0)}, {64*2752}
                  s_add_u32 m0, {s(s_lds)}, {W1B + j*12288}
                  s_add_u32 {s(S_U1)}, {s(S_U0)}, {s(s_glb)}"""

    def fwave(self):
        g = self.g; o = self.o
        X = 128
        ACC = 80
        WF = 44
        VX, VB, VW = 2, 6, 8
        P = 12
        WA = 16
        VCNT, VONE, VZ = 20, 21, 22
        XS = 24
        RS, NRS = 26, 27
        NM = 28
        CS = 32
        T = 2
        TA = 32

        g.c("---------------- F wave: stage A loader ----------------")
        self.lane8_pat(TA, TA+1, TA+2)
        g(f"""v_lshrrev_b32 {v(TA+2)}, 2, {v(TA+1)}
              v_lshlrev_b32 {v(TA+2)}, 4, {v(TA+2)}
              v_and_b32 {v(TA+3)}, 3, {v(TA+1)}
              v_add_u32 {v(TA+2)}, {v(TA+2)}, {v(TA+3)}
              v_lshl_or_b32 {v(VX)}, {v(TA+2)}, 10, {v(TA)}
              v_add_u32 {v(VX+1)}, 3072, {v(VX)}
              v_xor_b32 {v(VX+1)}, 64, {v(VX+1)}
              v_add_u32 {v(VX+2)}, 6144, {v(VX)}
              v_add_u32 {v(VX+3)}, 6144, {v(VX+1)}
              v_lshl_or_b32 {v(VB)}, {v(TA+1)}, 10, {v(TA)}
              v_add_u32 {v(VB+1)}, 7168, {v(VB)}
              v_xor_b32 {v(VB+1)}, 64, {v(VB+1)}
              s_lshl_b32 {s(S_XO)}, {s(S_MT)}, 17
              s_lshl_b32 {s(S_T0)}, {s(S_WI)}, 15
              s_add_u32 {s(S_XO)}, {s(S_XO)}, {s(S_T0)}
              s_lshl_b32 {s(S_BO)}, {s(S_G)}, 15
              s_and_b32 {s(S_T0)}, {s(S_WI)}, 1
              s_lshl_b32 {s(S_T0)}, {s(S_T0)}, 14
              s_add_u32 {s(S_BO)}, {s(S_BO)}, {s(S_T0)}
              s_lshl_b32 {s(S_T3)}, {s(S_WI)}, 12
              s_lshl_b32 {s(S_T4)}, {s(S_WI)}, 11
              s_add_u32 {s(S_T4)}, {s(S_T4)}, 16384
              s_mov_b32 {s(R_X+2)}, {hex(2048*512*2)}
              s_mov_b32 {s(R_X+3)}, 0x20000
              s_mov_b32 {s(R_A+2)}, {hex(512*512*2)}
              s_mov_b32 {s(R_A+3)}, 0x20000
              s_cmp_ge_u32 {s(S_WI)}, 2
              s_waitcnt lgkmcnt(0)
              s_mov_b32 {s(R_X)}, {s(P_X)}
              s_mov_b32 {s(R_X+1)}, {s(P_X+1)}
              s_cselect_b32 {s(R_A)}, {s(P_BIM)}, {s(P_BRE)}
              s_cselect_b32 {s(R_A+1)}, {s(P_BIM+1)}, {s(P_BRE+1)}""")

        def x_pre(c):
            g(f"""s_add_u32 {s(S_U0)}, {s(S_C0)}, {c}
                  s_and_b32 {s(S_U0)}, {s(S_U0)}, 7
                  s_lshl_b32 {s(S_U0)}, {s(S_U0)}, 7
                  s_add_u32 m0, {s(S_T3)}, {(c % 6) * SLOT}
                  s_add_u32 {s(S_U1)}, {s(S_U0)}, {s(S_XO)}""")
        def x_go(c, nf):
            for e in range(4):
                g(f"buffer_load_dwordx4 {v(VX+e)}, {s(R_X,4)}, {s(S_U1)} offen offset:{1024*e} lds")
                self.take(fill, nf)
            g(f"""s_add_u32 m0, {s(S_T4)}, {(c % 6) * SLOT}
                  s_add_u32 {s(S_U1)}, {s(S_U0)}, {s(S_BO)}""")
            for e in range(2):
                g(f"buffer_load_dwordx4 {v(VB+e)}, {s(R_A,4)}, {s(S_U1)} offen offset:{1024*e} lds")
                self.take(fill, nf)
        def w_pre(j): return self.w1_pre(j, S_T2, S_WO)
        def w_one(e):
            return f"buffer_load_dwordx4 {v(VW+e)}, {s(R_B,4)}, {s(S_U1)} offen offset:{1024*e} lds"

        def setup():
            g.c("{"); self.epoch(); g.c("}")
            self.frag_pat(P, TA, TA+1, True)
            for k in range(4): g(f"v_add_u32 {v(P+k)}, {s(S_T3)}, {v(P+k)}")
            srd(g, R_B, P_W1, 512 * 1376 * 2)
            self.w1_setup(VW, TA, S_T2, S_WO, S_T1)
            srd(g, R_W2, P_W2, 1376 * 512 * 2)
            srd(g, R_WS, P_WS, WS_BYTES)
            srd(g, R_OUT, P_OUT, 2048*512*4)
            g(f"""v_lshrrev_b32 {v(TA)}, 5, v0
              v_bfe_u32 {v(TA+1)}, v0, 2, 2
              v_lshl_add_u32 {v(TA)}, {v(TA)}, 3, {v(TA+1)}
              v_mul_u32_u24 {v(TA)}, 192, {v(TA)}
              v_bfe_u32 {v(TA+1)}, v0, 4, 1
              v_lshl_add_u32 {v(TA)}, {v(TA+1)}, 5, {v(TA)}
              v_and_b32 {v(TA+1)}, 3, v0
              v_lshl_add_u32 {v(TA)}, {v(TA+1)}, 3, {v(TA)}
              v_mov_b32 {v(VZ)}, 0
              v_bfe_u32 {v(TA+1)}, v0, 2, 2
              v_lshrrev_b32 {v(TA+2)}, 4, v0
              v_cmp_eq_u32 vcc, {v(TA+1)}, {v(TA+2)}
              v_mov_b32 {v(TA+1)}, 0x3f803f80
              s_nop 0
              v_cndmask_b32 {v(NM)}, 0, {v(TA+1)}, vcc
              v_cndmask_b32 {v(NM+1)}, 0, {v(TA+1)}, vcc
              v_cndmask_b32 {v(NM+2)}, 0, {v(TA+1)}, vcc
              v_cndmask_b32 {v(NM+3)}, 0, {v(TA+1)}, vcc""")
            for k in range(4):
                g(f"""s_xor_b32 {s(S_V0)}, {s(S_WI)}, {k}
                  s_mul_i32 {s(S_V0)}, {s(S_V0)}, 3072
                  s_add_u32 {s(S_V0)}, {s(S_V0)}, {W1B}
                  v_add_u32 {v(WA+k)}, {s(S_V0)}, {v(TA)}""")
            self.cnt_regs(VCNT, VONE)
            g(f"""v_and_b32 {v(RS)}, 31, v0
              s_lshl_b32 {s(S_V0)}, {s(S_WI)}, 7
              s_add_u32 {s(S_V0)}, {s(S_V0)}, {L_NM}
              v_lshl_add_u32 {v(RS)}, {v(RS)}, 2, {s(S_V0)}
              v_lshlrev_b32 v11, 4, v0
              v_add_u32 {v(XS+1)}, {L_CSF}, v11
              s_lshl_b32 {s(S_V0)}, {s(S_WI)}, 2
              v_add_u32 v1, {s(S_V0)}, {v(XS+1)}""")
        fill = self.collect(setup)
        x_pre(0); x_go(0, 0)
        g.c("@@SSTART")
        if o.get("fprioA", 0): g(f"s_setprio {o.get('fprioA', 0)}")
        NFF = o.get("nff", 5)
        x_pre(1); x_go(1, NFF)
        self.stamp(1)
        x_pre(2); x_go(2, NFF)
        for c in range(8):
            g.c(f"chunk {c}")
            n = c + 3
            if n < 8: x_pre(n)
            else: g(w_pre(2 * (n - 8)))
            g(f"s_waitcnt vmcnt(12) lgkmcnt({0 if c == 0 else 4})")
            if o.get("adetail") == 1:
                self.mute = True; self.stamp(2 + c, True)
            g("s_barrier")
            if o.get("adetail") == 2:
                self.mute = True; self.stamp(2 + c, True)
            if c == 0: self.epoch_fin()
            off = (c % 3) * SLOT
            def xread():
                if c in (3, 6):
                    op = "v_add_u32" if c == 3 else "v_subrev_u32"
                    for k in range(4): g(f"{op} {v(P+k)}, {3*SLOT}, {v(P+k)}")
                for k in range(4):
                    g(f"ds_read_b128 {v(X+16*c+4*k,4)}, {v(P+k)} offset:{off}")
            if n < 8:
                x_go(n, NFF)
                if n == 7: self.take(fill, 1000)
                xread()
            else:
                for e in range(3): g(w_one(e))
                if c == 7:
                    xread()
                    self.signal_cnt(C_S1, VCNT, VONE)
                g(w_pre(2 * (n - 8) + 1))
                for e in range(3): g(w_one(e))
                if c < 7: xread()
        self.stamp(2)
        g.c("---------------- F stage: w1 GEMM ----------------")
        g(f"s_setprio {o.get('fprio', 1)}")
        for j in (6, 7):
            g(w_pre(j))
            for e in range(3): g(w_one(e))
        g("s_waitcnt vmcnt(12)")
        self.signal_cnt(C_WA, VCNT, VONE)
        self.spin_cnt(C_WA, VCNT, T)
        self.stamp(3)
        steps = [(j, k) for j in range(4) for k in range(4)] + [(j, 0) for j in range(4, 8)] + [(j, k) for j in range(4, 8) for k in range(1, 4)]
        def rd(idx, t):
            j, k = steps[idx]
            if idx == 16 and t == 0:
                for kk in range(4): g(f"v_add_u32 {v(WA+kk)}, {4*12288}, {v(WA+kk)}")
            dst = WF + 12 * (idx % 3) + 4 * t
            off = (j % 4) * 12288 + t * 64
            g(f"""ds_read_b64_tr_b16 {v(dst,2)}, {v(WA+k)} offset:{off}
                  ds_read_b64_tr_b16 {v(dst+2,2)}, {v(WA+k)} offset:{off+768}""")
        for i in range(2):
            for t in range(3): rd(i, t)
        VD = 12
        def prep():
            for t in range(3):
                b = CS + 4*t
                g(f"""v_add_f32 {v(b)}, {v(b)}, {v(b+1)}
                      v_add_f32 {v(b+2)}, {v(b+2)}, {v(b+3)}
                      v_add_f32 {v(b+2)}, {v(b)}, {v(b+2)}""")
                self.split3(b+2, b, b+1, T+2, T+3)
                g(f"v_mov_b32 {v(b+2)}, 0\nv_mov_b32 {v(b+3)}, 0")
        def prep0():
            g(f"""v_lshlrev_b32 {v(T+2)}, 16, {v(XS)}
                  v_and_b32 {v(RS)}, 0xffff0000, {v(XS)}
                  v_rcp_f32 {v(RS)}, {v(RS)}
                  v_cvt_pk_bf16_f32 {v(NM)}, -{v(T+2)}, -{v(T+2)}
                  v_mul_f32 {v(NRS)}, 0xbfb8aa3b, {v(RS)}
                  v_mov_b32 {v(NM+1)}, {v(NM)}
                  v_mov_b32 {v(NM+2)}, 0
                  v_mov_b32 {v(NM+3)}, 0""")
        def silu_setup():
            g(f"""s_lshl_b32 {s(S_U0)}, {s(S_MT)}, 2
              s_add_u32 {s(S_U0)}, {s(S_U0)}, {s(S_WI)}
              s_mul_i32 {s(S_U0)}, {s(S_U0)}, {NKS}
              s_lshl_b32 {s(S_U1)}, {s(S_T1)}, 1
              s_add_u32 {s(S_U0)}, {s(S_U0)}, {s(S_U1)}
              s_add_u32 {s(S_U0)}, {s(S_U0)}, 64
              s_lshl_b32 {s(S_U2)}, {s(S_U0)}, 10""")
        f1 = self.collect(lambda: (self.w2_voff(VD, T+2), silu_setup()))
        f2 = self.collect(prep0); f3 = self.collect(prep)
        xsr = f"ds_read_b32 {v(XS)}, {v(RS)}"
        csr = "\n".join(f"ds_read_b128 {v(CS+4*t,4)}, {v(XS+1)} offset:{1024*t}" for t in range(3))
        def check(cnt, tgt, reads):
            lo = g.lab("WOK")
            g(f"""v_readfirstlane_b32 {s(S_U3)}, {v(T)}
                  s_cmp_eq_u32 {s(S_U3)}, {tgt}
                  s_cbranch_scc1 {lo}""")
            self.spin_cnt(cnt, VCNT, T, reads, tgt)
            g(f"{lo}:")
        extra = 0
        for idx, (j, k) in enumerate(steps):
            b = WF + 12 * (idx % 3)
            nxt = 6 if idx + 1 < 32 else 0
            g(f"s_waitcnt lgkmcnt({nxt + extra})")
            extra = 0
            xr = X + 16*j + 4*k
            for t in range(3):
                cc = "0" if idx == 0 else v(ACC+16*t, 16)
                g(f"v_mfma_f32_32x32x16_bf16 {v(ACC+16*t,16)}, {v(b+4*t,4)}, {v(xr,4)}, {cc}")
                if t == 0 and idx == 14: check(C_WB, 4, "")
                if t == 0 and idx == 22: check(C_S1, 8, xsr)
                if t == 0 and idx == 26: check(C_CSF, 4, csr)
                if idx + 2 < 32: rd(idx + 2, t)
                if 1 <= idx < 8: self.take(f1, 2)
                if 22 <= idx < 25: self.take(f2, 2)
                if 26 <= idx < 30: self.take(f3, 3)
                if idx == 30:
                    g(f"v_mfma_f32_32x32x16_bf16 {v(ACC+16*t,16)}, {v(CS+4*t,4)}, {v(NM,4)}, {v(ACC+16*t,16)}")
            if k == 0:
                for t in range(3):
                    cc = "0" if idx == 0 else v(CS+4*t, 4)
                    g(f"v_mfma_f32_16x16x32_bf16 {v(CS+4*t,4)}, {v(NM,4)}, {v(b+4*t,4)}, {cc}")
            if idx in (5, 13, 23, 29):
                self.signal_cnt(C_PD + 4*(5, 13, 23, 29).index(idx), VCNT, VONE); extra += 1
            if idx == 9:
                g("s_waitcnt vmcnt(0)")
                self.signal_cnt(C_WB, VCNT, VONE); extra += 1
            if idx == 12:
                g(f"ds_read_b32 {v(T)}, {v(VCNT)} offset:{C_WB}"); extra += 1
            if idx == 20:
                g(f"ds_read_b32 {v(T)}, {v(VCNT)} offset:{C_S1}\n" + xsr); extra += 2
            if idx == 21:
                for t in range(3): g(f"ds_write_b32 v1, {v(CS+4*t)} offset:{1024*t}")
                self.signal_cnt(C_CSF, VCNT, VONE); extra += 4
            if idx == 24:
                g(f"ds_read_b32 {v(T)}, {v(VCNT)} offset:{C_CSF}\n" + csr); extra += 4
            if o.get("fdetail") and idx % 4 == 3:
                self.mute = True
                self.stamp(4 + idx // 4, True)
        assert not f1 and not f2 and not f3
        self.stamp(4)
        g("s_nop 7\ns_nop 1")
        self.stamp(5)
        g.c("SiLU + store")
        g(f"s_setprio {o.get('fprio_silu', 3)}")
        PB = 11
        lsk = g.lab("NOT2")
        for t in range(3):
            a = ACC + 16*t
            if t == 2:
                g(f"""s_and_b32 {s(S_U0)}, {s(S_G)}, 3
                      s_cmp_eq_u32 {s(S_U0)}, 3
                      s_cbranch_scc1 {lsk}
                      s_add_u32 {s(S_U2)}, {s(S_U2)}, 4096""")
            for hf in range(2):
                e = WF if hf == 0 else WF + 8
                z = a + 8*hf
                for i in range(0, 8, 2): g(f"v_pk_mul_f32 {v(e+i,2)}, {v(z+i,2)}, {v(RS,2)} op_sel:[0,1] op_sel_hi:[1,1]")
                for i in range(8):
                    g(f"v_exp_f32 {v(e+i)}, {v(e+i)}")
                    if i & 1: g(f"v_pk_mul_f32 {v(z+i-1,2)}, {v(z+i-1,2)}, {v(RS,2)} op_sel_hi:[1,0]")
                for i in range(0, 8, 2): g(f"v_pk_add_f32 {v(e+i,2)}, {v(e+i,2)}, 1.0 op_sel_hi:[1,0]")
                for i in range(8): g(f"v_rcp_f32 {v(e+i)}, {v(e+i)}")
                for i in range(0, 8, 2): g(f"v_pk_mul_f32 {v(z+i,2)}, {v(z+i,2)}, {v(e+i,2)}")
                d = CS + 4*hf
                for i in range(4): g(f"v_cvt_pk_bf16_f32 {v(d+i)}, {v(a+8*hf+2*i)}, {v(a+8*hf+2*i+1)}")
                g(f"buffer_store_dwordx4 {v(d,4)}, {v(PB)}, {s(R_WS,4)}, {s(S_U2)} offen offset:{((2*t+hf)&3)*1024} sc1")
        g(f"{lsk}:")
        self.stamp(6)

        g.c("---------------- F phase 2 ----------------")
        A2 = 176
        BR = 96
        AB = 48
        BTm = 240
        WB = 6
        VA = 8
        T2 = 40
        T = 44
        NR = 10
        self.w2_own_setup(S_T2, S_WO)
        g(f"""v_lshrrev_b32 {v(T2)}, 5, v0
              v_bfe_u32 {v(T2+1)}, v0, 2, 2
              v_lshl_add_u32 {v(T2)}, {v(T2)}, 2, {v(T2+1)}
              v_lshlrev_b32 {v(T2)}, 7, {v(T2)}
              v_bfe_u32 {v(T2+1)}, v0, 3, 1
              v_lshl_add_u32 {v(T2)}, {v(T2+1)}, 6, {v(T2)}
              v_bfe_u32 {v(T2+1)}, v0, 4, 1
              v_lshl_add_u32 {v(T2)}, {v(T2+1)}, 5, {v(T2)}
              v_and_b32 {v(T2+1)}, 3, v0
              v_lshl_add_u32 {v(T2)}, {v(T2+1)}, 3, {v(T2)}
              v_add_u32 {v(WB)}, {s(S_T2)}, {v(T2)}
              v_xor_b32 {v(WB+1)}, 64, {v(WB)}
              s_and_b32 {s(S_U0)}, {s(S_WI)}, 2
              s_lshl_b32 {s(S_U0)}, {s(S_U0)}, 1
              v_add_u32 {v(T2+2)}, {s(S_U0)}, {v(VCNT)}""")
        def bread(dst, lks):
            for ct in range(2):
                for u in range(2):
                    g(f"ds_read_b64_tr_b16 {v(dst+4*ct+2*u,2)}, {v(WB+ct)} offset:{lks*2048+u*1024}")
        g(f"""s_mul_i32 {s(S_XO)}, {s(S_RT)}, {2*NKS}
              s_mul_i32 {s(S_U0)}, {s(S_WI)}, 22
              s_add_u32 {s(S_XO)}, {s(S_XO)}, {s(S_U0)}
              s_add_u32 {s(S_XO)}, {s(S_XO)}, 64
              s_lshl_b32 {s(S_XO)}, {s(S_XO)}, 10
              s_mul_i32 {s(S_U0)}, {s(S_WI)}, 12288
              v_add_u32 {v(T)}, {s(S_U0)}, {v(PB)}
              v_add_u32 {v(T+1)}, {s(S_T2)}, {v(PB)}""")
        self.out_setup(VA, 2, PB)
        self.set_flag(WS_FLAGF, VZ, T2+3, 0)
        g(f"s_setprio {o.get('fprio2', 0)}")
        self.spin_cnt(C_B1, T2+2, T2)
        self.stamp(7)
        for ks in range(NR):
            bread(BR + 8*ks, ks)
            if ks % 2 == 1: g("s_waitcnt lgkmcnt(4)")
        g("s_waitcnt lgkmcnt(0)")
        fb = o.get("f_b2a", 6)
        self.w2_issue(VD, S_T2, S_WO, 12, fb, 0)
        self.poll_issue(WS_FLAGF)
        self.w2_issue(VD, S_T2, S_WO, 12 + fb, 10 - fb, fb)
        self.stamp(8)
        self.poll_finish()
        self.stamp(9)
        BT = [240, 248, 32]
        ABL = [AB + 4*i for i in range(12)] + [16, 24, 28]
        N2, D = 44, o.get("f_depth", 12)
        def aload(i):
            rb, ks = divmod(i, 22)
            if ks % 4 == 0: g(f"s_add_u32 {s(S_U0)}, {s(S_XO)}, {(rb*NKS + ks)*1024}")
            g(f"buffer_load_dwordx4 {v(ABL[i%D],4)}, {v(PB)}, {s(R_WS,4)}, {s(S_U0)} offen offset:{(ks%4)*1024} sc1")
        for i in range(D): aload(i)
        for i in range(N2):
            rb, ks = divmod(i, 22)
            inl = lambda j: j < N2 and j % 22 >= NR
            w = f"s_waitcnt vmcnt({min(N2, i+D) - i - 1})"
            if inl(i): w += f" lgkmcnt({4 if inl(i+1) else 0})"
            g(w)
            bs = BT[i % 3] if inl(i) else BR + 8*ks
            for ct in range(2):
                d = A2 + 16*(2*rb+ct)
                g(f"v_mfma_f32_32x32x16_bf16 {v(d,16)}, {v(ABL[i%D],4)}, {v(bs+4*ct,4)}, {'0' if ks == 0 else v(d,16)}")
                if ct == 0 and inl(i+2): bread(BT[(i+2) % 3], ((i+2) % 22) % 12)
                if ct == 0 and 24 <= i < 28:
                    for u in range(2):
                        x = 2*(i-24) + u
                        g(f"ds_write_b128 {v(T)}, {v(A2+4*x,4)} offset:{4096 + x*1024}")
            if i + D < N2: aload(i + D)
            if o.get("p2detail") and i in (0, 7, 15, 22, 24, 29, 36):
                self.stamp(1 + (0, 7, 15, 22, 24, 29, 36).index(i), True)
            if i == 23: self.spin_cnt(C_SR, VCNT, T+2)
            if i == 27:
                self.signal_cnt(C_FM, VCNT, VONE)
                g(f"ds_read_b128 {v(40,4)}, v4 offset:{2*12288}")
        self.stamp(10)
        g("s_nop 7\ns_nop 3")
        for x in range(8):
            g(f"ds_write_b128 {v(T+1)}, {v(A2+32+4*x,4)} offset:{x*1024}")
        g("s_waitcnt lgkmcnt(0)\ns_barrier")
        self.final_piece(1, 40, BR, VA, 2)
        le = g.lab("NOEP")
        g(f"""s_lshl_b32 {s(S_U0)}, {s(S_RT)}, 5
              s_lshl_b32 {s(S_U1)}, {s(S_NT)}, 2
              s_add_u32 {s(S_U0)}, {s(S_U0)}, {s(S_U1)}
              s_add_u32 {s(S_U0)}, {s(S_U0)}, {s(S_WI)}
              s_cmp_lg_u32 {s(S_U0)}, {31*32}
              s_cbranch_scc1 {le}
              v_mov_b32 {v(T)}, {s(S_TAG)}
              s_mov_b32 {s(S_U0)}, {hex(WS_EPOCH)}
              s_mov_b64 exec, 1
              buffer_store_dword {v(T)}, {v(VZ)}, {s(R_WS,4)}, {s(S_U0)} offen
              s_mov_b64 exec, -1""")
        g(f"{le}:")
        self.stamp(11)
        self.stamps_out(T, 'F')
        g("s_endpgm")

    def out_setup(self, VO, VL, VL16):
        self.g(f"""v_and_b32 {v(VO)}, 31, v0
              v_lshlrev_b32 {v(VO)}, 2, {v(VO)}
              v_and_b32 {v(VL)}, 32, v0
              v_lshl_add_u32 {v(VO)}, {v(VL)}, 10, {v(VO)}
              s_lshl_b32 {s(S_U0)}, {s(S_WI)}, 10
              v_add_u32 {v(VL+2)}, {s(S_U0)}, {v(VL16)}
              v_add_u32 {v(VL)}, {W1B}, {v(VL+2)}
              v_add_u32 {v(VL+1)}, {W1B + 3*SLOT}, {v(VL+2)}
              s_lshl_b32 {s(S_T0)}, {s(S_RT)}, 17
              s_lshl_b32 {s(S_U0)}, {s(S_WI)}, 13
              s_add_u32 {s(S_T0)}, {s(S_T0)}, {s(S_U0)}
              s_lshl_b32 {s(S_U0)}, {s(S_NT)}, 8
              s_add_u32 {s(S_T0)}, {s(S_T0)}, {s(S_U0)}""")

    def sum_store(self, ACC, TMP, VO, rb, ct, first_wait):
        g = self.g
        g(f"""s_add_u32 {s(S_U0)}, {s(S_T0)}, {rb*65536 + ct*128}
              s_add_u32 {s(S_U1)}, {s(S_U0)}, 4096
              s_waitcnt lgkmcnt({first_wait + 2})""")
        for j in range(4): g(f"v_add_f32 {v(ACC+j)}, {v(ACC+j)}, {v(TMP+j)}")
        for j in range(4): g(f"v_add_f32 {v(ACC+j)}, {v(ACC+j)}, {v(TMP+4+j)}")
        g(f"s_waitcnt lgkmcnt({first_wait})")
        for j in range(4): g(f"v_add_f32 {v(TMP+8+j)}, {v(TMP+8+j)}, {v(TMP+12+j)}")
        for j in range(4):
            g(f"""v_add_f32 {v(ACC+j)}, {v(ACC+j)}, {v(TMP+8+j)}
                  buffer_store_dword {v(ACC+j)}, {v(VO)}, {s(R_OUT,4)}, {s(S_U0 if j < 2 else S_U1)} offen offset:{(j&1)*2048}{self.o.get('out_pol',' sc1')}""")

    def final_piece(self, ct, ACC, TMP, VO, VL):
        g = self.g
        for q in range(4):
            g(f"ds_read_b128 {v(TMP+4*q,4)}, {v(VL + (q == 3))} offset:{(q % 3)*SLOT + ct*4096}")
        self.sum_store(ACC, TMP, VO, 1, ct, 0)

    def gather3(self, base, stride, dst, T):
        g = self.g
        for d in range(1, 4):
            g(f"""s_xor_b32 {s(S_U0)}, {s(S_WI)}, {d}
                  s_mul_i32 {s(S_U0)}, {s(S_U0)}, {stride}
                  s_add_u32 {s(S_U0)}, {s(S_U0)}, {base + (d-1)*4096}
                  v_lshl_add_u32 {v(T)}, v0, 4, {s(S_U0)}""")
            for q in range(4):
                g(f"ds_read_b128 {v(dst+16*(d-1)+4*q,4)}, {v(T)} offset:{q*1024}")

    def a_setup(self, VA, ks_base, per_wave, T):
        g = self.g
        g(f"""s_lshr_b32 {s(S_U0)}, {s(S_WI)}, 1
              s_mul_i32 {s(S_U1)}, {s(S_U0)}, {NKS*1024}
              s_sub_u32 {s(S_U2)}, {NKS*1024}, {s(S_U1)}
              v_lshl_add_u32 {v(VA)}, v0, 4, {s(S_U1)}
              v_lshl_add_u32 {v(VA+1)}, v0, 4, {s(S_U2)}
              s_mul_i32 {s(S_XO)}, {s(S_RT)}, {2*NKS}
              s_mul_i32 {s(S_U0)}, {s(S_WI)}, {per_wave}
              s_add_u32 {s(S_XO)}, {s(S_XO)}, {s(S_U0)}
              s_add_u32 {s(S_XO)}, {s(S_XO)}, {ks_base}
              s_lshl_b32 {s(S_XO)}, {s(S_XO)}, 10""")

    def p2_loop(self, n, VA, AB, A2, bsrc, pre, mid, soff, init0=False):
        g = self.g
        D = 6
        def aload(ks):
            if ks % 2 == 0: soff(ks)
            for rb in range(2):
                g(f"buffer_load_dwordx4 {v(AB+8*(ks%D)+4*rb,4)}, {v(VA+rb)}, {s(R_WS,4)}, {s(S_U0)} offen offset:{(ks%2)*1024} sc1")
        for ks in range(D): aload(ks)
        for ks in range(n):
            pre(ks)
            g(f"s_waitcnt vmcnt({2*(min(n, ks+D) - ks - 1)})")
            for rb in range(2):
                for ct in range(2):
                    d = A2 + 16*(2*rb+ct)
                    cc = "0" if ks == 0 and not (init0 and rb == 0 and ct == 0) else v(d, 16)
                    g(f"v_mfma_f32_32x32x16_bf16 {v(d,16)}, {v(AB+8*(ks%D)+4*rb,4)}, {v(bsrc(ks)+4*ct,4)}, {cc}")
                    if rb == 0 and ct == 0: mid(ks)
            if ks + D < n: aload(ks + D)
        g("s_nop 7\ns_nop 7")

    def swave(self):
        g = self.g; o = self.o
        BR = 128
        WR, WI_ = BR + 80, BR + 112
        UR, UI = 96, 112
        FR = 48
        XA, BA = 2, 6
        LA, LB = 10, 11
        L16, L128, W0, KA, GS = 12, 14, 16, 18, 20
        VCNT, VONE, VZ = 22, 23, 24
        SEGV, NLB = 25, 26
        VXS, VCS = 1, 27
        T = 28
        XS, CG = BR, BR + 2
        OP = BR + 4
        RSV = BR + 16
        VD, TRW, TRR, LB1, LB2, VW, VL16 = 36, 40, 41, 42, 43, 44, 47
        R_W1 = R_OUT
        self.mute = False
        g("L_SWAVE:")
        g.c("---------------- S wave ----------------")
        g(f"v_lshlrev_b32 {v(T+4)}, 4, v0")
        if o.get("codepf", 1):
            lp = g.lab("NOPF")
            g(f"""s_cmp_lg_u32 {s(S_WI)}, 0
                  s_cbranch_scc1 {lp}
                  s_getpc_b64 {s(R_B,2)}""")
            g("L_PC:")
            g(f"""s_sub_u32 {s(R_B)}, {s(R_B)}, L_PC-{NAME}_kernel
                  s_subb_u32 {s(R_B+1)}, {s(R_B+1)}, 0
                  s_mov_b32 {s(R_B+2)}, L_CODE_END-{NAME}_kernel
                  s_mov_b32 {s(R_B+3)}, 0x20000
                  s_lshr_b32 {s(S_U0)}, s2, 3
                  s_lshl_b32 {s(S_U0)}, {s(S_U0)}, 10
                  buffer_load_dwordx4 {v(FR+12,4)}, {v(T+4)}, {s(R_B,4)}, {s(S_U0)} offen""")
            g(f"{lp}:")
        g(f"""
              s_lshl_b32 {s(S_T0)}, {s(S_MT)}, 7
              s_lshl_b32 {s(S_T1)}, {s(S_G)}, 3
              s_add_u32 {s(S_T0)}, {s(S_T0)}, {s(S_T1)}
              s_lshl_b32 {s(S_T1)}, {s(S_WI)}, 1
              s_add_u32 {s(S_T0)}, {s(S_T0)}, {s(S_T1)}
              s_lshl_b32 {s(S_U0)}, {s(S_T0)}, 10
              s_lshl_b32 {s(S_T1)}, {s(S_MT)}, 2
              s_add_u32 {s(S_T1)}, {s(S_T1)}, {s(S_WI)}
              s_and_b32 {s(S_U1)}, {s(S_T1)}, 31
              s_lshl_b32 {s(S_U2)}, {s(S_G)}, 5
              s_add_u32 {s(S_U1)}, {s(S_U1)}, {s(S_U2)}
              s_lshl_b32 {s(S_U1)}, {s(S_U1)}, 10
              s_mov_b32 {s(R_X+2)}, {hex(2048*512*2)}
              s_mov_b32 {s(R_X+3)}, 0x20000
              s_mov_b32 {s(R_A+2)}, {hex(512*512*2)}
              s_mov_b32 {s(R_A+3)}, 0x20000
              v_and_b32 {v(T)}, 31, v0
              v_lshlrev_b32 {v(T)}, 1, {v(T)}
              s_lshl_b32 {s(S_U2)}, {s(S_G)}, 6
              v_add_u32 {v(T)}, {s(S_U2)}, {v(T)}
              s_cmp_ge_u32 {s(S_MT)}, 8
              s_waitcnt lgkmcnt(0)
              s_mov_b32 {s(R_X)}, {s(P_X)}
              s_mov_b32 {s(R_X+1)}, {s(P_X+1)}
              s_cselect_b32 {s(R_A)}, {s(P_BIM)}, {s(P_BRE)}
              s_cselect_b32 {s(R_A+1)}, {s(P_BIM+1)}, {s(P_BRE+1)}
              buffer_load_dwordx4 {v(FR,4)}, {v(T+4)}, {s(R_X,4)}, {s(S_U0)} offen
              buffer_load_dwordx4 {v(FR+4,4)}, {v(T+4)}, {s(R_X,4)}, {s(S_U0)} offen offset:1024
              buffer_load_dwordx4 {v(FR+8,4)}, {v(T+4)}, {s(R_A,4)}, {s(S_U1)} offen
              global_load_ushort {v(T+1)}, {v(T)}, {s(P_LRE,2)}
              global_load_ushort {v(T+2)}, {v(T)}, {s(P_LIM,2)}
              global_load_ushort {v(T+3)}, {v(T)}, {s(P_LDT,2)}""")
        self.epoch()
        pfpos = o.get("pf", {"1": -1, "c": 6, "2": 6})
        RP = R_OUT
        def pf_emit(pos, VL):
            n = 0
            for key in "1c2":
                if pfpos.get(key) != pos: continue
                g(f"""s_lshl_b32 {s(S_U0)}, s2, 2
                      s_add_u32 {s(S_U0)}, {s(S_U0)}, {s(S_WI)}
                      s_lshl_b32 {s(S_U0)}, {s(S_U0)}, 10
                      s_mov_b32 {s(RP+3)}, 0x20000""")
                if key == "c":
                    g(f"""s_bitcmp1_b32 {s(S_WI)}, 0
                      s_cselect_b32 {s(RP)}, {s(P_CIM)}, {s(P_CRE)}
                      s_cselect_b32 {s(RP+1)}, {s(P_CIM+1)}, {s(P_CRE+1)}
                      s_mov_b32 {s(RP+2)}, {hex(512*1024)}
                      s_lshr_b32 {s(S_U1)}, {s(S_U0)}, 11
                      s_lshl_b32 {s(S_U1)}, {s(S_U1)}, 10
                      buffer_load_dwordx4 {v(BR+56,4)}, {v(VL)}, {s(RP,4)}, {s(S_U1)} offen""")
                    n += 1
                else:
                    P_ = P_W1 if key == "1" else P_W2
                    d = BR + (48 if key == "1" else 60)
                    g(f"""s_mov_b32 {s(RP)}, {s(P_)}
                      s_mov_b32 {s(RP+1)}, {s(P_+1)}
                      s_mov_b32 {s(RP+2)}, {hex(1376*1024)}
                      s_xor_b32 {s(S_U1)}, {s(S_WI)}, {0 if key == "1" else 3}
                      s_lshl_b32 {s(S_U1)}, {s(S_U1)}, 8
                      s_add_u32 {s(S_U1)}, {s(S_U1)}, s2
                      s_lshl_b32 {s(S_U1)}, {s(S_U1)}, 10
                      s_add_u32 {s(S_U1)}, {s(S_U1)}, {1 << 20}
                      buffer_load_dwordx4 {v(d,4)}, {v(VL)}, {s(RP,4)}, {s(S_U0)} offen
                      buffer_load_dwordx4 {v(d+4,4)}, {v(VL)}, {s(RP,4)}, {s(S_U1)} offen""")
                    n += 2
            return n
        npf_ = pf_emit(-1, T+4)
        g.c("@@SREST")
        self.cnt_regs(VCNT, VONE)
        g(f"""v_mov_b32 {v(VZ)}, 0
              v_lshlrev_b32 {v(T+5)}, 2, v0
              v_add_u32 {v(T+5)}, {L_CNT}, {v(T+5)}
              ds_write_b32 {v(T+5)}, {v(VZ)}
              s_mov_b32 {s(S_ONES)}, 0x3f803f80""")
        srd(g, R_WS, P_WS, WS_BYTES); srd(g, R_W2, P_W2, 1376 * 512 * 2)
        self.frag_pat(BA, T+6, T+7, False)
        g(f"s_lshl_b32 {s(S_T3)}, {s(S_WI)}, 12")
        for k in range(4):
            g(f"v_add_u32 {v(XA+k)}, {s(S_T3)}, {v(BA+k)}\nv_add_u32 {v(BA+k)}, 16384, {v(BA+k)}")
        for r in (2, 3, 6, 7, 10, 11): g(f"v_mov_b32 {v(OP+r)}, 0")
        self.tau(VXS, T+6)
        A5 = BR + 32
        SO = BR + 38
        g(f"""s_lshl_b32 {s(S_U0)}, {s(S_MT)}, 10
              s_lshl_b32 {s(S_U1)}, {s(S_WI)}, 8
              s_add_u32 {s(S_U0)}, {s(S_U0)}, {s(S_U1)}
              s_add_u32 {s(S_U0)}, {s(S_U0)}, {hex(WS_XS)}
              v_lshl_add_u32 {v(VXS)}, {v(VXS)}, 3, {s(S_U0)}
              s_lshl_b32 {s(S_T4)}, {s(S_G)}, 9
              s_add_u32 {s(S_T4)}, {s(S_T4)}, {hex(WS_CSG)}
              v_lshl_add_u32 {v(VCS)}, v0, 3, {s(S_T4)}
              v_lshrrev_b32 {v(SEGV)}, 5, v0
              v_lshlrev_b32 {v(SO)}, 3, {v(SEGV)}
              s_lshl_b32 {s(S_U0)}, {s(S_WI)}, 1
              v_add_u32 {v(SEGV)}, {s(S_U0)}, {v(SEGV)}""")
        for k in range(5): g(f"v_mov_b32 {v(A5+k)}, 0")
        g(f"""s_lshl_b32 {s(S_V1)}, {s(S_T0)}, 3
              s_add_u32 {s(S_V1)}, {s(S_V1)}, {hex(WS_XS)}
              s_lshl_b32 {s(S_XO)}, {s(S_T1)}, 3
              s_add_u32 {s(S_XO)}, {s(S_XO)}, {s(S_T4)}""")
        TB = BR + 40
        def addrs():
            self.lane8_pat(TB, TB+1, TB+2)
            g(f"""v_lshl_or_b32 {v(VD)}, {v(TB+1)}, 10, {v(TB)}
              v_add_u32 {v(VD+1)}, 7168, {v(VD)}
              v_xor_b32 {v(VD+1)}, 64, {v(VD+1)}
              v_add_u32 {v(VD+2)}, {2*7168}, {v(VD)}
              v_add_u32 {v(VD+3)}, {2*7168}, {v(VD+1)}
              s_mul_i32 {s(S_T2)}, {s(S_WI)}, 12288
              s_lshl_b32 {s(S_WO)}, {s(S_NT)}, 16
              s_lshl_b32 {s(S_U1)}, {s(S_WI)}, 8
              s_add_u32 {s(S_WO)}, {s(S_WO)}, {s(S_U1)}
              s_and_b32 {s(S_U1)}, {s(S_ROT)}, 2
              s_lshl_b32 {s(S_U1)}, {s(S_U1)}, 6
              s_add_u32 {s(S_WO)}, {s(S_WO)}, {s(S_U1)}
              s_and_b32 {s(S_U1)}, {s(S_WI)}, 1
              s_lshl_b32 {s(S_U1)}, {s(S_U1)}, 15
              s_xor_b32 {s(S_BO)}, {s(S_U1)}, 0x8000
              s_add_u32 {s(S_BO)}, {s(S_BO)}, {s(S_WO)}
              s_add_u32 {s(S_WO)}, {s(S_WO)}, {s(S_U1)}
              v_and_b32 {v(TB)}, 31, v0
              v_lshlrev_b32 {v(TB+1)}, 1, {v(SEGV)}
              v_sub_u32 {v(TB+1)}, {s(S_MT)}, {v(TB+1)}
              v_cmp_le_i32 {s(S_EX,2)}, 1, {v(TB+1)}
              v_cmp_le_i32 {s(S_MK,2)}, 2, {v(TB+1)}
              v_lshlrev_b32 {v(TB+1)}, 9, {v(TB+1)}
              v_lshl_add_u32 {v(TB+1)}, {v(TB)}, 4, {v(TB+1)}
              v_subrev_u32 {v(LB1)}, 512, {v(TB+1)}
              v_subrev_u32 {v(LB2)}, 1024, {v(TB+1)}
              v_mov_b32 {v(TB+2)}, 0x40000000
              v_cndmask_b32 {v(LB1)}, {v(TB+2)}, {v(LB1)}, {s(S_EX,2)}
              v_cndmask_b32 {v(LB2)}, {v(TB+2)}, {v(LB2)}, {s(S_MK,2)}
              s_lshl_b32 {s(S_U0)}, {s(S_WI)}, 11
              s_add_u32 {s(S_U0)}, {s(S_U0)}, {L_TR}
              v_lshl_add_u32 {v(TRW)}, {v(TB)}, 6, {s(S_U0)}
              v_and_b32 {v(TRR)}, 32, v0
              v_add_u32 {v(TRW)}, {v(TRW)}, {v(TRR)}
              v_lshlrev_b32 {v(TRR)}, 4, {v(TRR)}
              v_bfe_u32 {v(TB+3)}, v0, 2, 2
              v_lshl_add_u32 {v(TRR)}, {v(TB+3)}, 6, {v(TRR)}
              v_and_b32 {v(TB+3)}, 1, v0
              v_lshl_add_u32 {v(TRR)}, {v(TB+3)}, 5, {v(TRR)}
              v_and_b32 {v(TB+3)}, 16, v0
              v_add_u32 {v(TRR)}, {v(TRR)}, {v(TB+3)}
              v_and_b32 {v(TB+3)}, 2, v0
              v_lshl_add_u32 {v(TRR)}, {v(TB+3)}, 2, {v(TRR)}
              v_add_u32 {v(TRR)}, {s(S_U0)}, {v(TRR)}
              v_and_b32 {v(TB+3)}, 6, v0
              v_lshlrev_b32 {v(TB+3)}, 3, {v(TB+3)}
              v_xor_b32 {v(TRW)}, {v(TRW)}, {v(TB+3)}
              v_xor_b32 {v(VW)}, 16, {v(TRW)}
              v_and_b32 {v(TB+3)}, 8, v0
              v_lshlrev_b32 {v(TB+3)}, 1, {v(TB+3)}
              v_xor_b32 {v(TRR)}, {v(TRR)}, {v(TB+3)}
              v_xor_b32 {v(VW+1)}, 32, {v(TRR)}
              v_lshlrev_b32 {v(VL16)}, 4, v0
              s_lshl_b32 {s(S_U0)}, {s(S_MT)}, 2
              s_add_u32 {s(S_U0)}, {s(S_U0)}, {s(S_WI)}
              s_mul_i32 {s(S_U0)}, {s(S_U0)}, {NKS}
              s_lshl_b32 {s(S_U1)}, {s(S_G)}, 2
              s_add_u32 {s(S_U0)}, {s(S_U0)}, {s(S_U1)}
              s_lshl_b32 {s(S_T0)}, {s(S_U0)}, 10""")
        addrs()
        g(f"s_waitcnt vmcnt({npf_}) lgkmcnt(0)")
        self.epoch_fin()
        for k in range(4):
            g(f"""v_dot2c_f32_bf16 {v(A5)}, {s(S_ONES)}, {v(FR+k)}
                  v_dot2c_f32_bf16 {v(A5+1)}, {s(S_ONES)}, {v(FR+4+k)}
                  v_dot2c_f32_bf16 {v(A5+2)}, {v(FR+k)}, {v(FR+k)}
                  v_dot2c_f32_bf16 {v(A5+3)}, {v(FR+4+k)}, {v(FR+4+k)}
                  v_dot2c_f32_bf16 {v(A5+4)}, {s(S_ONES)}, {v(FR+8+k)}""")
        SX, SQ, CC = A5, A5+2, A5+4
        def stats():
            g(f"""s_nop 2
              v_mov_b32 {v(A5+5)}, {v(CC)}
              v_permlane32_swap_b32 {v(A5)}, {v(A5+1)}
              v_permlane32_swap_b32 {v(A5+2)}, {v(A5+3)}
              v_permlane32_swap_b32 {v(CC)}, {v(A5+5)}
              v_add_f32 {v(SX)}, {v(A5)}, {v(A5+1)}
              v_add_f32 {v(SQ)}, {v(A5+2)}, {v(A5+3)}
              v_add_f32 {v(CC)}, {v(CC)}, {v(A5+5)}
              v_mov_b32 {v(SX+1)}, {v(SX)}
              v_mov_b32 {v(SQ+1)}, {v(SQ)}
              v_mov_b32 {v(CC+1)}, {v(CC)}
              v_permlane16_swap_b32 {v(SX)}, {v(SX+1)}
              s_nop 0
              v_permlane16_swap_b32 {v(SQ)}, {v(SQ+1)}
              v_permlane16_swap_b32 {v(CC)}, {v(CC+1)}
              v_add_f32 {v(SX)}, {v(SX)}, {v(SX+1)}
              v_add_f32 {v(SQ)}, {v(SQ)}, {v(SQ+1)}
              v_add_f32 {v(CC)}, {v(CC)}, {v(CC+1)}""")
            for m in ("quad_perm:[1,0,3,2]", "quad_perm:[2,3,0,1]", "row_half_mirror", "row_mirror"):
                for r in (SX, SQ, CC):
                    g(f"v_add_f32_dpp {v(r)}, {v(r)}, {v(r)} {m} row_mask:0xf bank_mask:0xf")
            g(f"""v_mul_f32 {v(SX)}, 0x3b000000, {v(SX)}
              v_mul_f32 {v(SQ)}, 0x3b000000, {v(SQ)}
              v_fma_f32 {v(SQ)}, -{v(SX)}, {v(SX)}, {v(SQ)}
              v_max_f32 {v(SQ)}, 0, {v(SQ)}
              v_cvt_pk_bf16_f32 {v(SQ)}, {v(SQ)}, {v(SQ)}
              v_and_b32 {v(SQ)}, 0xffff0000, {v(SQ)}
              v_add_f32 {v(SQ)}, 0x3727c5ac, {v(SQ)}
              v_cvt_pk_bf16_f32 {v(SQ)}, {v(SQ)}, {v(SQ)}
              v_and_b32 {v(SQ)}, 0xffff0000, {v(SQ)}
              v_sqrt_f32 {v(SQ)}, {v(SQ)}
              v_mov_b32 {v(SX+1)}, {s(S_TAG)}
              v_mov_b32 {v(CC+1)}, {s(S_TAG)}
              v_cvt_pk_bf16_f32 {v(SX)}, {v(SX)}, {v(SQ)}
              ; {{
              s_mov_b32 exec_lo, 1
              s_mov_b32 exec_hi, 1
              buffer_store_dwordx2 {v(SX,2)}, {v(SO)}, {s(R_WS,4)}, {s(S_V1)} offen sc1
              s_mov_b32 exec_hi, 0
              buffer_store_dwordx2 {v(CC,2)}, {v(VZ)}, {s(R_WS,4)}, {s(S_XO)} offen sc1
              s_mov_b64 exec, -1
              ; }}""")
            g(f"""; {{
              s_bitcmp1_b32 {s(S_ROT)}, 0
              s_cselect_b32 {s(R_A)}, {s(P_CIM)}, {s(P_CRE)}
              s_cselect_b32 {s(R_A+1)}, {s(P_CIM+1)}, {s(P_CRE+1)}
              s_cselect_b32 {s(R_B)}, {s(P_CRE)}, {s(P_CIM)}
              s_cselect_b32 {s(R_B+1)}, {s(P_CRE+1)}, {s(P_CIM+1)}
              ; }}
              s_mov_b32 {s(R_B+2)}, {hex(512*512*2)}
              s_mov_b32 {s(R_B+3)}, 0x20000""")

        lr, li, dt = T+1, T+2, T+3
        def consts():
            g(f"""v_lshlrev_b32 {v(lr)}, 16, {v(lr)}
              v_lshlrev_b32 {v(li)}, 16, {v(li)}
              v_lshlrev_b32 {v(dt)}, 16, {v(dt)}
              v_mul_f32 {v(dt)}, 0x3fb8aa3b, {v(dt)}
              v_exp_f32 {v(dt)}, {v(dt)}
              s_nop 0
              v_cvt_pk_bf16_f32 {v(dt)}, {v(dt)}, {v(dt)}
              v_and_b32 {v(dt)}, 0xffff0000, {v(dt)}
              v_mul_f32 {v(T+4)}, {v(dt)}, {v(lr)}
              v_mul_f32 {v(T+5)}, {v(dt)}, {v(li)}
              v_mul_f32 {v(T+4)}, 0x3fb8aa3b, {v(T+4)}
              v_mul_f32 {v(T+5)}, 0.15915494, {v(T+5)}
              v_rndne_f32 {v(T+6)}, {v(T+5)}
              v_sub_f32 {v(T+5)}, {v(T+5)}, {v(T+6)}
              v_exp_f32 {v(T+4)}, {v(T+4)}
              v_cos_f32 {v(T+6)}, {v(T+5)}
              v_sin_f32 {v(T+7)}, {v(T+5)}
              v_mul_f32 {v(TB)}, {v(lr)}, {v(lr)}
              v_mul_f32 {v(LA)}, {v(T+4)}, {v(T+6)}
              v_mul_f32 {v(LB)}, {v(T+4)}, {v(T+7)}
              v_fmac_f32 {v(TB)}, {v(li)}, {v(li)}
              v_rcp_f32 {v(TB)}, {v(TB)}
              v_add_f32 {v(T+4)}, -1.0, {v(LA)}
              v_mul_f32 {v(KA)}, {v(T+4)}, {v(lr)}
              v_mul_f32 {v(KA+1)}, {v(LB)}, {v(lr)}
              v_fmac_f32 {v(KA)}, {v(LB)}, {v(li)}
              v_fma_f32 {v(KA+1)}, -{v(T+4)}, {v(li)}, {v(KA+1)}
              v_add_f32 {v(TB)}, {v(TB)}, {v(TB)}
              v_mul_f32 {v(KA)}, {v(KA)}, {v(TB)}
              v_mul_f32 {v(KA+1)}, {v(KA+1)}, {v(TB)}
              v_sub_f32 {v(NLB)}, 0, {v(LB)}""")
            a, b, c2 = T, T+2, T+4
            sq = lambda d, x: self.cmul(d, d+1, x, x+1, x, x+1)
            sq(a, LA); sq(b, a); sq(a, b); sq(L16, a)
            sq(a, L16); sq(b, a); sq(L128, b)
            g(f"""v_cmp_lt_u32 vcc, 31, v0
              s_nop 1
              v_cndmask_b32 {v(GS)}, 1.0, {v(L16)}, vcc
              v_cndmask_b32 {v(GS+1)}, 0, {v(L16+1)}, vcc
              ; {{
              s_bitcmp1_b32 {s(S_WI)}, 0
              s_cselect_b64 vcc, -1, 0
              ; }}
              v_cndmask_b32 {v(a)}, 1.0, {v(a)}, vcc
              v_cndmask_b32 {v(a+1)}, 0, {v(a+1)}, vcc
              ; {{
              s_bitcmp1_b32 {s(S_WI)}, 1
              s_cselect_b64 vcc, -1, 0
              ; }}
              v_cndmask_b32 {v(b)}, 1.0, {v(b)}, vcc
              v_cndmask_b32 {v(b+1)}, 0, {v(b+1)}, vcc""")
            self.cmul(c2, c2+1, GS, GS+1, a, a+1)
            self.cmul(GS, GS+1, c2, c2+1, b, b+1)
            sq(a, GS); sq(b, a); sq(a, b); sq(W0, a)
        def table():
            pr_, pi_ = KA, KA+1
            for j in range(16):
                g(f"""v_mul_f32 {v(WR+j)}, {v(LA)}, {v(pr_)}
                      v_mul_f32 {v(WI_+j)}, {v(LA)}, {v(pi_)}
                      v_fmac_f32 {v(WR+j)}, {v(NLB)}, {v(pi_)}
                      v_fmac_f32 {v(WI_+j)}, {v(LB)}, {v(pr_)}""")
                pr_, pi_ = WR+j, WI_+j
        fill = self.collect(lambda: (stats(), consts(), table()))
        take = lambda n: self.take(fill, n)
        self.stamp(1)

        NF = o.get("nfill", 7)
        g.c("stage A")
        if o.get("sprio", 1): g("s_setprio 2")
        def rd(k, off):
            f = FR + 12*k
            if o.get("x_nord"): return
            g(f"""ds_read_b128 {v(f,4)}, {v(XA+k)} offset:{off}
                  ds_read_b128 {v(f+4,4)}, {v(BA+k)} offset:{off}
                  ds_read_b128 {v(f+8,4)}, {v(BA+k)} offset:{off+4096}""")
        def m1(k, im):
            f = FR + 12*k; d = UI if im else UR
            if o.get("x_nomfma"): return
            cc = v(d,16) if started[im] else "0"
            started[im] = True
            g(f"v_mfma_f32_32x32x16_bf16 {v(d,16)}, {v(f,4)}, {v(f+4+4*im,4)}, {cc}")
        started = [False, False]
        late = 0
        gl = f"""buffer_load_dwordx2 {v(XS,2)}, {v(VXS)}, {s(R_WS,4)}, 0 offen sc1
                 buffer_load_dwordx2 {v(CG,2)}, {v(VCS)}, {s(R_WS,4)}, 0 offen sc1"""
        for c in range(8):
            off = (c % 3) * SLOT
            if c in (3, 6):
                op = "v_add_u32" if c == 3 else "v_subrev_u32"
                for k in range(8): g(f"{op} {v(XA+k)}, {3*SLOT}, {v(XA+k)}")
            g("s_barrier")
            rd(0, off); rd(1, off)
            if c == o.get("gl_at", 6): g(gl); late = 0
            late += pf_emit(c, VL16)
            if c:
                g("s_waitcnt lgkmcnt(6)")
                m1(2, 0); take(NF); m1(2, 1); rd(2, off); m1(3, 0); take(NF); m1(3, 1); rd(3, off)
            else:
                rd(2, off); rd(3, off)
            if c < 7:
                g("s_waitcnt lgkmcnt(9)")
                m1(0, 0); take(NF); m1(0, 1); take(NF)
                g("s_waitcnt lgkmcnt(6)")
                m1(1, 0); take(NF); m1(1, 1); take(NF)
        take(1000)
        g("s_waitcnt lgkmcnt(9)")
        m1(0, 0)
        self.recheck(gl, [XS+1, CG+1], late)
        m1(0, 1)
        g(f"""v_and_b32 {v(T+1)}, 0xffff0000, {v(XS)}
              v_rcp_f32 {v(T+1)}, {v(T+1)}
              v_lshrrev_b32 {v(T+2)}, 1, {v(VXS)}
              v_and_b32 {v(T+2)}, 0x1fc, {v(T+2)}
              v_add_u32 {v(T+2)}, {L_RS}, {v(T+2)}
              s_waitcnt lgkmcnt(6)""")
        m1(1, 0)
        g(f"""ds_write_b32 {v(T+2)}, {v(T+1)}
              v_lshlrev_b32 {v(T+3)}, 6, {v(SEGV)}
              v_add_u32 {v(T+3)}, {L_RS}, {v(T+3)}
              v_lshlrev_b32 {v(T+4)}, 16, {v(XS)}""")
        m1(1, 1)
        for k in range(4): g(f"ds_read_b128 {v(RSV+4*k,4)}, {v(T+3)} offset:{16*k}")
        g(f"""v_cvt_pk_bf16_f32 {v(OP)}, -{v(T+4)}, -{v(T+4)}
              s_waitcnt lgkmcnt(8)""")
        m1(2, 0)
        self.split3(CG, T+6, T+7, T+4, T+5)
        m1(2, 1)
        g(f"""v_cmp_gt_u32 vcc, 32, v0
              v_mov_b32 {v(OP+1)}, {v(OP)}
              v_and_b32 {v(T)}, 31, v0
              v_cndmask_b32 {v(OP+4)}, 0, {v(T+6)}, vcc
              v_cndmask_b32 {v(OP+5)}, 0, {v(T+7)}, vcc
              s_waitcnt lgkmcnt(5)""")
        m1(3, 0)
        g(f"""v_cndmask_b32 {v(OP+8)}, {v(T+6)}, {v(VZ)}, vcc
              v_cndmask_b32 {v(OP+9)}, {v(T+7)}, {v(VZ)}, vcc
              v_lshlrev_b32 {v(T+4)}, 3, {v(T)}
              v_add_u32 {v(T+4)}, {L_SEG}, {v(T+4)}
              v_lshl_add_u32 {v(T+5)}, {v(SEGV)}, 8, {v(T+4)}
              v_mfma_f32_32x32x16_bf16 {v(UR,16)}, {v(OP,4)}, {v(OP+4,4)}, {v(UR,16)}""")
        m1(3, 1)
        g(f"v_mfma_f32_32x32x16_bf16 {v(UI,16)}, {v(OP,4)}, {v(OP+8,4)}, {v(UI,16)}")
        self.stamp(2)
        if o.get("x_park"):
            g("s_sleep 100")
        g(f"""v_lshlrev_b32 {v(T+6)}, 4, {v(T)}
              s_lshl_b32 {s(S_T4)}, {s(S_G)}, 13
              s_add_u32 {s(S_T4)}, {s(S_T4)}, {hex(WS_AGG)}
              s_lshl_b32 {s(S_U0)}, {s(S_MT)}, 9
              s_add_u32 {s(S_U0)}, {s(S_U0)}, {s(S_T4)}
              s_waitcnt lgkmcnt(0)
              s_nop 3""")
        for r in range(16): g(f"v_mul_f32 {v(UR+r)}, {v(UR+r)}, {v(RSV+r)}")
        for r in range(16): g(f"v_mul_f32 {v(UI+r)}, {v(UI+r)}, {v(RSV+r)}")
        for r in range(1, 16):
            g(f"""v_fmac_f32 {v(UR+r)}, {v(LA)}, {v(UR+r-1)}
                  v_fmac_f32 {v(UI+r)}, {v(LA)}, {v(UI+r-1)}
                  v_fmac_f32 {v(UR+r)}, {v(NLB)}, {v(UI+r-1)}
                  v_fmac_f32 {v(UI+r)}, {v(LB)}, {v(UR+r-1)}""")
        g(f"""s_lshl_b32 {s(S_U1)}, {s(S_WI)}, 7
              s_add_u32 {s(S_U1)}, {s(S_U1)}, {L_NM}
              v_lshl_add_u32 {v(T+1)}, {v(T)}, 2, {s(S_U1)}
              ds_write2_b32 {v(T+5)}, {v(UR+15)}, {v(UI+15)} offset0:0 offset1:1
              ds_write_b32 {v(T+1)}, {v(XS)}""")
        self.signal_cnt(C_S1, VCNT, VONE)
        E = FR
        g(f"""v_sub_f32 {v(T+7)}, 0, {v(L16+1)}
              v_mov_b32 {v(E+16)}, {s(S_TAG)}
              v_mov_b32 {v(E+17)}, {s(S_TAG)}""")
        self.stamp(3)
        rds = "\n".join(f"ds_read_b64 {v(E+2*k,2)}, {v(T+4)} offset:{256*k}" for k in range(8))
        self.spin_cnt(C_S1, VCNT, T+1, rds, tgt=8)
        for k in range(1, 8):
            g(f"""v_fmac_f32 {v(E+2*k)}, {v(L16)}, {v(E+2*k-2)}
                  v_fmac_f32 {v(E+2*k+1)}, {v(L16)}, {v(E+2*k-1)}
                  v_fmac_f32 {v(E+2*k)}, {v(T+7)}, {v(E+2*k-1)}
                  v_fmac_f32 {v(E+2*k+1)}, {v(L16+1)}, {v(E+2*k-2)}""")
        lnp = g.lab("NOPUB")
        g(f"""s_cmp_lg_u32 {s(S_WI)}, 0
              s_cbranch_scc1 {lnp}
              s_mov_b32 exec_hi, 0
              buffer_store_dwordx4 {v(E+14,4)}, {v(T+6)}, {s(R_WS,4)}, {s(S_U0)} offen sc1
              s_mov_b64 exec, -1""")
        g(f"{lnp}:")
        if o.get("sprio", 1): g("s_setprio 0")
        self.stamp(4)
        PC = BA
        hps = [(part, kh, ct) for kh in range(2) for part in range(2) for ct in range(2)]
        def c_issue(i):
            part, kh, ct = hps[i]
            g(f"""s_add_u32 m0, {s(S_T2)}, {(i%3)*4096}
                  s_xor_b32 {s(S_U1)}, {s(S_BO if ct else S_WO)}, {128*kh}""")
            for e in range(4):
                g(f"buffer_load_dwordx4 {v(VD+e)}, {s(R_B if part else R_A,4)}, {s(S_U1)} offen offset:{1024*e} lds")
        def c_read(i):
            part, kh, ct = hps[i]
            for k in range(4):
                gi = 2*kh + (k >> 1); cb = k & 1
                ks = 4*gi + 2*part + cb
                g(f"ds_read_b128 {v(BR+8*ks+4*ct,4)}, {v(PC+k)} offset:{(i%3)*4096}")
        PP, NG, TT = FR + 32, FR + 34, FR + 36
        def idle_a():
            g(f"""s_sub_u32 {s(S_U0)}, {s(S_T2)}, 16384
                  v_mov_b32 {v(PP)}, 0
                  v_mov_b32 {v(PP+1)}, 0
                  v_sub_f32 {v(NG)}, 0, {v(KA+1)}
                  v_add_u32 {v(T+5)}, {L_LBP - L_SEG}, {v(T+5)}
                  v_add_u32 {v(T+4)}, {L_LBP - L_SEG}, {v(T+4)}""")
            for k in range(4): g(f"v_add_u32 {v(PC+k)}, {s(S_U0)}, {v(PC+k)}")
        def kap(r):
            t = TT + (r & 1)
            if 1 <= r < 8: g(f"v_cmp_eq_u32 vcc, {r}, {v(SEGV)}")
            g(f"""v_mul_f32 {v(t)}, {v(KA+1)}, {v(UR+r)}
                  v_mul_f32 {v(UR+r)}, {v(KA)}, {v(UR+r)}
                  v_fmac_f32 {v(UR+r)}, {v(NG)}, {v(UI+r)}
                  v_fma_f32 {v(UI+r)}, {v(KA)}, {v(UI+r)}, {v(t)}""")
            if 1 <= r < 8:
                g(f"""v_cndmask_b32 {v(PP)}, {v(PP)}, {v(E+2*r-2)}, vcc
                      v_cndmask_b32 {v(PP+1)}, {v(PP+1)}, {v(E+2*r-1)}, vcc""")
        idle_a()
        VD2 = 2
        self.w2_voff(VD2, T+1); self.w2_coop_setup(S_T3, S_T1)
        c_issue(0)
        for r in range(0, 5): kap(r)
        c_issue(1)
        for r in range(5, 10): kap(r)
        c_issue(2)
        for r in range(10, 16): kap(r)
        LBn = FR + 20
        lbl = f"""buffer_load_dwordx4 {v(LBn,4)}, {v(LB1)}, {s(R_WS,4)}, {s(S_T4)} offen sc1
                  buffer_load_dwordx4 {v(LBn+4,4)}, {v(LB2)}, {s(R_WS,4)}, {s(S_T4)} offen sc1"""
        nrec = o.get("c_rec", 3)
        self.stamp(5)
        g(lbl)
        for i in range(nrec):
            g(f"s_waitcnt vmcnt(10)")
            c_read(i)
            g("s_waitcnt lgkmcnt(0)")
            c_issue(i + 3)
        assert nrec == 3
        r0lb = o.get("r0_lb", 1)
        if r0lb:
            self.spin_cnt(C_PD, VCNT, T+1)
            for ins in self.w2_coop(VD2, S_T3, S_T1, 0): g(ins)
        l = g.lab("LB"); d = g.lab("LBD")
        g(f"""s_mov_b32 {s(S_SPIN)}, 0x40000
              s_waitcnt vmcnt({4*nrec + 6*r0lb})""")
        g(f"{l}:")
        g(f"""v_cmp_ne_u32 vcc, {s(S_TAG)}, {v(LBn+2)}
              v_cmp_ne_u32 s[100:101], {s(S_TAG)}, {v(LBn+6)}
              s_and_b64 vcc, vcc, {s(S_EX,2)}
              s_and_b64 s[100:101], s[100:101], {s(S_MK,2)}
              s_or_b64 vcc, vcc, s[100:101]
              s_cbranch_scc0 {d}
              s_sub_u32 {s(S_SPIN)}, {s(S_SPIN)}, 1
              s_cbranch_scc1 {d}
              s_sleep {o.get('lb_sleep', 2)}""")
        g(lbl)
        g(f"s_waitcnt vmcnt(0)\ns_branch {l}")
        g(f"{d}:")
        if o.get("sprio", 1): g("s_setprio 2")
        self.stamp(6)
        self.cfma(LBn, LBn+1, L128, L128+1, LBn+4, LBn+5, LBn, LBn+1)
        self.cmul(LBn+2, LBn+3, W0, W0+1, LBn, LBn+1)
        g(f"ds_write_b64 {v(T+5)}, {v(LBn+2,2)}")
        self.signal_cnt(C_S2, VCNT, VONE)
        spr = o.get("post_spr", 1)
        if spr:
            g(f"s_waitcnt vmcnt({4 + 6*r0lb})")
            c_read(3); c_read(4)
            g("s_waitcnt lgkmcnt(5)")
        self.spin_cnt(C_S2, VCNT, T+1, rds)
        sp = self.collect(lambda: (c_issue(6), c_issue(7))) if spr else []
        def spr1():
            while sp:
                it = sp.pop(0); g.L += it
                if "buffer_load" in it[0]: break
        if o.get("pdetail"): self.mute = True; self.stamp(7, True)
        for w in (4, 2, 1):
            for k in range(w):
                g(f"v_add_f32 {v(E+2*k)}, {v(E+2*k)}, {v(E+2*k+2*w)}\nv_add_f32 {v(E+2*k+1)}, {v(E+2*k+1)}, {v(E+2*k+2*w+1)}")
        self.cfma(PP, PP+1, GS, GS+1, E, E+1, PP, PP+1)
        g(f"v_sub_f32 {v(NG)}, 0, {v(PP+1)}")
        H = FR; O = FR + 16
        for part in range(2):
            U = UI if part else UR
            c1, c2_ = (PP+1, PP) if part else (PP, NG)
            for r in range(16):
                if r % 8 == 0: spr1()
                g(f"v_fmac_f32 {v(U+r)}, {v(WR+r)}, {v(c1)}")
            if part:
                g("s_waitcnt lgkmcnt(0)")
                if o.get("pdetail"): self.stamp(8, True)
                for cb in range(2):
                    g(f"buffer_store_dwordx4 {v(O+4*cb,4)}, {v(VL16)}, {s(R_WS,4)}, {s(S_T0)} offen offset:{cb*1024} sc1")
                if o.get("pdetail"): self.stamp(9, True)
            for r in range(16):
                if r % 8 == 0: spr1()
                g(f"v_fmac_f32 {v(U+r)}, {v(WI_+r)}, {v(c2_)}")
            ng = "-" if part else ""
            for i in range(8): g(f"v_cvt_pk_bf16_f32 {v(H+8*part+i)}, {ng}{v(U+2*i)}, {ng}{v(U+2*i+1)}")
            g(f"""ds_write_b128 {v(TRW)}, {v(H+8*part,4)}
                  ds_write_b128 {v(VW)}, {v(H+8*part+4,4)}""")
            for cb in range(2):
                for u in range(2):
                    g(f"ds_read_b64_tr_b16 {v(O+8*part+4*cb+2*u,2)}, {v(VW+1 if u else TRR)} offset:{cb*1024+u*256}")
        g("s_waitcnt lgkmcnt(0)")
        if o.get("pdetail"): self.stamp(10, True)
        for cb in range(2):
            g(f"buffer_store_dwordx4 {v(O+8+4*cb,4)}, {v(VL16)}, {s(R_WS,4)}, {s(S_T0)} offen offset:{(2+cb)*1024} sc1")
        if o.get("sprio", 1): g("s_setprio 0")
        self.stamp(7)
        nl = 0
        G2, DS = 12, 1
        g(f"""s_lshr_b32 {s(S_U0)}, {s(S_WI)}, 1
              s_lshl_b32 {s(S_U1)}, {s(S_RT)}, 1
              s_add_u32 {s(S_U0)}, {s(S_U0)}, {s(S_U1)}
              s_lshl_b32 {s(S_U1)}, {s(S_NT)}, 7
              s_and_b32 {s(S_U2)}, {s(S_WI)}, 1
              s_lshl_b32 {s(S_U2)}, {s(S_U2)}, 6
              s_add_u32 {s(S_U1)}, {s(S_U1)}, {s(S_U2)}
              s_lshl_b32 {s(S_U2)}, {s(S_U0)}, 15
              s_add_u32 {s(S_U2)}, {s(S_U2)}, {s(S_U1)}
              s_lshl_b32 {s(S_U0)}, {s(S_U0)}, 8
              s_add_u32 {s(S_U0)}, {s(S_U0)}, {hex(WS_XS)}
              v_and_b32 {v(T)}, 31, v0
              v_lshl_add_u32 v16, {v(T)}, 3, {s(S_U0)}
              v_lshl_add_u32 {v(T)}, {v(T)}, 1, {s(S_U1)}
              v_lshrrev_b32 {v(T+1)}, 2, v0
              v_and_b32 {v(T+2)}, 3, v0
              v_lshlrev_b32 {v(T+2)}, 4, {v(T+2)}
              v_lshl_or_b32 {v(T+1)}, {v(T+1)}, 10, {v(T+2)}
              v_add_u32 {v(T+2)}, {15*1024}, {v(T+1)}
              s_lshl_b32 {s(S_V1)}, {s(S_WI)}, 11
              s_add_u32 {s(S_V1)}, {s(S_V1)}, {L_TR}
              s_mov_b32 m0, {s(S_V1)}
              global_load_ushort {v(DS)}, {v(T)}, {s(P_DSK,2)}
              buffer_load_dwordx4 {v(T+1)}, {s(R_X,4)}, {s(S_U2)} offen lds
              buffer_load_dwordx4 {v(T+2)}, {s(R_X,4)}, {s(S_U2)} offen offset:1024 lds""")
        xs2 = f"buffer_load_dwordx2 {v(G2,2)}, v16, {s(R_WS,4)}, 0 offen sc1"
        g(xs2)
        assert not sp
        nl = 4
        if not spr:
            g("s_waitcnt vmcnt(8)")
            c_read(3); c_read(4)
            g("s_waitcnt lgkmcnt(0)")
            c_issue(6); c_issue(7); nl += 8
        early = ([] if r0lb else [0]) + [1]
        pre_flag = early if o.get("r1_pre_flag", 1) else []
        for q in pre_flag:
            self.spin_cnt(C_PD + 4*q, VCNT, T)
            for ins in self.w2_coop(VD2, S_T3, S_T1, q): g(ins)
            nl += 6
        if o.get("qdetail"): self.mute = True; self.stamp(8, True)
        self.set_flag(WS_FLAGS, VZ, T, nl)
        if o.get("pdetail"): self.stamp(11, True)
        if o.get("qdetail"): self.stamp(9, True)
        for q in [x for x in early if x not in pre_flag] + [2, 3]:
            self.spin_cnt(C_PD + 4*q, VCNT, T)
            for ins in self.w2_coop(VD2, S_T3, S_T1, q): g(ins)
        self.poll_issue(WS_FLAGS)
        g(f"s_waitcnt vmcnt(12)")
        self.signal_cnt(C_B1, VCNT, VONE)
        for i in (5, 6, 7): c_read(i)
        g.c("---------------- S phase 2 ----------------")
        A2 = 64; AB = 16; VA = 10
        VC2, VO2 = 14, 15
        g.c("residual x + bf16(xn * D) of the own tile")
        self.recheck(xs2, [G2+1], 12)
        XP, MM, RR = A2 + 16, A2 + 32, A2 + 48
        g(f"""v_lshlrev_b32 {v(T+4)}, 16, {v(G2)}
              v_and_b32 {v(T+5)}, 0xffff0000, {v(G2)}
              v_rcp_f32 {v(T+5)}, {v(T+5)}
              v_and_b32 {v(T+2)}, 31, v0
              s_lshl_b32 {s(S_U0)}, {s(S_WI)}, 7
              s_add_u32 {s(S_U0)}, {s(S_U0)}, {L_RS}
              v_lshl_add_u32 {v(T+2)}, {v(T+2)}, 2, {s(S_U0)}
              ds_write2st64_b32 {v(T+2)}, {v(T+4)}, {v(T+5)} offset0:0 offset1:2
              v_lshlrev_b32 {v(T+3)}, 6, {v(SEGV)}
              v_add_u32 {v(T+3)}, {L_RS}, {v(T+3)}
              v_and_b32 {v(T+6)}, 32, v0
              v_lshlrev_b32 {v(T+6)}, 5, {v(T+6)}
              v_bfe_u32 {v(T+7)}, v0, 2, 2
              v_lshl_add_u32 {v(T+6)}, {v(T+7)}, 6, {v(T+6)}
              v_and_b32 {v(T+7)}, 16, v0
              v_lshl_add_u32 {v(T+6)}, {v(T+7)}, 1, {v(T+6)}
              v_and_b32 {v(T+7)}, 3, v0
              v_lshl_add_u32 {v(T+6)}, {v(T+7)}, 3, {v(T+6)}
              v_add_u32 {v(T+6)}, {s(S_V1)}, {v(T+6)}
              s_waitcnt lgkmcnt(3)""")
        for u in range(4): g(f"ds_read_b64_tr_b16 {v(XP+2*u,2)}, {v(T+6)} offset:{256*u}")
        for k in range(4): g(f"ds_read_b128 {v(MM+4*k,4)}, {v(T+3)} offset:{16*k}")
        for k in range(4): g(f"ds_read_b128 {v(RR+4*k,4)}, {v(T+3)} offset:{512+16*k}")
        self.a_setup(VA, 0, 16, 12)
        g(f"""v_mov_b32 {v(VC2)}, {v(VCNT)}
              v_mov_b32 {v(VO2)}, 1
              v_lshlrev_b32 {v(DS)}, 16, {v(DS)}
              s_mov_b32 {s(S_V0)}, 0xffff0000""")
        def residual():
            for i in range(8):
                x = A2 + 2*i; m = MM + 2*i; r = RR + 2*i
                g(f"""v_lshlrev_b32 {v(x)}, 16, {v(XP+i)}
                  v_and_b32 {v(x+1)}, {s(S_V0)}, {v(XP+i)}
                  v_sub_f32 {v(m)}, {v(x)}, {v(m)}
                  v_sub_f32 {v(m+1)}, {v(x+1)}, {v(m+1)}
                  v_cvt_pk_bf16_f32 {v(m+1)}, {v(m)}, {v(m+1)}
                  v_lshlrev_b32 {v(m)}, 16, {v(m+1)}
                  v_and_b32 {v(m+1)}, {s(S_V0)}, {v(m+1)}
                  v_mul_f32 {v(m)}, {v(m)}, {v(r)}
                  v_mul_f32 {v(m+1)}, {v(m+1)}, {v(r+1)}
                  v_cvt_pk_bf16_f32 {v(m+1)}, {v(m)}, {v(m+1)}
                  v_lshlrev_b32 {v(m)}, 16, {v(m+1)}
                  v_and_b32 {v(m+1)}, {s(S_V0)}, {v(m+1)}
                  v_mul_f32 {v(m)}, {v(m)}, {v(DS)}
                  v_mul_f32 {v(m+1)}, {v(m+1)}, {v(DS)}
                  v_cvt_pk_bf16_f32 {v(m+1)}, {v(m)}, {v(m+1)}
                  v_lshlrev_b32 {v(m)}, 16, {v(m+1)}
                  v_and_b32 {v(m+1)}, {s(S_V0)}, {v(m+1)}
                  v_add_f32 {v(x)}, {v(x)}, {v(m)}
                  v_add_f32 {v(x+1)}, {v(x+1)}, {v(m+1)}""")

        self.stamp(8)
        self.poll_finish()
        self.stamp(9)
        g(f"s_setprio {o.get('sprio2', 2)}")
        def soff(ks): g(f"s_add_u32 {s(S_U0)}, {s(S_XO)}, {ks*1024}")
        def pre(ks):
            if ks == 0:
                g("s_waitcnt vmcnt(12)")
                self.signal_cnt(C_B1 + 4, VC2, VO2)
                residual()
                g("s_nop 1")
        self.p2_loop(16, VA, AB, A2, lambda ks: BR + 8*ks, pre, lambda ks: None, soff, True)
        self.stamp(10)
        g.c("S: dump partials, pre-reduce")
        T = 2
        g(f"v_lshl_add_u32 {v(T+3)}, v0, 4, {s(S_T2)}")
        for sl in range(1, 4):
            for q in range(4):
                g(f"ds_write_b128 {v(T+3)}, {v(A2+16*sl+4*q,4)} offset:{(sl-1)*4096+q*1024}")
        self.signal_cnt(C_SD, VC2, VO2)
        self.spin_cnt(C_SD, VC2, T)
        self.gather3(0, 12288, AB, T)
        g(f"""s_xor_b32 {s(S_U0)}, {s(S_WI)}, 1
              s_mul_i32 {s(S_U0)}, {s(S_U0)}, 12288
              v_lshl_add_u32 {v(T+3)}, v0, 4, {s(S_U0)}""")
        for dd in range(3):
            g(f"s_waitcnt lgkmcnt({8-4*dd})")
            for r in range(16): g(f"v_add_f32 {v(A2+r)}, {v(A2+r)}, {v(AB+16*dd+r)}")
        for q in range(4):
            g(f"ds_write_b128 {v(T+3)}, {v(A2+4*q,4)} offset:{q*1024}")
        self.signal_cnt(C_SR, VC2, VO2)
        g("s_setprio 0")
        srd(g, R_OUT, P_OUT, 2048*512*4)
        g(f"v_lshlrev_b32 v9, 4, v0")
        self.out_setup(8, 4, 9)
        self.spin_cnt(C_FM, VC2, T)
        for k, tile in enumerate((0, 1, 2)):
            g(f"ds_read_b128 {v(A2+4*k,4)}, v6 offset:{(tile^1)*12288}")
        for ct in range(2):
            for q in range(4):
                g(f"ds_read_b128 {v(AB+16*ct+4*q,4)}, v6 offset:{q*12288 + 4096 + ct*4096}")
        self.sum_store(A2, AB, 8, 0, 0, 4)
        self.sum_store(A2+4, AB+16, 8, 0, 1, 0)
        g("s_barrier")
        self.final_piece(0, A2+8, AB, 8, 4)
        self.stamp(11)
        self.stamps_out(T, 'S')
        g("L_END:")
        g("s_endpgm")
        g("L_CODE_END:")

    def build(self):
        hdr = open("cdna_kernels/" + NAME + ".s.ref").read().split("\n")
        head = [l for l in hdr if l.startswith(";") and "@launch" not in l]
        self.prologue(); self.fwave(); self.swave()
        if self.o.get("near_start", 1):
            L = self.g.L
            i0 = L.index("L_SWAVE:"); i1 = L.index("    ; @@SREST"); j = L.index("    ; @@SSTART")
            blk = L[i0:i1]
            self.g.L = L[:j] + ["    s_branch L_FCONT"] + blk + ["    s_branch L_SREST", "L_FCONT:"] + L[j+1:i0] + ["L_SREST:"] + L[i1+1:]
        lst = self.o.get("list")
        if lst:
            out = "\n".join(head) + "\n"
            for ch in lst:
                if ch == "m": out += f"; @launch kernel={NAME}_kernel grid=(256,1,1) block=(512,1,1) lds={LDS_BYTES}\n"
                elif ch == "n": out += f"; @launch kernel=null_kernel grid=(1,1,1) block=(64,1,1) lds=0\n"
                elif ch == "a": out += f"; @launch kernel=null_kernel grid=(256,1,1) block=(512,1,1) lds={LDS_BYTES}\n"
                elif ch == "b": out += f"; @launch kernel=null_kernel grid=(256,1,1) block=(256,1,1) lds={LDS_BYTES}\n"
                elif ch == "c": out += f"; @launch kernel=null_kernel grid=(256,1,1) block=(64,1,1) lds=0\n"
        else:
            out = "\n".join(head) + f"\n; @launch grid=(256,1,1) block=(512,1,1) lds={LDS_BYTES}\n"
        out += f""".amdgcn_target "amdgcn-amd-amdhsa--gfx950"
.text
.globl {NAME}_kernel
.p2align 8
.type {NAME}_kernel,@function
{NAME}_kernel:
"""
        out += self.g.text()
        if lst:
            out += """.p2align 8
.globl null_kernel
.type null_kernel,@function
null_kernel:
    s_endpgm
.section .rodata,"a"
.p2align 6
.amdhsa_kernel null_kernel
  .amdhsa_next_free_vgpr 256
  .amdhsa_next_free_sgpr 102
  .amdhsa_accum_offset 256
  .amdhsa_group_segment_fixed_size 0
  .amdhsa_kernarg_size 120
  .amdhsa_user_sgpr_count 2
  .amdhsa_user_sgpr_kernarg_segment_ptr 1
  .amdhsa_system_sgpr_workgroup_id_x 1
.end_amdhsa_kernel
"""
        out += f""".section .rodata,"a"
.p2align 6
.amdhsa_kernel {NAME}_kernel
  .amdhsa_next_free_vgpr 256
  .amdhsa_next_free_sgpr 102
  .amdhsa_accum_offset 256
  .amdhsa_group_segment_fixed_size 0
  .amdhsa_kernarg_size 120
  .amdhsa_user_sgpr_count 2
  .amdhsa_user_sgpr_kernarg_segment_ptr 1
  .amdhsa_system_sgpr_workgroup_id_x 1
.end_amdhsa_kernel
"""
        return out

if __name__ == "__main__":
    path = sys.argv[1]
    opt = json.loads(sys.argv[2]) if len(sys.argv) > 2 else {}
    open(path, "w").write(Gen(opt).build())
```
